```python
import torch

def _softmax(x, axis=-1):
    return torch.softmax(x, dim=axis)
def _gelu(x):
    return torch.nn.functional.gelu(x, approximate="tanh")
def _silu(x):
    return torch.nn.functional.silu(x)
def _sigmoid(x):
    return torch.sigmoid(x)
def _layernorm(x, axis=-1, eps=1e-5):
    m = x.mean(dim=axis, keepdim=True)
    v = x.var(dim=axis, keepdim=True, unbiased=False)
    return (x - m) / torch.sqrt(v + eps)
def _scatter_add(tgt, idx, src, axis=0):
    return tgt.clone().index_add_(axis, idx, src)
def _segment_sum(src, seg, n):
    out = torch.zeros((n,) + src.shape[1:], dtype=src.dtype)
    return out.index_add_(0, seg, src)
def _pad(x, pw):
    flat = tuple(v for pair in reversed(pw) for v in pair)
    return torch.nn.functional.pad(x, flat)

kernel_name = 'concat_heads__gqa_block_cached__gqa_block_cached__near_ridge'

def setup_inputs():

    _w = (lambda a: (lambda t: t.to(torch.bfloat16) if t.is_floating_point() else t)(torch.as_tensor(a)))
    def _A_setup():
        B, Sq, D = 8, 240, 640
        Hq, Hkv, Sk, Dh = 32, 32, 1024, 192
        assert Hq % Hkv == 0, (Hq, Hkv)
        return {
            "x": _w((lambda *s: torch.randn(*s, dtype=torch.bfloat16) * 0.8)(B, Sq, D)),
            "k_cache": _w((lambda *s: torch.randn(*s, dtype=torch.bfloat16) * 0.8)(B, Hkv, Sk, Dh)),
            "v_cache": _w((lambda *s: torch.randn(*s, dtype=torch.bfloat16) * 0.05)(B, Hkv, Sk, Dh)),
            "wq": _w((lambda *s: torch.randn(*s, dtype=torch.bfloat16) * 0.8)(D, Hq * Dh) * (D ** -0.5)),
            "wo": _w((lambda *s: torch.randn(*s, dtype=torch.bfloat16) * 0.05)(Hq * Dh, D) * ((Hq * Dh) ** -0.5)),
        }
    _A_in = _A_setup()

    def _B_setup():
        B, Sq, D = 8, 240, 640
        Hq, Hkv, Sk, Dh = 32, 32, 1024, 192
        assert Hq % Hkv == 0, (Hq, Hkv)
        return {
            "x": _w((lambda *s: torch.randn(*s, dtype=torch.bfloat16) * 0.8)(B, Sq, D)),
            "k_cache": _w((lambda *s: torch.randn(*s, dtype=torch.bfloat16) * 0.8)(B, Hkv, Sk, Dh)),
            "v_cache": _w((lambda *s: torch.randn(*s, dtype=torch.bfloat16) * 0.05)(B, Hkv, Sk, Dh)),
            "wq": _w((lambda *s: torch.randn(*s, dtype=torch.bfloat16) * 0.8)(D, Hq * Dh) * (D ** -0.5)),
            "wo": _w((lambda *s: torch.randn(*s, dtype=torch.bfloat16) * 0.05)(Hq * Dh, D) * ((Hq * Dh) ** -0.5)),
        }
    _B_in = _B_setup()

    return {
        "A_x": _A_in["x"],
        "A_k_cache": _A_in["k_cache"],
        "A_v_cache": _A_in["v_cache"],
        "A_wq": _A_in["wq"],
        "A_wo": _A_in["wo"],
        "B_x": _B_in["x"],
        "B_k_cache": _B_in["k_cache"],
        "B_v_cache": _B_in["v_cache"],
        "B_wq": _B_in["wq"],
        "B_wo": _B_in["wo"],
    }

def reference(A_x, A_k_cache, A_v_cache, A_wq, A_wo, B_x, B_k_cache, B_v_cache, B_wq, B_wo):
    def _A_ref(x, k_cache, v_cache, wq, wo):
        B, Sq, D = x.shape
        Hq, Dh = 32, 192
        Hkv = k_cache.shape[1]
        rep = Hq // Hkv
        q = (lambda x, *d: x.permute(*d))((x @ wq).reshape(B, Sq, Hq, Dh), 0, 2, 1, 3)
        k = (lambda x, n, axis: torch.repeat_interleave(x, n, dim=axis))(k_cache, rep, axis=1)
        v = (lambda x, n, axis: torch.repeat_interleave(x, n, dim=axis))(v_cache, rep, axis=1)
        scores = torch.einsum("bhqd,bhkd->bhqk", q, k) * (Dh ** -0.5)
        p = _softmax(scores, axis=-1)
        o = torch.einsum("bhqk,bhkd->bhqd", p, v)
        return (lambda x, *d: x.permute(*d))(o, 0, 2, 1, 3).reshape(B, Sq, Hq * Dh) @ wo

    def _B_ref(x, k_cache, v_cache, wq, wo):
        B, Sq, D = x.shape
        Hq, Dh = 32, 192
        Hkv = k_cache.shape[1]
        rep = Hq // Hkv
        q = (lambda x, *d: x.permute(*d))((x @ wq).reshape(B, Sq, Hq, Dh), 0, 2, 1, 3)
        k = (lambda x, n, axis: torch.repeat_interleave(x, n, dim=axis))(k_cache, rep, axis=1)
        v = (lambda x, n, axis: torch.repeat_interleave(x, n, dim=axis))(v_cache, rep, axis=1)
        scores = torch.einsum("bhqd,bhkd->bhqk", q, k) * (Dh ** -0.5)
        p = _softmax(scores, axis=-1)
        o = torch.einsum("bhqk,bhkd->bhqd", p, v)
        return (lambda x, *d: x.permute(*d))(o, 0, 2, 1, 3).reshape(B, Sq, Hq * Dh) @ wo

    a = _A_ref(A_x, A_k_cache, A_v_cache, A_wq, A_wo)
    b = _B_ref(B_x, B_k_cache, B_v_cache, B_wq, B_wo)
    return torch.concatenate([a, b], axis=-1)
```

```python
import re

def R(f, a, n=1):
    return [f"{f}{a+i}" for i in range(n)]

def rt(f, a, n=1):
    return f"{f}{a}" if n == 1 else f"{f}[{a}:{a+n-1}]"

class Reg:
    def __init__(self, f, a, n=1):
        self.f, self.a, self.n = f, a, n
    def __str__(self): return rt(self.f, self.a, self.n)
    def regs(self): return R(self.f, self.a, self.n)
    def sub(self, o, n=1): return Reg(self.f, self.a + o, n)
def V(a, n=1): return Reg('v', a, n)
def A(a, n=1): return Reg('a', a, n)
def S(a, n=1): return Reg('s', a, n)

def regs_of(x):
    if isinstance(x, Reg): return x.regs()
    if isinstance(x, str) and x in ('m0', 'vcc', 'exec', 'scc'): return [x]
    return []

class Ins:
    def __init__(self, text, kind, rd=(), wr=(), **kw):
        self.text, self.kind = text, kind
        self.rd, self.wr = list(rd), list(wr)
        self.trans = kw.get('trans', False)
        self.perm = kw.get('perm', False)
        self.srcC = kw.get('srcC', [])
        self.store = kw.get('store', False)
        self.stdata = kw.get('stdata', [])
        self.dma = kw.get('dma', False)
        self.tag = kw.get('tag')
        self.slot = kw.get('slot')
        self.private = kw.get('private', False)
        self.need_vm = kw.get('need_vm')
        self.need_lgkm0 = kw.get('lgkm0', False)
        self.lgkm = None
        self.vm = None
        self.free = kw.get('free', True)
        self.states = kw.get('states', 1)
        self.lgkm_cnt = kw.get('lgkm_cnt', kind == 'D')
    def emit(self):
        if self.kind == 'W':
            p = []
            if self.vm is not None: p.append(f"vmcnt({self.vm})")
            if self.lgkm is not None: p.append(f"lgkmcnt({self.lgkm})")
            if not p: return None
            return "s_waitcnt " + " ".join(p)
        return self.text

def mfma(D, Aop, Bop, C):
    c = str(C) if isinstance(C, Reg) else "0"
    return Ins(f"v_mfma_f32_16x16x32_bf16 {D}, {Aop}, {Bop}, {c}", 'M',
               rd=Aop.regs() + Bop.regs() + regs_of(C), wr=D.regs(), srcC=regs_of(C))
def valu(op, D, *src, kind='V', **kw):
    rd = []
    for s in src: rd += regs_of(s)
    extra_rd = kw.pop('rd', []); extra_wr = kw.pop('wr', [])
    return Ins(f"{op} {D}, " + ", ".join(str(s) for s in src), kind, rd=rd + extra_rd, wr=regs_of(D) + extra_wr, **kw)
def vexp(D, s): return valu("v_exp_f32", D, s, kind='E', trans=True)
def vrcp(D, s): return valu("v_rcp_f32", D, s, kind='E', trans=True)
def vperm(which, a, b):
    return Ins(f"v_permlane{which}_swap_b32 {a}, {b}", 'E', rd=a.regs() + b.regs(), wr=a.regs() + b.regs(), perm=True)
def salu(op, D, *src, scc=True, **kw):
    rd = []
    for s in src: rd += regs_of(s)
    return Ins(f"{op} {D}, " + ", ".join(str(s) for s in src), 'S', rd=rd + kw.pop('rd', []),
               wr=regs_of(D) + (['scc'] if scc else []), **kw)
def smov(D, s): return salu("s_mov_b32", D, s, scc=False)
def scmp(op, a, b):
    return Ins(f"{op} {a}, {b}", 'S', rd=regs_of(a) + regs_of(b), wr=['scc'])
def nop(n=0): return Ins(f"s_nop {n}", 'S', states=n + 1)
def raw(text, kind='S', rd=(), wr=(), **kw): return Ins(text, kind, rd, wr, **kw)
def label(name): return Ins(name + ":", 'L', states=0)
def dsread(op, D, addr, off, tag=None, private=False):
    o = f" offset:{off}" if off else ""
    return Ins(f"{op} {D}, {addr}{o}", 'D', rd=addr.regs(), wr=D.regs(), tag=tag, private=private)
def dswrite(op, addr, data, off):
    o = f" offset:{off}" if off else ""
    return Ins(f"{op} {addr}, {data}{o}", 'D', rd=addr.regs() + data.regs())
def dma(addr, srd, soff, off, flags="", tag=None, slot=None, private=False):
    o = f" offset:{off}" if off else ""
    fl = f" {flags}" if flags else ""
    return Ins(f"buffer_load_dwordx4 {addr}, {srd}, {soff} offen{o}{fl} lds", 'X',
               rd=addr.regs() + srd.regs() + regs_of(soff) + ['m0'], dma=True, tag=tag, slot=slot, private=private)
def gload(D, addr, srd, soff, off, flags="", op="buffer_load_dwordx4"):
    o = f" offset:{off}" if off else ""
    fl = f" {flags}" if flags else ""
    return Ins(f"{op} {D}, {addr}, {srd}, {soff} offen{o}{fl}", 'X',
               rd=addr.regs() + srd.regs() + regs_of(soff), wr=D.regs())
def gstore(data, addr, srd, soff, off, flags="", op=None):
    op = op or {1: "buffer_store_dword", 2: "buffer_store_dwordx2", 4: "buffer_store_dwordx4"}[data.n]
    o = f" offset:{off}" if off else ""
    fl = f" {flags}" if flags else ""
    return Ins(f"{op} {data}, {addr}, {srd}, {soff} offen{o}{fl}", 'X',
               rd=addr.regs() + srd.regs() + regs_of(soff) + data.regs(), store=True, stdata=data.regs())
def wait(need_vm=None, lgkm0=False, free=True): return Ins("", 'W', need_vm=need_vm, lgkm0=lgkm0, free=free)
def barrier(): return Ins("s_barrier", 'B')

COST = {'S': 1, 'W': 1, 'B': 1, 'V': 1, 'E': 2, 'D': 2, 'X': 3, 'L': 0}

class Sched:
    def __init__(self, mf):
        self.mf = mf
        self.g = [[] for _ in mf]
        self.pre = []
    def _slots(self, items):
        items = self.order(items)
        t = 1
        prev = None
        for it in items:
            k = it.kind
            if k in 'VE' and t < 2: t = 2
            if k in 'DX' and prev in ('V', 'E'): t += 1
            t += COST[k]
            prev = k
        return t
    @staticmethod
    def order(items):
        return items
    def fits(self, i, ins, front=False):
        items = ([ins] + self.g[i]) if front else (self.g[i] + [ins])
        return self._slots(items) <= 4
    def put(self, i, ins, front=False):
        if front: self.g[i].insert(0, ins)
        else: self.g[i].append(ins)
    def place(self, ins, lo, hi, force=True):
        hi = min(hi, len(self.g) - 1)
        assert lo <= hi, (ins.text, lo, hi)
        for i in range(lo, hi + 1):
            cand = self._insert(self.g[i], ins)
            if self._slots(cand) <= 4:
                self.g[i] = cand
                return i
        if not force: return None
        best = min(range(lo, hi + 1), key=lambda i: self._slots(self._insert(self.g[i], ins)))
        self.g[best] = self._insert(self.g[best], ins)
        return best
    @staticmethod
    def _insert(items, ins):
        if ins.kind in 'VE': return items + [ins]
        k = 0
        while k < len(items) and items[k].kind not in 'VE': k += 1
        return items[:k] + [ins] + items[k:]
    def add_wait_sites(self):
        for i in range(len(self.g)):
            if any(it.kind == 'W' for it in self.g[i]): continue
            w = wait()
            cand = self._insert(self.g[i], w)
            if self._slots(cand) <= max(4, self._slots(self.g[i])):
                self.g[i] = cand
    def linear(self):
        out = list(self.pre)
        for m, g in zip(self.mf, self.g):
            out.append(m); out += g
        return out
    def cycles(self):
        return sum(4 * max(4, self._slots([x for x in g if not (x.kind == 'W' and x.emit() is None)])) for g in self.g)

def derive_waits(trace, name="", verbose=False):
    changed = True
    npass = 0
    mind = {}
    while changed:
        changed = False
        npass += 1
        assert npass < 50
        pend = {}
        nl = nv = 0
        donel = donev = 0
        sites = []
        vmtags = {}
        lissue = {}; vissue = {}
        mcount = 0
        for pos, (ins, ctx) in enumerate(trace):
            if ins.kind == 'W':
                if ins.need_vm is not None:
                    need = ins.need_vm(ctx)
                    if need == 'all': idx = nv
                    else: idx = max([vmtags.get(t, 0) for t in need] + [0])
                    if idx > donev:
                        n = min(63, nv - idx)
                        if ins.vm is None or n < ins.vm: ins.vm = n; changed = True
                if ins.need_lgkm0 and ins.lgkm != 0:
                    ins.lgkm = 0; changed = True
                if ins.lgkm is not None and nl - ins.lgkm > donel:
                    d = mcount - lissue[nl - ins.lgkm]
                    mind[id(ins)] = min(mind.get(id(ins), (1 << 30, None))[0], d), pos
                    donel = nl - ins.lgkm
                if ins.vm is not None: donev = max(donev, nv - ins.vm)
                sites.append((ins, nl, nv))
                continue
            for r in ins.rd + ins.wr:
                if r in pend:
                    c, idx = pend[r]
                    if c == 'l' and idx > donel:
                        ok = False
                        for (w, snl, snv) in reversed(sites):
                            if snl < idx: break
                            if not w.free: continue
                            n = min(15, snl - idx)
                            if w.lgkm is None or n < w.lgkm: w.lgkm = n; changed = True
                            donel = max(donel, snl - w.lgkm); ok = True
                            break
                        assert ok, f"{name}: no lgkm wait site for {ins.text} (reg {r}) ctx {ctx}"
                    if c == 'v' and idx > donev:
                        ok = False
                        for (w, snl, snv) in reversed(sites):
                            if snv < idx: break
                            if not w.free: continue
                            n = min(63, snv - idx)
                            if w.vm is None or n < w.vm: w.vm = n; changed = True
                            donev = max(donev, snv - w.vm); ok = True
                            break
                        assert ok, f"{name}: no vm wait site for {ins.text} (reg {r}) ctx {ctx}"
                    del pend[r]
            if ins.kind == 'M': mcount += 1
            if ins.lgkm_cnt:
                nl += 1; lissue[nl] = mcount
                for r in ins.wr: pend[r] = ('l', nl)
            if ins.kind == 'X':
                nv += 1; vissue[nv] = mcount
                for r in ins.wr: pend[r] = ('v', nv)
                if ins.dma and ins.tag: vmtags[ins.tag(ctx)] = nv
        if changed: mind = {}
    if verbose:
        short = sorted((d, p) for d, p in mind.values())[:12]
        print(f"[{name}] shortest ds->wait distances (mfma count, pos):", short)

def live(trace):
    return [(i, c) for (i, c) in trace if not (i.kind == 'W' and i.emit() is None) and i.kind != 'L']

def check_hazards(trace, name=""):
    tr = live(trace)
    errs = []
    n = len(tr)
    def look(i, need, pred, what):
        st = 0
        j = i + 1
        while j < n and st < need:
            c = tr[j][0]
            if pred(c):
                errs.append(f"{what}: [{tr[i][0].text}] -> [{c.emit()}] states {st} < {need} ctx {tr[i][1]}")
            st += c.states
            j += 1
    for i, (p, ctx) in enumerate(tr):
        W = set(p.wr)
        if p.kind == 'M':
            def cons8(c):
                if c.kind == 'M':
                    ab = set(c.rd) - set(c.srcC)
                    return bool(ab & W)
                if c.kind in 'VEDX': return bool((set(c.rd) | set(c.wr)) & W)
                return False
            look(i, 8, cons8, "mfmaD->use")
            look(i, 6, lambda c: c.kind == 'M' and bool(set(c.srcC) & W) and c.srcC != p.wr, "mfmaD->partialC")
            look(i, 6, lambda c: c.kind == 'M' and bool(set(c.wr) & W) and c.srcC != p.wr, "mfmaD->WAW")
            C = set(p.srcC)
            look(i, 3, lambda c: c.kind in 'VE' and bool(set(c.wr) & C), "mfmaC WAR")
        if p.kind in 'VE':
            vw = {r for r in W if r[0] in 'va' and r != 'vcc'}
            sw = W - vw
            look(i, 2, lambda c: c.kind == 'M' and bool(set(c.rd) & vw), "valu->mfma")
            look(i, 2, lambda c: c.perm and bool(set(c.rd) & vw), "valu->permlane")
            look(i, 1, lambda c: 'readfirstlane' in c.text and bool(set(c.rd) & vw), "valu->readlane")
            if p.trans:
                look(i, 1, lambda c: c.kind in 'VE' and not c.trans and bool(set(c.rd) & vw), "trans->valu")
            if sw:
                look(i, 5, lambda c: c.kind == 'X' and bool(set(c.rd) & sw), "valu sgpr->vmem")
                look(i, 2, lambda c: c.kind in 'VE' and bool(set(c.rd) & sw), "valu sgpr->valu")
                look(i, 4, lambda c: c.kind == 'S' and bool(set(c.rd) & sw), "valu sgpr->salu(pad)")
        if p.kind == 'S' and 'm0' in W:
            look(i, 1, lambda c: c.dma, "m0->dma")
        if p.store and len(p.stdata) > 2:
            D = set(p.stdata)
            look(i, 2, lambda c: c.kind in 'VE' and bool(set(c.wr) & D), "store data WAR")
    seen = set()
    for e in errs:
        k = e.split(" ctx")[0]
        if k not in seen:
            seen.add(k); print(f"HAZARD[{name}]", e)
    return not errs

def lds_events(trace):
    ep = 0
    nl = nv = 0
    dmas = []
    reads = []
    pl = pv = 0
    for pos, (ins, ctx) in enumerate(trace):
        if ins.kind == 'B': ep += 1
        if ins.kind == 'W':
            if ins.lgkm is not None:
                while pl < len(reads) and reads[pl][1] <= nl - ins.lgkm:
                    reads[pl][3] = ep; reads[pl][6] = pos; pl += 1
            if ins.vm is not None:
                while pv < len(dmas) and dmas[pv][2] <= nv - ins.vm:
                    dmas[pv][4] = ep; dmas[pv][7] = pos; pv += 1
        if ins.lgkm_cnt:
            nl += 1
            if ins.tag: reads.append([ins.tag(ctx), nl, ep, None, ins.private, pos, None])
        if ins.kind == 'X':
            nv += 1
            if ins.dma and ins.tag: dmas.append([ins.tag(ctx), ins.slot(ctx), nv, ep, None, ins.private, pos, None])
    return dmas, reads, ep

def check_lds(traces, name=""):
    ev = {k: lds_events(t) for k, t in traces.items()}
    eps = {k: e[2] for k, e in ev.items()}
    ok = True
    if len(set(eps.values())) != 1:
        print("LDS: barrier counts differ", eps); ok = False
    INF = 1 << 30
    done = {}; written = set()
    for k, (dm, rd, _) in ev.items():
        for d in dm:
            written.add(d[0])
            if not d[5]: done[d[0]] = max(done.get(d[0], -1), INF if d[4] is None else d[4])
    for k, (dm, rd, _) in ev.items():
        pdone = {}
        for d in dm:
            if d[5]: pdone[d[0]] = max(pdone.get(d[0], -1), INF if d[7] is None else d[7])
        for r in rd:
            if r[0] not in written: print("LDS: read of never written tile", r[0], k); ok = False; continue
            if r[4]:
                if not pdone.get(r[0], INF) < r[5]: print("LDS RAW(private)", k, r[0]); ok = False
            elif not done[r[0]] < r[2]:
                print("LDS RAW", k, r[0], "dma done epoch", done[r[0]], "read epoch", r[2]); ok = False
    rdone = {}
    for k, (dm, rd, _) in ev.items():
        for r in rd:
            rdone.setdefault(r[0], {})
            e = rdone[r[0]].get(k, (-1, -1))
            rdone[r[0]][k] = (max(e[0], INF if r[3] is None else r[3]), max(e[1], INF if r[6] is None else r[6]))
    occ = {}
    first = {}
    for k, (dm, rd, _) in ev.items():
        for d in dm:
            key = (d[1], d[0])
            first[key] = min(first.get(key, (INF, INF)), (d[3], d[6]))
    for (slot, tile), e in sorted(first.items(), key=lambda x: x[1]):
        occ.setdefault(slot, []).append(tile)
    priv = {}
    for k, (dm, rd, _) in ev.items():
        for d in dm: priv[d[0]] = d[5]
    for k, (dm, rd, _) in ev.items():
        for d in dm:
            lst = occ[d[1]]
            i = lst.index(d[0])
            if i == 0: continue
            prev = lst[i - 1]
            for k2, (e, p) in rdone.get(prev, {}).items():
                if d[5] and priv[prev]:
                    if k2 == k and not p < d[6]: print("LDS WAR(private)", k, d[0], "over", prev); ok = False
                else:
                    if priv[prev] and not any(x[0] == prev and x[1] == d[1] for x in ev[k2][0]): continue
                    if not e < d[3]:
                        print("LDS WAR", k, d[0], "issue epoch", d[3], "over", prev, "read done epoch", e, k2); ok = False
    return ok

SEQS = []
def check_seqs(code):
    pos = {id(i): k for k, i in enumerate(code)}
    ok = True
    for seq in SEQS:
        p = [pos[id(i)] for i in seq if id(i) in pos]
        if p != sorted(p):
            print("SEQ ORDER broken:", [i.text for i in seq][:6], p); ok = False
    return ok

def sim_scalar(trace, init, name=""):
    st = dict(init)
    ok = True
    def val(x):
        x = x.strip()
        if x in st: return st[x]
        if re.fullmatch(r"-?\d+|0x[0-9a-f]+", x): return int(x, 0)
        return None
    nerr = 0
    for ins, ctx in trace:
        ex = getattr(ins, 'expect', None)
        if ex is not None:
            msg = ex(ctx, st)
            if msg:
                ok = False; nerr += 1
                if nerr < 10: print(f"SIM[{name}] {ins.text}: {msg} ctx {ctx}")
        m = re.match(r"(s_add_u32|s_sub_u32|s_mov_b32|v_add_u32) (\S+), (\S+?)(?:, (\S+))?$", ins.text)
        if m and not getattr(ins, 'nosim', False):
            op, d, a, b = m.groups()
            va = val(a); vb = val(b) if b else None
            if op == 's_mov_b32': r = va
            elif va is None or vb is None: r = None
            elif op == 's_sub_u32': r = (va - vb) & 0xffffffff
            else: r = (va + vb) & 0xffffffff
            if r is None: st.pop(d, None)
            else: st[d] = r
    return ok

def emit(instrs):
    out = []
    for i in instrs:
        t = i.emit()
        if t is not None: out.append(t)
    return out
```

```python
import math, struct
from asmlib import *

SL = 24832
KS = [0, SL, 2 * SL]
VS = [3 * SL, 4 * SL, 5 * SL]
EB = 6 * SL
FLAG = EB + 12288
LDS_BYTES = 163840

sX, sW, sK, sV, sO = S(4, 4), S(8, 4), S(12, 4), S(16, 4), S(20, 4)
sWave = S(24)
kR, kN, kF = S(25), S(26), S(27)
vR, vN, vF = S(28), S(29), S(30)
sKoff, sVoff, sWoff, sXoff = S(31), S(32), S(33), S(34)
sLoop, sHead = S(35), S(36)
sThr = S(37)
sC2 = S(38, 2)
sGrp = S(40)
sT0, sT1, sT2, sT3 = S(41), S(42), S(43), S(47)
sXl = [S(44), S(45)]
sOoff = S(46)
sWcur, sVcur = S(48), S(49)
sTo = S(50)
sTx = S(51)
sBad = S(52, 2)
sTs = S(56, 2)
sDbg = S(60, 4)

def blk(q, s): return q * 6 + s
def Qf(q, s): return V(8 * blk(q, s), 4)
def QACC(T, q): return V(8 * blk(q, T >> 1) + 4 * (T & 1), 4)
def U(i): return V(8 * i + 4, 4)
def Pf(par, q, u): return U(par * 8 + q * 2 + u)
def Sf(i): return U(16 + (i & 3))
def Ci(q): return U(20 + q)
def VB(b, u, e=None):
    return V(192 + 8 * b + 4 * u, 4) if e is None else V(192 + 8 * b + 4 * u + 2 * e, 2)
TMP = [V(216, 8), V(224, 8)]
def Lq(q): return V(232 + q)
kaddr = [V(236), V(237)]
vaddr = [V(238), V(239), V(240), V(241)]
waddr = [V(242), V(243)]
xaddr = [V(244), V(245)]
dKV = [V(246), V(247), V(248)]
dW = [V(249), V(250), V(251)]
dX = V(252)
vL16 = V(253)
vt0, vt1 = V(254), V(255)
def Oacc(T, q): return A(4 * (T * 4 + q), 4)
def Kf(b, s): return A(192 + 24 * b + 4 * s, 4)
def Xf(par, q, u): return A(192 + 32 * par + 8 * q + 4 * u, 4)

def fbits(x): return "0x%08x" % struct.unpack("<I", struct.pack("<f", x))[0]

class Cfg:
    wshift = 8
    kvflags = "nt"
    wflags = ""
    xflags = ""
    oflags = ""
    stamps = False

def tagK(dn): return lambda c: ('K', c['h'], c['t'] + dn)
def tagV(dn): return lambda c: ('V', c['h'], c['t'] + dn)
def absT(kind, dh, n): return lambda c: (kind, c['h'] + dh, n)
def slot_of(tile, nq):
    k, h, n = tile
    if k == 'K': return ('k', n % 3)
    if k == 'x': return ('k', 1 + n % 2) if nq == 4 else ('e', n % 2)
    if k == 'W': return ('v', (h * 26 + n) % 3)
    if k == 'V': return ('v', (h * 26 + 10 + n) % 3)

def slot_base(slot):
    return {'k': KS, 'v': VS, 'e': [EB, EB + 6144]}[slot[0]][slot[1]]
def exp_dma(ins, tag, nq, soff, imm, idx, cfg):
    def f(c, st):
        k, h, n = tag(c); w = st['wave']; base = slot_base(slot_of((k, h, n), nq)); hh = st['h0'] + 16 * h
        if k == 'x':
            el = base + (w * 8192 if nq == 4 else 0) + idx * 1024
            eg = w * 64 * 1280 + 128 * n + idx * 10240
        else:
            i = idx + (3 * w if nq == 4 else 0); mm = i // 3
            el = base + i * 1024
            if k == 'W':
                el += cfg.wshift if mm >= 4 else 0
                eg = hh * 384 + (64 * n + 32 * ((mm & 3) >> 1) + 4 * (mm & 1) + 8 * (mm >> 2)) * 12288 + (i % 3) * 1024
            else: eg = hh * 393216 + n * 24576 + i * 1024
        gl, gg = st.get('m0'), st.get(str(soff))
        if gl is None or gg is None or gl + imm != el or gg + imm != eg: return f"lds {gl}+{imm} vs {el}; glob {gg}+{imm} vs {eg} tile {(k, h, n)}"
    ins.expect = f
    return ins
def exp_rd(ins, addr, tag):
    def f(c, st):
        base = slot_base(slot_of(tag(c), 4))
        if st.get(str(addr)) != base: return f"base {st.get(str(addr))} vs {base} tile {tag(c)}"
    ins.expect = f
    return ins

def job_tile(nq, kind, slotreg, tag, cfg):
    srd, off, addr, fl = {'K': (sK, sKoff, dKV, cfg.kvflags), 'V': (sV, sVoff, dKV, cfg.kvflags),
                          'W': (sW, sWoff, dW, cfg.wflags)}[kind]
    sl = lambda c: slot_of(tag(c), nq)
    out = []
    if nq == 4:
        out.append(salu("s_add_u32", 'm0', slotreg, sGrp))
        for m in range(3): out.append(exp_dma(dma(addr[m], srd, off, 1024 * m, fl, tag=tag, slot=sl), tag, nq, off, 1024 * m, m, cfg))
    else:
        for mm in range(3, 8):
            if kind == 'W':
                k0 = 32 * ((mm & 3) >> 1) + 4 * (mm & 1) + 8 * (mm >> 2)
                go = k0 * 12288; lo = mm * 3072 + (cfg.wshift if mm >= 4 else 0)
            else:
                go = lo = mm * 3072
            out.append(salu("s_add_u32", 'm0', slotreg, lo))
            out.append(salu("s_add_u32", sT0, off, go))
            for m in range(3): out.append(exp_dma(dma(addr[m], srd, sT0, 1024 * m, fl, tag=tag, slot=sl), tag, nq, sT0, 1024 * m, 3 * mm + m, cfg))
    out.append(salu("s_add_u32", off, off, 786432 if kind == 'W' else 24576))
    return out

def job_x(nq, n, dh, cfg, dep=()):
    tag = absT('x', dh, n); sl = lambda c: slot_of(tag(c), nq)
    out = []
    for i in range(2 * nq):
        if i % 4 == 0: out.append(salu("s_add_u32", 'm0', sXl[n & 1], 1024 * i))
        out.append(salu("s_add_u32", sTx, sXoff, 128 * n + 10240 * i - 1024 * (i % 4)))
        d = dma(dX, sX, sTx, 1024 * (i % 4), cfg.xflags, tag=tag, slot=sl, private=True)
        exp_dma(d, tag, nq, sTx, 1024 * (i % 4), i, cfg)
        if i == 0: d.rd += list(dep)
        out.append(d)
    return out

def seq_after(sc, seq, lo, hi, even=False):
    seq = list(seq)
    SEQS.append(seq)
    hi = min(hi, len(sc.g) - 1)
    n = len(seq)
    nx = sum(1 for i in seq if i.kind == 'X'); kx = 0
    g = lo; prev = None; pg = None
    for k, ins in enumerate(seq):
        dl = max(g, min(hi, lo + ((k + 1) * (hi - lo + 1) + n - 1) // n - 1))
        if not even: dl = max(g, min(hi, hi - (n - 1 - k) // 2))
        g1 = g
        if even and ins.kind == 'X': g1 = max(g, min(dl, lo + (kx * (hi - lo + 1)) // nx))
        same_bad = prev is not None and ((prev.kind in 'VE' and ins.kind not in 'VE') or ('m0' in prev.wr and ins.dma))
        if same_bad and g1 == pg:
            if g1 + 1 <= hi: g1 += 1; dl = max(dl, g1)
            else:
                if 'm0' in prev.wr: sc.g[g1].append(nop(0))
                sc.g[g1].append(ins); prev = ins; pg = g1
                for rest in seq[k + 1:]:
                    if 'm0' in prev.wr and rest.dma: sc.g[g1].append(nop(0))
                    sc.g[g1].append(rest); prev = rest
                return g1
        r = sc.place(ins, g1, dl, force=True)
        if ins.kind == 'X': kx += 1
        g = r; pg = r; prev = ins
    return g

def place_even(sc, seq, lo, hi): return seq_after(sc, seq, lo, hi, even=True)

def rdK(j, s, tag): return exp_rd(dsread("ds_read_b128", Kf(j & 1, s), kaddr[s & 1], (j & 3) * 6144 + (s >> 1) * 128, tag), kaddr[s & 1], tag)
def rdV(T, u, e, tag):
    T %= 12
    return exp_rd(dsread("ds_read_b64_tr_b16", VB(T & 3, u, e), vaddr[T & 3], (32 * u + 16 * e) * 384 + (T >> 2) * 128, tag), vaddr[T & 3], tag)
def rdW(T, u, e, tag):
    T %= 12
    s, uu = T >> 1, T & 1
    return exp_rd(dsread("ds_read_b64_tr_b16", VB(T % 3, u, e), waddr[s & 1], (2 * u + e) * 3072 + (s >> 1) * 128 + 8 * uu, tag), waddr[s & 1], tag)
def rdX(nq, n, dh, q, u):
    d = SL if nq == 4 else 6144
    return dsread("ds_read_b128", Xf(n & 1, q, u), xaddr[u], (n & 1) * d + q * 2048, absT('x', dh, n), private=True)
UE = [(0, 0), (0, 1), (1, 0), (1, 1)]

def rebase(regs, cur, new):
    return [salu("s_sub_u32", sT1, new, cur), smov(cur, new)] + [valu("v_add_u32", r, sT1, r) for r in regs]
def rotate(r, n, f): return [smov(sT2, r), smov(r, n), smov(n, f), smov(f, sT2)]
def rebaseK():
    return [salu("s_sub_u32", sT3, kN, kR)] + [valu("v_add_u32", r, sT3, r) for r in kaddr]

def softmax_ops(Sx, q, j, par):
    e = [vexp(Sx.sub(r), Sx.sub(r)) for r in range(4)]
    a = [valu("v_add_f32", Lq(q), Lq(q), Sx.sub(r)) for r in range(4)]
    P = Pf(par, q, j >> 1)
    c = [valu("v_cvt_pk_bf16_f32", P.sub(2 * (j & 1) + i), Sx.sub(2 * i), Sx.sub(2 * i + 1)) for i in range(2)]
    return e, a, c

def attn_iter(nq, par, cfg, first_pv=False, jobs=(), next_k=True, k_rot=True):
    NG = 4 * nq
    mf = []
    for G in range(NG):
        j, q = divmod(G, nq)
        for s in range(6):
            mf.append(mfma(Sf(G), Kf(j & 1, s), Qf(q, s), Ci(q) if s == 0 else Sf(G)))
        for n in range(3 * G, 3 * G + 3):
            T, qq = divmod(n, nq)
            for u in range(2):
                mf.append(mfma(Oacc(T, qq), VB(T & 3, u), Pf(par, qq, u), 0 if (first_pv and u == 0) else Oacc(T, qq)))
    sc = Sched(mf)
    def pvpos(n): return 12 * (n // 3) + 6 + 2 * (n % 3)
    sm = []
    for G in range(NG):
        Gp = (G - 1) % NG
        j, q = divmod(Gp, nq)
        e, a, c = softmax_ops(Sf(Gp), q, j, par if G == 0 else par ^ 1)
        for r in range(4): sc.put(12 * G + 2 * r, e[r])
        sm.append((e, a, c))
    GB = 3 * nq
    bw = wait(need_vm=(lambda c: [('K', c['h'], c['t'] + 2), ('V', c['h'], c['t'] + 1)]), lgkm0=True, free=False)
    sc.put(12 * GB, bw, front=True)
    sc.put(12 * GB + 2, barrier(), front=True)
    bar = 12 * GB + 2
    reads = []
    for j in range(4):
        lo = 12 * nq * j
        nxt = (j == 3)
        tv, tk = (tagV(1), tagK(2)) if nxt else (tagV(0), tagK(1))
        for i in range(3):
            T = 3 * j + 3 + i
            l2 = lo if i == 0 else pvpos(nq * (T - 4) + nq - 1) + 1
            l2 = max(l2, lo)
            if nxt: l2 = max(l2, bar + 1)
            item = [(rdV(T, u, e, tv), l2) for (u, e) in UE]
            reads.append((l2, 0, item))
        if not nxt or next_k:
            l2 = max(lo, bar + 1) if nxt else lo
            reads.append((l2, 1, [(rdK(j + 1, s, tk), l2) for s in range(6)]))
    reads.sort(key=lambda x: (x[0], x[1]))
    g = 0
    lastpre = 0
    for _, _, item in reads:
        for ins, l2 in item:
            g = max(g, l2)
            while not (g % 12 in (1, 3, 5, 7, 8, 9) and not sc.g[g]) :
                g += 1
                if nq == 3 and g % 12 in (10, 11) and not sc.g[g]: break
            assert g < len(mf), "ds overflow"
            sc.put(g, ins)
            if g < bar: lastpre = g
    assert lastpre < 12 * GB
    upd = rebase(vaddr, sVcur, vN) + (rebaseK() if k_rot else [])
    for G in range(NG):
        e, a, c = sm[G]
        b = 12 * G
        if nq == 3 and G == 0:
            order = [(a[0], 1), (c[0], 3), (a[1], 5), (c[1], 7), (a[2], 8), (a[3], 9)]
        else:
            order = [(a[0], 1), (a[1], 3), (c[0], 5), (a[2], 7), (a[3], 8), (c[1], 9)]
        for ins, o in order: sc.put(b + o, ins)
    seq_after(sc, upd, lastpre, bar)
    gj = 0
    seq = [i for jb in jobs for i in jb]
    if seq: gj = place_even(sc, seq, 0, 12 * GB - 13)
    rot = rotate(vR, vN, vF) + (rotate(kR, kN, kF) if k_rot else [])
    seq_after(sc, rot, bar + 1, len(mf) - 2)
    return sc

def attn_last(nq, cfg, nxt):
    par = 1
    mf = []
    for T in range(12):
        for q in range(nq):
            for u in range(2): mf.append(mfma(Oacc(T, q), VB(T & 3, u), Pf(par, q, u), Oacc(T, q)))
    sc = Sched(mf)
    sp = 2 * nq
    e, a, c = softmax_ops(Sf(4 * nq - 1), nq - 1, 3, par)
    if nq == 4:
        for r in range(4): sc.put(r, e[r])
        sc.put(4, c[0]); sc.put(4, c[1]); sc.put(5, a[0]); sc.put(5, a[1])
        g0 = 6
    else:
        sc.put(0, e[0]); sc.put(0, e[1]); sc.put(1, e[2]); sc.put(1, e[3])
        sc.put(2, c[0]); sc.put(2, c[1]); sc.put(3, a[0]); sc.put(3, a[1])
        g0 = 4
    g = g0
    for T in range(3, 12):
        g = max(g, sp * (T - 3))
        for (u, ee) in UE:
            sc.put(g, rdV(T, u, ee, tagV(0))); g += 1
        sc.put(g - 1, wait())
    lastv = g - 1
    fin = [a[2], a[3]]
    for q in range(nq):
        t = vt0 if q % 2 == 0 else vt1
        for w in (32, 16):
            fin += [valu("v_mov_b32", t, Lq(q)), None, vperm(w, t, Lq(q)), valu("v_add_f32", Lq(q), Lq(q), t)]
    g = g0
    for ins in fin:
        if ins is None: g += 2; continue
        g = sc.place(ins, g, g + 8)
    for q in range(nq):
        g = sc.place(vrcp(Lq(q), Lq(q)), g + 1, g + 8)
    bar = sp * 10
    if nxt:
        w = wait(need_vm=lambda c: [('x', c['h'] + 1, 0)], free=False)
        gx = sc.place(w, sp * 3, sp * 4)
        dep = []
        for q in range(nq):
            for u in range(2):
                r = rdX(nq, 0, 1, q, u); dep += r.wr
                gx = sc.place(r, gx + 1, gx + 8)
        j1 = job_tile(nq, 'W', vF, absT('W', 1, 1), cfg) + job_tile(nq, 'K', kR, absT('K', 1, 0), cfg)
        ge = place_even(sc, j1, g0, sp * 7)
        ws = wait(); gw = sc.place(ws, max(gx + 4, ge), max(gx + 4, ge) + 4)
        place_even(sc, job_x(nq, 2, 1, cfg, dep), gw + 1, len(mf) - 1)
        bw = wait(need_vm=(lambda c: [('W', c['h'] + 1, 0)]), lgkm0=True, free=False)
        gb = sc.place(bw, bar - 1, bar)
        gb = sc.place(barrier(), gb, bar + 1)
        seq_after(sc, rebase(waddr, sWcur, vN), lastv, gb)
        g = gb
        for T in range(2):
            g = max(g, sp * (10 + T) - 1)
            for (u, ee) in UE: g = sc.place(rdW(T, u, ee, absT('W', 1, 0)), g + 1, min(len(mf) - 1, g + 2))
            sc.place(wait(), g, g)
        seq_after(sc, rotate(vR, vN, vF), gb + 1, len(mf) - 1)
    return sc

def epi_block(q, s, t, cfg, packed=False):
    ops = []
    for i in range(8):
        src = Oacc(2 * s + (i >> 2), q).sub(i & 3)
        ops.append(valu("v_accvgpr_read_b32", t.sub(i), src))
    for i in range(8): ops.append(valu("v_mul_f32", t.sub(i), t.sub(i), Lq(q)))
    for i in range(4): ops.append(valu("v_cvt_pk_bf16_f32", t.sub(i), t.sub(2 * i), t.sub(2 * i + 1)))
    ops.append(salu("s_add_u32", sTo, sOoff, q * 6144 + (4096 if s >= 4 else 0)))
    stv = gstore(t.sub(0, 4), vL16, sO, sTo, (s & 3) * 1024, cfg.oflags)
    def f(c, st):
        h = 0 if c['t'] < 0 else 1
        e = (st['h0'] + 16 * h) * 92160 + (4 * st['wave'] + q) * 6144 + s * 1024
        if st.get(str(sTo)) is None or st[str(sTo)] + (s & 3) * 1024 != e: return f"store off vs {e}"
    stv.expect = f
    ops.append(stv)
    return ops

def qproj(nq, cfg, epi):
    sp = 2 * nq; SN = 12 * sp
    mf = []
    for st in range(10):
        for T in range(12):
            for q in range(nq):
                for u in range(2):
                    mf.append(mfma(QACC(T, q), VB(T % 3, u), Xf(st & 1, q, u), 0 if (st == 0 and u == 0) else QACC(T, q)))
    sc = Sched(mf)
    for st in range(10):
        b = st * SN
        for T in range(10):
            g = b + sp * T
            for (u, e) in UE:
                sc.put(g, rdW(T + 2, u, e, absT('W', 0, st))); g += 1
            sc.put(g - 1, wait())
        lastw = g - 1
        need = [('W', st + 1)] if st < 9 else [('K', 0)]
        bw = wait(need_vm=(lambda c, need=need: [(k, c['h'], n) for k, n in need]), lgkm0=True, free=False)
        gb = b + sp * 10
        sc.put(gb, bw); sc.put(gb, barrier())
        g = gb
        if st < 9:
            seq_after(sc, rebase(waddr, sWcur, vN), lastw, gb)
            for T in range(2):
                g = max(g, b + sp * (10 + T) - 1)
                for (u, e) in UE:
                    g += 1; sc.put(g, rdW(T, u, e, absT('W', 0, st + 1)))
                sc.put(g, wait())
        else:
            seq_after(sc, rebase(vaddr, sVcur, vN), lastw, gb)
            for s in range(6):
                g += 1; sc.put(g, rdK(0, s, absT('K', 0, 0)))
        seq_after(sc, rotate(vR, vN, vF), gb + 1, b + SN - 1)
        dep = []
        gx = b + sp * 4
        if st < 9:
            w = wait(need_vm=(lambda c, st=st: [('x', c['h'], st + 1)]), free=False)
            gx = sc.place(w, gx, gx + sp)
            for q in range(nq):
                for u in range(2):
                    r = rdX(nq, st + 1, 0, q, u); dep += r.wr
                    gx = sc.place(r, gx + 1, gx + sp)
        if st < 8: j1 = job_tile(nq, 'W', vF, absT('W', 0, st + 2), cfg)
        else:
            j1 = job_tile(nq, 'V', vF, absT('V', 0, st - 8), cfg) + job_tile(nq, 'K', kN if st == 8 else kF, absT('K', 0, st - 7), cfg)
        ge = place_even(sc, j1, b, b + (sp * 4 - 1 if st < 7 and nq == 4 else sp * 6 if st < 7 else sp * 9))
        if st + 3 <= 9:
            ws = wait(); gw = sc.place(ws, max(gx + 4, ge), max(gx + 4, ge) + 4)
            place_even(sc, job_x(nq, st + 3, 0, cfg, dep), gw + 1, b + SN - 1)
    if epi:
        nb = 6 * nq
        step = (len(mf) - 60) // nb
        i = 0
        for s in range(6):
            for q in range(nq):
                seq_after(sc, epi_block(q, s, TMP[i & 1], cfg), 10 + i * step, 10 + (i + 1) * step - 1)
                i += 1
        seq_after(sc, [salu("s_add_u32", sOoff, sOoff, 16 * 92160)], len(mf) - 20, len(mf) - 1)
    return sc

def conv_prologue(nq, cfg):
    out = []
    cv = []
    for s in range(6):
        for q in range(nq):
            b = V(8 * blk(q, s), 8)
            for i in range(4): cv.append(valu("v_pk_mul_f32", b.sub(2 * i, 2), b.sub(2 * i, 2), sC2))
            for i in range(4): cv.append(valu("v_cvt_pk_bf16_f32", b.sub(i), b.sub(2 * i), b.sub(2 * i + 1)))
    j = job_tile(nq, 'V', vF, absT('V', 0, 2), cfg)
    k = 0
    for i, ins in enumerate(cv):
        out.append(ins)
        if i % 4 == 3 and k < len(j): out.append(j[k]); k += 1
    out += j[k:]
    for q in range(nq): out.append(valu("v_mov_b32", Lq(q), 0))
    out.append(wait())
    NG = 4 * nq
    mf = []
    for G in range(NG):
        jj, q = divmod(G, nq)
        for s in range(6):
            mf.append(mfma(Sf(G), Kf(jj & 1, s), Qf(q, s), (0 if jj == 0 else Ci(q)) if s == 0 else Sf(G)))
    sc = Sched(mf)
    sc.pre = out
    gb = 6 * nq * 3
    for jj in range(3):
        g = 6 * nq * jj
        for s in range(6):
            sc.put(g, rdK(jj + 1, s, absT('K', 0, 0))); g += 2
    lastk = g - 2
    bw = wait(need_vm=(lambda c: [('K', c['h'], 1), ('V', c['h'], 0)]), lgkm0=True, free=False)
    sc.put(gb - 1, bw); sc.put(gb - 1, barrier())
    seq_after(sc, rebaseK(), lastk + 1, gb - 2)
    g = gb
    post = [rdK(4, s, absT('K', 0, 1)) for s in range(6)]
    for T in range(3): post += [rdV(T, u, e, absT('V', 0, 0)) for (u, e) in UE]
    for ins in post:
        sc.put(g, ins); g += 1
    assert g <= len(mf)
    rot = rotate(kR, kN, kF)
    for i, ins in enumerate(rot): sc.put(gb + i, ins)
    tail = []
    for G in range(NG - 1):
        jj, q = divmod(G, nq)
        Sx = Sf(G)
        ops = []
        if jj == 0:
            t = vt0; m = vt1
            ops += [valu("v_max3_f32", m, Sx.sub(0), Sx.sub(1), Sx.sub(2)), valu("v_max_f32", m, m, Sx.sub(3))]
            for w in (32, 16):
                ops += [valu("v_mov_b32", t, m), nop(1), vperm(w, t, m), valu("v_max_f32", m, m, t)]
            for r in range(4): ops.append(valu("v_sub_f32", Ci(q).sub(r), 0, m))
            for r in range(4): ops.append(valu("v_sub_f32", Sx.sub(r), Sx.sub(r), m))
        e, a, c = softmax_ops(Sx, q, jj, 0)
        ops += [e[0], e[1], a[0], e[2], a[1], e[3], c[0], a[2], a[3], c[1]]
        if G + 2 < NG:
            n = len(ops)
            for i, ins in enumerate(ops): sc.put(6 * (G + 2) + (i * 6) // n, ins)
        else:
            tail += ops
    sc.add_wait_sites()
    for jj in range(1, 4):
        sc.put(6 * nq * jj - 1, wait())
    return sc.linear() + tail + [wait()]

def setup(cfg):
    o = []
    a = lambda t: o.append(raw(t))
    a("s_cmp_ge_u32 s2, 256"); a("s_cbranch_scc1 L_k1_end")
    a("s_load_dwordx8 s[64:71], s[0:1], 0")
    a("s_load_dwordx8 s[72:79], s[0:1], 40")
    a("s_load_dwordx2 s[80:81], s[0:1], 96")
    if cfg.stamps: a("s_memrealtime s[90:91]")
    a("v_lshrrev_b32 v1, 6, v0"); a("v_and_b32 v0, 63, v0")
    a(f"v_readfirstlane_b32 {sWave}, v1")
    a("s_lshr_b32 s82, s2, 3")
    a("s_bfe_u32 s83, s2, 0x10001"); a("s_lshl_b32 s83, s83, 2"); a("s_lshr_b32 s84, s82, 3"); a("s_add_u32 s83, s83, s84")
    a("s_and_b32 s84, s2, 1"); a("s_lshl_b32 s84, s84, 3"); a("s_and_b32 s85, s82, 7"); a("s_add_u32 s84, s84, s85")
    a("s_bfe_u32 s85, s2, 0x10002")
    a("v_and_b32 v1, 15, v0")
    a("v_lshrrev_b32 v2, 4, v0")
    a("v_and_b32 v3, 6, v1")
    a("v_xor_b32 v4, v2, v3")
    a("v_lshlrev_b32 v4, 4, v4")
    a("v_mul_u32_u24 v5, 384, v1")
    a(f"v_add_u32 {kaddr[0]}, v5, v4")
    a(f"v_xor_b32 v6, 64, v4"); a(f"v_add_u32 {kaddr[1]}, v5, v6")
    a("v_lshlrev_b32 v5, 7, v1")
    a(f"v_add_u32 {xaddr[0]}, v5, v4"); a(f"v_add_u32 {xaddr[1]}, v5, v6")
    a("v_lshrrev_b32 v1, 2, v0"); a("v_and_b32 v3, 6, v1")
    a("v_bfe_u32 v4, v0, 1, 1"); a("v_xor_b32 v4, v4, v3"); a("v_lshlrev_b32 v4, 4, v4")
    a("v_and_b32 v5, 1, v0"); a("v_lshlrev_b32 v5, 3, v5")
    a("v_mul_u32_u24 v6, 384, v1"); a("v_add_u32 v5, v5, v6")
    for m in range(4):
        a(f"v_xor_b32 v6, {32 * m}, v4"); a(f"v_add_u32 {vaddr[m]}, v5, v6")
    a("v_and_b32 v3, 1, v2"); a(f"v_mul_u32_u24 v3, {12288 + cfg.wshift}, v3")
    a("v_lshrrev_b32 v4, 1, v2"); a("v_lshlrev_b32 v4, 2, v4"); a("v_bfe_u32 v5, v0, 2, 2"); a("v_add_u32 v4, v4, v5")
    a("v_mul_u32_u24 v4, 384, v4"); a("v_add_u32 v3, v3, v4")
    a("v_bfe_u32 v4, v0, 3, 1"); a("v_lshlrev_b32 v4, 2, v4"); a("v_and_b32 v5, 3, v0"); a("v_xor_b32 v4, v4, v5"); a("v_lshlrev_b32 v4, 4, v4")
    a(f"v_add_u32 {waddr[0]}, v3, v4"); a("v_xor_b32 v4, 64, v4"); a(f"v_add_u32 {waddr[1]}, v3, v4")
    a("v_lshrrev_b32 v1, 3, v0"); a("v_and_b32 v2, 7, v0")
    for m in range(3):
        a(f"v_add_u32 v3, {8 * m}, v1")
        a("v_mul_u32_u24 v4, 43, v3"); a("v_lshrrev_b32 v4, 7, v4")
        a("v_and_b32 v5, 6, v4"); a("v_xor_b32 v5, v5, v2"); a("v_lshlrev_b32 v5, 4, v5")
        a("v_lshlrev_b32 v6, 7, v1"); a(f"v_add_u32 {dKV[m]}, v5, v6")
        a("v_mul_u32_u24 v5, 3, v4"); a("v_sub_u32 v5, v3, v5"); a("v_lshlrev_b32 v5, 7, v5")
        a("v_bfe_u32 v6, v4, 1, 1"); a("v_lshlrev_b32 v6, 2, v6"); a("v_xor_b32 v6, v6, v2"); a("v_lshlrev_b32 v6, 4, v6"); a("v_add_u32 v5, v5, v6")
        a("v_lshrrev_b32 v6, 2, v4"); a("v_lshlrev_b32 v6, 4, v6"); a("v_and_b32 v7, 3, v4"); a("v_add_u32 v6, v6, v7")
        a("v_mul_u32_u24 v6, 12288, v6"); a("v_add_u32 v5, v5, v6")
        a(f"v_subrev_u32 {dW[m]}, {1024 * m}, v5")
    a("v_and_b32 v3, 6, v1"); a("v_xor_b32 v3, v3, v2"); a("v_lshlrev_b32 v3, 4, v3")
    a("v_mul_u32_u24 v4, 1280, v1"); a(f"v_add_u32 {dX}, v3, v4")
    a(f"v_lshlrev_b32 {vL16}, 4, v0")
    a("s_waitcnt lgkmcnt(0)")
    a("s_cmp_eq_u32 s85, 0")
    for i in range(8): a(f"s_cselect_b32 s{64 + i}, s{64 + i}, s{72 + i}")
    a("s_mul_i32 s86, s83, 307200"); a("s_add_u32 s4, s64, s86"); a("s_addc_u32 s5, s65, 0"); a("s_mov_b32 s6, 307200"); a("s_mov_b32 s7, 0x20000")
    a("s_mov_b32 s8, s70"); a("s_mov_b32 s9, s71"); a("s_mov_b32 s10, 7864320"); a("s_mov_b32 s11, 0x20000")
    a("s_mul_i32 s86, s83, 12582912")
    a("s_add_u32 s12, s66, s86"); a("s_addc_u32 s13, s67, 0"); a("s_mov_b32 s14, 12582912"); a("s_mov_b32 s15, 0x20000")
    a("s_add_u32 s16, s68, s86"); a("s_addc_u32 s17, s69, 0"); a("s_mov_b32 s18, 12582912"); a("s_mov_b32 s19, 0x20000")
    a("s_lshl_b32 s86, s85, 3"); a("s_add_u32 s86, s86, s83"); a("s_mul_i32 s86, s86, 2949120")
    a("s_add_u32 s20, s80, s86"); a("s_addc_u32 s21, s81, 0"); a("s_mov_b32 s22, 2949120"); a("s_mov_b32 s23, 0x20000")
    if cfg.stamps:
        a("s_add_u32 s60, s80, 0x4000000"); a("s_addc_u32 s61, s81, 0"); a("s_mov_b32 s62, 0x100000"); a("s_mov_b32 s63, 0x20000")
    a(f"s_mov_b32 {kR}, {KS[0]}"); a(f"s_mov_b32 {kN}, {KS[1]}"); a(f"s_mov_b32 {kF}, {KS[2]}")
    a(f"s_mov_b32 {vR}, {VS[0]}"); a(f"s_mov_b32 {vN}, {VS[1]}"); a(f"s_mov_b32 {vF}, {VS[2]}")
    a(f"s_mov_b32 {sVcur}, 0"); a(f"s_mov_b32 {sWcur}, {VS[0]}")
    for r in waddr: a(f"v_add_u32 {r}, {VS[0]}, {r}")
    c = math.log2(math.e) / math.sqrt(192.0)
    a(f"s_mov_b32 s38, {fbits(c)}"); a(f"s_mov_b32 s39, {fbits(c)}")
    a(f"s_mov_b32 {sHead}, 0")
    a(f"s_mul_i32 {sKoff}, s84, 393216"); a(f"s_mul_i32 {sWoff}, s84, 384")
    a(f"s_mul_i32 {sXoff}, {sWave}, {64 * 1280}")
    a(f"s_mul_i32 {sOoff}, s84, 92160"); a(f"s_mul_i32 s86, {sWave}, {4 * 6144}"); a(f"s_add_u32 {sOoff}, {sOoff}, s86")
    a(f"s_cmp_eq_u32 {sWave}, 3"); a("s_cbranch_scc1 L_k1_v3")
    return o

def setup_variant(nq, cfg):
    o = []
    def a(t):
        i = raw(t); i.nosim = True; o.append(i)
    if nq == 4:
        a(f"s_mul_i32 {sGrp}, {sWave}, 3072"); a(f"s_add_u32 {sKoff}, {sKoff}, {sGrp}")
        a(f"s_and_b32 s86, {sWave}, 1"); a("s_lshl_b32 s86, s86, 2"); a(f"s_lshr_b32 s87, {sWave}, 1"); a("s_lshl_b32 s87, s87, 5")
        a("s_add_u32 s86, s86, s87"); a("s_mul_i32 s86, s86, 12288"); a(f"s_add_u32 {sWoff}, {sWoff}, s86")
        a(f"s_lshl_b32 s86, {sWave}, 13"); a(f"s_add_u32 {sXl[0]}, s86, {KS[1]}"); a(f"s_add_u32 {sXl[1]}, s86, {KS[2]}")
    else:
        a(f"s_mov_b32 {sXl[0]}, {EB}"); a(f"s_mov_b32 {sXl[1]}, {EB + 6144}")
    a(f"s_mov_b32 {sVoff}, {sKoff}")
    for r in xaddr: a(f"v_add_u32 {r}, {sXl[0]}, {r}")
    def spaced(seq):
        for i in seq:
            o.append(i)
            if 'm0' in i.wr: o.append(nop(0))
    spaced(job_x(nq, 0, 0, cfg)); spaced(job_tile(nq, 'W', vR, absT('W', 0, 0), cfg))
    spaced(job_x(nq, 1, 0, cfg)); spaced(job_tile(nq, 'W', vN, absT('W', 0, 1), cfg))
    spaced(job_tile(nq, 'K', kR, absT('K', 0, 0), cfg))
    o.append(wait(need_vm=lambda c: [('x', 0, 0), ('W', 0, 0)], free=False)); o.append(barrier())
    dep = []
    for q in range(nq):
        for u in range(2):
            r = rdX(nq, 0, 0, q, u); dep += r.wr; o.append(r)
    for T in range(2):
        for (u, e) in UE: o.append(rdW(T, u, e, absT('W', 0, 0)))
    o.append(wait())
    spaced(job_x(nq, 2, 0, cfg, dep))
    o.append(wait())
    return o

def stamp(cfg, idx):
    if not cfg.stamps: return []
    return [raw("s_memrealtime s[56:57]"), raw("s_memtime s[58:59]"), raw("s_waitcnt lgkmcnt(0)"),
            raw(f"s_mov_b32 s{64 + 2 * idx}, s56"), raw(f"s_mov_b32 s{65 + 2 * idx}, s58")]

def variant(nq, cfg):
    sfx = f"_{nq}"
    su = setup_variant(nq, cfg) + stamp(cfg, 0)
    q1 = qproj(nq, cfg, False); q1.add_wait_sites()
    q2 = qproj(nq, cfg, True); q2.add_wait_sites()
    cp = conv_prologue(nq, cfg)
    jK = lambda: job_tile(nq, 'K', kF, tagK(3), cfg)
    jV = lambda: job_tile(nq, 'V', vF, tagV(2), cfg)
    i0 = attn_iter(nq, 0, cfg, first_pv=True, jobs=[jK()])
    i1 = attn_iter(nq, 1, cfg, jobs=[jK(), jV()])
    i2 = attn_iter(nq, 0, cfg, jobs=[jK(), jV()])
    fixK = [salu("s_add_u32", sKoff, sKoff, 15 * 393216)]
    fixV = [salu("s_add_u32", sVoff, sVoff, 15 * 393216)]
    fixW = [salu("s_sub_u32", sWoff, sWoff, 10 * 786432 - 16 * 384)]
    a13 = attn_iter(nq, 1, cfg, jobs=[jV(), fixK, fixV, fixW, job_x(nq, 0, 1, cfg)])
    a14 = attn_iter(nq, 0, cfg, jobs=[job_tile(nq, 'W', vF, absT('W', 1, 0), cfg), job_x(nq, 1, 1, cfg)], next_k=False, k_rot=False)
    a15 = attn_last(nq, cfg, True)
    b13 = attn_iter(nq, 1, cfg, jobs=[jV()])
    b14 = attn_iter(nq, 0, cfg, next_k=False, k_rot=False)
    b15 = attn_last(nq, cfg, False)
    i0.place(smov(sLoop, 6), 20, 60)
    i2.place(salu("s_sub_u32", sLoop, sLoop, 1), 20, 60)
    for s in (i0, i1, i2, a13, a14, a15, b13, b14, b15): s.add_wait_sites()
    loopend = [scmp("s_cmp_lg_u32", sLoop, 0), raw(f"s_cbranch_scc1 L_loop{sfx}")]
    headbr = [scmp("s_cmp_lg_u32", sHead, 0), raw(f"s_cbranch_scc1 L_tail2{sfx}")]
    back = [smov(sHead, 1), raw(f"s_branch L_head{sfx}")]
    fin = [nop(7)]
    i = 0
    for s in range(6):
        for q in range(nq):
            fin += epi_block(q, s, TMP[i & 1], cfg); i += 1
    end = []
    if cfg.stamps:
        end += [raw("s_waitcnt vmcnt(0)")] + stamp(cfg, 7)
        end += [raw("s_mov_b32 s80, s90"), raw("s_mov_b32 s81, 0")]
        for i in range(20): end.append(raw(f"v_mov_b32 v{i}, s{64 + i}"))
        end += [raw(f"s_lshl_b32 s86, s2, 2"), raw(f"s_add_u32 s86, s86, {sWave}"), raw("s_lshl_b32 s86, s86, 7"), raw("v_mov_b32 v20, 0"), raw("s_nop 1")]
        for i in range(5): end.append(raw(f"buffer_store_dwordx4 v[{4 * i}:{4 * i + 3}], v20, s[60:63], s86 offen offset:{16 * i}"))
    end.append(raw("s_endpgm"))
    L = lambda s: s.linear()
    st = lambda i: stamp(cfg, i)
    s1, s2, s3, s4, s5, s6 = st(1), [], st(3), st(4), st(5), st(6)
    code = su + L(q1) + s1 + [label(f"L_head{sfx}")] + cp + L(i0) + [raw(".p2align 3", 'L', states=0), label(f"L_loop{sfx}")] + L(i1) + L(i2) + loopend + headbr \
        + L(a13) + L(a14) + L(a15) + s3 + L(q2) + s4 + back + [label(f"L_tail2{sfx}")] + L(b13) + L(b14) + L(b15) + s6 + fin + end
    tr = []
    def add(ins, **c): tr.extend((i, c) for i in ins)
    add(su, h=0, t=-9); add(L(q1) + s1, h=0, t=-5)
    for h in range(2):
        add(cp, h=h, t=-1); add(L(i0), h=h, t=0)
        for t in range(1, 13, 2):
            add(L(i1), h=h, t=t); add(L(i2), h=h, t=t + 1); add(loopend, h=h, t=t + 1)
        add(headbr, h=h, t=12)
        if h == 0:
            add(L(a13), h=0, t=13); add(L(a14), h=0, t=14); add(L(a15) + s3, h=0, t=15); add(L(q2) + s4, h=1, t=-5); add(back, h=1, t=-5)
        else:
            add(L(b13), h=1, t=13); add(L(b14), h=1, t=14); add(L(b15) + s6, h=1, t=15); add(fin + end, h=1, t=16)
    derive_waits(tr, f"k1 nq{nq}", verbose=True)
    ok = check_hazards(tr, f"k1 nq{nq}")
    ok = check_seqs(code) and ok
    for w in ([0, 1, 2] if nq == 4 else [3]):
        h0 = 5
        grp = w * 3072 if nq == 4 else 0
        k0 = [0, 4, 32, 0][w]
        init = {'wave': w, 'h0': h0, str(kR): KS[0], str(kN): KS[1], str(kF): KS[2], str(vR): VS[0], str(vN): VS[1], str(vF): VS[2],
                str(sVcur): 0, str(sWcur): VS[0], str(sKoff): h0 * 393216 + grp, str(sVoff): h0 * 393216 + grp, str(sWoff): h0 * 384 + k0 * 12288,
                str(sXoff): w * 64 * 1280, str(sOoff): h0 * 92160 + w * 4 * 6144, str(sGrp): grp,
                str(sXl[0]): (KS[1] + w * 8192 if nq == 4 else EB), str(sXl[1]): (KS[2] + w * 8192 if nq == 4 else EB + 6144)}
        for r in kaddr + vaddr: init[str(r)] = 0
        for r in waddr: init[str(r)] = VS[0]
        ok = sim_scalar(tr, init, f"nq{nq} w{w}") and ok
    info = {n: s.cycles() for n, s in dict(q1=q1, q2=q2, i0=i0, i1=i1, i2=i2, a13=a13, a14=a14, a15=a15, b15=b15).items()}
    print(f"nq{nq} model cycles:", info)
    return code, tr, ok

def build_k1(cfg, name):
    su = setup(cfg)
    c4, t4, ok4 = variant(4, cfg)
    c3, t3, ok3 = variant(3, cfg)
    okl = check_lds({4: t4, 3: t3})
    assert ok4 and ok3 and okl
    lines = [f".globl {name}", ".p2align 8", f".type {name},@function", f"{name}:"]
    lines += emit(su) + emit(c4) + ["L_k1_end:", "s_endpgm", "L_k1_v3:"] + emit(c3)
    return lines

if __name__ == "__main__":
    l = build_k1(Cfg(), "k1_kernel")
    print(len(l), "lines")
```

```python
from asmlib import *
from k1 import seq_after, place_even, UE

sO, sWo, sOut = S(4, 4), S(8, 4), S(12, 4)
sWave = S(24)
sOb = S(25)
sWb = [S(26), S(27)]
sLb = S(28)
sTo, sTw = S(29), S(30)
sOutb = S(31)

def ACC(N, q): return V(4 * (N * 5 + q), 4)
def WB(b, u, e=None):
    return V(160 + 8 * b + 4 * u, 4) if e is None else V(160 + 8 * b + 4 * u + 2 * e, 2)
def OF(b, q, u): return A(40 * b + 8 * q + 4 * u, 4)
raddr = [V(192), V(193), V(194), V(195)]
daddr = [V(196), V(197), V(198), V(199)]
oaddr = [V(200 + i) for i in range(5)]
wraddr = [V(205), V(206), V(207)]
rdaddr = V(208)
outaddr = V(209)
NSLOT = 5
NCH = 24

class Cfg2:
    oflags = ""
    wflags = ""
    stamps = False
    fake = 0

def head_of(c):
    hh, cc = divmod(c, 3)
    return (hh if hh < 4 else 12 + hh), cc

def job_o(c, cfg):
    h, cc = head_of(c)
    if cfg.fake: h = 0
    out = [salu("s_add_u32", sTo, sOb, h * 92160 + cc * 2048)]
    for q in range(5):
        for u in range(2): out.append(gload(OF(c % 3, q, u), oaddr[q], sO, sTo, 1024 * u, cfg.oflags))
    return out

def job_w(n, cfg, dep=()):
    c, half = divmod(n, 2)
    h, cc = head_of(c)
    if cfg.fake: h = 0
    tag = lambda ctx: ('U', n); sl = lambda ctx: n % NSLOT
    out = []
    for i in range(8):
        if i % 4 == 0:
            out.append(salu("s_add_u32", 'm0', sLb, (n % NSLOT) * 8192 + 1024 * i))
            out.append(salu("s_add_u32", sTw, sWb[half], (h * 192 + 64 * cc + 8 * i) * 1280))
        d = dma(daddr[i % 4], sWo, sTw, 1024 * (i % 4), cfg.wflags, tag=tag, slot=sl, private=True)
        if i == 0: d.rd += list(dep)
        out.append(d)
    return out

def rdW(gs, u, e):
    n = gs >> 2
    return dsread("ds_read_b64_tr_b16", WB(gs & 3, u, e), raddr[gs & 3], (n % NSLOT) * 8192 + (32 * u + 16 * e) * 128,
                  tag=lambda ctx: ('U', n), private=True)

def stamp(cfg, idx):
    if not cfg.stamps: return []
    return [raw("s_memrealtime s[56:57]"), raw("s_memtime s[58:59]"), raw("s_waitcnt lgkmcnt(0)"),
            raw(f"s_mov_b32 s{64 + 2 * idx}, s56"), raw(f"s_mov_b32 s{65 + 2 * idx}, s58")]

def build_k2(cfg, name):
    o = []
    a = lambda t: o.append(raw(t))
    a("s_cmp_ge_u32 s2, 240"); a("s_cbranch_scc1 L_k2_end")
    a("s_load_dwordx2 s[40:41], s[0:1], 32"); a("s_load_dwordx2 s[42:43], s[0:1], 72")
    a("s_load_dwordx2 s[44:45], s[0:1], 80"); a("s_load_dwordx2 s[46:47], s[0:1], 96")
    if cfg.stamps: a("s_memrealtime s[90:91]")
    a("v_lshrrev_b32 v1, 6, v0"); a("v_and_b32 v0, 63, v0")
    a(f"v_readfirstlane_b32 {sWave}, v1")
    a("s_lshr_b32 s48, s2, 3"); a("s_bfe_u32 s49, s2, 0x10002")
    a("s_and_b32 s50, s2, 3"); a("s_lshl_b32 s50, s50, 1")
    a("s_cmp_ge_u32 s48, 15"); a("s_cselect_b32 s51, 1, 0"); a("s_add_u32 s50, s50, s51"); a("s_mul_i32 s51, s51, 15"); a("s_sub_u32 s48, s48, s51")
    a("s_mul_i32 s51, s48, 52"); a("s_lshr_b32 s51, s51, 8")
    a("s_mul_i32 s52, s51, 5"); a("s_sub_u32 s52, s48, s52")
    a(f"s_mul_i32 {sLb}, {sWave}, 40960")
    a(f"s_mul_i32 {sOb}, {sWave}, {4 * 92160}"); a(f"s_mul_i32 s53, s51, {5 * 6144}"); a(f"s_add_u32 {sOb}, {sOb}, s53")
    a(f"s_mul_i32 s53, {sWave}, {4 * 192 * 1280}"); a("s_lshl_b32 s54, s52, 8"); a("s_add_u32 s53, s53, s54")
    a(f"s_lshr_b32 s54, {sWave}, 1"); a("s_lshl_b32 s54, s54, 7"); a(f"s_add_u32 {sWb[0]}, s53, s54")
    a("s_xor_b32 s54, s54, 128"); a(f"s_add_u32 {sWb[1]}, s53, s54")
    a("s_mul_i32 s53, s50, 240"); a("s_mul_i32 s54, s51, 80"); a("s_add_u32 s53, s53, s54"); a(f"s_mul_i32 {sOutb}, s53, 2560")
    a("s_mul_i32 s53, s49, 1280"); a(f"s_add_u32 {sOutb}, {sOutb}, s53"); a("s_lshl_b32 s53, s52, 8"); a(f"s_add_u32 {sOutb}, {sOutb}, s53")
    a(f"s_lshl_b32 s53, {sWave}, 6"); a(f"s_add_u32 {sOutb}, {sOutb}, s53")
    a("v_lshrrev_b32 v1, 3, v0"); a("v_and_b32 v2, 7, v0")
    a("v_and_b32 v3, 6, v1"); a("v_xor_b32 v3, v3, v2"); a("v_lshlrev_b32 v3, 4, v3")
    a("v_mul_u32_u24 v4, 1280, v1"); a(f"v_add_u32 {daddr[0]}, v3, v4")
    for i in range(1, 4): a(f"v_add_u32 {daddr[i]}, {9216 * i}, {daddr[0]}")
    a(f"v_lshlrev_b32 {oaddr[0]}, 4, v0")
    for i in range(1, 5): a(f"v_add_u32 {oaddr[i]}, {6144 * i}, {oaddr[0]}")
    a("s_waitcnt lgkmcnt(0)")
    a("s_cmp_eq_u32 s49, 0"); a("s_cselect_b32 s8, s40, s42"); a("s_cselect_b32 s9, s41, s43"); a("s_mov_b32 s10, 7864320"); a("s_mov_b32 s11, 0x20000")
    a("s_lshl_b32 s53, s49, 3"); a("s_add_u32 s53, s53, s50"); a("s_mul_i32 s53, s53, 2949120")
    a("s_add_u32 s4, s46, s53"); a("s_addc_u32 s5, s47, 0"); a("s_mov_b32 s6, 2949120"); a("s_mov_b32 s7, 0x20000")
    a("s_mov_b32 s12, s44"); a("s_mov_b32 s13, s45"); a("s_mov_b32 s14, 4915200"); a("s_mov_b32 s15, 0x20000")
    if cfg.stamps:
        a("s_add_u32 s60, s46, 0x4100000"); a("s_addc_u32 s61, s47, 0"); a("s_mov_b32 s62, 0x100000"); a("s_mov_b32 s63, 0x20000")
    o += job_w(0, cfg) + job_o(0, cfg) + job_w(1, cfg) + job_w(2, cfg) + job_o(1, cfg) + job_w(3, cfg)
    a("v_lshrrev_b32 v1, 2, v0"); a("v_and_b32 v3, 6, v1")
    a("v_bfe_u32 v4, v0, 1, 1"); a("v_xor_b32 v4, v4, v3"); a("v_lshlrev_b32 v4, 4, v4")
    a("v_and_b32 v5, 1, v0"); a("v_lshlrev_b32 v5, 3, v5")
    a("v_lshlrev_b32 v6, 7, v1"); a("v_add_u32 v5, v5, v6"); a(f"v_add_u32 v5, {sLb}, v5")
    a(f"s_and_b32 s53, {sWave}, 1"); a("s_lshl_b32 s53, s53, 6"); a("v_xor_b32 v4, s53, v4")
    for m in range(4):
        a(f"v_xor_b32 v6, {32 * m}, v4"); a(f"v_add_u32 {raddr[m]}, v5, v6")
    for k in range(1, 4):
        a(f"s_xor_b32 s53, {sWave}, {k}"); a("s_mul_i32 s53, s53, 30720"); a(f"s_add_u32 s53, s53, {(k - 1) * 10240}")
        a(f"v_add_u32 {wraddr[k - 1]}, s53, {oaddr[0]}")
    a(f"s_mul_i32 s53, {sWave}, 30720"); a(f"v_add_u32 {rdaddr}, s53, {oaddr[0]}")
    a("v_and_b32 v1, 15, v0"); a("v_mul_u32_u24 v1, 2560, v1"); a("v_lshrrev_b32 v2, 4, v0"); a("v_lshlrev_b32 v2, 3, v2"); a(f"v_add_u32 {outaddr}, v1, v2")
    o.append(wait(need_vm=lambda c: [('U', 0)], free=False))
    lastreads = {}
    for gs in range(2):
        for (u, e) in UE: o.append(rdW(gs, u, e))
    o.append(wait())
    o += stamp(cfg, 0)
    mf = []
    for c in range(NCH):
        for N in range(8):
            for q in range(5):
                for u in range(2):
                    mf.append(mfma(ACC(N, q), WB((8 * c + N) & 3, u), OF(c % 3, q, u), 0 if (c == 0 and u == 0) else ACC(N, q)))
    sc = Sched(mf)
    NS = 8 * NCH
    for gs in range(NS):
        g = 10 * gs
        t = gs + 2
        if t < NS:
            if t % 4 == 0:
                sc.put(g - 1, wait(need_vm=(lambda c, n=t >> 2: [('U', n)]), free=False))
            rs = [rdW(t, u, e) for (u, e) in UE]
            for i, r in enumerate(rs): sc.put(g + i, r)
            lastreads[t] = rs
        sc.put(g + 3, wait())
        if gs % 8 == 7: sc.put(g + 9, wait())
    place_even(sc, job_w(4, cfg), 0, 19)
    for n in range(2 * NCH - NSLOT):
        lo = 10 * (4 * n + 2) + 4
        place_even(sc, job_w(n + NSLOT, cfg, dep=lastreads[4 * n + 3][-1].wr), lo, lo + 39)
    for c in range(NCH - 2):
        place_even(sc, job_o(c + 2, cfg), 80 * c, 80 * c + 59)
    sc.add_wait_sites()
    fin = stamp(cfg, 1) + [wait(lgkm0=True), barrier(), nop(3)]
    for k in range(1, 4):
        for t in range(10):
            fin.append(dswrite("ds_write_b128", wraddr[k - 1], ACC(2 * k + t // 5, t % 5), 1024 * t))
    fin += [wait(lgkm0=True), barrier()]
    for t in range(10):
        for k in range(3):
            fin.append(dsread("ds_read_b128", V(40 + 4 * (3 * t + k), 4), rdaddr, k * 10240 + 1024 * t))
    for t in range(10):
        N, q = divmod(t, 5)
        fin.append(wait())
        ac = ACC(N, q)
        for k in range(3):
            for i in range(2):
                fin.append(valu("v_pk_add_f32", ac.sub(2 * i, 2), ac.sub(2 * i, 2), V(40 + 4 * (3 * t + k) + 2 * i, 2)))
        for i in range(2): fin.append(valu("v_cvt_pk_bf16_f32", ac.sub(i), ac.sub(2 * i), ac.sub(2 * i + 1)))
        fin.append(salu("s_add_u32", sTo, sOutb, q * 16 * 2560))
        fin.append(gstore(ac.sub(0, 2), outaddr, sOut, sTo, 32 * N))
    if cfg.stamps:
        fin += [raw("s_waitcnt vmcnt(0)")] + stamp(cfg, 2)
        fin += [raw("s_mov_b32 s70, s90"), raw("s_mov_b32 s71, 0")]
        for i in range(8): fin.append(raw(f"v_mov_b32 v{i}, s{64 + i}"))
        fin += [raw(f"s_lshl_b32 s86, s2, 2"), raw(f"s_add_u32 s86, s86, {sWave}"), raw("s_lshl_b32 s86, s86, 7"), raw("v_mov_b32 v20, 0"), raw("s_nop 1")]
        for i in range(2): fin.append(raw(f"buffer_store_dwordx4 v[{4 * i}:{4 * i + 3}], v20, s[60:63], s86 offen offset:{16 * i}"))
    code = o + sc.linear() + fin
    tr = [(i, {}) for i in code]
    derive_waits(tr, "k2", verbose=True)
    ok = check_hazards(tr, "k2") and check_seqs(code) and check_lds({0: tr})
    print("k2 model cycles", sc.cycles())
    assert ok
    return [f".globl {name}", ".p2align 8", f".type {name},@function", f"{name}:"] + emit(code) + ["L_k2_end:", "s_endpgm"]

if __name__ == "__main__":
    print(len(build_k2(Cfg2(), "k2_kernel")))
```

```python
import sys, re
from k1 import build_k1, Cfg, LDS_BYTES
from k2 import build_k2, Cfg2
NAME = "concat_heads__gqa_block_cached__gqa_block_cached__near_ridge"
def desc(name):
    return f""".amdhsa_kernel {name}
  .amdhsa_next_free_vgpr 512
  .amdhsa_next_free_sgpr 102
  .amdhsa_accum_offset 256
  .amdhsa_group_segment_fixed_size 0
  .amdhsa_kernarg_size 104
  .amdhsa_user_sgpr_count 2
  .amdhsa_user_sgpr_kernarg_segment_ptr 1
  .amdhsa_system_sgpr_workgroup_id_x 1
  .amdhsa_float_denorm_mode_32 3
.end_amdhsa_kernel"""
MACROS = r"""
.macro mm f, d, fa, a, fb, b, c
v_mfma_f32_16x16x32_bf16 \f[\d:\d+3], \fa[\a:\a+3], \fb[\b:\b+3], \f[\c:\c+3]
.endm
.macro mz f, d, fa, a, fb, b
v_mfma_f32_16x16x32_bf16 \f[\d:\d+3], \fa[\a:\a+3], \fb[\b:\b+3], 0
.endm
.macro tr d, a, o
ds_read_b64_tr_b16 v[\d:\d+1], v\a offset:\o
.endm
"""
def compress(l):
    m = re.fullmatch(r"v_mfma_f32_16x16x32_bf16 (\w)\[(\d+):\d+\], (\w)\[(\d+):\d+\], (\w)\[(\d+):\d+\], (?:\w\[(\d+):\d+\]|0)", l)
    if m:
        f, d, fa, a, fb, b, c = m.groups()
        return f"mm {f},{d},{fa},{a},{fb},{b},{c}" if c is not None else f"mz {f},{d},{fa},{a},{fb},{b}"
    m = re.fullmatch(r"ds_read_b64_tr_b16 v\[(\d+):\d+\], v(\d+)(?: offset:(\d+))?", l)
    if m: return f"tr {m.group(1)},{m.group(2)},{m.group(3) or 0}"
    return l
def generate(path, c1, c2):
    hdr = open("cdna_kernels/" + NAME + ".s.ref").read().split("\n")
    head = [l for l in hdr if l.startswith(";") and "@launch" not in l and "Override" not in l and "grid=ceil" not in l]
    out = head + [f"; @launch kernel={NAME}_kernel grid=(256,1,1) block=(256,1,1) lds={LDS_BYTES}",
                  f"; @launch kernel=oproj_kernel grid=(240,1,1) block=(256,1,1) lds={LDS_BYTES}",
                  '.amdgcn_target "amdgcn-amd-amdhsa--gfx950"', MACROS, ".text"]
    out += [compress(l) for l in build_k1(c1, NAME + "_kernel")]
    out += [compress(l) for l in build_k2(c2, "oproj_kernel")]
    out += ['.section .rodata,"a"', ".p2align 6", desc(NAME + "_kernel"), ".p2align 6", desc("oproj_kernel")]
    open(path, "w").write("\n".join(out) + "\n")
if __name__ == "__main__":
    c1, c2 = Cfg(), Cfg2()
    for kv in sys.argv[2:]:
        k, v = kv.split("=")
        tgt, k = (c1, k[3:]) if k.startswith("k1.") else (c2, k[3:]) if k.startswith("k2.") else (None, k)
        v = v.replace("+", " ")
        if v.lstrip("-").isdigit(): v = int(v)
        for t in ([tgt] if tgt else [c1, c2]): setattr(t, k, v)
    generate(sys.argv[1], c1, c2)
```

```python
import math, struct
from asmlib import *

SL = 24832
KS = [0, SL, 2 * SL]
VS = [3 * SL, 4 * SL, 5 * SL]
EB = 6 * SL
FLAG = EB + 12288
LDS_BYTES = 163840

sX, sW, sK, sV, sO = S(4, 4), S(8, 4), S(12, 4), S(16, 4), S(20, 4)
sWave = S(24)
kR, kN, kF = S(25), S(26), S(27)
vR, vN, vF = S(28), S(29), S(30)
sKoff, sVoff, sWoff, sXoff = S(31), S(32), S(33), S(34)
sLoop, sHead = S(35), S(36)
sThr = S(37)
sC2 = S(38, 2)
sGrp = S(40)
sT0, sT1, sT2, sT3 = S(41), S(42), S(43), S(47)
sXl = [S(44), S(45)]
sOoff = S(46)
sWcur, sVcur = S(48), S(49)
sTo = S(50)
sTx = S(51)
sBad = S(52, 2)
sTs = S(56, 2)
sDbg = S(60, 4)

def blk(q, s): return q * 6 + s
def Qf(q, s): return V(8 * blk(q, s), 4)
def QACC(T, q): return V(8 * blk(q, T >> 1) + 4 * (T & 1), 4)
def U(i): return V(8 * i + 4, 4)
def Pf(par, q, u): return U(par * 8 + q * 2 + u)
def Sf(i): return U(16 + (i & 3))
def Ci(q): return U(20 + q)
def VB(b, u, e=None):
    return V(192 + 8 * b + 4 * u, 4) if e is None else V(192 + 8 * b + 4 * u + 2 * e, 2)
TMP = [V(216, 8), V(224, 8)]
def Lq(q): return V(232 + q)
kaddr = [V(236), V(237)]
vaddr = [V(238), V(239), V(240), V(241)]
waddr = [V(242), V(243)]
xaddr = [V(244), V(245)]
dKV = [V(246), V(247), V(248)]
dW = [V(249), V(250), V(251)]
dX = V(252)
vL16 = V(253)
vt0, vt1 = V(254), V(255)
def Oacc(T, q): return A(4 * (T * 4 + q), 4)
def Kf(b, s): return A(192 + 24 * b + 4 * s, 4)
def Xf(par, q, u): return A(192 + 32 * par + 8 * q + 4 * u, 4)

def fbits(x): return "0x%08x" % struct.unpack("<I", struct.pack("<f", x))[0]

class Cfg:
    wshift = 8
    kvflags = "nt"
    wflags = ""
    xflags = ""
    oflags = ""
    stamps = False
    fake = 0

def tagK(dn): return lambda c: ('K', c['h'], c['t'] + dn)
def tagV(dn): return lambda c: ('V', c['h'], c['t'] + dn)
def absT(kind, dh, n): return lambda c: (kind, c['h'] + dh, n)
def slot_of(tile, nq):
    k, h, n = tile
    if k == 'K': return ('k', n % 3)
    if k == 'x': return ('k', 1 + n % 2) if nq == 4 else ('e', n % 2)
    if k == 'W': return ('v', (h * 26 + n) % 3)
    if k == 'V': return ('v', (h * 26 + 10 + n) % 3)

def slot_base(slot):
    return {'k': KS, 'v': VS, 'e': [EB, EB + 6144]}[slot[0]][slot[1]]
def exp_dma(ins, tag, nq, soff, imm, idx, cfg):
    def f(c, st):
        k, h, n = tag(c); w = st['wave']; base = slot_base(slot_of((k, h, n), nq)); hh = st['h0'] + 16 * h
        if k == 'x':
            el = base + (w * 8192 if nq == 4 else 0) + idx * 1024
            eg = w * 64 * 1280 + 128 * n + idx * 10240
        else:
            i = idx + (3 * w if nq == 4 else 0); mm = i // 3
            el = base + i * 1024
            if k == 'W':
                el += cfg.wshift if mm >= 4 else 0
                eg = hh * 384 + (64 * n + 32 * ((mm & 3) >> 1) + 4 * (mm & 1) + 8 * (mm >> 2)) * 12288 + (i % 3) * 1024
            else: eg = hh * 393216 + n * 24576 + i * 1024
        gl, gg = st.get('m0'), st.get(str(soff))
        if gl is None or gg is None or gl + imm != el or gg + imm != eg: return f"lds {gl}+{imm} vs {el}; glob {gg}+{imm} vs {eg} tile {(k, h, n)}"
    ins.expect = f
    return ins
def exp_rd(ins, addr, tag):
    def f(c, st):
        base = slot_base(slot_of(tag(c), 4))
        if st.get(str(addr)) != base: return f"base {st.get(str(addr))} vs {base} tile {tag(c)}"
    ins.expect = f
    return ins

def job_tile(nq, kind, slotreg, tag, cfg):
    srd, off, addr, fl = {'K': (sK, sKoff, dKV, cfg.kvflags), 'V': (sV, sVoff, dKV, cfg.kvflags),
                          'W': (sW, sWoff, dW, cfg.wflags)}[kind]
    sl = lambda c: slot_of(tag(c), nq)
    out = []
    if nq == 4:
        out.append(salu("s_add_u32", 'm0', slotreg, sGrp))
        for m in range(3): out.append(exp_dma(dma(addr[m], srd, off, 1024 * m, fl, tag=tag, slot=sl), tag, nq, off, 1024 * m, m, cfg))
    else:
        for mm in range(3, 8):
            if kind == 'W':
                k0 = 32 * ((mm & 3) >> 1) + 4 * (mm & 1) + 8 * (mm >> 2)
                go = k0 * 12288; lo = mm * 3072 + (cfg.wshift if mm >= 4 else 0)
            else:
                go = lo = mm * 3072
            out.append(salu("s_add_u32", 'm0', slotreg, lo))
            out.append(salu("s_add_u32", sT0, off, go))
            for m in range(3): out.append(exp_dma(dma(addr[m], srd, sT0, 1024 * m, fl, tag=tag, slot=sl), tag, nq, sT0, 1024 * m, 3 * mm + m, cfg))
    adv = 786432 if kind == 'W' else 24576
    if cfg.fake and (kind != 'W' or cfg.fake > 1): adv = 0
    out.append(salu("s_add_u32", off, off, adv))
    return out

def job_x(nq, n, dh, cfg, dep=()):
    tag = absT('x', dh, n); sl = lambda c: slot_of(tag(c), nq)
    out = []
    for i in range(2 * nq):
        if i % 4 == 0: out.append(salu("s_add_u32", 'm0', sXl[n & 1], 1024 * i))
        out.append(salu("s_add_u32", sTx, sXoff, (0 if cfg.fake > 1 else 128 * n) + 10240 * i - 1024 * (i % 4)))
        d = dma(dX, sX, sTx, 1024 * (i % 4), cfg.xflags, tag=tag, slot=sl, private=True)
        exp_dma(d, tag, nq, sTx, 1024 * (i % 4), i, cfg)
        if i == 0: d.rd += list(dep)
        out.append(d)
    return out

def seq_after(sc, seq, lo, hi, even=False):
    seq = list(seq)
    SEQS.append(seq)
    hi = min(hi, len(sc.g) - 1)
    n = len(seq)
    nx = sum(1 for i in seq if i.kind == 'X'); kx = 0
    g = lo; prev = None; pg = None
    for k, ins in enumerate(seq):
        dl = max(g, min(hi, lo + ((k + 1) * (hi - lo + 1) + n - 1) // n - 1))
        if not even: dl = max(g, min(hi, hi - (n - 1 - k) // 2))
        g1 = g
        if even and ins.kind == 'X': g1 = max(g, min(dl, lo + (kx * (hi - lo + 1)) // nx))
        same_bad = prev is not None and ((prev.kind in 'VE' and ins.kind not in 'VE') or ('m0' in prev.wr and ins.dma))
        if same_bad and g1 == pg:
            if g1 + 1 <= hi: g1 += 1; dl = max(dl, g1)
            else:
                if 'm0' in prev.wr: sc.g[g1].append(nop(0))
                sc.g[g1].append(ins); prev = ins; pg = g1
                for rest in seq[k + 1:]:
                    if 'm0' in prev.wr and rest.dma: sc.g[g1].append(nop(0))
                    sc.g[g1].append(rest); prev = rest
                return g1
        r = sc.place(ins, g1, dl, force=True)
        if ins.kind == 'X': kx += 1
        g = r; pg = r; prev = ins
    return g

def place_even(sc, seq, lo, hi): return seq_after(sc, seq, lo, hi, even=True)

def rdK(j, s, tag): return exp_rd(dsread("ds_read_b128", Kf(j & 1, s), kaddr[s & 1], (j & 3) * 6144 + (s >> 1) * 128, tag), kaddr[s & 1], tag)
def rdV(T, u, e, tag):
    T %= 12
    return exp_rd(dsread("ds_read_b64_tr_b16", VB(T & 3, u, e), vaddr[T & 3], (32 * u + 16 * e) * 384 + (T >> 2) * 128, tag), vaddr[T & 3], tag)
def rdW(T, u, e, tag):
    T %= 12
    s, uu = T >> 1, T & 1
    return exp_rd(dsread("ds_read_b64_tr_b16", VB(T % 3, u, e), waddr[s & 1], (2 * u + e) * 3072 + (s >> 1) * 128 + 8 * uu, tag), waddr[s & 1], tag)
def rdX(nq, n, dh, q, u):
    d = SL if nq == 4 else 6144
    return dsread("ds_read_b128", Xf(n & 1, q, u), xaddr[u], (n & 1) * d + q * 2048, absT('x', dh, n), private=True)
UE = [(0, 0), (0, 1), (1, 0), (1, 1)]

def rebase(regs, cur, new):
    return [salu("s_sub_u32", sT1, new, cur), smov(cur, new)] + [valu("v_add_u32", r, sT1, r) for r in regs]
def rotate(r, n, f): return [smov(sT2, r), smov(r, n), smov(n, f), smov(f, sT2)]
def rebaseK():
    return [salu("s_sub_u32", sT3, kN, kR)] + [valu("v_add_u32", r, sT3, r) for r in kaddr]

def softmax_ops(Sx, q, j, par):
    e = [vexp(Sx.sub(r), Sx.sub(r)) for r in range(4)]
    a = [valu("v_add_f32", Lq(q), Lq(q), Sx.sub(r)) for r in range(4)]
    P = Pf(par, q, j >> 1)
    c = [valu("v_cvt_pk_bf16_f32", P.sub(2 * (j & 1) + i), Sx.sub(2 * i), Sx.sub(2 * i + 1)) for i in range(2)]
    return e, a, c

def attn_iter(nq, par, cfg, first_pv=False, jobs=(), next_k=True, k_rot=True):
    NG = 4 * nq
    mf = []
    for G in range(NG):
        j, q = divmod(G, nq)
        for s in range(6):
            mf.append(mfma(Sf(G), Kf(j & 1, s), Qf(q, s), Ci(q) if s == 0 else Sf(G)))
        for n in range(3 * G, 3 * G + 3):
            T, qq = divmod(n, nq)
            for u in range(2):
                mf.append(mfma(Oacc(T, qq), VB(T & 3, u), Pf(par, qq, u), 0 if (first_pv and u == 0) else Oacc(T, qq)))
    sc = Sched(mf)
    def pvpos(n): return 12 * (n // 3) + 6 + 2 * (n % 3)
    sm = []
    for G in range(NG):
        Gp = (G - 1) % NG
        j, q = divmod(Gp, nq)
        e, a, c = softmax_ops(Sf(Gp), q, j, par if G == 0 else par ^ 1)
        for r in range(4): sc.put(12 * G + 2 * r, e[r])
        sm.append((e, a, c))
    GB = 3 * nq
    bw = wait(need_vm=(lambda c: [('K', c['h'], c['t'] + 2), ('V', c['h'], c['t'] + 1)]), lgkm0=True, free=False)
    sc.put(12 * GB, bw, front=True)
    sc.put(12 * GB + 2, barrier(), front=True)
    bar = 12 * GB + 2
    reads = []
    for j in range(4):
        lo = 12 * nq * j
        nxt = (j == 3)
        tv, tk = (tagV(1), tagK(2)) if nxt else (tagV(0), tagK(1))
        for i in range(3):
            T = 3 * j + 3 + i
            l2 = lo if i == 0 else pvpos(nq * (T - 4) + nq - 1) + 1
            l2 = max(l2, lo)
            if nxt: l2 = max(l2, bar + 1)
            item = [(rdV(T, u, e, tv), l2) for (u, e) in UE]
            reads.append((l2, 0, item))
        if not nxt or next_k:
            l2 = max(lo, bar + 1) if nxt else lo
            reads.append((l2, 1, [(rdK(j + 1, s, tk), l2) for s in range(6)]))
    reads.sort(key=lambda x: (x[0], x[1]))
    g = 0
    lastpre = 0
    for _, _, item in reads:
        for ins, l2 in item:
            g = max(g, l2)
            while not (g % 12 in (1, 3, 5, 7, 8, 9) and not sc.g[g]) :
                g += 1
                if nq == 3 and g % 12 in (10, 11) and not sc.g[g]: break
            assert g < len(mf), "ds overflow"
            sc.put(g, ins)
            if g < bar: lastpre = g
    assert lastpre < 12 * GB
    upd = rebase(vaddr, sVcur, vN) + (rebaseK() if k_rot else [])
    for G in range(NG):
        e, a, c = sm[G]
        b = 12 * G
        if nq == 3 and G == 0:
            order = [(a[0], 1), (c[0], 3), (a[1], 5), (c[1], 7), (a[2], 8), (a[3], 9)]
        else:
            order = [(a[0], 1), (a[1], 3), (c[0], 5), (a[2], 7), (a[3], 8), (c[1], 9)]
        for ins, o in order: sc.put(b + o, ins)
    seq_after(sc, upd, lastpre, bar)
    gj = 0
    seq = [i for jb in jobs for i in jb]
    if seq: gj = place_even(sc, seq, 0, 12 * GB - 13)
    rot = rotate(vR, vN, vF) + (rotate(kR, kN, kF) if k_rot else [])
    seq_after(sc, rot, bar + 1, len(mf) - 2)
    return sc

def attn_last(nq, cfg, nxt):
    par = 1
    mf = []
    for T in range(12):
        for q in range(nq):
            for u in range(2): mf.append(mfma(Oacc(T, q), VB(T & 3, u), Pf(par, q, u), Oacc(T, q)))
    sc = Sched(mf)
    sp = 2 * nq
    e, a, c = softmax_ops(Sf(4 * nq - 1), nq - 1, 3, par)
    if nq == 4:
        for r in range(4): sc.put(r, e[r])
        sc.put(4, c[0]); sc.put(4, c[1]); sc.put(5, a[0]); sc.put(5, a[1])
        g0 = 6
    else:
        sc.put(0, e[0]); sc.put(0, e[1]); sc.put(1, e[2]); sc.put(1, e[3])
        sc.put(2, c[0]); sc.put(2, c[1]); sc.put(3, a[0]); sc.put(3, a[1])
        g0 = 4
    g = g0
    for T in range(3, 12):
        g = max(g, sp * (T - 3))
        for (u, ee) in UE:
            sc.put(g, rdV(T, u, ee, tagV(0))); g += 1
        sc.put(g - 1, wait())
    lastv = g - 1
    fin = [a[2], a[3]]
    for q in range(nq):
        t = vt0 if q % 2 == 0 else vt1
        for w in (32, 16):
            fin += [valu("v_mov_b32", t, Lq(q)), None, vperm(w, t, Lq(q)), valu("v_add_f32", Lq(q), Lq(q), t)]
    g = g0
    for ins in fin:
        if ins is None: g += 2; continue
        g = sc.place(ins, g, g + 8)
    for q in range(nq):
        g = sc.place(vrcp(Lq(q), Lq(q)), g + 1, g + 8)
    bar = sp * 10
    if nxt:
        w = wait(need_vm=lambda c: [('x', c['h'] + 1, 0)], free=False)
        gx = sc.place(w, sp * 3, sp * 4)
        dep = []
        for q in range(nq):
            for u in range(2):
                r = rdX(nq, 0, 1, q, u); dep += r.wr
                gx = sc.place(r, gx + 1, gx + 8)
        j1 = job_tile(nq, 'W', vF, absT('W', 1, 1), cfg) + job_tile(nq, 'K', kR, absT('K', 1, 0), cfg)
        ge = place_even(sc, j1, g0, sp * 7)
        ws = wait(); gw = sc.place(ws, max(gx + 4, ge), max(gx + 4, ge) + 4)
        place_even(sc, job_x(nq, 2, 1, cfg, dep), gw + 1, len(mf) - 1)
        bw = wait(need_vm=(lambda c: [('W', c['h'] + 1, 0)]), lgkm0=True, free=False)
        gb = sc.place(bw, bar - 1, bar)
        gb = sc.place(barrier(), gb, bar + 1)
        seq_after(sc, rebase(waddr, sWcur, vN), lastv, gb)
        g = gb
        for T in range(2):
            g = max(g, sp * (10 + T) - 1)
            for (u, ee) in UE: g = sc.place(rdW(T, u, ee, absT('W', 1, 0)), g + 1, min(len(mf) - 1, g + 2))
            sc.place(wait(), g, g)
        seq_after(sc, rotate(vR, vN, vF), gb + 1, len(mf) - 1)
    return sc

def epi_block(q, s, t, cfg, packed=False):
    ops = []
    for i in range(8):
        src = Oacc(2 * s + (i >> 2), q).sub(i & 3)
        ops.append(valu("v_accvgpr_read_b32", t.sub(i), src))
    for i in range(8): ops.append(valu("v_mul_f32", t.sub(i), t.sub(i), Lq(q)))
    for i in range(4): ops.append(valu("v_cvt_pk_bf16_f32", t.sub(i), t.sub(2 * i), t.sub(2 * i + 1)))
    ops.append(salu("s_add_u32", sTo, sOoff, q * 6144 + (4096 if s >= 4 else 0)))
    stv = gstore(t.sub(0, 4), vL16, sO, sTo, (s & 3) * 1024, cfg.oflags)
    def f(c, st):
        h = 0 if c['t'] < 0 else 1
        e = (st['h0'] + 16 * h) * 92160 + (4 * st['wave'] + q) * 6144 + s * 1024
        if st.get(str(sTo)) is None or st[str(sTo)] + (s & 3) * 1024 != e: return f"store off vs {e}"
    stv.expect = f
    ops.append(stv)
    return ops

def qproj(nq, cfg, epi):
    sp = 2 * nq; SN = 12 * sp
    mf = []
    for st in range(10):
        for T in range(12):
            for q in range(nq):
                for u in range(2):
                    mf.append(mfma(QACC(T, q), VB(T % 3, u), Xf(st & 1, q, u), 0 if (st == 0 and u == 0) else QACC(T, q)))
    sc = Sched(mf)
    for st in range(10):
        b = st * SN
        for T in range(10):
            g = b + sp * T
            for (u, e) in UE:
                sc.put(g, rdW(T + 2, u, e, absT('W', 0, st))); g += 1
            sc.put(g - 1, wait())
        lastw = g - 1
        need = [('W', st + 1)] if st < 9 else [('K', 0)]
        bw = wait(need_vm=(lambda c, need=need: [(k, c['h'], n) for k, n in need]), lgkm0=True, free=False)
        gb = b + sp * 10
        sc.put(gb, bw); sc.put(gb, barrier())
        g = gb
        if st < 9:
            seq_after(sc, rebase(waddr, sWcur, vN), lastw, gb)
            for T in range(2):
                g = max(g, b + sp * (10 + T) - 1)
                for (u, e) in UE:
                    g += 1; sc.put(g, rdW(T, u, e, absT('W', 0, st + 1)))
                sc.put(g, wait())
        else:
            seq_after(sc, rebase(vaddr, sVcur, vN), lastw, gb)
            for s in range(6):
                g += 1; sc.put(g, rdK(0, s, absT('K', 0, 0)))
        seq_after(sc, rotate(vR, vN, vF), gb + 1, b + SN - 1)
        dep = []
        gx = b + sp * 4
        if st < 9:
            w = wait(need_vm=(lambda c, st=st: [('x', c['h'], st + 1)]), free=False)
            gx = sc.place(w, gx, gx + sp)
            for q in range(nq):
                for u in range(2):
                    r = rdX(nq, st + 1, 0, q, u); dep += r.wr
                    gx = sc.place(r, gx + 1, gx + sp)
        if st < 8: j1 = job_tile(nq, 'W', vF, absT('W', 0, st + 2), cfg)
        else:
            j1 = job_tile(nq, 'V', vF, absT('V', 0, st - 8), cfg) + job_tile(nq, 'K', kN if st == 8 else kF, absT('K', 0, st - 7), cfg)
        ge = place_even(sc, j1, b, b + (sp * 4 - 1 if st < 7 and nq == 4 else sp * 6 if st < 7 else sp * 9))
        if st + 3 <= 9:
            ws = wait(); gw = sc.place(ws, max(gx + 4, ge), max(gx + 4, ge) + 4)
            place_even(sc, job_x(nq, st + 3, 0, cfg, dep), gw + 1, b + SN - 1)
    if epi:
        nb = 6 * nq
        step = (len(mf) - 60) // nb
        i = 0
        for s in range(6):
            for q in range(nq):
                seq_after(sc, epi_block(q, s, TMP[i & 1], cfg), 10 + i * step, 10 + (i + 1) * step - 1)
                i += 1
        seq_after(sc, [salu("s_add_u32", sOoff, sOoff, 16 * 92160)], len(mf) - 20, len(mf) - 1)
    return sc

def conv_prologue(nq, cfg):
    out = []
    cv = []
    for s in range(6):
        for q in range(nq):
            b = V(8 * blk(q, s), 8)
            for i in range(4): cv.append(valu("v_pk_mul_f32", b.sub(2 * i, 2), b.sub(2 * i, 2), sC2))
            for i in range(4): cv.append(valu("v_cvt_pk_bf16_f32", b.sub(i), b.sub(2 * i), b.sub(2 * i + 1)))
    j = job_tile(nq, 'V', vF, absT('V', 0, 2), cfg)
    k = 0
    for i, ins in enumerate(cv):
        out.append(ins)
        if i % 4 == 3 and k < len(j): out.append(j[k]); k += 1
    out += j[k:]
    for q in range(nq): out.append(valu("v_mov_b32", Lq(q), 0))
    out.append(wait())
    NG = 4 * nq
    mf = []
    for G in range(NG):
        jj, q = divmod(G, nq)
        for s in range(6):
            mf.append(mfma(Sf(G), Kf(jj & 1, s), Qf(q, s), (0 if jj == 0 else Ci(q)) if s == 0 else Sf(G)))
    sc = Sched(mf)
    sc.pre = out
    gb = 6 * nq * 3
    for jj in range(3):
        g = 6 * nq * jj
        for s in range(6):
            sc.put(g, rdK(jj + 1, s, absT('K', 0, 0))); g += 2
    lastk = g - 2
    bw = wait(need_vm=(lambda c: [('K', c['h'], 1), ('V', c['h'], 0)]), lgkm0=True, free=False)
    sc.put(gb - 1, bw); sc.put(gb - 1, barrier())
    seq_after(sc, rebaseK(), lastk + 1, gb - 2)
    g = gb
    post = [rdK(4, s, absT('K', 0, 1)) for s in range(6)]
    for T in range(3): post += [rdV(T, u, e, absT('V', 0, 0)) for (u, e) in UE]
    for ins in post:
        sc.put(g, ins); g += 1
    assert g <= len(mf)
    rot = rotate(kR, kN, kF)
    for i, ins in enumerate(rot): sc.put(gb + i, ins)
    tail = []
    for G in range(NG - 1):
        jj, q = divmod(G, nq)
        Sx = Sf(G)
        ops = []
        if jj == 0:
            t = vt0; m = vt1
            ops += [valu("v_max3_f32", m, Sx.sub(0), Sx.sub(1), Sx.sub(2)), valu("v_max_f32", m, m, Sx.sub(3))]
            for w in (32, 16):
                ops += [valu("v_mov_b32", t, m), nop(1), vperm(w, t, m), valu("v_max_f32", m, m, t)]
            for r in range(4): ops.append(valu("v_sub_f32", Ci(q).sub(r), 0, m))
            for r in range(4): ops.append(valu("v_sub_f32", Sx.sub(r), Sx.sub(r), m))
        e, a, c = softmax_ops(Sx, q, jj, 0)
        ops += [e[0], e[1], a[0], e[2], a[1], e[3], c[0], a[2], a[3], c[1]]
        if G + 2 < NG:
            n = len(ops)
            for i, ins in enumerate(ops): sc.put(6 * (G + 2) + (i * 6) // n, ins)
        else:
            tail += ops
    sc.add_wait_sites()
    for jj in range(1, 4):
        sc.put(6 * nq * jj - 1, wait())
    return sc.linear() + tail + [wait()]

def setup(cfg):
    o = []
    a = lambda t: o.append(raw(t))
    a("s_cmp_ge_u32 s2, 256"); a("s_cbranch_scc1 L_k1_end")
    a("s_load_dwordx8 s[64:71], s[0:1], 0")
    a("s_load_dwordx8 s[72:79], s[0:1], 40")
    a("s_load_dwordx2 s[80:81], s[0:1], 96")
    if cfg.stamps: a("s_memrealtime s[90:91]")
    a("v_lshrrev_b32 v1, 6, v0"); a("v_and_b32 v0, 63, v0")
    a(f"v_readfirstlane_b32 {sWave}, v1")
    a("s_lshr_b32 s82, s2, 3")
    a("s_bfe_u32 s83, s2, 0x10001"); a("s_lshl_b32 s83, s83, 2"); a("s_lshr_b32 s84, s82, 3"); a("s_add_u32 s83, s83, s84")
    a("s_and_b32 s84, s2, 1"); a("s_lshl_b32 s84, s84, 3"); a("s_and_b32 s85, s82, 7"); a("s_add_u32 s84, s84, s85")
    a("s_bfe_u32 s85, s2, 0x10002")
    a("v_and_b32 v1, 15, v0")
    a("v_lshrrev_b32 v2, 4, v0")
    a("v_and_b32 v3, 6, v1")
    a("v_xor_b32 v4, v2, v3")
    a("v_lshlrev_b32 v4, 4, v4")
    a("v_mul_u32_u24 v5, 384, v1")
    a(f"v_add_u32 {kaddr[0]}, v5, v4")
    a(f"v_xor_b32 v6, 64, v4"); a(f"v_add_u32 {kaddr[1]}, v5, v6")
    a("v_lshlrev_b32 v5, 7, v1")
    a(f"v_add_u32 {xaddr[0]}, v5, v4"); a(f"v_add_u32 {xaddr[1]}, v5, v6")
    a("v_lshrrev_b32 v1, 2, v0"); a("v_and_b32 v3, 6, v1")
    a("v_bfe_u32 v4, v0, 1, 1"); a("v_xor_b32 v4, v4, v3"); a("v_lshlrev_b32 v4, 4, v4")
    a("v_and_b32 v5, 1, v0"); a("v_lshlrev_b32 v5, 3, v5")
    a("v_mul_u32_u24 v6, 384, v1"); a("v_add_u32 v5, v5, v6")
    for m in range(4):
        a(f"v_xor_b32 v6, {32 * m}, v4"); a(f"v_add_u32 {vaddr[m]}, v5, v6")
    a("v_and_b32 v3, 1, v2"); a(f"v_mul_u32_u24 v3, {12288 + cfg.wshift}, v3")
    a("v_lshrrev_b32 v4, 1, v2"); a("v_lshlrev_b32 v4, 2, v4"); a("v_bfe_u32 v5, v0, 2, 2"); a("v_add_u32 v4, v4, v5")
    a("v_mul_u32_u24 v4, 384, v4"); a("v_add_u32 v3, v3, v4")
    a("v_bfe_u32 v4, v0, 3, 1"); a("v_lshlrev_b32 v4, 2, v4"); a("v_and_b32 v5, 3, v0"); a("v_xor_b32 v4, v4, v5"); a("v_lshlrev_b32 v4, 4, v4")
    a(f"v_add_u32 {waddr[0]}, v3, v4"); a("v_xor_b32 v4, 64, v4"); a(f"v_add_u32 {waddr[1]}, v3, v4")
    a("v_lshrrev_b32 v1, 3, v0"); a("v_and_b32 v2, 7, v0")
    for m in range(3):
        a(f"v_add_u32 v3, {8 * m}, v1")
        a("v_mul_u32_u24 v4, 43, v3"); a("v_lshrrev_b32 v4, 7, v4")
        a("v_and_b32 v5, 6, v4"); a("v_xor_b32 v5, v5, v2"); a("v_lshlrev_b32 v5, 4, v5")
        a("v_lshlrev_b32 v6, 7, v1"); a(f"v_add_u32 {dKV[m]}, v5, v6")
        a("v_mul_u32_u24 v5, 3, v4"); a("v_sub_u32 v5, v3, v5"); a("v_lshlrev_b32 v5, 7, v5")
        a("v_bfe_u32 v6, v4, 1, 1"); a("v_lshlrev_b32 v6, 2, v6"); a("v_xor_b32 v6, v6, v2"); a("v_lshlrev_b32 v6, 4, v6"); a("v_add_u32 v5, v5, v6")
        a("v_lshrrev_b32 v6, 2, v4"); a("v_lshlrev_b32 v6, 4, v6"); a("v_and_b32 v7, 3, v4"); a("v_add_u32 v6, v6, v7")
        a("v_mul_u32_u24 v6, 12288, v6"); a("v_add_u32 v5, v5, v6")
        a(f"v_subrev_u32 {dW[m]}, {1024 * m}, v5")
    a("v_and_b32 v3, 6, v1"); a("v_xor_b32 v3, v3, v2"); a("v_lshlrev_b32 v3, 4, v3")
    a("v_mul_u32_u24 v4, 1280, v1"); a(f"v_add_u32 {dX}, v3, v4")
    a(f"v_lshlrev_b32 {vL16}, 4, v0")
    a("s_waitcnt lgkmcnt(0)")
    a("s_cmp_eq_u32 s85, 0")
    for i in range(8): a(f"s_cselect_b32 s{64 + i}, s{64 + i}, s{72 + i}")
    a("s_mul_i32 s86, s83, 307200"); a("s_add_u32 s4, s64, s86"); a("s_addc_u32 s5, s65, 0"); a("s_mov_b32 s6, 307200"); a("s_mov_b32 s7, 0x20000")
    a("s_mov_b32 s8, s70"); a("s_mov_b32 s9, s71"); a("s_mov_b32 s10, 7864320"); a("s_mov_b32 s11, 0x20000")
    a("s_mul_i32 s86, s83, 12582912")
    a("s_add_u32 s12, s66, s86"); a("s_addc_u32 s13, s67, 0"); a("s_mov_b32 s14, 12582912"); a("s_mov_b32 s15, 0x20000")
    a("s_add_u32 s16, s68, s86"); a("s_addc_u32 s17, s69, 0"); a("s_mov_b32 s18, 12582912"); a("s_mov_b32 s19, 0x20000")
    a("s_lshl_b32 s86, s85, 3"); a("s_add_u32 s86, s86, s83"); a("s_mul_i32 s86, s86, 2949120")
    a("s_add_u32 s20, s80, s86"); a("s_addc_u32 s21, s81, 0"); a("s_mov_b32 s22, 2949120"); a("s_mov_b32 s23, 0x20000")
    if cfg.stamps:
        a("s_add_u32 s60, s80, 0x4000000"); a("s_addc_u32 s61, s81, 0"); a("s_mov_b32 s62, 0x100000"); a("s_mov_b32 s63, 0x20000")
    a(f"s_mov_b32 {kR}, {KS[0]}"); a(f"s_mov_b32 {kN}, {KS[1]}"); a(f"s_mov_b32 {kF}, {KS[2]}")
    a(f"s_mov_b32 {vR}, {VS[0]}"); a(f"s_mov_b32 {vN}, {VS[1]}"); a(f"s_mov_b32 {vF}, {VS[2]}")
    a(f"s_mov_b32 {sVcur}, 0"); a(f"s_mov_b32 {sWcur}, {VS[0]}")
    for r in waddr: a(f"v_add_u32 {r}, {VS[0]}, {r}")
    c = math.log2(math.e) / math.sqrt(192.0)
    a(f"s_mov_b32 s38, {fbits(c)}"); a(f"s_mov_b32 s39, {fbits(c)}")
    a(f"s_mov_b32 {sHead}, 0")
    a(f"s_mul_i32 {sKoff}, s84, 393216"); a(f"s_mul_i32 {sWoff}, s84, 384")
    a(f"s_mul_i32 {sXoff}, {sWave}, {64 * 1280}")
    a(f"s_mul_i32 {sOoff}, s84, 92160"); a(f"s_mul_i32 s86, {sWave}, {4 * 6144}"); a(f"s_add_u32 {sOoff}, {sOoff}, s86")
    a(f"s_cmp_eq_u32 {sWave}, 3"); a("s_cbranch_scc1 L_k1_v3")
    return o

def setup_variant(nq, cfg):
    o = []
    def a(t):
        i = raw(t); i.nosim = True; o.append(i)
    if nq == 4:
        a(f"s_mul_i32 {sGrp}, {sWave}, 3072"); a(f"s_add_u32 {sKoff}, {sKoff}, {sGrp}")
        a(f"s_and_b32 s86, {sWave}, 1"); a("s_lshl_b32 s86, s86, 2"); a(f"s_lshr_b32 s87, {sWave}, 1"); a("s_lshl_b32 s87, s87, 5")
        a("s_add_u32 s86, s86, s87"); a("s_mul_i32 s86, s86, 12288"); a(f"s_add_u32 {sWoff}, {sWoff}, s86")
        a(f"s_lshl_b32 s86, {sWave}, 13"); a(f"s_add_u32 {sXl[0]}, s86, {KS[1]}"); a(f"s_add_u32 {sXl[1]}, s86, {KS[2]}")
    else:
        a(f"s_mov_b32 {sXl[0]}, {EB}"); a(f"s_mov_b32 {sXl[1]}, {EB + 6144}")
    a(f"s_mov_b32 {sVoff}, {sKoff}")
    for r in xaddr: a(f"v_add_u32 {r}, {sXl[0]}, {r}")
    def spaced(seq):
        for i in seq:
            o.append(i)
            if 'm0' in i.wr: o.append(nop(0))
    spaced(job_x(nq, 0, 0, cfg)); spaced(job_tile(nq, 'W', vR, absT('W', 0, 0), cfg))
    spaced(job_x(nq, 1, 0, cfg)); spaced(job_tile(nq, 'W', vN, absT('W', 0, 1), cfg))
    spaced(job_tile(nq, 'K', kR, absT('K', 0, 0), cfg))
    o.append(wait(need_vm=lambda c: [('x', 0, 0), ('W', 0, 0)], free=False)); o.append(barrier())
    dep = []
    for q in range(nq):
        for u in range(2):
            r = rdX(nq, 0, 0, q, u); dep += r.wr; o.append(r)
    for T in range(2):
        for (u, e) in UE: o.append(rdW(T, u, e, absT('W', 0, 0)))
    o.append(wait())
    spaced(job_x(nq, 2, 0, cfg, dep))
    o.append(wait())
    return o

def stamp(cfg, idx):
    if not cfg.stamps: return []
    return [raw("s_memrealtime s[56:57]"), raw("s_memtime s[58:59]"), raw("s_waitcnt lgkmcnt(0)"),
            raw(f"s_mov_b32 s{64 + 2 * idx}, s56"), raw(f"s_mov_b32 s{65 + 2 * idx}, s58")]

def variant(nq, cfg):
    sfx = f"_{nq}"
    su = setup_variant(nq, cfg) + stamp(cfg, 0)
    q1 = qproj(nq, cfg, False); q1.add_wait_sites()
    q2 = qproj(nq, cfg, True); q2.add_wait_sites()
    cp = conv_prologue(nq, cfg)
    jK = lambda: job_tile(nq, 'K', kF, tagK(3), cfg)
    jV = lambda: job_tile(nq, 'V', vF, tagV(2), cfg)
    i0 = attn_iter(nq, 0, cfg, first_pv=True, jobs=[jK()])
    i1 = attn_iter(nq, 1, cfg, jobs=[jK(), jV()])
    i2 = attn_iter(nq, 0, cfg, jobs=[jK(), jV()])
    fixK = [salu("s_add_u32", sKoff, sKoff, 15 * 393216)]
    fixV = [salu("s_add_u32", sVoff, sVoff, 15 * 393216)]
    fixW = [salu("s_sub_u32", sWoff, sWoff, 0 if cfg.fake > 1 else 10 * 786432 - 16 * 384)]
    a13 = attn_iter(nq, 1, cfg, jobs=[jV(), fixK, fixV, fixW, job_x(nq, 0, 1, cfg)])
    a14 = attn_iter(nq, 0, cfg, jobs=[job_tile(nq, 'W', vF, absT('W', 1, 0), cfg), job_x(nq, 1, 1, cfg)], next_k=False, k_rot=False)
    a15 = attn_last(nq, cfg, True)
    b13 = attn_iter(nq, 1, cfg, jobs=[jV()])
    b14 = attn_iter(nq, 0, cfg, next_k=False, k_rot=False)
    b15 = attn_last(nq, cfg, False)
    i0.place(smov(sLoop, 6), 20, 60)
    i2.place(salu("s_sub_u32", sLoop, sLoop, 1), 20, 60)
    for s in (i0, i1, i2, a13, a14, a15, b13, b14, b15): s.add_wait_sites()
    loopend = [scmp("s_cmp_lg_u32", sLoop, 0), raw(f"s_cbranch_scc1 L_loop{sfx}")]
    headbr = [scmp("s_cmp_lg_u32", sHead, 0), raw(f"s_cbranch_scc1 L_tail2{sfx}")]
    back = [smov(sHead, 1), raw(f"s_branch L_head{sfx}")]
    fin = [nop(7)]
    i = 0
    for s in range(6):
        for q in range(nq):
            fin += epi_block(q, s, TMP[i & 1], cfg); i += 1
    end = []
    if cfg.stamps:
        end += [raw("s_waitcnt vmcnt(0)")] + stamp(cfg, 7)
        end += [raw("s_mov_b32 s80, s90"), raw("s_mov_b32 s81, 0")]
        for i in range(20): end.append(raw(f"v_mov_b32 v{i}, s{64 + i}"))
        end += [raw(f"s_lshl_b32 s86, s2, 2"), raw(f"s_add_u32 s86, s86, {sWave}"), raw("s_lshl_b32 s86, s86, 7"), raw("v_mov_b32 v20, 0"), raw("s_nop 1")]
        for i in range(5): end.append(raw(f"buffer_store_dwordx4 v[{4 * i}:{4 * i + 3}], v20, s[60:63], s86 offen offset:{16 * i}"))
    end.append(raw("s_endpgm"))
    L = lambda s: s.linear()
    st = lambda i: stamp(cfg, i)
    s1, s2, s3, s4, s5, s6 = st(1), [], st(3), st(4), st(5), st(6)
    code = su + L(q1) + s1 + [label(f"L_head{sfx}")] + cp + L(i0) + [raw(".p2align 3", 'L', states=0), label(f"L_loop{sfx}")] + L(i1) + L(i2) + loopend + headbr \
        + L(a13) + L(a14) + L(a15) + s3 + L(q2) + s4 + back + [label(f"L_tail2{sfx}")] + L(b13) + L(b14) + L(b15) + s6 + fin + end
    tr = []
    def add(ins, **c): tr.extend((i, c) for i in ins)
    add(su, h=0, t=-9); add(L(q1) + s1, h=0, t=-5)
    for h in range(2):
        add(cp, h=h, t=-1); add(L(i0), h=h, t=0)
        for t in range(1, 13, 2):
            add(L(i1), h=h, t=t); add(L(i2), h=h, t=t + 1); add(loopend, h=h, t=t + 1)
        add(headbr, h=h, t=12)
        if h == 0:
            add(L(a13), h=0, t=13); add(L(a14), h=0, t=14); add(L(a15) + s3, h=0, t=15); add(L(q2) + s4, h=1, t=-5); add(back, h=1, t=-5)
        else:
            add(L(b13), h=1, t=13); add(L(b14), h=1, t=14); add(L(b15) + s6, h=1, t=15); add(fin + end, h=1, t=16)
    derive_waits(tr, f"k1 nq{nq}", verbose=True)
    ok = check_hazards(tr, f"k1 nq{nq}")
    ok = check_seqs(code) and ok
    for w in ([0, 1, 2] if nq == 4 else [3]):
        h0 = 5
        grp = w * 3072 if nq == 4 else 0
        k0 = [0, 4, 32, 0][w]
        init = {'wave': w, 'h0': h0, str(kR): KS[0], str(kN): KS[1], str(kF): KS[2], str(vR): VS[0], str(vN): VS[1], str(vF): VS[2],
                str(sVcur): 0, str(sWcur): VS[0], str(sKoff): h0 * 393216 + grp, str(sVoff): h0 * 393216 + grp, str(sWoff): h0 * 384 + k0 * 12288,
                str(sXoff): w * 64 * 1280, str(sOoff): h0 * 92160 + w * 4 * 6144, str(sGrp): grp,
                str(sXl[0]): (KS[1] + w * 8192 if nq == 4 else EB), str(sXl[1]): (KS[2] + w * 8192 if nq == 4 else EB + 6144)}
        for r in kaddr + vaddr: init[str(r)] = 0
        for r in waddr: init[str(r)] = VS[0]
        if not cfg.fake: ok = sim_scalar(tr, init, f"nq{nq} w{w}") and ok
    info = {n: s.cycles() for n, s in dict(q1=q1, q2=q2, i0=i0, i1=i1, i2=i2, a13=a13, a14=a14, a15=a15, b15=b15).items()}
    print(f"nq{nq} model cycles:", info)
    return code, tr, ok

def build_k1(cfg, name):
    su = setup(cfg)
    c4, t4, ok4 = variant(4, cfg)
    c3, t3, ok3 = variant(3, cfg)
    okl = check_lds({4: t4, 3: t3})
    assert ok4 and ok3 and okl
    lines = [f".globl {name}", ".p2align 8", f".type {name},@function", f"{name}:"]
    lines += emit(su) + emit(c4) + ["L_k1_end:", "s_endpgm", "L_k1_v3:"] + emit(c3)
    return lines

if __name__ == "__main__":
    l = build_k1(Cfg(), "k1_kernel")
    print(len(l), "lines")
```

```python
import re

def R(f, a, n=1):
    return [f"{f}{a+i}" for i in range(n)]

def rt(f, a, n=1):
    return f"{f}{a}" if n == 1 else f"{f}[{a}:{a+n-1}]"

class Reg:
    def __init__(self, f, a, n=1):
        self.f, self.a, self.n = f, a, n
    def __str__(self): return rt(self.f, self.a, self.n)
    def regs(self): return R(self.f, self.a, self.n)
    def sub(self, o, n=1): return Reg(self.f, self.a + o, n)
def V(a, n=1): return Reg('v', a, n)
def A(a, n=1): return Reg('a', a, n)
def S(a, n=1): return Reg('s', a, n)

def regs_of(x):
    if isinstance(x, Reg): return x.regs()
    if isinstance(x, str) and x in ('m0', 'vcc', 'exec', 'scc'): return [x]
    return []

class Ins:
    def __init__(self, text, kind, rd=(), wr=(), **kw):
        self.text, self.kind = text, kind
        self.rd, self.wr = list(rd), list(wr)
        self.trans = kw.get('trans', False)
        self.perm = kw.get('perm', False)
        self.srcC = kw.get('srcC', [])
        self.store = kw.get('store', False)
        self.stdata = kw.get('stdata', [])
        self.dma = kw.get('dma', False)
        self.tag = kw.get('tag')
        self.slot = kw.get('slot')
        self.private = kw.get('private', False)
        self.need_vm = kw.get('need_vm')
        self.need_lgkm0 = kw.get('lgkm0', False)
        self.lgkm = None
        self.vm = None
        self.free = kw.get('free', True)
        self.states = kw.get('states', 1)
        self.lgkm_cnt = kw.get('lgkm_cnt', kind == 'D')
    def emit(self):
        if self.kind == 'W':
            p = []
            if self.vm is not None: p.append(f"vmcnt({self.vm})")
            if self.lgkm is not None: p.append(f"lgkmcnt({self.lgkm})")
            if not p: return None
            return "s_waitcnt " + " ".join(p)
        return self.text

def mfma(D, Aop, Bop, C):
    c = str(C) if isinstance(C, Reg) else "0"
    return Ins(f"v_mfma_f32_16x16x32_bf16 {D}, {Aop}, {Bop}, {c}", 'M',
               rd=Aop.regs() + Bop.regs() + regs_of(C), wr=D.regs(), srcC=regs_of(C))
def valu(op, D, *src, kind='V', **kw):
    rd = []
    for s in src: rd += regs_of(s)
    extra_rd = kw.pop('rd', []); extra_wr = kw.pop('wr', [])
    return Ins(f"{op} {D}, " + ", ".join(str(s) for s in src), kind, rd=rd + extra_rd, wr=regs_of(D) + extra_wr, **kw)
def vexp(D, s): return valu("v_exp_f32", D, s, kind='E', trans=True)
def vrcp(D, s): return valu("v_rcp_f32", D, s, kind='E', trans=True)
def vperm(which, a, b):
    return Ins(f"v_permlane{which}_swap_b32 {a}, {b}", 'E', rd=a.regs() + b.regs(), wr=a.regs() + b.regs(), perm=True)
def salu(op, D, *src, scc=True, **kw):
    rd = []
    for s in src: rd += regs_of(s)
    return Ins(f"{op} {D}, " + ", ".join(str(s) for s in src), 'S', rd=rd + kw.pop('rd', []),
               wr=regs_of(D) + (['scc'] if scc else []), **kw)
def smov(D, s): return salu("s_mov_b32", D, s, scc=False)
def scmp(op, a, b):
    return Ins(f"{op} {a}, {b}", 'S', rd=regs_of(a) + regs_of(b), wr=['scc'])
def nop(n=0): return Ins(f"s_nop {n}", 'S', states=n + 1)
def raw(text, kind='S', rd=(), wr=(), **kw): return Ins(text, kind, rd, wr, **kw)
def label(name): return Ins(name + ":", 'L', states=0)
def dsread(op, D, addr, off, tag=None, private=False):
    o = f" offset:{off}" if off else ""
    return Ins(f"{op} {D}, {addr}{o}", 'D', rd=addr.regs(), wr=D.regs(), tag=tag, private=private)
def dswrite(op, addr, data, off):
    o = f" offset:{off}" if off else ""
    return Ins(f"{op} {addr}, {data}{o}", 'D', rd=addr.regs() + data.regs())
def dma(addr, srd, soff, off, flags="", tag=None, slot=None, private=False):
    o = f" offset:{off}" if off else ""
    fl = f" {flags}" if flags else ""
    return Ins(f"buffer_load_dwordx4 {addr}, {srd}, {soff} offen{o}{fl} lds", 'X',
               rd=addr.regs() + srd.regs() + regs_of(soff) + ['m0'], dma=True, tag=tag, slot=slot, private=private)
def gload(D, addr, srd, soff, off, flags="", op="buffer_load_dwordx4"):
    o = f" offset:{off}" if off else ""
    fl = f" {flags}" if flags else ""
    return Ins(f"{op} {D}, {addr}, {srd}, {soff} offen{o}{fl}", 'X',
               rd=addr.regs() + srd.regs() + regs_of(soff), wr=D.regs())
def gstore(data, addr, srd, soff, off, flags="", op=None):
    op = op or {1: "buffer_store_dword", 2: "buffer_store_dwordx2", 4: "buffer_store_dwordx4"}[data.n]
    o = f" offset:{off}" if off else ""
    fl = f" {flags}" if flags else ""
    return Ins(f"{op} {data}, {addr}, {srd}, {soff} offen{o}{fl}", 'X',
               rd=addr.regs() + srd.regs() + regs_of(soff) + data.regs(), store=True, stdata=data.regs())
def wait(need_vm=None, lgkm0=False, free=True): return Ins("", 'W', need_vm=need_vm, lgkm0=lgkm0, free=free)
def barrier(): return Ins("s_barrier", 'B')

COST = {'M': 4, 'S': 1, 'W': 1, 'B': 1, 'V': 1, 'E': 2, 'D': 2, 'X': 3, 'L': 0}

class Sched:
    def __init__(self, mf):
        self.mf = mf
        self.g = [[] for _ in mf]
        self.pre = []
        self.post = []
    def _slots(self, items):
        items = self.order(items)
        t = 1
        prev = None
        for it in items:
            k = it.kind
            if k in 'VE' and t < 2: t = 2
            if k in 'DX' and prev in ('V', 'E'): t += 1
            t += getattr(it, 'cost', COST[k])
            prev = k
        return t
    @staticmethod
    def order(items):
        return items
    def fits(self, i, ins, front=False):
        items = ([ins] + self.g[i]) if front else (self.g[i] + [ins])
        return self._slots(items) <= 4
    def put(self, i, ins, front=False):
        if front: self.g[i].insert(0, ins)
        else: self.g[i].append(ins)
    def place(self, ins, lo, hi, force=True):
        hi = min(hi, len(self.g) - 1)
        assert lo <= hi, (ins.text, lo, hi)
        for i in range(lo, hi + 1):
            cand = self._insert(self.g[i], ins)
            if self._slots(cand) <= 4:
                self.g[i] = cand
                return i
        if not force: return None
        best = min(range(lo, hi + 1), key=lambda i: self._slots(self._insert(self.g[i], ins)))
        self.g[best] = self._insert(self.g[best], ins)
        return best
    @staticmethod
    def _insert(items, ins):
        if ins.kind in 'VE': return items + [ins]
        k = 0
        while k < len(items) and items[k].kind not in 'VE': k += 1
        return items[:k] + [ins] + items[k:]
    def add_wait_sites(self):
        for i in range(len(self.g)):
            if any(it.kind == 'W' for it in self.g[i]): continue
            w = wait()
            cand = self._insert(self.g[i], w)
            if self._slots(cand) <= max(4, self._slots(self.g[i])):
                self.g[i] = cand
    def linear(self):
        out = list(self.pre)
        for m, g in zip(self.mf, self.g):
            out.append(m); out += g
        return out + list(self.post)
    def part(self, lo, hi):
        out = []
        for m, g in zip(self.mf[lo:hi], self.g[lo:hi]):
            out.append(m); out += g
        return out
    def cycles(self):
        return sum(4 * max(4, self._slots([x for x in g if not (x.kind == 'W' and x.emit() is None)])) for g in self.g)

def derive_waits(trace, name="", verbose=False):
    changed = True
    npass = 0
    mind = {}
    while changed:
        changed = False
        npass += 1
        assert npass < 50
        pend = {}
        nl = nv = 0
        donel = donev = 0
        sites = []
        vmtags = {}
        lissue = {}; vissue = {}
        mcount = 0
        for pos, (ins, ctx) in enumerate(trace):
            if ins.kind == 'W':
                if ins.need_vm is not None:
                    need = ins.need_vm(ctx)
                    if need == 'all': idx = nv
                    else: idx = max([vmtags.get(t, 0) for t in need] + [0])
                    if idx > donev:
                        n = min(63, nv - idx)
                        if ins.vm is None or n < ins.vm: ins.vm = n; changed = True
                if ins.need_lgkm0 and ins.lgkm != 0:
                    ins.lgkm = 0; changed = True
                if ins.lgkm is not None and nl - ins.lgkm > donel:
                    d = mcount - lissue[nl - ins.lgkm]
                    mind[id(ins)] = min(mind.get(id(ins), (1 << 30, None))[0], d), pos
                    donel = nl - ins.lgkm
                if ins.vm is not None: donev = max(donev, nv - ins.vm)
                sites.append((ins, nl, nv))
                continue
            for r in ins.rd + ins.wr:
                if r in pend:
                    c, idx = pend[r]
                    if c == 'l' and idx > donel:
                        ok = False
                        for (w, snl, snv) in reversed(sites):
                            if snl < idx: break
                            if not w.free: continue
                            n = min(15, snl - idx)
                            if w.lgkm is None or n < w.lgkm: w.lgkm = n; changed = True
                            donel = max(donel, snl - w.lgkm); ok = True
                            break
                        assert ok, f"{name}: no lgkm wait site for {ins.text} (reg {r}) ctx {ctx}"
                    if c == 'v' and idx > donev:
                        ok = False
                        for (w, snl, snv) in reversed(sites):
                            if snv < idx: break
                            if not w.free: continue
                            n = min(63, snv - idx)
                            if w.vm is None or n < w.vm: w.vm = n; changed = True
                            donev = max(donev, snv - w.vm); ok = True
                            break
                        assert ok, f"{name}: no vm wait site for {ins.text} (reg {r}) ctx {ctx}"
                    del pend[r]
            if ins.kind == 'M': mcount += 1
            if ins.lgkm_cnt:
                nl += 1; lissue[nl] = mcount
                for r in ins.wr: pend[r] = ('l', nl)
            if ins.kind == 'X':
                nv += 1; vissue[nv] = mcount
                for r in ins.wr: pend[r] = ('v', nv)
                if ins.dma and ins.tag: vmtags[ins.tag(ctx)] = nv
        if changed: mind = {}
    if verbose:
        short = sorted((d, p) for d, p in mind.values())[:12]
        print(f"[{name}] shortest ds->wait distances (mfma count, pos):", short)

def live(trace):
    return [(i, c) for (i, c) in trace if not (i.kind == 'W' and i.emit() is None) and i.kind != 'L']

def check_hazards(trace, name=""):
    tr = live(trace)
    errs = []
    n = len(tr)
    def look(i, need, pred, what):
        st = 0
        j = i + 1
        while j < n and st < need:
            c = tr[j][0]
            if pred(c):
                errs.append(f"{what}: [{tr[i][0].text}] -> [{c.emit()}] states {st} < {need} ctx {tr[i][1]}")
            st += c.states
            j += 1
    for i, (p, ctx) in enumerate(tr):
        W = set(p.wr)
        if p.kind == 'M':
            def cons8(c):
                if c.kind == 'M':
                    ab = set(c.rd) - set(c.srcC)
                    return bool(ab & W)
                if c.kind in 'VEDX': return bool((set(c.rd) | set(c.wr)) & W)
                return False
            look(i, 8, cons8, "mfmaD->use")
            look(i, 6, lambda c: c.kind == 'M' and bool(set(c.srcC) & W) and c.srcC != p.wr, "mfmaD->partialC")
            look(i, 6, lambda c: c.kind == 'M' and bool(set(c.wr) & W) and c.srcC != p.wr, "mfmaD->WAW")
            C = set(p.srcC)
            look(i, 3, lambda c: c.kind in 'VE' and bool(set(c.wr) & C), "mfmaC WAR")
        if p.kind in 'VE':
            vw = {r for r in W if r[0] in 'va' and r != 'vcc'}
            sw = W - vw
            look(i, 2, lambda c: c.kind == 'M' and bool(set(c.rd) & vw), "valu->mfma")
            look(i, 2, lambda c: c.perm and bool(set(c.rd) & vw), "valu->permlane")
            look(i, 1, lambda c: 'readfirstlane' in c.text and bool(set(c.rd) & vw), "valu->readlane")
            if p.trans:
                look(i, 1, lambda c: c.kind in 'VE' and not c.trans and bool(set(c.rd) & vw), "trans->valu")
            if sw:
                look(i, 5, lambda c: c.kind == 'X' and bool(set(c.rd) & sw), "valu sgpr->vmem")
                look(i, 2, lambda c: c.kind in 'VE' and bool(set(c.rd) & sw), "valu sgpr->valu")
                look(i, 4, lambda c: c.kind == 'S' and bool(set(c.rd) & sw), "valu sgpr->salu(pad)")
        if p.kind == 'S' and 'm0' in W:
            look(i, 1, lambda c: c.dma, "m0->dma")
        if p.store and len(p.stdata) > 2:
            D = set(p.stdata)
            look(i, 2, lambda c: c.kind in 'VE' and bool(set(c.wr) & D), "store data WAR")
    seen = set()
    for e in errs:
        k = e.split(" ctx")[0]
        if k not in seen:
            seen.add(k); print(f"HAZARD[{name}]", e)
    return not errs

def lds_events(trace):
    ep = 0
    nl = nv = 0
    dmas = []
    reads = []
    pl = pv = 0
    for pos, (ins, ctx) in enumerate(trace):
        if ins.kind == 'B': ep += 1
        if ins.kind == 'W':
            if ins.lgkm is not None:
                while pl < len(reads) and reads[pl][1] <= nl - ins.lgkm:
                    reads[pl][3] = ep; reads[pl][6] = pos; pl += 1
            if ins.vm is not None:
                while pv < len(dmas) and dmas[pv][2] <= nv - ins.vm:
                    dmas[pv][4] = ep; dmas[pv][7] = pos; pv += 1
        if ins.lgkm_cnt:
            nl += 1
            if ins.tag: reads.append([ins.tag(ctx), nl, ep, None, ins.private, pos, None])
        if ins.kind == 'X':
            nv += 1
            if ins.dma and ins.tag:
                sl = ins.slot(ctx)
                for x in ([('k', sl[1]), ('v', sl[1])] if isinstance(sl, tuple) and sl[0] == 'kv' else [sl]):
                    dmas.append([ins.tag(ctx), x, nv, ep, None, ins.private, pos, None])
    return dmas, reads, ep

def check_lds(traces, name=""):
    ev = {k: lds_events(t) for k, t in traces.items()}
    eps = {k: e[2] for k, e in ev.items()}
    ok = True
    if len(set(eps.values())) != 1:
        print("LDS: barrier counts differ", eps); ok = False
    INF = 1 << 30
    done = {}; written = set()
    for k, (dm, rd, _) in ev.items():
        for d in dm:
            written.add(d[0])
            if not d[5]: done[d[0]] = max(done.get(d[0], -1), INF if d[4] is None else d[4])
    for k, (dm, rd, _) in ev.items():
        pdone = {}
        for d in dm:
            if d[5]: pdone[d[0]] = max(pdone.get(d[0], -1), INF if d[7] is None else d[7])
        for r in rd:
            if r[0] not in written: print("LDS: read of never written tile", r[0], k); ok = False; continue
            if r[4]:
                if not pdone.get(r[0], INF) < r[5]: print("LDS RAW(private)", k, r[0]); ok = False
            elif not done[r[0]] < r[2]:
                print("LDS RAW", k, r[0], "dma done epoch", done[r[0]], "read epoch", r[2]); ok = False
    rdone = {}
    for k, (dm, rd, _) in ev.items():
        for r in rd:
            rdone.setdefault(r[0], {})
            e = rdone[r[0]].get(k, (-1, -1))
            rdone[r[0]][k] = (max(e[0], INF if r[3] is None else r[3]), max(e[1], INF if r[6] is None else r[6]))
    occ = {}
    first = {}
    for k, (dm, rd, _) in ev.items():
        for d in dm:
            key = (d[1], d[0])
            first[key] = min(first.get(key, (INF, INF)), (d[3], d[6]))
    for (slot, tile), e in sorted(first.items(), key=lambda x: x[1]):
        occ.setdefault(slot, []).append(tile)
    priv = {}
    for k, (dm, rd, _) in ev.items():
        for d in dm: priv[d[0]] = d[5]
    for k, (dm, rd, _) in ev.items():
        for d in dm:
            lst = occ[d[1]]
            i = lst.index(d[0])
            if i == 0: continue
            prev = lst[i - 1]
            for k2, (e, p) in rdone.get(prev, {}).items():
                if d[5] and priv[prev]:
                    if k2 == k and not p < d[6]: print("LDS WAR(private)", k, d[0], "over", prev); ok = False
                else:
                    if priv[prev] and not any(x[0] == prev and x[1] == d[1] for x in ev[k2][0]): continue
                    if not e < d[3]:
                        print("LDS WAR", k, d[0], "issue epoch", d[3], "over", prev, "read done epoch", e, k2); ok = False
    return ok

SEQS = []
def check_seqs(code):
    pos = {id(i): k for k, i in enumerate(code)}
    ok = True
    for seq in SEQS:
        p = [pos[id(i)] for i in seq if id(i) in pos]
        if p != sorted(p):
            print("SEQ ORDER broken:", [i.text for i in seq][:6], p); ok = False
    return ok

def sim_scalar(trace, init, name=""):
    st = dict(init)
    ok = True
    def val(x):
        x = x.strip()
        if x in st: return st[x]
        if re.fullmatch(r"-?\d+|0x[0-9a-f]+", x): return int(x, 0)
        return None
    nerr = 0
    for ins, ctx in trace:
        ex = getattr(ins, 'expect', None)
        if ex is not None:
            msg = ex(ctx, st)
            if msg:
                ok = False; nerr += 1
                if nerr < 10: print(f"SIM[{name}] {ins.text}: {msg} ctx {ctx}")
        if hasattr(ins, 'simfn'): ins.simfn(st); continue
        m = re.match(r"(s_add_u32|s_sub_u32|s_mov_b32|v_add_u32) (\S+), (\S+?)(?:, (\S+))?$", ins.text)
        if (not m or getattr(ins, 'nosim', False)) and ins.kind != 'M':
            for r in ins.wr: st.pop(r, None)
        if m and not getattr(ins, 'nosim', False):
            op, d, a, b = m.groups()
            va = val(a); vb = val(b) if b else None
            if op == 's_mov_b32': r = va
            elif va is None or vb is None: r = None
            elif op == 's_sub_u32': r = (va - vb) & 0xffffffff
            else: r = (va + vb) & 0xffffffff
            if r is None: st.pop(d, None)
            else: st[d] = r
    return ok

def emit(instrs):
    out = []
    for i in instrs:
        t = i.emit()
        if t is not None: out.append(t)
    return out
```

```python
import math, struct
from asmlib import *

SL = 24832
KS = [0, SL, 2 * SL]
VS = [3 * SL, 4 * SL, 5 * SL]
EB = 6 * SL
FLAG = EB + 12288
LDS_BYTES = 163840

sX, sW, sK, sV, sO = S(4, 4), S(8, 4), S(12, 4), S(16, 4), S(20, 4)
sWave = S(24)
kR, kN, kF = S(25), S(26), S(27)
vR, vN, vF = S(28), S(29), S(30)
sKoff, sVoff, sWoff, sXoff = S(31), S(32), S(33), S(34)
sLoop, sHead = S(35), S(36)
sThr = S(37)
sC2 = S(38, 2)
sGrp = S(40)
sT0, sT1, sT2, sT3, sT4 = S(41), S(42), S(43), S(47), S(55)
sXl = [S(44), S(45)]
sOoff = S(46)
sWcur, sVcur = S(48), S(49)
sTo = S(50)
sTx = S(51)
sBad = S(52, 2)
sWopf = S(54)
sTs = S(56, 4)
sOr, sOut, sEx, sDbg = S(60, 4), S(64, 4), S(68, 4), S(72, 4)
sOb, sWb, sLb, sOutb = S(76), S(77), S(78), S(79)
sExs, sExr, sFs, sFr = S(80), S(81), S(82), S(83)
sSig, sCnt, sMyc = S(84), S(85), S(86)
sRedo, sIdle = S(87), S(88)
sK0, sW0, sX0 = S(89), S(90), S(91)
sKend, sVend, sWend, sXend = S(92), S(93), S(94), S(95)
sWo = S(96, 4)
sSpin = S(100)
sTp = S(101)
OOB = 0x7fff0000
EXOFF = 0x3000000
FLOFF = 0xC00000
STOFF = 0x1000000

def blk(q, s): return q * 6 + s
def Qf(q, s): return V(8 * blk(q, s), 4)
def QACC(T, q): return V(8 * blk(q, T >> 1) + 4 * (T & 1), 4)
def U(i): return V(8 * i + 4, 4)
def Pf(par, q, u): return U(par * 8 + q * 2 + u)
def Sf(i): return U(16 + (i & 3))
def Ci(q): return U(20 + q)
def VB(b, u, e=None):
    return V(192 + 8 * b + 4 * u, 4) if e is None else V(192 + 8 * b + 4 * u + 2 * e, 2)
TMP = [V(216, 8), V(224, 8)]
def Lq(q): return V(232 + q)
kaddr = [V(236), V(237)]
vaddr = [V(238), V(239), V(240), V(241)]
waddr = [V(242), V(243)]
xaddr = [V(244), V(245)]
dKV = [V(246), V(247), V(248)]
dW = [V(249), V(250), V(251)]
dX = V(252)
vL16 = V(253)
vt0, vt1 = V(224), V(225)
vOne = V(254)
vStamp = V(255)
raddr = [V(249), V(250), V(251), V(242)]
def PACC(N, q): return V(4 * (N * 5 + q), 4)
def OF(b, q, u):
    i = 2 * q + u
    if b == 0: return A(192 + 4 * i, 4)
    if b == 1: return A(232 + 4 * i, 4) if i < 6 else U(20 + i - 6)
    return V(8 * (20 + i), 4) if i < 4 else A(4 * (i - 4), 4)
def Oacc(T, q): return A(4 * (T * 4 + q), 4)
def Kf(b, s): return A(192 + 24 * b + 4 * s, 4)
def Xf(par, q, u): return A(192 + 32 * par + 8 * q + 4 * u, 4)

def fbits(x): return "0x%08x" % struct.unpack("<I", struct.pack("<f", x))[0]

class Cfg:
    wshift = 8
    kvflags = "nt"
    wflags = ""
    xflags = ""
    oflags = "sc1"
    orflags = "sc1"
    woflags = ""
    pubchunk = 5
    thr = 40
    stamps = False
    fake = 0
    nostore = 0
    w3all = 1
    rotkv = 1
    rotq = 1
    codepf = 1
    wopf = 1

def tagK(dn): return lambda c: ('K', c['h'], c['t'] + dn)
def tagV(dn): return lambda c: ('V', c['h'], c['t'] + dn)
def absT(kind, dh, n): return lambda c: (kind, c['h'] + dh, n)
def slot_of(tile, nq):
    k, h, n = tile
    if k == 'K': return ('k', n % 3)
    if k == 'x': return ('k', 1 + n % 2) if nq == 4 else ('e', n % 2)
    if k == 'W': return ('v', (h * 26 + n) % 3)
    if k == 'V': return ('v', (h * 26 + 10 + n) % 3)
    if k == 'U': return ('kv', (n + 1) % 3)

def slot_base(slot):
    return {'k': KS, 'v': VS, 'e': [EB, EB + 6144]}[slot[0]][slot[1]]
def exp_dma(ins, tag, nq, soff, imm, idx, cfg):
    def f(c, st):
        k, h, n = tag(c); w = st['wave']; base = slot_base(slot_of((k, h, n), nq)); hh = st['h0'] + 16 * h
        if k == 'x':
            el = base + (w * 8192 if nq == 4 else 0) + idx * 1024
            eg = w * 64 * 1280 + 128 * ((n + st['rq']) % 10) + idx * 10240
        else:
            i = idx + (3 * w if nq == 4 else 0); mm = i // 3
            n = (n + st['rq']) % 10 if k == 'W' else (n + st['rk']) % 16
            el = base + i * 1024
            if k == 'W':
                el += cfg.wshift if mm >= 4 else 0
                eg = hh * 384 + (64 * n + 32 * ((mm & 3) >> 1) + 4 * (mm & 1) + 8 * (mm >> 2)) * 12288 + (i % 3) * 1024
            else: eg = hh * 393216 + n * 24576 + i * 1024
        gl, gg = st.get('m0'), st.get(str(soff))
        if gl is None or gg is None or gl + imm != el or gg + imm != eg: return f"lds {gl}+{imm} vs {el}; glob {gg}+{imm} vs {eg} tile {(k, h, n)}"
    ins.expect = f
    return ins
def exp_rd(ins, addr, tag):
    def f(c, st):
        base = slot_base(slot_of(tag(c), 4))
        if st.get(str(addr)) != base: return f"base {st.get(str(addr))} vs {base} tile {tag(c)}"
    ins.expect = f
    return ins

def advance(off, end, step, span, on=True):
    o = [salu("s_add_u32", off, off, step)]
    if on:
        i = Ins(f"s_cmp_eq_u32 {off}, {end}\ns_cselect_b32 {sT4}, {span}, 0", 'S', rd=off.regs() + end.regs(), wr=['scc'] + sT4.regs(), states=2)
        i.cost = 2
        i.simfn = lambda st: st.__setitem__(str(sT4), span if st[str(off)] == st[str(end)] else 0)
        o += [i, salu("s_sub_u32", off, off, sT4)]
    return o

def job_tile(nq, kind, slotreg, tag, cfg, groups=None, adv=True):
    srd, off, end, addr, fl = {'K': (sK, sKoff, sKend, dKV, cfg.kvflags), 'V': (sV, sVoff, sVend, dKV, cfg.kvflags),
                               'W': (sW, sWoff, sWend, dW, cfg.wflags)}[kind]
    sl = lambda c: slot_of(tag(c), nq)
    out = []
    if nq == 4:
        if groups is None:
            out.append(salu("s_add_u32", 'm0', slotreg, sGrp))
            for m in range(3): out.append(exp_dma(dma(addr[m], srd, off, 1024 * m, fl, tag=tag, slot=sl), tag, nq, off, 1024 * m, m, cfg))
    else:
        for mm in (range(3, 8) if groups is None else groups):
            if kind == 'W':
                k0 = 32 * ((mm & 3) >> 1) + 4 * (mm & 1) + 8 * (mm >> 2)
                go = k0 * 12288; lo = mm * 3072 + (cfg.wshift if mm >= 4 else 0)
            else:
                go = lo = mm * 3072
            out.append(salu("s_add_u32", 'm0', slotreg, lo))
            out.append(salu("s_add_u32", sT0, off, go))
            for m in range(3): out.append(exp_dma(dma(addr[m], srd, sT0, 1024 * m, fl, tag=tag, slot=sl), tag, nq, sT0, 1024 * m, 3 * mm + m, cfg))
    if adv:
        step = 786432 if kind == 'W' else 24576
        if cfg.fake and (kind != 'W' or cfg.fake > 1): step = 0
        out += advance(off, end, step, 7864320 if kind == 'W' else 393216)
    return out

def job_x(nq, n, dh, cfg, dep=()):
    tag = absT('x', dh, n); sl = lambda c: slot_of(tag(c), nq)
    out = []
    for i in range(2 * nq):
        if i % 4 == 0: out.append(salu("s_add_u32", 'm0', sXl[n & 1], 1024 * i))
        out.append(salu("s_add_u32", sTx, sXoff, 10240 * i - 1024 * (i % 4)))
        d = dma(dX, sX, sTx, 1024 * (i % 4), cfg.xflags, tag=tag, slot=sl, private=True)
        exp_dma(d, tag, nq, sTx, 1024 * (i % 4), i, cfg)
        if i == 0: d.rd += list(dep)
        out.append(d)
    out += advance(sXoff, sXend, 0 if cfg.fake > 1 else 128, 1280)
    return out

def seq_after(sc, seq, lo, hi, even=False):
    seq = list(seq)
    SEQS.append(seq)
    hi = min(hi, len(sc.g) - 1)
    n = len(seq)
    nx = sum(1 for i in seq if i.kind == 'X'); kx = 0
    g = lo; prev = None; pg = None
    for k, ins in enumerate(seq):
        dl = max(g, min(hi, lo + ((k + 1) * (hi - lo + 1) + n - 1) // n - 1))
        if not even: dl = max(g, min(hi, hi - (n - 1 - k) // 2))
        g1 = g
        if even and ins.kind == 'X': g1 = max(g, min(dl, lo + (kx * (hi - lo + 1)) // nx))
        same_bad = prev is not None and ((prev.kind in 'VE' and ins.kind not in 'VE') or ('m0' in prev.wr and ins.dma))
        if same_bad and g1 == pg:
            if g1 + 1 <= hi: g1 += 1; dl = max(dl, g1)
            else:
                if 'm0' in prev.wr: sc.g[g1].append(nop(0))
                sc.g[g1].append(ins); prev = ins; pg = g1
                for rest in seq[k + 1:]:
                    if 'm0' in prev.wr and rest.dma: sc.g[g1].append(nop(0))
                    sc.g[g1].append(rest); prev = rest
                return g1
        r = sc.place(ins, g1, dl, force=True)
        if ins.kind == 'X': kx += 1
        g = r; pg = r; prev = ins
    return g

def place_even(sc, seq, lo, hi): return seq_after(sc, seq, lo, hi, even=True)

def rdK(j, s, tag): return exp_rd(dsread("ds_read_b128", Kf(j & 1, s), kaddr[s & 1], (j & 3) * 6144 + (s >> 1) * 128, tag), kaddr[s & 1], tag)
def rdV(T, u, e, tag):
    T %= 12
    return exp_rd(dsread("ds_read_b64_tr_b16", VB(T & 3, u, e), vaddr[T & 3], (32 * u + 16 * e) * 384 + (T >> 2) * 128, tag), vaddr[T & 3], tag)
def rdW(T, u, e, tag):
    T %= 12
    s, uu = T >> 1, T & 1
    return exp_rd(dsread("ds_read_b64_tr_b16", VB(T % 3, u, e), waddr[s & 1], (2 * u + e) * 3072 + (s >> 1) * 128 + 8 * uu, tag), waddr[s & 1], tag)
def rdX(nq, n, dh, q, u):
    d = SL if nq == 4 else 6144
    return dsread("ds_read_b128", Xf(n & 1, q, u), xaddr[u], (n & 1) * d + q * 2048, absT('x', dh, n), private=True)
UE = [(0, 0), (0, 1), (1, 0), (1, 1)]

def rebase(regs, cur, new):
    return [salu("s_sub_u32", sT1, new, cur), smov(cur, new)] + [valu("v_add_u32", r, sT1, r) for r in regs]
def rotate(r, n, f): return [smov(sT2, r), smov(r, n), smov(n, f), smov(f, sT2)]
def rebaseK():
    return [salu("s_sub_u32", sT3, kN, kR)] + [valu("v_add_u32", r, sT3, r) for r in kaddr]

def softmax_ops(Sx, q, j, par):
    e = [vexp(Sx.sub(r), Sx.sub(r)) for r in range(4)]
    a = [valu("v_add_f32", Lq(q), Lq(q), Sx.sub(r)) for r in range(4)]
    P = Pf(par, q, j >> 1)
    c = [valu("v_cvt_pk_bf16_f32", P.sub(2 * (j & 1) + i), Sx.sub(2 * i), Sx.sub(2 * i + 1)) for i in range(2)]
    return e, a, c

def attn_iter(nq, par, cfg, first_pv=False, jobs=(), next_k=True, k_rot=True, late=()):
    NG = 4 * nq
    mf = []
    for G in range(NG):
        j, q = divmod(G, nq)
        for s in range(6):
            mf.append(mfma(Sf(G), Kf(j & 1, s), Qf(q, s), Ci(q) if s == 0 else Sf(G)))
        for n in range(3 * G, 3 * G + 3):
            T, qq = divmod(n, nq)
            for u in range(2):
                mf.append(mfma(Oacc(T, qq), VB(T & 3, u), Pf(par, qq, u), 0 if (first_pv and u == 0) else Oacc(T, qq)))
    sc = Sched(mf)
    def pvpos(n): return 12 * (n // 3) + 6 + 2 * (n % 3)
    sm = []
    for G in range(NG):
        Gp = (G - 1) % NG
        j, q = divmod(Gp, nq)
        e, a, c = softmax_ops(Sf(Gp), q, j, par if G == 0 else par ^ 1)
        for r in range(4): sc.put(12 * G + 2 * r, e[r])
        sm.append((e, a, c))
    GB = 3 * nq
    bw = wait(need_vm=(lambda c: [('K', c['h'], c['t'] + 2), ('V', c['h'], c['t'] + 1)]), lgkm0=True, free=False)
    sc.put(12 * GB, bw, front=True)
    sc.put(12 * GB + 2, barrier(), front=True)
    bar = 12 * GB + 2
    reads = []
    for j in range(4):
        lo = 12 * nq * j
        nxt = (j == 3)
        tv, tk = (tagV(1), tagK(2)) if nxt else (tagV(0), tagK(1))
        for i in range(3):
            T = 3 * j + 3 + i
            l2 = lo if i == 0 else pvpos(nq * (T - 4) + nq - 1) + 1
            l2 = max(l2, lo)
            if nxt: l2 = max(l2, bar + 1)
            item = [(rdV(T, u, e, tv), l2) for (u, e) in UE]
            reads.append((l2, 0, item))
        if not nxt or next_k:
            l2 = max(lo, bar + 1) if nxt else lo
            reads.append((l2, 1, [(rdK(j + 1, s, tk), l2) for s in range(6)]))
    reads.sort(key=lambda x: (x[0], x[1]))
    g = 0
    lastpre = 0
    for _, _, item in reads:
        for ins, l2 in item:
            g = max(g, l2)
            while not (g % 12 in (1, 3, 5, 7, 8, 9) and not sc.g[g]) :
                g += 1
                if nq == 3 and g % 12 in (10, 11) and not sc.g[g]: break
            assert g < len(mf), "ds overflow"
            sc.put(g, ins)
            if g < bar: lastpre = g
    assert lastpre < 12 * GB
    upd = rebase(vaddr, sVcur, vN) + (rebaseK() if k_rot else [])
    for G in range(NG):
        e, a, c = sm[G]
        b = 12 * G
        if nq == 3 and G == 0:
            order = [(a[0], 1), (c[0], 3), (a[1], 5), (c[1], 7), (a[2], 8), (a[3], 9)]
        else:
            order = [(a[0], 1), (a[1], 3), (c[0], 5), (a[2], 7), (a[3], 8), (c[1], 9)]
        for ins, o in order: sc.put(b + o, ins)
    if nq == 3:
        for G in range(NG):
            sc.put(12 * G + 4, wait(), front=True)
            if G % 3 == 2: sc.put(12 * G + 11, wait())
    seq_after(sc, upd, lastpre, bar)
    gj = 0
    seq = [i for jb in jobs for i in jb]
    if seq: gj = place_even(sc, seq, 0, 12 * GB - (2 if nq == 3 else 13))
    rot = rotate(vR, vN, vF) + (rotate(kR, kN, kF) if k_rot else [])
    seq = [i for jb in late for i in jb]
    if any(i.kind == 'X' for i in seq):
        gr = seq_after(sc, rot, bar + 1, bar + 4)
        place_even(sc, seq, gr + 1, len(mf) - 2)
    else:
        seq_after(sc, rot + seq, bar + 1, len(mf) - 2)
    return sc

NCH = 24
PSLOT = [0, SL - 1024, 2 * SL - 1024]
def head_of(c):
    hh, cc = divmod(c, 3)
    return (hh if hh < 4 else 12 + hh), cc
def tagU(c): return lambda ctx: ('U', 0, c)
def job_o(c, cfg):
    h, cc = head_of(c)
    out = []
    for q in range(5):
        out.append(salu("s_add_u32", sTp, sOb, h * 92160 + cc * 2048 + q * 6144))
        for u in range(2):
            l = gload(OF(c % 3, q, u), vL16, sOr, sTp, 1024 * u, cfg.orflags)
            l.expect = lambda ctx, st, e=h * 92160 + cc * 2048 + q * 6144: None if st.get(str(sTp)) == st[str(sOb)] + e else "o off"
            out.append(l)
    return out
def job_u(c, cfg):
    h, cc = head_of(c)
    tag = tagU(c); sl = lambda ctx: slot_of(tag(ctx), 4)
    out = []
    for i in range(8):
        if i % 4 == 0: out.append(salu("s_add_u32", 'm0', sLb, PSLOT[(c + 1) % 3] + 1024 * i))
        out.append(salu("s_add_u32", sTx, sWb, (h * 192 + 64 * cc + 8 * i) * 1280 - 1024 * (i % 4)))
        d = dma(dX, sWo, sTx, 1024 * (i % 4), cfg.woflags, tag=tag, slot=sl)
        d.expect = lambda ctx, st, e=(h * 192 + 64 * cc + 8 * i) * 1280 - 1024 * (i % 4), el=PSLOT[(c + 1) % 3] + 4096 * (i // 4): \
            None if (st.get(str(sTx)) == st[str(sWb)] + e and st.get('m0') == st[str(sLb)] + el) else "u off"
        out.append(d)
    return out
def rdU(gs, u, e):
    c, N = divmod(gs, 8)
    return dsread("ds_read_b64_tr_b16", VB(gs % 3, u, e), raddr[N & 3],
                  PSLOT[(c + 1) % 3] + (N >> 2) * 8192 + (32 * u + 16 * e) * 128, tag=tagU(c))
def calc_raddr():
    o = [valu("v_lshrrev_b32", vt0, 6, vL16),
         valu("v_and_b32", vt1, 6, vt0),
         valu("v_lshlrev_b32", vt0, 7, vt0),
         valu("v_bfe_u32", raddr[0], vL16, 4, 1),
         valu("v_lshl_add_u32", vt0, raddr[0], 3, vt0),
         valu("v_bfe_u32", raddr[0], vL16, 5, 1),
         valu("v_xor_b32", vt1, vt1, raddr[0]),
         valu("v_lshlrev_b32", vt1, 4, vt1),
         salu("s_lshr_b32", sTp, sWave, 1), salu("s_lshl_b32", sTp, sTp, 6),
         valu("v_xor_b32", vt1, sTp, vt1),
         salu("s_lshr_b32", sTp, sWave, 1), salu("s_mul_i32", sTp, sTp, 3 * SL, scc=False), salu("s_add_u32", sTp, sTp, 1024),
         valu("v_add_u32", vt0, sTp, vt0)]
    for m in range(4):
        o += [valu("v_xor_b32", raddr[m], 32 * m, vt1), valu("v_add_u32", raddr[m], raddr[m], vt0)]
    for i in o: i.nosim = True
    return o
def unit(lines, kind='S', cost=None, rd=(), wr=(), **kw):
    i = Ins("\n".join(lines), kind, rd=rd, wr=wr, states=len([l for l in lines if not l.endswith(":")]), **kw)
    i.cost = cost if cost is not None else len(lines)
    i.nosim = True
    return i
_uid = [0]
def signal_add(off, guarded):
    _uid[0] += 1; n = _uid[0]
    l = [f"v_mov_b32 {vOne}, 1", "s_mov_b64 exec, 1", f"buffer_atomic_add {vOne}, off, {sDbg}, {off} sc1", "s_mov_b64 exec, -1"]
    if guarded: l = [f"s_cmp_eq_u32 {off}, -1", f"s_cbranch_scc1 L_nosig{n}"] + l + [f"s_mov_b32 {off}, -1", f"L_nosig{n}:"]
    u = unit(l, 'S', cost=8, wr=['scc'])
    u.states = 2
    return u
def poll_issue(gen):
    return gload_off(V(226, 2), sDbg, sCnt, 64 * gen)
def gload_off(D, srd, soff, off):
    op = {1: "buffer_load_dword", 2: "buffer_load_dwordx2"}[D.n]
    return Ins(f"{op} {D}, off, {srd}, {soff} offset:{off} sc1", 'X', rd=srd.regs() + soff.regs(), wr=D.regs())
def poll_check(gen):
    _uid[0] += 1; n = _uid[0]
    l = [f"s_mov_b32 {sSpin}, 0x80000", f"L_poll{n}:",
         "v_min_u32 v226, v226, v227", "s_nop 0", f"v_readfirstlane_b32 {sT0}, v226", "s_nop 3",
         f"s_cmp_ge_u32 {sT0}, 16", f"s_cbranch_scc1 L_pok{n}",
         "s_sleep 2", f"buffer_load_dwordx2 v[226:227], off, {sDbg}, {sCnt} offset:{64 * gen} sc1",
         f"s_sub_u32 {sSpin}, {sSpin}, 1", f"s_cmp_lg_u32 {sSpin}, 0", "s_waitcnt vmcnt(0)", f"s_cbranch_scc1 L_poll{n}", f"L_pok{n}:"]
    u = unit(l, 'S', cost=12, rd=['v226', 'v227'], wr=['v226', 'scc'] + sT0.regs())
    u.states = 0
    return u

def attn_last(nq, cfg, nxt):
    par = 1
    mf = []
    for T in range(12):
        for q in range(nq):
            for u in range(2): mf.append(mfma(Oacc(T, q), VB(T & 3, u), Pf(par, q, u), Oacc(T, q)))
    sc = Sched(mf)
    sp = 2 * nq
    e, a, c = softmax_ops(Sf(4 * nq - 1), nq - 1, 3, par)
    if nq == 4:
        for r in range(4): sc.put(r, e[r])
        sc.put(4, c[0]); sc.put(4, c[1]); sc.put(5, a[0]); sc.put(5, a[1])
        g0 = 6
    else:
        sc.put(0, e[0]); sc.put(0, e[1]); sc.put(1, e[2]); sc.put(1, e[3])
        sc.put(2, c[0]); sc.put(2, c[1]); sc.put(3, a[0]); sc.put(3, a[1])
        g0 = 4
    g = g0
    for T in range(3, 12):
        g = max(g, sp * (T - 3))
        for (u, ee) in UE:
            sc.put(g, rdV(T, u, ee, tagV(0))); g += 1
        sc.put(g - 1, wait())
    lastv = g - 1
    fin = [a[2], a[3]]
    for q in range(nq):
        t = vt0 if q % 2 == 0 else vt1
        for w in (32, 16):
            fin += [valu("v_mov_b32", t, Lq(q)), None, vperm(w, t, Lq(q)), valu("v_add_f32", Lq(q), Lq(q), t)]
    fin += [valu("v_add_f32", vt0, Lq(0), Lq(1)), valu("v_add_f32", vt0, vt0, Lq(2))]
    if nq == 4: fin.append(valu("v_add_f32", vt0, vt0, Lq(3)))
    fin.append(Ins(f"v_cmp_ngt_f32 {sBad}, {sThr}, {vt0}", 'V', rd=vt0.regs() + sThr.regs(), wr=sBad.regs()))
    SEQS.append([i for i in fin if i is not None])
    g = g0
    for ins in fin:
        if ins is None: g += 2; continue
        g = sc.place(ins, g, g + 8)
    for q in range(nq):
        g = sc.place(vrcp(Lq(q), Lq(q)), g + 1, g + 8)
    ginv = g
    chk = [salu("s_or_b32", sBad.sub(0), sBad.sub(0), sBad.sub(1)), salu("s_lshl_b32", sTp, sWave, 2), salu("s_add_u32", sTp, sTp, FLAG),
           valu("v_mov_b32", vt0, sBad.sub(0)), valu("v_mov_b32", vt1, sTp), dswrite("ds_write_b32", vt1, vt0, 0),
           valu("v_mov_b32", vOne, FLAG)]
    for i in chk: i.nosim = True
    g = seq_after(sc, chk, g + 1, g + 12)
    bar = sp * 10
    assert g < bar - 2
    gnext = g + 1
    if nxt == 'Q':
        w = wait(need_vm=lambda c: [('x', c['h'] + 1, 0)], free=False)
        gx = sc.place(w, sp * 3, sp * 4)
        dep = []
        for q in range(nq):
            for u in range(2):
                r = rdX(nq, 0, 1, q, u); dep += r.wr
                gx = sc.place(r, gx + 1, gx + 8)
        j1 = job_tile(nq, 'W', vF, absT('W', 1, 1), cfg) + job_tile(nq, 'K', kR, absT('K', 1, 0), cfg)
        ge = place_even(sc, j1, g0, sp * 7)
        ws = wait(); gw = sc.place(ws, max(gx + 4, ge), max(gx + 4, ge) + 4)
        place_even(sc, job_x(nq, 2, 1, cfg, dep), gw + 1, len(mf) - 1)
        need = lambda c: [('W', c['h'] + 1, 0)]
    else:
        place_even(sc, job_u(1, cfg), g0, gnext - 1)
        place_even(sc, job_o(0, cfg) + job_o(1, cfg), gnext, len(mf) - 1)
        need = lambda c: [('U', 0, 0)]
    bw = wait(need_vm=need, lgkm0=True, free=False)
    gb = sc.place(bw, bar - 1, bar)
    gb = sc.place(barrier(), gb, bar + 1)
    fl = dsread("ds_read_b128", V(228, 4), vOne, 0)
    g = sc.place(fl, gb + 1, gb + 2)
    if nxt == 'Q':
        seq_after(sc, rebase(waddr, sWcur, vN), lastv, gb)
        seq_after(sc, rotate(vR, vN, vF), gb + 1, len(mf) - 1)
    for T in range(2):
        g = max(g, sp * (10 + T) - 1)
        for (u, ee) in UE:
            r = rdW(T, u, ee, absT('W', 1, 0)) if nxt == 'Q' else rdU(T, u, ee)
            g = sc.place(r, min(len(mf) - 1, g + 1), min(len(mf) - 1, g + 2))
        sc.place(wait(), g, g)
    sc.post = [valu("v_or3_b32", V(228), V(228), V(229), V(230)), valu("v_or_b32", V(228), V(228), V(231)), nop(0),
               Ins(f"v_readfirstlane_b32 {sBad.sub(0)}, v228", 'V', rd=['v228'], wr=sBad.sub(0).regs()), nop(3),
               salu("s_andn2_b32", sBad.sub(0), sBad.sub(0), sRedo), raw(f"s_cbranch_scc1 L_slow_{nq}"), smov(sRedo, 0)]
    return sc

def epi_block(q, s, t, cfg, packed=False):
    ops = []
    for i in range(8):
        src = Oacc(2 * s + (i >> 2), q).sub(i & 3)
        ops.append(valu("v_accvgpr_read_b32", t.sub(i), src))
    for i in range(8): ops.append(valu("v_mul_f32", t.sub(i), t.sub(i), Lq(q)))
    for i in range(4): ops.append(valu("v_cvt_pk_bf16_f32", t.sub(i), t.sub(2 * i), t.sub(2 * i + 1)))
    ops.append(salu("s_add_u32", sTo, sOoff, q * 6144 + (4096 if s >= 4 else 0)))
    stv = gstore(t.sub(0, 4), vL16, sO, sTo, (s & 3) * 1024, cfg.oflags)
    def f(c, st):
        h = 0 if c['t'] < 0 else 1
        e = (st['h0'] + 16 * h) * 92160 + (4 * st['wave'] + q) * 6144 + s * 1024
        if st.get(str(sTo)) is None or st[str(sTo)] + (s & 3) * 1024 != e: return f"store off vs {e}"
    stv.expect = f
    if not cfg.nostore: ops.append(stv)
    return ops

def qproj(nq, cfg, epi):
    sp = 2 * nq; SN = 12 * sp
    mf = []
    for st in range(10):
        for T in range(12):
            for q in range(nq):
                for u in range(2):
                    mf.append(mfma(QACC(T, q), VB(T % 3, u), Xf(st & 1, q, u), 0 if (st == 0 and u == 0) else QACC(T, q)))
    sc = Sched(mf)
    for st in range(10):
        b = st * SN
        for T in range(10):
            g = b + sp * T
            for (u, e) in UE:
                sc.put(g, rdW(T + 2, u, e, absT('W', 0, st))); g += 1
            sc.put(g - 1, wait())
        lastw = g - 1
        need = [('W', st + 1)] if st < 9 else [('K', 0)]
        bw = wait(need_vm=(lambda c, need=need: [(k, c['h'], n) for k, n in need]), lgkm0=True, free=False)
        gb = b + sp * 10
        sc.put(gb, bw); sc.put(gb, barrier())
        g = gb
        if st < 9:
            seq_after(sc, rebase(waddr, sWcur, vN), lastw, gb)
            for T in range(2):
                g = max(g, b + sp * (10 + T) - 1)
                for (u, e) in UE:
                    g += 1; sc.put(g, rdW(T, u, e, absT('W', 0, st + 1)))
                sc.put(g, wait())
        else:
            seq_after(sc, rebase(vaddr, sVcur, vN), lastw, gb)
            for s in range(6):
                g += 1; sc.put(g, rdK(0, s, absT('K', 0, 0)))
        seq_after(sc, rotate(vR, vN, vF), gb + 1, b + SN - 1)
        dep = []
        gx = b + sp * 4
        if st < 9:
            w = wait(need_vm=(lambda c, st=st: [('x', c['h'], st + 1)]), free=False)
            gx = sc.place(w, gx, gx + sp)
            for q in range(nq):
                for u in range(2):
                    r = rdX(nq, st + 1, 0, q, u); dep += r.wr
                    gx = sc.place(r, gx + 1, gx + sp)
        if st < 8: j1 = job_tile(nq, 'W', vF, absT('W', 0, st + 2), cfg)
        else:
            j1 = job_tile(nq, 'V', vF, absT('V', 0, st - 8), cfg) + job_tile(nq, 'K', kN if st == 8 else kF, absT('K', 0, st - 7), cfg)
        ge = place_even(sc, j1, b, b + (sp * 4 - 1 if st < 7 and nq == 4 else sp * 6 if st < 7 else sp * 9))
        if st + 3 <= 9:
            ws = wait(); gw = sc.place(ws, max(gx + 4, ge), max(gx + 4, ge) + 4)
            place_even(sc, job_x(nq, st + 3, 0, cfg, dep), gw + 1, b + SN - 1)
    if epi:
        nb = 6 * nq
        step = (len(mf) - 60) // nb
        i = 0
        for s in range(6):
            for q in range(nq):
                seq_after(sc, epi_block(q, s, TMP[i & 1], cfg), 10 + i * step, 10 + (i + 1) * step - 1)
                i += 1
        seq_after(sc, [salu("s_add_u32", sOoff, sOoff, 16 * 92160), smov(sSig, sMyc)], len(mf) - 20, len(mf) - 1)
    return sc

def conv_prologue(nq, cfg):
    out = []
    cv = []
    for s in range(6):
        for q in range(nq):
            b = V(8 * blk(q, s), 8)
            for i in range(4): cv.append(valu("v_pk_mul_f32", b.sub(2 * i, 2), b.sub(2 * i, 2), sC2))
            for i in range(4): cv.append(valu("v_cvt_pk_bf16_f32", b.sub(i), b.sub(2 * i), b.sub(2 * i + 1)))
    j = job_tile(nq, 'V', vF, absT('V', 0, 2), cfg)
    k = 0
    for i, ins in enumerate(cv):
        out.append(ins)
        if i % 4 == 3 and k < len(j): out.append(j[k]); k += 1
    out += j[k:]
    for q in range(nq): out.append(valu("v_mov_b32", Ci(q).sub(0), "0xff800000"))
    out.append(label(f"L_prol_{nq}"))
    for q in range(nq): out.append(valu("v_mov_b32", Lq(q), 0))
    out.append(wait())
    NG = 4 * nq
    mf = []
    for G in range(NG):
        jj, q = divmod(G, nq)
        for s in range(6):
            mf.append(mfma(Sf(G), Kf(jj & 1, s), Qf(q, s), (0 if jj == 0 else Ci(q)) if s == 0 else Sf(G)))
    sc = Sched(mf)
    sc.pre = out
    gb = 6 * nq * 3
    for jj in range(3):
        g = 6 * nq * jj
        for s in range(6):
            sc.put(g, rdK(jj + 1, s, absT('K', 0, 0))); g += 2
    lastk = g - 2
    bw = wait(need_vm=(lambda c: 'all'), lgkm0=True, free=False)
    bw.vm = 0
    sc.put(gb - 1, bw); sc.put(gb - 1, barrier())
    if nq == 3: sc.put(gb - 1, signal_add(sSig, True))
    seq_after(sc, rebaseK(), lastk + 1, gb - 2)
    g = gb
    post = [rdK(4, s, absT('K', 0, 1)) for s in range(6)]
    for T in range(3): post += [rdV(T, u, e, absT('V', 0, 0)) for (u, e) in UE]
    for ins in post:
        sc.put(g, ins); g += 1
    assert g <= len(mf)
    rot = rotate(kR, kN, kF)
    for i, ins in enumerate(rot): sc.put(gb + i, ins)
    tail = []
    for G in range(NG - 1):
        jj, q = divmod(G, nq)
        Sx = Sf(G)
        ops = []
        if jj == 0:
            t = vt0; m = vt1
            ops += [valu("v_max3_f32", m, Sx.sub(0), Sx.sub(1), Sx.sub(2)), valu("v_max3_f32", m, m, Sx.sub(3), Ci(q).sub(0))]
            for w in (32, 16):
                ops += [valu("v_mov_b32", t, m), nop(1), vperm(w, t, m), valu("v_max_f32", m, m, t)]
            for r in range(4): ops.append(valu("v_sub_f32", Ci(q).sub(r), 0, m))
            for r in range(4): ops.append(valu("v_sub_f32", Sx.sub(r), Sx.sub(r), m))
        e, a, c = softmax_ops(Sx, q, jj, 0)
        ops += [e[0], e[1], a[0], e[2], a[1], e[3], c[0], a[2], a[3], c[1]]
        if G + 2 < NG:
            n = len(ops)
            for i, ins in enumerate(ops): sc.put(6 * (G + 2) + (i * 6) // n, ins)
        else:
            tail += ops
    sc.add_wait_sites()
    for jj in range(1, 4):
        sc.put(6 * nq * jj - 1, wait())
    return sc.linear() + tail + [wait()]

CS = 6
def p_chunks(c0, c1, nq, cfg):
    mf = []
    for c in range(c0, c1):
        for N in range(8):
            for q in range(5):
                for u in range(2):
                    mf.append(mfma(PACC(N, q), VB((8 * c + N) % 3, u), OF(c % 3, q, u), 0 if (c == 0 and u == 0) else PACC(N, q)))
    sc = Sched(mf)
    PUB = cfg.pubchunk
    for c in range(c0, c1):
        b = 80 * (c - c0)
        for N in range(6):
            for i, (u, e) in enumerate(UE): sc.put(b + 10 * N + i, rdU(8 * c + N + 2, u, e))
            sc.put(b + 10 * N + 3, wait())
        if c + 1 < NCH:
            bw = wait(need_vm=(lambda ctx, c=c: 'all' if c == PUB else [('U', 0, c + 1)]), lgkm0=True, free=False)
            if c == PUB: bw.vm = 0
            if c == 9:
                sc.put(b + 59, wait())
                _uid[0] += 1; n = _uid[0]
                sc.put(b + 59, unit([f"s_cmp_lg_u32 {sWave}, 3", f"s_cbranch_scc1 L_skip{n}"], cost=2, rd=['v226', 'v227']))
                pc = poll_check(1); pc.cost = 0; sc.put(b + 59, pc); sc.put(b + 59, label(f"L_skip{n}"))
            sc.put(b + 60, bw); sc.put(b + 60, barrier())
            if c == PUB and nq == 3:
                sc.put(b + 60, salu("s_add_u32", sSig, sMyc, 64)); sc.put(b + 60, signal_add(sSig, False))
            for i, (u, e) in enumerate(UE):
                sc.put(b + 61 + i, rdU(8 * c + 8, u, e)); sc.put(b + 70 + i, rdU(8 * c + 9, u, e))
            sc.put(b + 73, wait())
        else:
            sc.put(b + 63, wait())
        sc.put(b + 79, wait())
        if c == 9: sc.put(b + 14, poll_issue(1))
    first_reads = []
    if nq is not None:
        nb = 6 * nq
        span = 80 * PUB + 10
        step = (span - 4) / nb
        i = 0
        for s in range(6):
            for q in range(nq):
                ops = epi_block(q, s, TMP[i & 1], cfg)
                if s == 0: first_reads += ops[:8]
                ge = seq_after(sc, ops, 4 + int(i * step), 4 + int((i + 1) * step) - 1)
                if s == 0: gfirst = 4 + int(i * step) + 9
                i += 1
    for c in range(c0, c1):
        b = 80 * (c - c0)
        if c + 2 < NCH:
            ju, jo = job_u(c + 2, cfg), job_o(c + 2, cfg)
            if c == 0:
                place_even(sc, ju, b, b + 40)
                place_even(sc, jo[:6], b + 30, b + gfirst); place_even(sc, jo[6:], b + gfirst + 1, b + 78)
                for r in first_reads:
                    for l in jo:
                        if set(l.wr) & set(r.rd): SEQS.append([r, l])
            elif c == PUB:
                place_even(sc, ju, b, b + 24); place_even(sc, jo[:3], b, b + 24); place_even(sc, jo[3:], b + 61, b + 78)
            else:
                place_even(sc, ju, b, b + 78); place_even(sc, jo, b + 2, b + 78)
    sc.add_wait_sites()
    return sc

def p_end(cfg):
    wr, rd, oa = V(236), V(237), V(238)
    pre = [salu("s_and_b32", sTp, sWave, 1), salu("s_add_u32", sTp, sTp, 1), salu("s_mul_i32", sTp, sTp, SL, scc=False),
           salu("s_lshr_b32", sTx, sWave, 1), salu("s_mul_i32", sTx, sTx, 3 * SL, scc=False),
           salu("s_add_u32", sT0, sTp, sTx), valu("v_add_u32", wr, sT0, vL16),
           salu("s_sub_u32", sTx, 3 * SL, sTx), salu("s_add_u32", sT0, sTp, sTx), valu("v_add_u32", rd, sT0, vL16),
           valu("v_bfe_u32", oa, vL16, 4, 4), valu("v_mul_u32_u24", oa, 2560, oa),
           valu("v_lshrrev_b32", vt0, 8, vL16), valu("v_lshl_add_u32", oa, vt0, 3, oa)]
    for i in pre: i.nosim = True
    def T(pair, t): return PACC(2 * pair + t // 5, t % 5)
    def add(dst, src): return [valu("v_pk_add_f32", dst.sub(2 * i, 2), dst.sub(2 * i, 2), src.sub(2 * i, 2)) for i in range(2)]
    f = []
    for t in range(10): f.append(dswrite("ds_write_b128", wr, T(1, t), 1024 * (10 + t)))
    for t in range(10): f.append(dswrite("ds_write_b128", wr, T(3, t), 1024 * t))
    f += [wait(lgkm0=True), barrier()]
    for t in range(10): f.append(dsread("ds_read_b128", T(3, t), rd, 1024 * t))
    for t in range(10): f.append(dsread("ds_read_b128", T(1, t), rd, 1024 * (10 + t)))
    for t in range(10):
        f.append(wait()); f += add(T(2, t), T(3, t))
        if t % 4 == 0: f.append(salu("s_add_u32", sTp, sExs, 1024 * t))
        f.append(gstore(T(2, t), vL16, sEx, sTp, 1024 * (t % 4), "sc1"))
    for t in range(10):
        f.append(wait()); f += add(T(0, t), T(1, t))
    w = wait(need_vm=lambda c: 'all', free=False); w.vm = 0
    f += [w, barrier()]
    f.append(unit([f"s_cmp_lg_u32 {sWave}, 3", "s_cbranch_scc1 L_xok",
                   f"v_mov_b32 {vOne}, 1", "s_mov_b64 exec, 1", f"buffer_store_dword {vOne}, off, {sEx}, {sFs} sc1", "s_mov_b64 exec, -1",
                   f"s_mov_b32 {sSpin}, 0x80000", "L_xpoll:",
                   f"buffer_load_dword v226, off, {sEx}, {sFr} sc1", f"s_sub_u32 {sSpin}, {sSpin}, 1", "s_waitcnt vmcnt(0)",
                   f"v_readfirstlane_b32 {sTp}, v226", f"s_cmp_eq_u32 {sSpin}, 0", "s_cbranch_scc1 L_xok", "s_nop 1",
                   f"s_cmp_lg_u32 {sTp}, 1", "s_cbranch_scc1 L_xpoll", "L_xok:"]))
    f.append(barrier())
    for t in range(10):
        if t % 4 == 0: f.append(salu("s_add_u32", sTp, sExr, 1024 * t))
        f.append(gload(T(1, t), vL16, sEx, sTp, 1024 * (t % 4), "sc1"))
    for t in range(10):
        N, q = divmod(t, 5)
        ac = T(0, t)
        f.append(wait()); f += add(ac, T(1, t))
        for i in range(2): f.append(valu("v_cvt_pk_bf16_f32", ac.sub(i), ac.sub(2 * i), ac.sub(2 * i + 1)))
        f.append(salu("s_add_u32", sTp, sOutb, q * 16 * 2560))
        f.append(gstore(ac.sub(0, 2), oa, sOut, sTp, 32 * N))
    return pre, f

def slow_path(nq, cfg):
    o = []
    a = lambda t: o.append(raw(t))
    def spaced(seq):
        for i in seq:
            o.append(i)
            if 'm0' in i.wr: o.append(nop(0))
    dummy = lambda c: ('K', 0, 0)
    o.append(label(f"L_slow_{nq}"))
    a("s_waitcnt vmcnt(0) lgkmcnt(0)"); a("s_barrier")
    a(f"s_mov_b32 {sRedo}, -1")
    a(f"s_cmp_eq_u32 {sHead}, 0")
    a(f"s_cselect_b32 {sT0}, {16 * 393216}, 0"); a(f"s_cselect_b32 {sT1}, {16 * 384}, 0")
    a(f"s_cselect_b32 {sT2}, 0, {16 * 393216}")
    a(f"s_mov_b32 {vR}, {VS[0]}"); a(f"s_mov_b32 {vN}, {VS[1]}"); a(f"s_mov_b32 {vF}, {VS[2]}")
    a(f"s_cselect_b32 {vR}, {VS[1]}, {vR}"); a(f"s_cselect_b32 {vN}, {VS[2]}, {vN}"); a(f"s_cselect_b32 {vF}, {VS[0]}, {vF}")
    a(f"s_sub_u32 {sKend}, {sKend}, {sT0}"); a(f"s_sub_u32 {sVend}, {sVend}, {sT0}"); a(f"s_sub_u32 {sWend}, {sWend}, {sT1}")
    a(f"s_add_u32 {sKoff}, {sK0}, {sT2}"); a(f"s_mov_b32 {sVoff}, {sKoff}")
    a(f"s_mov_b32 {sWoff}, {sW0}"); a(f"s_mov_b32 {sXoff}, {sX0}")
    for i in rebase(vaddr, sVcur, vR): o.append(i)
    for q in range(nq): a(f"v_mov_b32 {Ci(q).sub(0)}, 0xff800000")
    a(f"s_mov_b32 {sLoop}, 16")
    o.append(label(f"L_slowl_{nq}"))
    spaced(job_tile(nq, 'K', kR, dummy, cfg))
    a("s_waitcnt vmcnt(0)"); a("s_barrier")
    for j in range(4):
        for s in range(6): o.append(rdK(j, s, dummy))
        a("s_waitcnt lgkmcnt(0)")
        for q in range(nq):
            for s in range(6): o.append(mfma(Sf(q), Kf(j & 1, s), Qf(q, s), 0 if s == 0 else Sf(q)))
        a("s_nop 7")
        for q in range(nq):
            m = Ci(q).sub(0); Sx = Sf(q)
            a(f"v_max3_f32 {m}, {m}, {Sx.sub(0)}, {Sx.sub(1)}"); a(f"v_max3_f32 {m}, {m}, {Sx.sub(2)}, {Sx.sub(3)}")
    a("s_barrier")
    a(f"s_sub_u32 {sLoop}, {sLoop}, 1"); a(f"s_cmp_lg_u32 {sLoop}, 0"); a(f"s_cbranch_scc1 L_slowl_{nq}")
    for r in (kR, kN, kF): spaced(job_tile(nq, 'K', r, dummy, cfg))
    a("s_waitcnt vmcnt(0)")
    for r in (vR, vN, vF): spaced(job_tile(nq, 'V', r, dummy, cfg))
    a("s_waitcnt vmcnt(0)"); a("s_barrier")
    for s in range(6): o.append(rdK(0, s, dummy))
    a("s_waitcnt lgkmcnt(0)")
    a(f"s_branch L_prol_{nq}")
    return o

def setup(cfg):
    o = []
    a = lambda t: o.append(raw(t))
    a("s_cmp_ge_u32 s2, 256"); a("s_cbranch_scc1 L_end")
    a("s_load_dwordx8 s[24:31], s[0:1], 0")
    a("s_load_dwordx8 s[32:39], s[0:1], 40")
    a("s_load_dwordx2 s[96:97], s[0:1], 32"); a("s_load_dwordx2 s[40:41], s[0:1], 72")
    a("s_load_dwordx4 s[44:47], s[0:1], 80")
    a("s_load_dwordx2 s[42:43], s[0:1], 96")
    if cfg.stamps: a("s_memrealtime s[56:57]")
    if cfg.codepf:
        a("s_getpc_b64 s[48:49]"); a("L_pc:")
        a("s_lshr_b32 s50, s2, 3"); a("s_lshl_b32 s50, s50, 6")
        a("v_add_u32 v2, s50, v0"); a("v_lshlrev_b32 v2, 7, v2")
        a("v_min_u32 v2, L_code_end-L_pc-4, v2")
        a("v_mov_b32 v3, s49"); a("v_add_co_u32 v2, vcc, s48, v2"); a("s_nop 1"); a("v_addc_co_u32 v3, vcc, 0, v3, vcc")
        a("v_cmp_gt_u32 vcc, 64, v0"); a("s_and_saveexec_b64 s[48:49], vcc"); a("s_cbranch_execz L_nopf")
        a(f"global_load_dword {vOne}, v[2:3], off")
        a("L_nopf:"); a("s_mov_b64 exec, s[48:49]")
    a("v_lshrrev_b32 v1, 6, v0"); a("v_and_b32 v0, 63, v0")
    a("v_readfirstlane_b32 s3, v1")
    a("s_lshr_b32 s50, s2, 3")
    a("s_bfe_u32 s51, s2, 0x10001"); a("s_lshl_b32 s51, s51, 2"); a("s_lshr_b32 s52, s50, 3"); a("s_add_u32 s51, s51, s52")
    a("s_and_b32 s52, s2, 1"); a("s_lshl_b32 s52, s52, 3"); a("s_and_b32 s53, s50, 7"); a("s_add_u32 s52, s52, s53")
    a("s_bfe_u32 s53, s2, 0x10002")
    a("v_lshrrev_b32 v1, 3, v0"); a("v_and_b32 v2, 7, v0")
    for m in range(3):
        a(f"v_add_u32 v3, {8 * m}, v1")
        a("v_mul_u32_u24 v4, 43, v3"); a("v_lshrrev_b32 v4, 7, v4")
        a("v_and_b32 v5, 6, v4"); a("v_xor_b32 v5, v5, v2"); a("v_lshlrev_b32 v5, 4, v5")
        a("v_lshlrev_b32 v6, 7, v1"); a(f"v_add_u32 {dKV[m]}, v5, v6")
        a("v_mul_u32_u24 v5, 3, v4"); a("v_sub_u32 v5, v3, v5"); a("v_lshlrev_b32 v5, 7, v5")
        a("v_bfe_u32 v6, v4, 1, 1"); a("v_lshlrev_b32 v6, 2, v6"); a("v_xor_b32 v6, v6, v2"); a("v_lshlrev_b32 v6, 4, v6"); a("v_add_u32 v5, v5, v6")
        a("v_lshrrev_b32 v6, 2, v4"); a("v_lshlrev_b32 v6, 4, v6"); a("v_and_b32 v7, 3, v4"); a("v_add_u32 v6, v6, v7")
        a("v_mul_u32_u24 v6, 12288, v6"); a("v_add_u32 v5, v5, v6")
        a(f"v_subrev_u32 {dW[m]}, {1024 * m}, v5")
    a("v_and_b32 v3, 6, v1"); a("v_xor_b32 v3, v3, v2"); a("v_lshlrev_b32 v3, 4, v3")
    a("v_mul_u32_u24 v4, 1280, v1"); a(f"v_add_u32 {dX}, v3, v4")
    a(f"v_lshlrev_b32 {vL16}, 4, v0")
    a("s_waitcnt lgkmcnt(0)")
    if cfg.stamps: a(f"v_writelane_b32 {vStamp}, s56, 30")
    a("s_cmp_eq_u32 s53, 0")
    for i in range(8): a(f"s_cselect_b32 s{24 + i}, s{24 + i}, s{32 + i}")
    a("s_cselect_b32 s96, s96, s40"); a("s_cselect_b32 s97, s97, s41"); a("s_mov_b32 s98, 7864320"); a("s_mov_b32 s99, 0x20000")
    a("s_mul_i32 s48, s51, 307200"); a("s_add_u32 s4, s24, s48"); a("s_addc_u32 s5, s25, 0"); a("s_mov_b32 s6, 307200"); a("s_mov_b32 s7, 0x20000")
    a("s_mov_b32 s8, s30"); a("s_mov_b32 s9, s31"); a("s_mov_b32 s10, 7864320"); a("s_mov_b32 s11, 0x20000")
    a("s_mul_i32 s48, s51, 12582912")
    a("s_add_u32 s12, s26, s48"); a("s_addc_u32 s13, s27, 0"); a("s_mov_b32 s14, 12582912"); a("s_mov_b32 s15, 0x20000")
    a("s_add_u32 s16, s28, s48"); a("s_addc_u32 s17, s29, 0"); a("s_mov_b32 s18, 12582912"); a("s_mov_b32 s19, 0x20000")
    a("s_lshl_b32 s48, s53, 3"); a("s_add_u32 s48, s48, s51"); a(f"s_lshl_b32 {sMyc}, s48, 2"); a("s_mul_i32 s48, s48, 2949120")
    a("s_add_u32 s20, s42, s48"); a("s_addc_u32 s21, s43, 0"); a("s_mov_b32 s22, 2949120"); a("s_mov_b32 s23, 0x20000")
    a("s_mov_b32 s64, s44"); a("s_mov_b32 s65, s45"); a("s_mov_b32 s66, 4915200"); a("s_mov_b32 s67, 0x20000")
    a(f"s_add_u32 s68, s42, {EXOFF}"); a("s_addc_u32 s69, s43, 0"); a(f"s_mov_b32 s70, {STOFF + 0x100000}"); a("s_mov_b32 s71, 0x20000")
    a("s_mov_b32 s72, s46"); a("s_mov_b32 s73, s47"); a("s_mov_b32 s74, 256"); a("s_mov_b32 s75, 0x20000")
    a("s_cmp_ge_u32 s50, 30"); a(f"s_cselect_b32 {sIdle}, 1, 0"); a("s_min_u32 s24, s50, 29")
    a("s_and_b32 s25, s24, 1"); a("s_lshr_b32 s24, s24, 1")
    a("s_mul_i32 s26, s24, 52"); a("s_lshr_b32 s26, s26, 8"); a("s_mul_i32 s27, s26, 5"); a("s_sub_u32 s27, s24, s27")
    a("s_lshl_b32 s26, s26, 1"); a("s_and_b32 s28, s3, 1"); a("s_add_u32 s26, s26, s28")
    a("s_cmp_ge_u32 s26, 3"); a("s_cselect_b32 s29, 1, 0"); a("s_mul_i32 s30, s29, 3"); a("s_sub_u32 s26, s26, s30")
    a("s_and_b32 s30, s2, 7"); a("s_lshl_b32 s30, s30, 1")
    a(f"s_lshl_b32 {sCnt}, s30, 2")
    a("s_add_u32 s30, s30, s29"); a("s_mul_i32 s31, s30, 2949120")
    a("s_add_u32 s60, s42, s31"); a("s_addc_u32 s61, s43, 0"); a("s_mov_b32 s62, 2949120"); a("s_mov_b32 s63, 0x20000")
    a("s_lshl_b32 s31, s25, 1"); a("s_lshr_b32 s32, s3, 1"); a("s_add_u32 s31, s31, s32")
    a(f"s_mul_i32 {sOb}, s31, {4 * 92160}"); a(f"s_mul_i32 s33, s26, {5 * 6144}"); a(f"s_add_u32 {sOb}, {sOb}, s33")
    a(f"s_mul_i32 {sWb}, s31, {4 * 192 * 1280}"); a("s_lshl_b32 s33, s27, 8"); a(f"s_add_u32 {sWb}, {sWb}, s33")
    a("s_xor_b32 s33, s28, s25"); a("s_lshl_b32 s33, s33, 7"); a(f"s_add_u32 {sWb}, {sWb}, s33")
    a(f"s_mul_i32 {sLb}, s32, {3 * SL}"); a("s_lshl_b32 s33, s28, 13"); a(f"s_add_u32 {sLb}, {sLb}, s33"); a(f"s_add_u32 {sLb}, {sLb}, 1024")
    a("s_and_b32 s30, s30, 7"); a("s_mul_i32 s30, s30, 240"); a("s_mul_i32 s33, s26, 80"); a("s_add_u32 s30, s30, s33")
    a(f"s_mul_i32 {sOutb}, s30, 2560"); a("s_mul_i32 s33, s53, 1280"); a(f"s_add_u32 {sOutb}, {sOutb}, s33")
    a("s_lshl_b32 s33, s27, 8"); a(f"s_add_u32 {sOutb}, {sOutb}, s33"); a("s_lshl_b32 s33, s31, 6"); a(f"s_add_u32 {sOutb}, {sOutb}, s33")
    a("s_lshl_b32 s33, s2, 2"); a("s_add_u32 s33, s33, s3"); a(f"s_mul_i32 {sExs}, s33, 10240"); a("s_xor_b32 s33, s33, 32"); a(f"s_mul_i32 {sExr}, s33, 10240")
    a("s_lshl_b32 s33, s2, 7"); a(f"s_add_u32 {sFs}, s33, {FLOFF}"); a("s_xor_b32 s33, s33, 1024"); a(f"s_add_u32 {sFr}, s33, {FLOFF}")
    a("s_and_b32 s33, s51, 1"); a("s_lshl_b32 s33, s33, 4"); a("s_add_u32 s33, s33, s52"); a("s_lshl_b32 s33, s33, 3")
    a("s_lshl_b32 s34, s53, 2"); a("s_add_u32 s33, s33, s34"); a("s_lshr_b32 s34, s51, 1"); a("s_add_u32 s33, s33, s34")
    a("s_lshl_b32 s33, s33, 7"); a(f"s_add_u32 {sSpin}, s33, {FLOFF}")
    a("s_and_b32 s48, s2, 3"); a("s_lshl_b32 s48, s48, 5"); a("s_add_u32 s48, s48, s50"); a(f"s_mul_i32 {sWopf}, s48, 61440")
    a(f"s_mov_b32 {sSig}, -1"); a(f"s_mov_b32 {sRedo}, 0")
    a(f"s_mov_b32 {sWave}, s3")
    a(f"s_mul_i32 {sKoff}, s52, 393216"); a(f"s_mul_i32 {sWoff}, s52, 384")
    a(f"s_mul_i32 {sXoff}, {sWave}, {64 * 1280}")
    a(f"s_mul_i32 {sOoff}, s52, 92160"); a(f"s_mul_i32 s48, {sWave}, {4 * 6144}"); a(f"s_add_u32 {sOoff}, {sOoff}, s48")
    a(f"s_mov_b32 {sTp}, s50")
    a(f"s_mov_b32 {kR}, {KS[0]}"); a(f"s_mov_b32 {kN}, {KS[1]}"); a(f"s_mov_b32 {kF}, {KS[2]}")
    a(f"s_mov_b32 {vR}, {VS[0]}"); a(f"s_mov_b32 {vN}, {VS[1]}"); a(f"s_mov_b32 {vF}, {VS[2]}")
    a(f"s_mov_b32 {sVcur}, 0"); a(f"s_mov_b32 {sWcur}, {VS[0]}")
    c = math.log2(math.e) / math.sqrt(192.0)
    a(f"s_mov_b32 s38, {fbits(c)}"); a(f"s_mov_b32 s39, {fbits(c)}")
    a(f"s_mov_b32 {sThr}, {fbits(2.0 ** cfg.thr)}")
    a(f"s_mov_b32 {sHead}, 0")
    a(f"s_cmp_eq_u32 {sWave}, 3"); a("s_cbranch_scc1 L_v3")
    return o

def lds_addr_setup(cfg):
    o = []
    def a(t):
        i = raw(t); i.nosim = True; o.append(i)
    a("v_and_b32 v1, 15, v0")
    a("v_lshrrev_b32 v2, 4, v0")
    a("v_and_b32 v3, 6, v1")
    a("v_xor_b32 v4, v2, v3")
    a("v_lshlrev_b32 v4, 4, v4")
    a("v_mul_u32_u24 v5, 384, v1")
    a(f"v_add_u32 {kaddr[0]}, v5, v4")
    a(f"v_xor_b32 v6, 64, v4"); a(f"v_add_u32 {kaddr[1]}, v5, v6")
    a("v_lshlrev_b32 v5, 7, v1"); a(f"v_add_u32 v5, {sXl[0]}, v5")
    a(f"v_add_u32 {xaddr[0]}, v5, v4"); a(f"v_add_u32 {xaddr[1]}, v5, v6")
    a("v_lshrrev_b32 v1, 2, v0"); a("v_and_b32 v3, 6, v1")
    a("v_bfe_u32 v4, v0, 1, 1"); a("v_xor_b32 v4, v4, v3"); a("v_lshlrev_b32 v4, 4, v4")
    a("v_and_b32 v5, 1, v0"); a("v_lshlrev_b32 v5, 3, v5")
    a("v_mul_u32_u24 v6, 384, v1"); a("v_add_u32 v5, v5, v6")
    for m in range(4):
        a(f"v_xor_b32 v6, {32 * m}, v4"); a(f"v_add_u32 {vaddr[m]}, v5, v6")
    a("v_and_b32 v3, 1, v2"); a(f"v_mul_u32_u24 v3, {12288 + cfg.wshift}, v3"); a(f"v_add_u32 v3, {VS[0]}, v3")
    a("v_lshrrev_b32 v4, 1, v2"); a("v_lshlrev_b32 v4, 2, v4"); a("v_bfe_u32 v5, v0, 2, 2"); a("v_add_u32 v4, v4, v5")
    a("v_mul_u32_u24 v4, 384, v4"); a("v_add_u32 v3, v3, v4")
    a("v_bfe_u32 v4, v0, 3, 1"); a("v_lshlrev_b32 v4, 2, v4"); a("v_and_b32 v5, 3, v0"); a("v_xor_b32 v4, v4, v5"); a("v_lshlrev_b32 v4, 4, v4")
    a(f"v_add_u32 {waddr[0]}, v3, v4"); a("v_xor_b32 v4, 64, v4"); a(f"v_add_u32 {waddr[1]}, v3, v4")
    return o

def setup_variant(nq, cfg):
    o = []
    def a(t):
        i = raw(t); i.nosim = True; o.append(i)
    if nq == 4:
        a(f"s_mul_i32 {sGrp}, {sWave}, 3072"); a(f"s_add_u32 {sKoff}, {sKoff}, {sGrp}")
        a(f"s_and_b32 {sT0}, {sWave}, 1"); a(f"s_lshl_b32 {sT0}, {sT0}, 2"); a(f"s_lshr_b32 {sT1}, {sWave}, 1"); a(f"s_lshl_b32 {sT1}, {sT1}, 5")
        a(f"s_add_u32 {sT0}, {sT0}, {sT1}"); a(f"s_mul_i32 {sT0}, {sT0}, 12288"); a(f"s_add_u32 {sWoff}, {sWoff}, {sT0}")
        a(f"s_lshl_b32 {sT0}, {sWave}, 13"); a(f"s_add_u32 {sXl[0]}, {sT0}, {KS[1]}"); a(f"s_add_u32 {sXl[1]}, {sT0}, {KS[2]}")
    else:
        a(f"s_mov_b32 {sXl[0]}, {EB}"); a(f"s_mov_b32 {sXl[1]}, {EB + 6144}")
        a("v_mov_b32 v1, 0"); a("s_mov_b64 exec, 1"); a(f"buffer_store_dword v1, off, {sEx}, {sSpin} sc1"); a("s_mov_b64 exec, -1")
    a(f"s_add_u32 {sKend}, {sKoff}, 393216"); a(f"s_mov_b32 {sVend}, {sKend}")
    a(f"s_add_u32 {sWend}, {sWoff}, 7864320"); a(f"s_add_u32 {sXend}, {sXoff}, 1280")
    if cfg.rotkv:
        a(f"s_mul_i32 {sT0}, s2, 5"); a(f"s_lshr_b32 {sT1}, s2, 4"); a(f"s_add_u32 {sT0}, {sT0}, {sT1}"); a(f"s_and_b32 {sT0}, {sT0}, 15")
        a(f"s_mul_i32 {sT0}, {sT0}, 24576"); a(f"s_add_u32 {sKoff}, {sKoff}, {sT0}")
    if cfg.rotq == 1:
        a(f"s_lshr_b32 {sT0}, {sTp}, 3"); a(f"s_lshl_b32 {sT0}, {sT0}, 1"); a(f"s_and_b32 {sT1}, {sTp}, 7"); a(f"s_add_u32 {sT0}, {sT0}, {sT1}")
        a(f"s_mul_i32 {sT0}, {sT0}, 5"); a(f"s_lshr_b32 {sT0}, {sT0}, 2")
        a(f"s_cmp_ge_u32 {sT0}, 10"); a(f"s_cselect_b32 {sT1}, 10, 0"); a(f"s_sub_u32 {sT0}, {sT0}, {sT1}")
    if cfg.rotq == 2:
        a(f"s_lshr_b32 {sT0}, {sTp}, 3"); a(f"s_xor_b32 {sT0}, {sT0}, {sTp}"); a(f"s_and_b32 {sT0}, {sT0}, 1"); a(f"s_mul_i32 {sT0}, {sT0}, 5")
    if cfg.rotq:
        a(f"s_mul_i32 {sT1}, {sT0}, 786432"); a(f"s_add_u32 {sWoff}, {sWoff}, {sT1}"); a(f"s_lshl_b32 {sT1}, {sT0}, 7"); a(f"s_add_u32 {sXoff}, {sXoff}, {sT1}")
    a(f"s_mov_b32 {sVoff}, {sKoff}")
    a(f"s_mov_b32 {sK0}, {sKoff}"); a(f"s_mov_b32 {sW0}, {sWoff}"); a(f"s_mov_b32 {sX0}, {sXoff}")
    def spaced(seq):
        for i in seq:
            o.append(i)
            if 'm0' in i.wr: o.append(nop(0))
    spaced(job_x(nq, 0, 0, cfg)); spaced(job_tile(nq, 'W', vR, absT('W', 0, 0), cfg))
    o.extend(lds_addr_setup(cfg))
    spaced(job_x(nq, 1, 0, cfg)); spaced(job_tile(nq, 'W', vN, absT('W', 0, 1), cfg))
    spaced(job_tile(nq, 'K', kR, absT('K', 0, 0), cfg))
    o.append(wait(need_vm=lambda c: [('x', 0, 0), ('W', 0, 0)], free=False)); o.append(barrier())
    dep = []
    for q in range(nq):
        for u in range(2):
            r = rdX(nq, 0, 0, q, u); dep += r.wr; o.append(r)
    for T in range(2):
        for (u, e) in UE: o.append(rdW(T, u, e, absT('W', 0, 0)))
    o.append(wait())
    spaced(job_x(nq, 2, 0, cfg, dep))
    o.append(wait())
    return o

def stamp(cfg, idx):
    if not cfg.stamps: return []
    return [raw("s_memrealtime s[56:57]"), raw("s_memtime s[58:59]"), raw("s_waitcnt lgkmcnt(0)"),
            raw(f"v_writelane_b32 {vStamp}, s56, {2 * idx}"), raw(f"v_writelane_b32 {vStamp}, s58, {2 * idx + 1}")]
def finish(cfg, idx):
    e = []
    if cfg.stamps:
        e += [raw("s_waitcnt vmcnt(0)")] + stamp(cfg, idx)
        e += [raw(f"s_lshl_b32 {sTp}, s2, 2"), raw(f"s_add_u32 {sTp}, {sTp}, {sWave}"), raw(f"s_lshl_b32 {sTp}, {sTp}, 8"),
              raw(f"s_add_u32 {sTp}, {sTp}, {STOFF}"), raw(f"v_lshrrev_b32 v0, 2, {vL16}"),
              raw(f"buffer_store_dword {vStamp}, v0, {sEx}, {sTp} offen")]
    return e + [raw("s_endpgm")]

def variant(nq, cfg, common):
    sfx = f"_{nq}"
    st = lambda i: stamp(cfg, i)
    su = setup_variant(nq, cfg) + st(0)
    q1 = qproj(nq, cfg, False); q1.add_wait_sites()
    q2 = qproj(nq, cfg, True); q2.add_wait_sites()
    cp = conv_prologue(nq, cfg)
    if cfg.w3all:
        jK = lambda: job_tile(nq, 'K', kF, tagK(3), cfg, groups=range(8))
        jV = lambda: job_tile(nq, 'V', vF, tagV(2), cfg, groups=range(4, 8))
        jL = lambda: [job_tile(nq, 'V', vF, tagV(3), cfg, groups=range(4), adv=False)]
    else:
        jK = lambda: job_tile(nq, 'K', kF, tagK(3), cfg)
        jV = lambda: job_tile(nq, 'V', vF, tagV(2), cfg)
        jL = lambda: []
    i0 = attn_iter(nq, 0, cfg, first_pv=True, jobs=[jK()], late=jL())
    i1 = attn_iter(nq, 1, cfg, jobs=[jV(), jK()], late=jL())
    i2 = attn_iter(nq, 0, cfg, jobs=[jV(), jK()], late=jL())
    fix = []
    for o_, d_ in ((sKoff, 16 * 393216), (sKend, 16 * 393216), (sVoff, 16 * 393216), (sVend, 16 * 393216), (sWoff, 16 * 384), (sWend, 16 * 384)):
        fix.append(salu("s_add_u32", o_, o_, d_))
    a13 = attn_iter(nq, 1, cfg, jobs=[jV(), fix, job_x(nq, 0, 1, cfg)])
    a14 = attn_iter(nq, 0, cfg, jobs=[job_tile(nq, 'W', vF, absT('W', 1, 0), cfg), job_x(nq, 1, 1, cfg)], next_k=False, k_rot=False)
    a15 = attn_last(nq, cfg, 'Q')
    pf = []
    if cfg.wopf and nq == 3:
        pf.append(valu("v_lshlrev_b32", V(243), 3, vL16))
        for i in range(8):
            pf.append(gload(V(244), V(243), sWo, sWopf, 0, "", op="buffer_load_dword"))
            pf[-1].wr = []
            pf.append(salu("s_add_u32", sWopf, sWopf, 8192 if i < 6 else 4096) if i < 7 else salu("s_sub_u32", sWopf, sWopf, 6 * 8192 + 4096))
    b13 = attn_iter(nq, 1, cfg, jobs=[jV(), pf], late=[calc_raddr()])
    b14 = attn_iter(nq, 0, cfg, jobs=[([poll_issue(0)] if nq == 3 else []), job_u(0, cfg)], next_k=False, k_rot=False)
    if nq == 3:
        gb = 12 * 9 - 1
        b14.put(gb, wait()); b14.put(gb, poll_check(0))
    b15 = attn_last(nq, cfg, 'P')
    pa = p_chunks(0, CS, nq, cfg)
    i0.place(smov(sLoop, 6), 20, 60)
    i2.place(salu("s_sub_u32", sLoop, sLoop, 1), 20, 60)
    for s in (i0, i1, i2, a13, a14, a15, b13, b14, b15): s.add_wait_sites()
    loopend = [scmp("s_cmp_lg_u32", sLoop, 0), raw(f"s_cbranch_scc1 L_loop{sfx}")]
    headbr = [scmp("s_cmp_lg_u32", sHead, 0), raw(f"s_cbranch_scc1 L_tail2{sfx}")]
    back = [smov(sHead, 1), raw(f"s_branch L_head{sfx}")]
    idlebr = [scmp("s_cmp_lg_u32", sIdle, 0), raw(f"s_cbranch_scc1 L_idle{sfx}"), wait()]
    idle = [label(f"L_idle{sfx}")]
    i = 0
    for s in range(6):
        for q in range(nq):
            idle += epi_block(q, s, TMP[i & 1], cfg); i += 1
    idle += [raw("s_waitcnt vmcnt(0)"), barrier()]
    if nq == 3: idle += [salu("s_add_u32", sSig, sMyc, 64), signal_add(sSig, False)]
    idle += finish(cfg, 8)
    L = lambda s: s.linear()
    s1, s3, s4, s5 = st(1), st(2), st(3), st(4)
    jump = [raw("s_branch L_pcommon")] if nq == 3 else []
    code = su + L(q1) + s1 + [label(f"L_head{sfx}")] + cp + L(i0) + [raw(".p2align 3", 'L', states=0), label(f"L_loop{sfx}")] + L(i1) + L(i2) + loopend + headbr \
        + L(a13) + L(a14) + L(a15) + s3 + L(q2) + s4 + back + slow_path(nq, cfg) + idle \
        + [label(f"L_tail2{sfx}")] + L(b13) + L(b14) + L(b15) + s5 + idlebr + L(pa) + jump
    tr = []
    def add(ins, **c): tr.extend((i, c) for i in ins)
    add(su, h=0, t=-9); add(L(q1) + s1, h=0, t=-5)
    for h in range(2):
        add(cp, h=h, t=-1); add(L(i0), h=h, t=0)
        for t in range(1, 13, 2):
            add(L(i1), h=h, t=t); add(L(i2), h=h, t=t + 1); add(loopend, h=h, t=t + 1)
        add(headbr, h=h, t=12)
        if h == 0:
            add(L(a13), h=0, t=13); add(L(a14), h=0, t=14); add(L(a15) + s3, h=0, t=15); add(L(q2) + s4, h=1, t=-5); add(back, h=1, t=-5)
        else:
            add(L(b13), h=1, t=13); add(L(b14), h=1, t=14); add(L(b15) + s5, h=1, t=15)
    tr_idle = tr + [(i, dict(h=1, t=16)) for i in idlebr[:2] + idle]
    add(idlebr + L(pa) + jump + common, h=1, t=16)
    info = dict(q1=q1, q2=q2, i0=i0, i1=i1, i2=i2, a13=a13, a14=a14, a15=a15, b13=b13, b14=b14, b15=b15, pa=pa)
    return code, tr, tr_idle, info

def sim_variant(nq, tr, cfg):
    ok = True
    for w in ([0, 1, 2] if nq == 4 else [3]):
        h0 = 5
        grp = w * 3072 if nq == 4 else 0
        k0 = [0, 4, 32, 0][w]
        rk = 7 if cfg.rotkv else 0; rq = 3 if cfg.rotq else 0
        init = {'wave': w, 'h0': h0, 'rk': rk, 'rq': rq, str(kR): KS[0], str(kN): KS[1], str(kF): KS[2], str(vR): VS[0], str(vN): VS[1], str(vF): VS[2],
                str(sVcur): 0, str(sWcur): VS[0], str(sKoff): h0 * 393216 + grp, str(sVoff): h0 * 393216 + grp, str(sWoff): h0 * 384 + k0 * 12288,
                str(sXoff): w * 64 * 1280, str(sOoff): h0 * 92160 + w * 4 * 6144, str(sGrp): grp,
                str(sXl[0]): (KS[1] + w * 8192 if nq == 4 else EB), str(sXl[1]): (KS[2] + w * 8192 if nq == 4 else EB + 6144),
                str(sOb): 1000000, str(sWb): 2000000, str(sLb): 3000}
        init[str(sKend)] = init[str(sKoff)] + 393216; init[str(sVend)] = init[str(sKend)]
        init[str(sWend)] = init[str(sWoff)] + 7864320; init[str(sXend)] = init[str(sXoff)] + 1280
        init[str(sKoff)] += rk * 24576; init[str(sVoff)] += rk * 24576; init[str(sWoff)] += rq * 786432; init[str(sXoff)] += rq * 128
        for r in kaddr + vaddr: init[str(r)] = 0
        for r in waddr: init[str(r)] = VS[0]
        if not cfg.fake: ok = sim_scalar(tr, init, f"nq{nq} w{w}") and ok
    return ok

def build(cfg, name):
    su = setup(cfg)
    pb = p_chunks(CS, NCH, None, cfg)
    pre, fin = p_end(cfg)
    seq_after(pb, pre, len(pb.mf) - 75, len(pb.mf) - 20)
    common = [label("L_pcommon")] + stamp(cfg, 5) + pb.linear() + stamp(cfg, 6) + fin + finish(cfg, 7)
    c4, t4, ti4, inf4 = variant(4, cfg, common)
    c3, t3, ti3, inf3 = variant(3, cfg, common)
    for rep in range(2):
        for n, t in (("nq4", t4), ("nq3", t3), ("idle4", ti4), ("idle3", ti3)): derive_waits(t, n, verbose=(rep == 1 and n[0] == 'n'))
    ok = True
    for n, t in (("nq4", t4), ("nq3", t3), ("idle4", ti4), ("idle3", ti3)): ok = check_hazards(t, n) and ok
    ok = check_seqs(c4 + common) and check_seqs(c3) and ok
    ok = sim_variant(4, t4, cfg) and sim_variant(3, t3, cfg) and ok
    ok = check_lds({4: t4, 3: t3}) and ok
    for n, inf in (("nq4", inf4), ("nq3", inf3)): print(n, "model cycles:", {k: s.cycles() for k, s in inf.items()})
    print("common", pb.cycles())
    assert ok
    lines = [f".globl {name}", ".p2align 8", f".type {name},@function", f"{name}:"]
    lines += emit(su) + emit(c4) + emit(common) + ["L_end:", "s_endpgm", "L_v3:"] + emit(c3)
    out = []
    for l in lines: out += l.split("\n")
    return out

if __name__ == "__main__":
    print(len(build(Cfg(), "k_kernel")), "lines")
```

```python
import sys, re
from fz import build, Cfg, LDS_BYTES
NAME = "concat_heads__gqa_block_cached__gqa_block_cached__near_ridge"
def desc(name):
    return f""".amdhsa_kernel {name}
  .amdhsa_next_free_vgpr 512
  .amdhsa_next_free_sgpr 102
  .amdhsa_accum_offset 256
  .amdhsa_group_segment_fixed_size 0
  .amdhsa_kernarg_size 104
  .amdhsa_user_sgpr_count 2
  .amdhsa_user_sgpr_kernarg_segment_ptr 1
  .amdhsa_system_sgpr_workgroup_id_x 1
  .amdhsa_float_denorm_mode_32 3
.end_amdhsa_kernel"""
MACROS = r"""
.macro mm f, d, fa, a, fb, b, c
v_mfma_f32_16x16x32_bf16 \f[\d:\d+3], \fa[\a:\a+3], \fb[\b:\b+3], \f[\c:\c+3]
.endm
.macro mz f, d, fa, a, fb, b
v_mfma_f32_16x16x32_bf16 \f[\d:\d+3], \fa[\a:\a+3], \fb[\b:\b+3], 0
.endm
.macro tr d, a, o
ds_read_b64_tr_b16 v[\d:\d+1], v\a offset:\o
.endm
"""
def compress(l):
    m = re.fullmatch(r"v_mfma_f32_16x16x32_bf16 (\w)\[(\d+):\d+\], (\w)\[(\d+):\d+\], (\w)\[(\d+):\d+\], (?:\w\[(\d+):\d+\]|0)", l)
    if m:
        f, d, fa, a, fb, b, c = m.groups()
        return f"mm {f},{d},{fa},{a},{fb},{b},{c}" if c is not None else f"mz {f},{d},{fa},{a},{fb},{b}"
    m = re.fullmatch(r"ds_read_b64_tr_b16 v\[(\d+):\d+\], v(\d+)(?: offset:(\d+))?", l)
    if m: return f"tr {m.group(1)},{m.group(2)},{m.group(3) or 0}"
    return l
def generate(path, c):
    hdr = open("cdna_kernels/" + NAME + ".s.ref").read().split("\n")
    head = [l for l in hdr if l.startswith(";") and "@launch" not in l]
    out = head + [f"; @launch grid=(256,1,1) block=(256,1,1) lds={LDS_BYTES}",
                  '.amdgcn_target "amdgcn-amd-amdhsa--gfx950"', MACROS, ".text"]
    out += [compress(l) for l in build(c, NAME + "_kernel")]
    out += ["L_code_end:"]
    out += ['.section .rodata,"a"', ".p2align 6", desc(NAME + "_kernel")]
    open(path, "w").write("\n".join(out) + "\n")
if __name__ == "__main__":
    c = Cfg()
    for kv in sys.argv[2:]:
        k, v = kv.split("=")
        v = v.replace("+", " ")
        if v.lstrip("-").isdigit(): v = int(v)
        assert hasattr(c, k), k
        setattr(c, k, v)
    generate(sys.argv[1], c)
```

```python
import math, struct
from asmlib import *

SL = 24832
KS = [0, SL, 2 * SL]
VS = [3 * SL, 4 * SL, 5 * SL]
EB = 6 * SL
FLAG = EB + 12288
LDS_BYTES = 163840

sX, sW, sK, sV, sO = S(4, 4), S(8, 4), S(12, 4), S(16, 4), S(20, 4)
sWave = S(24)
kR, kN, kF = S(25), S(26), S(27)
vR, vN, vF = S(28), S(29), S(30)
sKoff, sVoff, sWoff, sXoff = S(31), S(32), S(33), S(34)
sLoop, sHead = S(35), S(36)
sThr = S(37)
sC2 = S(38, 2)
sGrp = S(40)
sT0, sT1, sT2, sT3, sT4 = S(41), S(42), S(43), S(47), S(55)
sXl = [S(44), S(45)]
sOoff = S(46)
sWcur, sVcur = S(48), S(49)
sTo = S(50)
sTx = S(51)
sBad = S(52, 2)
sWopf = S(54)
sTs = S(56, 4)
sOr, sOut, sEx, sDbg = S(60, 4), S(64, 4), S(68, 4), S(72, 4)
sOb, sWb, sLb, sOutb = S(76), S(77), S(78), S(79)
sExs, sExr, sFs, sFr = S(80), S(81), S(82), S(83)
sSig, sCnt, sMyc = S(84), S(85), S(86)
sRedo, sIdle = S(87), S(88)
sK0, sW0, sX0 = S(89), S(90), S(91)
sKend, sVend, sWend, sXend = S(92), S(93), S(94), S(95)
sWo = S(96, 4)
sSpin = S(100)
sTp = S(101)
OOB = 0x7fff0000
EXOFF = 0x3000000
FLOFF = 0xC00000
STOFF = 0x1000000

def blk(q, s): return q * 6 + s
def Qf(q, s): return V(8 * blk(q, s), 4)
def QACC(T, q): return V(8 * blk(q, T >> 1) + 4 * (T & 1), 4)
def U(i): return V(8 * i + 4, 4)
def Pf(par, q, u): return U(par * 8 + q * 2 + u)
def Sf(i): return U(16 + (i & 3))
def Ci(q): return U(20 + q)
def VB(b, u, e=None):
    return V(192 + 8 * b + 4 * u, 4) if e is None else V(192 + 8 * b + 4 * u + 2 * e, 2)
TMP = [V(216, 8), V(224, 8)]
def Lq(q): return V(232 + q)
kaddr = [V(236), V(237)]
vaddr = [V(238), V(239), V(240), V(241)]
waddr = [V(242), V(243)]
xaddr = [V(244), V(245)]
dKV = [V(246), V(247), V(248)]
dW = [V(249), V(250), V(251)]
dX = V(252)
vL16 = V(253)
vt0, vt1 = V(224), V(225)
vOne = V(254)
vStamp = V(255)
raddr = [V(249), V(250), V(251), V(242)]
def PACC(N, q): return V(4 * (N * 5 + q), 4)
def OF(b, q, u):
    i = 2 * q + u
    if b == 0: return A(192 + 4 * i, 4)
    if b == 1: return A(232 + 4 * i, 4) if i < 6 else U(20 + i - 6)
    return V(8 * (20 + i), 4) if i < 4 else A(4 * (i - 4), 4)
def Oacc(T, q): return A(4 * (T * 4 + q), 4)
def Kf(b, s): return A(192 + 24 * b + 4 * s, 4)
def Xf(par, q, u): return A(192 + 32 * par + 8 * q + 4 * u, 4)

def fbits(x): return "0x%08x" % struct.unpack("<I", struct.pack("<f", x))[0]

class Cfg:
    wshift = 8
    kvflags = "nt"
    wflags = ""
    xflags = ""
    oflags = "sc1"
    orflags = "sc1"
    woflags = ""
    pubchunk = 5
    kvperm = 0
    xpace = 0
    l2pf = 0
    l2n = 3
    l2tot = 12
    l2fl = ""
    ntlate = 99
    outflags = ""
    thr = 40
    stamps = False
    fake = 0
    nostore = 0
    w3all = 1
    rotkv = 1
    rotq = 1
    codepf = 1
    wopf = 1

def tagK(dn): return lambda c: ('K', c['h'], c['t'] + dn)
def tagV(dn): return lambda c: ('V', c['h'], c['t'] + dn)
def absT(kind, dh, n): return lambda c: (kind, c['h'] + dh, n)
def slot_of(tile, nq):
    k, h, n = tile
    if k == 'K': return ('k', n % 3)
    if k == 'x': return ('k', 1 + n % 2) if nq == 4 else ('e', n % 2)
    if k == 'W': return ('v', (h * 26 + n) % 3)
    if k == 'V': return ('v', (h * 26 + 10 + n) % 3)
    if k == 'U': return ('kv', (n + 1) % 3)

def kv_map(cfg):
    return {0: (8, list(range(8))),
            1: (1, [0, 32, 64, 96, 16, 48, 80, 112]),
            2: (2, [0, 32, 64, 96, 1, 33, 65, 97]),
            3: (4, [0, 64, 1, 65, 2, 66, 3, 67])}[cfg.kvperm]
def slot_base(slot):
    return {'k': KS, 'v': VS, 'e': [EB, EB + 6144]}[slot[0]][slot[1]]
def exp_dma(ins, tag, nq, soff, imm, idx, cfg):
    def f(c, st):
        k, h, n = tag(c); w = st['wave']; base = slot_base(slot_of((k, h, n), nq)); hh = st['h0'] + 16 * h
        if k == 'x':
            el = base + (w * 8192 if nq == 4 else 0) + idx * 1024
            eg = w * 64 * 1280 + 128 * ((n + st['rq']) % 10) + idx * 10240
        else:
            i = idx + (3 * w if nq == 4 else 0); mm = i // 3
            n = (n + st['rq']) % 10 if k == 'W' else (n + st['rk']) % 16
            el = base + i * 1024
            if k == 'W':
                el += cfg.wshift if mm >= 4 else 0
                eg = hh * 384 + (64 * n + 32 * ((mm & 3) >> 1) + 4 * (mm & 1) + 8 * (mm >> 2)) * 12288 + (i % 3) * 1024
            else: eg = hh * 393216 + (n * kv_map(cfg)[0] + kv_map(cfg)[1][mm]) * 3072 + (i % 3) * 1024
        gl, gg = st.get('m0'), st.get(str(soff))
        if gl is None or gg is None or gl + imm != el or gg + imm != eg: return f"lds {gl}+{imm} vs {el}; glob {gg}+{imm} vs {eg} tile {(k, h, n)}"
    ins.expect = f
    return ins
def exp_rd(ins, addr, tag):
    def f(c, st):
        base = slot_base(slot_of(tag(c), 4))
        if st.get(str(addr)) != base: return f"base {st.get(str(addr))} vs {base} tile {tag(c)}"
    ins.expect = f
    return ins

def advance(off, end, step, span, on=True):
    o = [salu("s_add_u32", off, off, step)]
    if on:
        i = Ins(f"s_cmp_eq_u32 {off}, {end}\ns_cselect_b32 {sT4}, {span}, 0", 'S', rd=off.regs() + end.regs(), wr=['scc'] + sT4.regs(), states=2)
        i.cost = 2
        i.simfn = lambda st: st.__setitem__(str(sT4), span if st[str(off)] == st[str(end)] else 0)
        o += [i, salu("s_sub_u32", off, off, sT4)]
    return o

def job_tile(nq, kind, slotreg, tag, cfg, groups=None, adv=True, flo=None):
    srd, off, end, addr, fl = {'K': (sK, sKoff, sKend, dKV, cfg.kvflags), 'V': (sV, sVoff, sVend, dKV, cfg.kvflags),
                               'W': (sW, sWoff, sWend, dW, cfg.wflags)}[kind]
    sl = lambda c: slot_of(tag(c), nq)
    if flo is not None: fl = flo
    out = []
    if nq == 4:
        if groups is None:
            out.append(salu("s_add_u32", 'm0', slotreg, sGrp))
            for m in range(3): out.append(exp_dma(dma(addr[m], srd, off, 1024 * m, fl, tag=tag, slot=sl), tag, nq, off, 1024 * m, m, cfg))
    else:
        for mm in (range(3, 8) if groups is None else groups):
            if kind == 'W':
                k0 = 32 * ((mm & 3) >> 1) + 4 * (mm & 1) + 8 * (mm >> 2)
                go = k0 * 12288; lo = mm * 3072 + (cfg.wshift if mm >= 4 else 0)
            else:
                lo = mm * 3072; go = kv_map(cfg)[1][mm] * 3072
            out.append(salu("s_add_u32", 'm0', slotreg, lo))
            out.append(salu("s_add_u32", sT0, off, go))
            for m in range(3): out.append(exp_dma(dma(addr[m], srd, sT0, 1024 * m, fl, tag=tag, slot=sl), tag, nq, sT0, 1024 * m, 3 * mm + m, cfg))
    if adv:
        step = 786432 if kind == 'W' else 3072 * kv_map(cfg)[0]
        if cfg.fake and (kind != 'W' or cfg.fake > 1): step = 0
        out += advance(off, end, step, 7864320 if kind == 'W' else 16 * 3072 * kv_map(cfg)[0])
    return out

def job_x(nq, n, dh, cfg, dep=()):
    tag = absT('x', dh, n); sl = lambda c: slot_of(tag(c), nq)
    out = []
    for i in range(2 * nq):
        if i % 4 == 0: out.append(salu("s_add_u32", 'm0', sXl[n & 1], 1024 * i))
        out.append(salu("s_add_u32", sTx, sXoff, 10240 * i - 1024 * (i % 4)))
        d = dma(dX, sX, sTx, 1024 * (i % 4), 'nt' if n >= cfg.ntlate else cfg.xflags, tag=tag, slot=sl, private=True)
        exp_dma(d, tag, nq, sTx, 1024 * (i % 4), i, cfg)
        if i == 0: d.rd += list(dep)
        out.append(d)
    out += advance(sXoff, sXend, 0 if cfg.fake > 1 else 128, 1280)
    return out

def seq_after(sc, seq, lo, hi, even=False):
    seq = list(seq)
    SEQS.append(seq)
    hi = min(hi, len(sc.g) - 1)
    n = len(seq)
    nx = sum(1 for i in seq if i.kind == 'X'); kx = 0
    g = lo; prev = None; pg = None
    for k, ins in enumerate(seq):
        dl = max(g, min(hi, lo + ((k + 1) * (hi - lo + 1) + n - 1) // n - 1))
        if not even: dl = max(g, min(hi, hi - (n - 1 - k) // 2))
        g1 = g
        if even and ins.kind == 'X': g1 = max(g, min(dl, lo + (kx * (hi - lo + 1)) // nx))
        same_bad = prev is not None and ((prev.kind in 'VE' and ins.kind not in 'VE') or ('m0' in prev.wr and ins.dma))
        if same_bad and g1 == pg:
            if g1 + 1 <= hi: g1 += 1; dl = max(dl, g1)
            else:
                if 'm0' in prev.wr: sc.g[g1].append(nop(0))
                sc.g[g1].append(ins); prev = ins; pg = g1
                for rest in seq[k + 1:]:
                    if 'm0' in prev.wr and rest.dma: sc.g[g1].append(nop(0))
                    sc.g[g1].append(rest); prev = rest
                return g1
        r = sc.place(ins, g1, dl, force=True)
        if ins.kind == 'X': kx += 1
        g = r; pg = r; prev = ins
    return g

def place_even(sc, seq, lo, hi): return seq_after(sc, seq, lo, hi, even=True)

def rdK(j, s, tag): return exp_rd(dsread("ds_read_b128", Kf(j & 1, s), kaddr[s & 1], (j & 3) * 6144 + (s >> 1) * 128, tag), kaddr[s & 1], tag)
def rdV(T, u, e, tag):
    T %= 12
    return exp_rd(dsread("ds_read_b64_tr_b16", VB(T & 3, u, e), vaddr[T & 3], (32 * u + 16 * e) * 384 + (T >> 2) * 128, tag), vaddr[T & 3], tag)
def rdW(T, u, e, tag):
    T %= 12
    s, uu = T >> 1, T & 1
    return exp_rd(dsread("ds_read_b64_tr_b16", VB(T % 3, u, e), waddr[s & 1], (2 * u + e) * 3072 + (s >> 1) * 128 + 8 * uu, tag), waddr[s & 1], tag)
def rdX(nq, n, dh, q, u):
    d = SL if nq == 4 else 6144
    return dsread("ds_read_b128", Xf(n & 1, q, u), xaddr[u], (n & 1) * d + q * 2048, absT('x', dh, n), private=True)
UE = [(0, 0), (0, 1), (1, 0), (1, 1)]

def rebase(regs, cur, new):
    return [salu("s_sub_u32", sT1, new, cur), smov(cur, new)] + [valu("v_add_u32", r, sT1, r) for r in regs]
def rotate(r, n, f): return [smov(sT2, r), smov(r, n), smov(n, f), smov(f, sT2)]
def rebaseK():
    return [salu("s_sub_u32", sT3, kN, kR)] + [valu("v_add_u32", r, sT3, r) for r in kaddr]

def softmax_ops(Sx, q, j, par):
    e = [vexp(Sx.sub(r), Sx.sub(r)) for r in range(4)]
    a = [valu("v_add_f32", Lq(q), Lq(q), Sx.sub(r)) for r in range(4)]
    P = Pf(par, q, j >> 1)
    c = [valu("v_cvt_pk_bf16_f32", P.sub(2 * (j & 1) + i), Sx.sub(2 * i), Sx.sub(2 * i + 1)) for i in range(2)]
    return e, a, c

def attn_iter(nq, par, cfg, first_pv=False, jobs=(), next_k=True, k_rot=True, late=()):
    NG = 4 * nq
    mf = []
    for G in range(NG):
        j, q = divmod(G, nq)
        for s in range(6):
            mf.append(mfma(Sf(G), Kf(j & 1, s), Qf(q, s), Ci(q) if s == 0 else Sf(G)))
        for n in range(3 * G, 3 * G + 3):
            T, qq = divmod(n, nq)
            for u in range(2):
                mf.append(mfma(Oacc(T, qq), VB(T & 3, u), Pf(par, qq, u), 0 if (first_pv and u == 0) else Oacc(T, qq)))
    sc = Sched(mf)
    def pvpos(n): return 12 * (n // 3) + 6 + 2 * (n % 3)
    sm = []
    for G in range(NG):
        Gp = (G - 1) % NG
        j, q = divmod(Gp, nq)
        e, a, c = softmax_ops(Sf(Gp), q, j, par if G == 0 else par ^ 1)
        for r in range(4): sc.put(12 * G + 2 * r, e[r])
        sm.append((e, a, c))
    GB = 3 * nq
    bw = wait(need_vm=(lambda c: [('K', c['h'], c['t'] + 2), ('V', c['h'], c['t'] + 1)]), lgkm0=True, free=False)
    sc.put(12 * GB, bw, front=True)
    if cfg.stamps > 1 and nq == 4:
        sc.put(12 * GB, raw("s_memrealtime s[56:57]"), front=True)
        sc.put(12 * GB + 22, unit([f"v_cmp_eq_u32 vcc, s3, {vL16}", f"v_mov_b32 {vOne}, s56", "s_add_u32 s3, s3, 16", f"v_cndmask_b32 {vStamp}, {vStamp}, {vOne}, vcc"], 'V', cost=3))
    sc.put(12 * GB + 2, barrier(), front=True)
    bar = 12 * GB + 2
    reads = []
    for j in range(4):
        lo = 12 * nq * j
        nxt = (j == 3)
        tv, tk = (tagV(1), tagK(2)) if nxt else (tagV(0), tagK(1))
        for i in range(3):
            T = 3 * j + 3 + i
            l2 = lo if i == 0 else pvpos(nq * (T - 4) + nq - 1) + 1
            l2 = max(l2, lo)
            if nxt: l2 = max(l2, bar + 1)
            item = [(rdV(T, u, e, tv), l2) for (u, e) in UE]
            reads.append((l2, 0, item))
        if not nxt or next_k:
            l2 = max(lo, bar + 1) if nxt else lo
            reads.append((l2, 1, [(rdK(j + 1, s, tk), l2) for s in range(6)]))
    reads.sort(key=lambda x: (x[0], x[1]))
    g = 0
    lastpre = 0
    for _, _, item in reads:
        for ins, l2 in item:
            g = max(g, l2)
            while not (g % 12 in (1, 3, 5, 7, 8, 9) and not sc.g[g]) :
                g += 1
                if nq == 3 and g % 12 in (10, 11) and not sc.g[g]: break
            assert g < len(mf), "ds overflow"
            sc.put(g, ins)
            if g < bar: lastpre = g
    assert lastpre < 12 * GB
    upd = rebase(vaddr, sVcur, vN) + (rebaseK() if k_rot else [])
    for G in range(NG):
        e, a, c = sm[G]
        b = 12 * G
        if nq == 3 and G == 0:
            order = [(a[0], 1), (c[0], 3), (a[1], 5), (c[1], 7), (a[2], 8), (a[3], 9)]
        else:
            order = [(a[0], 1), (a[1], 3), (c[0], 5), (a[2], 7), (a[3], 8), (c[1], 9)]
        for ins, o in order: sc.put(b + o, ins)
    if nq == 3:
        for G in range(NG):
            sc.put(12 * G + 4, wait(), front=True)
            if G % 3 == 2: sc.put(12 * G + 11, wait())
    if cfg.xpace and nq == 4:
        for G in range(NG): sc.put(12 * G + 6, nop(cfg.xpace - 1))
    seq_after(sc, upd, lastpre, bar)
    gj = 0
    seq = [i for jb in jobs for i in jb]
    if seq: gj = place_even(sc, seq, 0, 12 * GB - (2 if nq == 3 else 13))
    rot = rotate(vR, vN, vF) + (rotate(kR, kN, kF) if k_rot else [])
    seq = [i for jb in late for i in jb]
    if any(i.kind == 'X' for i in seq):
        gr = seq_after(sc, rot, bar + 1, bar + 4)
        place_even(sc, seq, gr + 1, len(mf) - 2)
    else:
        seq_after(sc, rot + seq, bar + 1, len(mf) - 2)
    return sc

NCH = 24
PSLOT = [0, SL - 1024, 2 * SL - 1024]
def head_of(c):
    hh, cc = divmod(c, 3)
    return (hh if hh < 4 else 12 + hh), cc
def tagU(c): return lambda ctx: ('U', 0, c)
def job_o(c, cfg):
    h, cc = head_of(c)
    out = []
    for q in range(5):
        out.append(salu("s_add_u32", sTp, sOb, h * 92160 + cc * 2048 + q * 6144))
        for u in range(2):
            l = gload(OF(c % 3, q, u), vL16, sOr, sTp, 1024 * u, cfg.orflags)
            l.expect = lambda ctx, st, e=h * 92160 + cc * 2048 + q * 6144: None if st.get(str(sTp)) == st[str(sOb)] + e else "o off"
            out.append(l)
    return out
def job_u(c, cfg):
    h, cc = head_of(c)
    tag = tagU(c); sl = lambda ctx: slot_of(tag(ctx), 4)
    out = []
    for i in range(8):
        if i % 4 == 0: out.append(salu("s_add_u32", 'm0', sLb, PSLOT[(c + 1) % 3] + 1024 * i))
        out.append(salu("s_add_u32", sTx, sWb, (h * 192 + 64 * cc + 8 * i) * 1280 - 1024 * (i % 4)))
        d = dma(dX, sWo, sTx, 1024 * (i % 4), cfg.woflags, tag=tag, slot=sl)
        d.expect = lambda ctx, st, e=(h * 192 + 64 * cc + 8 * i) * 1280 - 1024 * (i % 4), el=PSLOT[(c + 1) % 3] + 4096 * (i // 4): \
            None if (st.get(str(sTx)) == st[str(sWb)] + e and st.get('m0') == st[str(sLb)] + el) else "u off"
        out.append(d)
    return out
def rdU(gs, u, e):
    c, N = divmod(gs, 8)
    return dsread("ds_read_b64_tr_b16", VB(gs % 3, u, e), raddr[N & 3],
                  PSLOT[(c + 1) % 3] + (N >> 2) * 8192 + (32 * u + 16 * e) * 128, tag=tagU(c))
def calc_raddr():
    o = [valu("v_lshrrev_b32", vt0, 6, vL16),
         valu("v_and_b32", vt1, 6, vt0),
         valu("v_lshlrev_b32", vt0, 7, vt0),
         valu("v_bfe_u32", raddr[0], vL16, 4, 1),
         valu("v_lshl_add_u32", vt0, raddr[0], 3, vt0),
         valu("v_bfe_u32", raddr[0], vL16, 5, 1),
         valu("v_xor_b32", vt1, vt1, raddr[0]),
         valu("v_lshlrev_b32", vt1, 4, vt1),
         salu("s_lshr_b32", sTp, sWave, 1), salu("s_lshl_b32", sTp, sTp, 6),
         valu("v_xor_b32", vt1, sTp, vt1),
         salu("s_lshr_b32", sTp, sWave, 1), salu("s_mul_i32", sTp, sTp, 3 * SL, scc=False), salu("s_add_u32", sTp, sTp, 1024),
         valu("v_add_u32", vt0, sTp, vt0)]
    for m in range(4):
        o += [valu("v_xor_b32", raddr[m], 32 * m, vt1), valu("v_add_u32", raddr[m], raddr[m], vt0)]
    for i in o: i.nosim = True
    return o
def unit(lines, kind='S', cost=None, rd=(), wr=(), **kw):
    i = Ins("\n".join(lines), kind, rd=rd, wr=wr, states=len([l for l in lines if not l.endswith(":")]), **kw)
    i.cost = cost if cost is not None else len(lines)
    i.nosim = True
    return i
_uid = [0]
def signal_add(off, guarded):
    _uid[0] += 1; n = _uid[0]
    l = [f"v_mov_b32 {vOne}, 1", "s_mov_b64 exec, 1", f"buffer_atomic_add {vOne}, off, {sDbg}, {off} sc1", "s_mov_b64 exec, -1"]
    if guarded: l = [f"s_cmp_eq_u32 {off}, -1", f"s_cbranch_scc1 L_nosig{n}"] + l + [f"s_mov_b32 {off}, -1", f"L_nosig{n}:"]
    u = unit(l, 'S', cost=8, wr=['scc'])
    u.states = 2
    return u
def poll_issue(gen):
    return gload_off(V(226, 2), sDbg, sCnt, 64 * gen)
def gload_off(D, srd, soff, off):
    op = {1: "buffer_load_dword", 2: "buffer_load_dwordx2"}[D.n]
    return Ins(f"{op} {D}, off, {srd}, {soff} offset:{off} sc1", 'X', rd=srd.regs() + soff.regs(), wr=D.regs())
def poll_check(gen):
    _uid[0] += 1; n = _uid[0]
    l = [f"s_mov_b32 {sSpin}, 0x80000", f"L_poll{n}:",
         "v_min_u32 v226, v226, v227", "s_nop 0", f"v_readfirstlane_b32 {sT0}, v226", "s_nop 3",
         f"s_cmp_ge_u32 {sT0}, 16", f"s_cbranch_scc1 L_pok{n}",
         "s_sleep 2", f"buffer_load_dwordx2 v[226:227], off, {sDbg}, {sCnt} offset:{64 * gen} sc1",
         f"s_sub_u32 {sSpin}, {sSpin}, 1", f"s_cmp_lg_u32 {sSpin}, 0", "s_waitcnt vmcnt(0)", f"s_cbranch_scc1 L_poll{n}", f"L_pok{n}:"]
    u = unit(l, 'S', cost=12, rd=['v226', 'v227'], wr=['v226', 'scc'] + sT0.regs())
    u.states = 0
    return u

def attn_last(nq, cfg, nxt):
    par = 1
    mf = []
    for T in range(12):
        for q in range(nq):
            for u in range(2): mf.append(mfma(Oacc(T, q), VB(T & 3, u), Pf(par, q, u), Oacc(T, q)))
    sc = Sched(mf)
    sp = 2 * nq
    e, a, c = softmax_ops(Sf(4 * nq - 1), nq - 1, 3, par)
    if nq == 4:
        for r in range(4): sc.put(r, e[r])
        sc.put(4, c[0]); sc.put(4, c[1]); sc.put(5, a[0]); sc.put(5, a[1])
        g0 = 6
    else:
        sc.put(0, e[0]); sc.put(0, e[1]); sc.put(1, e[2]); sc.put(1, e[3])
        sc.put(2, c[0]); sc.put(2, c[1]); sc.put(3, a[0]); sc.put(3, a[1])
        g0 = 4
    g = g0
    for T in range(3, 12):
        g = max(g, sp * (T - 3))
        for (u, ee) in UE:
            sc.put(g, rdV(T, u, ee, tagV(0))); g += 1
        sc.put(g - 1, wait())
    lastv = g - 1
    fin = [a[2], a[3]]
    for q in range(nq):
        t = vt0 if q % 2 == 0 else vt1
        for w in (32, 16):
            fin += [valu("v_mov_b32", t, Lq(q)), None, vperm(w, t, Lq(q)), valu("v_add_f32", Lq(q), Lq(q), t)]
    fin += [valu("v_add_f32", vt0, Lq(0), Lq(1)), valu("v_add_f32", vt0, vt0, Lq(2))]
    if nq == 4: fin.append(valu("v_add_f32", vt0, vt0, Lq(3)))
    fin.append(Ins(f"v_cmp_ngt_f32 {sBad}, {sThr}, {vt0}", 'V', rd=vt0.regs() + sThr.regs(), wr=sBad.regs()))
    SEQS.append([i for i in fin if i is not None])
    g = g0
    for ins in fin:
        if ins is None: g += 2; continue
        g = sc.place(ins, g, g + 8)
    for q in range(nq):
        g = sc.place(vrcp(Lq(q), Lq(q)), g + 1, g + 8)
    ginv = g
    chk = [salu("s_or_b32", sBad.sub(0), sBad.sub(0), sBad.sub(1)), salu("s_lshl_b32", sTp, sWave, 2), salu("s_add_u32", sTp, sTp, FLAG),
           valu("v_mov_b32", vt0, sBad.sub(0)), valu("v_mov_b32", vt1, sTp), dswrite("ds_write_b32", vt1, vt0, 0),
           valu("v_mov_b32", vOne, FLAG)]
    for i in chk: i.nosim = True
    g = seq_after(sc, chk, g + 1, g + 12)
    bar = sp * 10
    assert g < bar - 2
    gnext = g + 1
    if nxt == 'Q':
        w = wait(need_vm=lambda c: [('x', c['h'] + 1, 0)], free=False)
        gx = sc.place(w, sp * 3, sp * 4)
        dep = []
        for q in range(nq):
            for u in range(2):
                r = rdX(nq, 0, 1, q, u); dep += r.wr
                gx = sc.place(r, gx + 1, gx + 8)
        j1 = job_tile(nq, 'W', vF, absT('W', 1, 1), cfg) + job_tile(nq, 'K', kR, absT('K', 1, 0), cfg)
        ge = place_even(sc, j1, g0, sp * 7)
        ws = wait(); gw = sc.place(ws, max(gx + 4, ge), max(gx + 4, ge) + 4)
        place_even(sc, job_x(nq, 2, 1, cfg, dep), gw + 1, len(mf) - 1)
        need = lambda c: [('W', c['h'] + 1, 0)]
    else:
        place_even(sc, job_u(1, cfg), g0, gnext - 1)
        place_even(sc, job_o(0, cfg) + job_o(1, cfg), gnext, len(mf) - 1)
        need = lambda c: [('U', 0, 0)]
    bw = wait(need_vm=need, lgkm0=True, free=False)
    gb = sc.place(bw, bar - 1, bar)
    gb = sc.place(barrier(), gb, bar + 1)
    fl = dsread("ds_read_b128", V(228, 4), vOne, 0)
    g = sc.place(fl, gb + 1, gb + 2)
    if nxt == 'Q':
        seq_after(sc, rebase(waddr, sWcur, vN), lastv, gb)
        seq_after(sc, rotate(vR, vN, vF), gb + 1, len(mf) - 1)
    for T in range(2):
        g = max(g, sp * (10 + T) - 1)
        for (u, ee) in UE:
            r = rdW(T, u, ee, absT('W', 1, 0)) if nxt == 'Q' else rdU(T, u, ee)
            g = sc.place(r, min(len(mf) - 1, g + 1), min(len(mf) - 1, g + 2))
        sc.place(wait(), g, g)
    sc.post = [valu("v_or3_b32", V(228), V(228), V(229), V(230)), valu("v_or_b32", V(228), V(228), V(231)), nop(0),
               Ins(f"v_readfirstlane_b32 {sBad.sub(0)}, v228", 'V', rd=['v228'], wr=sBad.sub(0).regs()), nop(3),
               salu("s_andn2_b32", sBad.sub(0), sBad.sub(0), sRedo), raw(f"s_cbranch_scc1 L_slow_{nq}"), smov(sRedo, 0)]
    return sc

def epi_block(q, s, t, cfg, packed=False):
    ops = []
    for i in range(8):
        src = Oacc(2 * s + (i >> 2), q).sub(i & 3)
        ops.append(valu("v_accvgpr_read_b32", t.sub(i), src))
    for i in range(8): ops.append(valu("v_mul_f32", t.sub(i), t.sub(i), Lq(q)))
    for i in range(4): ops.append(valu("v_cvt_pk_bf16_f32", t.sub(i), t.sub(2 * i), t.sub(2 * i + 1)))
    ops.append(salu("s_add_u32", sTo, sOoff, q * 6144 + (4096 if s >= 4 else 0)))
    stv = gstore(t.sub(0, 4), vL16, sO, sTo, (s & 3) * 1024, cfg.oflags)
    def f(c, st):
        h = 0 if c['t'] < 0 else 1
        e = (st['h0'] + 16 * h) * 92160 + (4 * st['wave'] + q) * 6144 + s * 1024
        if st.get(str(sTo)) is None or st[str(sTo)] + (s & 3) * 1024 != e: return f"store off vs {e}"
    stv.expect = f
    if not cfg.nostore: ops.append(stv)
    return ops

def qproj(nq, cfg, epi):
    sp = 2 * nq; SN = 12 * sp
    mf = []
    for st in range(10):
        for T in range(12):
            for q in range(nq):
                for u in range(2):
                    mf.append(mfma(QACC(T, q), VB(T % 3, u), Xf(st & 1, q, u), 0 if (st == 0 and u == 0) else QACC(T, q)))
    sc = Sched(mf)
    for st in range(10):
        b = st * SN
        for T in range(10):
            g = b + sp * T
            for (u, e) in UE:
                sc.put(g, rdW(T + 2, u, e, absT('W', 0, st))); g += 1
            sc.put(g - 1, wait())
        lastw = g - 1
        need = [('W', st + 1)] if st < 9 else [('K', 0)]
        bw = wait(need_vm=(lambda c, need=need: [(k, c['h'], n) for k, n in need]), lgkm0=True, free=False)
        gb = b + sp * 10
        sc.put(gb, bw); sc.put(gb, barrier())
        g = gb
        if st < 9:
            seq_after(sc, rebase(waddr, sWcur, vN), lastw, gb)
            for T in range(2):
                g = max(g, b + sp * (10 + T) - 1)
                for (u, e) in UE:
                    g += 1; sc.put(g, rdW(T, u, e, absT('W', 0, st + 1)))
                sc.put(g, wait())
        else:
            seq_after(sc, rebase(vaddr, sVcur, vN), lastw, gb)
            for s in range(6):
                g += 1; sc.put(g, rdK(0, s, absT('K', 0, 0)))
        seq_after(sc, rotate(vR, vN, vF), gb + 1, b + SN - 1)
        dep = []
        gx = b + sp * 4
        if st < 9:
            w = wait(need_vm=(lambda c, st=st: [('x', c['h'], st + 1)]), free=False)
            gx = sc.place(w, gx, gx + sp)
            for q in range(nq):
                for u in range(2):
                    r = rdX(nq, st + 1, 0, q, u); dep += r.wr
                    gx = sc.place(r, gx + 1, gx + sp)
        b0 = b
        if st < 8: j1 = job_tile(nq, 'W', vF, absT('W', 0, st + 2), cfg, flo=('nt' if st + 2 >= cfg.ntlate else None))
        else:
            j1 = job_tile(nq, 'V', vF, absT('V', 0, st - 8), cfg) + job_tile(nq, 'K', kN if st == 8 else kF, absT('K', 0, st - 7), cfg)
        if cfg.l2pf and nq == 3 and st >= cfg.l2pf:
            assert cfg.kvperm == 1
            pre = []
            if st == cfg.l2pf: pre.append(valu("v_lshlrev_b32", vOne, 3, vL16))
            for i in range((st - cfg.l2pf) * cfg.l2n, min(cfg.l2tot, (st - cfg.l2pf + 1) * cfg.l2n)):
                pre.append(salu("s_add_u32", sT0, sKend, 393216 - 49152 - 8192 * (i // 2 + 1)))
                t = gload(V(191), vOne, sK if i % 2 == 0 else sV, sT0, 0, cfg.l2fl, op="buffer_load_dword"); t.wr = []
                pre.append(t)
            if pre:
                SEQS.append(pre)
                for i in pre: sc.put(b + 4, i)
                b0 = b + 5
        ge = place_even(sc, j1, b0, b + (sp * 4 - 1 if st < 7 and nq == 4 else sp * 6 if st < 7 else sp * 9))
        if st + 3 <= 9:
            ws = wait(); gw = sc.place(ws, max(gx + 4, ge), max(gx + 4, ge) + 4)
            place_even(sc, job_x(nq, st + 3, 0, cfg, dep), gw + 1, b + SN - 1)
    if epi:
        nb = 6 * nq
        step = (len(mf) - 60) // nb
        i = 0
        for s in range(6):
            for q in range(nq):
                seq_after(sc, epi_block(q, s, TMP[i & 1], cfg), 10 + i * step, 10 + (i + 1) * step - 1)
                i += 1
        seq_after(sc, [salu("s_add_u32", sOoff, sOoff, 16 * 92160), smov(sSig, sMyc)], len(mf) - 20, len(mf) - 1)
    return sc

def conv_prologue(nq, cfg):
    out = []
    cv = []
    for s in range(6):
        for q in range(nq):
            b = V(8 * blk(q, s), 8)
            for i in range(4): cv.append(valu("v_pk_mul_f32", b.sub(2 * i, 2), b.sub(2 * i, 2), sC2))
            for i in range(4): cv.append(valu("v_cvt_pk_bf16_f32", b.sub(i), b.sub(2 * i), b.sub(2 * i + 1)))
    j = job_tile(nq, 'V', vF, absT('V', 0, 2), cfg)
    k = 0
    for i, ins in enumerate(cv):
        out.append(ins)
        if i % 4 == 3 and k < len(j): out.append(j[k]); k += 1
    out += j[k:]
    for q in range(nq): out.append(valu("v_mov_b32", Ci(q).sub(0), "0xff800000"))
    out.append(label(f"L_prol_{nq}"))
    for q in range(nq): out.append(valu("v_mov_b32", Lq(q), 0))
    out.append(wait())
    NG = 4 * nq
    mf = []
    for G in range(NG):
        jj, q = divmod(G, nq)
        for s in range(6):
            mf.append(mfma(Sf(G), Kf(jj & 1, s), Qf(q, s), (0 if jj == 0 else Ci(q)) if s == 0 else Sf(G)))
    sc = Sched(mf)
    sc.pre = out
    gb = 6 * nq * 3
    for jj in range(3):
        g = 6 * nq * jj
        for s in range(6):
            sc.put(g, rdK(jj + 1, s, absT('K', 0, 0))); g += 2
    lastk = g - 2
    bw = wait(need_vm=(lambda c: 'all'), lgkm0=True, free=False)
    bw.vm = 0
    sc.put(gb - 1, bw); sc.put(gb - 1, barrier())
    if nq == 3: sc.put(gb - 1, signal_add(sSig, True))
    seq_after(sc, rebaseK(), lastk + 1, gb - 2)
    g = gb
    post = [rdK(4, s, absT('K', 0, 1)) for s in range(6)]
    for T in range(3): post += [rdV(T, u, e, absT('V', 0, 0)) for (u, e) in UE]
    for ins in post:
        sc.put(g, ins); g += 1
    assert g <= len(mf)
    rot = rotate(kR, kN, kF)
    for i, ins in enumerate(rot): sc.put(gb + i, ins)
    tail = []
    for G in range(NG - 1):
        jj, q = divmod(G, nq)
        Sx = Sf(G)
        ops = []
        if jj == 0:
            t = vt0; m = vt1
            ops += [valu("v_max3_f32", m, Sx.sub(0), Sx.sub(1), Sx.sub(2)), valu("v_max3_f32", m, m, Sx.sub(3), Ci(q).sub(0))]
            for w in (32, 16):
                ops += [valu("v_mov_b32", t, m), nop(1), vperm(w, t, m), valu("v_max_f32", m, m, t)]
            for r in range(4): ops.append(valu("v_sub_f32", Ci(q).sub(r), 0, m))
            for r in range(4): ops.append(valu("v_sub_f32", Sx.sub(r), Sx.sub(r), m))
        e, a, c = softmax_ops(Sx, q, jj, 0)
        ops += [e[0], e[1], a[0], e[2], a[1], e[3], c[0], a[2], a[3], c[1]]
        if G + 2 < NG:
            n = len(ops)
            for i, ins in enumerate(ops): sc.put(6 * (G + 2) + (i * 6) // n, ins)
        else:
            tail += ops
    sc.add_wait_sites()
    for jj in range(1, 4):
        sc.put(6 * nq * jj - 1, wait())
    return sc.linear() + tail + [wait()]

CS = 6
def p_chunks(c0, c1, nq, cfg):
    mf = []
    for c in range(c0, c1):
        for N in range(8):
            for q in range(5):
                for u in range(2):
                    mf.append(mfma(PACC(N, q), VB((8 * c + N) % 3, u), OF(c % 3, q, u), 0 if (c == 0 and u == 0) else PACC(N, q)))
    sc = Sched(mf)
    PUB = cfg.pubchunk
    for c in range(c0, c1):
        b = 80 * (c - c0)
        for N in range(6):
            for i, (u, e) in enumerate(UE): sc.put(b + 10 * N + i, rdU(8 * c + N + 2, u, e))
            sc.put(b + 10 * N + 3, wait())
        if c + 1 < NCH:
            bw = wait(need_vm=(lambda ctx, c=c: 'all' if c == PUB else [('U', 0, c + 1)]), lgkm0=True, free=False)
            if c == PUB: bw.vm = 0
            if c == 9:
                sc.put(b + 59, wait())
                _uid[0] += 1; n = _uid[0]
                sc.put(b + 59, unit([f"s_cmp_lg_u32 {sWave}, 3", f"s_cbranch_scc1 L_skip{n}"], cost=2, rd=['v226', 'v227']))
                pc = poll_check(1); pc.cost = 0; sc.put(b + 59, pc); sc.put(b + 59, label(f"L_skip{n}"))
            sc.put(b + 60, bw); sc.put(b + 60, barrier())
            if c == PUB and nq == 3:
                sc.put(b + 60, salu("s_add_u32", sSig, sMyc, 64)); sc.put(b + 60, signal_add(sSig, False))
            for i, (u, e) in enumerate(UE):
                sc.put(b + 61 + i, rdU(8 * c + 8, u, e)); sc.put(b + 70 + i, rdU(8 * c + 9, u, e))
            sc.put(b + 73, wait())
        else:
            sc.put(b + 63, wait())
        sc.put(b + 79, wait())
        if c == 9: sc.put(b + 14, poll_issue(1))
    first_reads = []
    if nq is not None:
        nb = 6 * nq
        span = 80 * PUB + 10
        step = (span - 4) / nb
        i = 0
        for s in range(6):
            for q in range(nq):
                ops = epi_block(q, s, TMP[i & 1], cfg)
                if s == 0: first_reads += ops[:8]
                ge = seq_after(sc, ops, 4 + int(i * step), 4 + int((i + 1) * step) - 1)
                if s == 0: gfirst = 4 + int(i * step) + 9
                i += 1
    for c in range(c0, c1):
        b = 80 * (c - c0)
        if c + 2 < NCH:
            ju, jo = job_u(c + 2, cfg), job_o(c + 2, cfg)
            if c == 0:
                place_even(sc, ju, b, b + 40)
                place_even(sc, jo[:6], b + 30, b + gfirst); place_even(sc, jo[6:], b + gfirst + 1, b + 78)
                for r in first_reads:
                    for l in jo:
                        if set(l.wr) & set(r.rd): SEQS.append([r, l])
            elif c == PUB:
                place_even(sc, ju, b, b + 24); place_even(sc, jo[:3], b, b + 24); place_even(sc, jo[3:], b + 61, b + 78)
            else:
                place_even(sc, ju, b, b + 78); place_even(sc, jo, b + 2, b + 78)
    sc.add_wait_sites()
    return sc

def p_end(cfg):
    wr, rd, oa = V(236), V(237), V(238)
    pre = [salu("s_and_b32", sTp, sWave, 1), salu("s_add_u32", sTp, sTp, 1), salu("s_mul_i32", sTp, sTp, SL, scc=False),
           salu("s_lshr_b32", sTx, sWave, 1), salu("s_mul_i32", sTx, sTx, 3 * SL, scc=False),
           salu("s_add_u32", sT0, sTp, sTx), valu("v_add_u32", wr, sT0, vL16),
           salu("s_sub_u32", sTx, 3 * SL, sTx), salu("s_add_u32", sT0, sTp, sTx), valu("v_add_u32", rd, sT0, vL16),
           valu("v_bfe_u32", oa, vL16, 4, 4), valu("v_mul_u32_u24", oa, 2560, oa),
           valu("v_lshrrev_b32", vt0, 8, vL16), valu("v_lshl_add_u32", oa, vt0, 3, oa)]
    for i in pre: i.nosim = True
    def T(pair, t): return PACC(2 * pair + t // 5, t % 5)
    def add(dst, src): return [valu("v_pk_add_f32", dst.sub(2 * i, 2), dst.sub(2 * i, 2), src.sub(2 * i, 2)) for i in range(2)]
    f = []
    for t in range(10): f.append(dswrite("ds_write_b128", wr, T(1, t), 1024 * (10 + t)))
    for t in range(10): f.append(dswrite("ds_write_b128", wr, T(3, t), 1024 * t))
    f += [wait(lgkm0=True), barrier()]
    for t in range(10): f.append(dsread("ds_read_b128", T(3, t), rd, 1024 * t))
    for t in range(10): f.append(dsread("ds_read_b128", T(1, t), rd, 1024 * (10 + t)))
    for t in range(10):
        f.append(wait()); f += add(T(2, t), T(3, t))
        if t % 4 == 0: f.append(salu("s_add_u32", sTp, sExs, 1024 * t))
        f.append(gstore(T(2, t), vL16, sEx, sTp, 1024 * (t % 4), "sc1"))
    for t in range(10):
        f.append(wait()); f += add(T(0, t), T(1, t))
    w = wait(need_vm=lambda c: 'all', free=False); w.vm = 0
    f += [w, barrier()]
    f.append(unit([f"s_cmp_lg_u32 {sWave}, 3", "s_cbranch_scc1 L_xok",
                   f"v_mov_b32 {vOne}, 1", "s_mov_b64 exec, 1", f"buffer_store_dword {vOne}, off, {sEx}, {sFs} sc1", "s_mov_b64 exec, -1",
                   f"s_mov_b32 {sSpin}, 0x80000", "L_xpoll:",
                   f"buffer_load_dword v226, off, {sEx}, {sFr} sc1", f"s_sub_u32 {sSpin}, {sSpin}, 1", "s_waitcnt vmcnt(0)",
                   f"v_readfirstlane_b32 {sTp}, v226", f"s_cmp_eq_u32 {sSpin}, 0", "s_cbranch_scc1 L_xok", "s_nop 1",
                   f"s_cmp_lg_u32 {sTp}, 1", "s_cbranch_scc1 L_xpoll", "L_xok:"]))
    f.append(barrier())
    for t in range(10):
        if t % 4 == 0: f.append(salu("s_add_u32", sTp, sExr, 1024 * t))
        f.append(gload(T(1, t), vL16, sEx, sTp, 1024 * (t % 4), "sc1"))
    for t in range(10):
        N, q = divmod(t, 5)
        ac = T(0, t)
        f.append(wait()); f += add(ac, T(1, t))
        for i in range(2): f.append(valu("v_cvt_pk_bf16_f32", ac.sub(i), ac.sub(2 * i), ac.sub(2 * i + 1)))
        f.append(salu("s_add_u32", sTp, sOutb, q * 16 * 2560))
        f.append(gstore(ac.sub(0, 2), oa, sOut, sTp, 32 * N, cfg.outflags))
    return pre, f

def slow_path(nq, cfg):
    o = []
    a = lambda t: o.append(raw(t))
    def spaced(seq):
        for i in seq:
            o.append(i)
            if 'm0' in i.wr: o.append(nop(0))
    dummy = lambda c: ('K', 0, 0)
    o.append(label(f"L_slow_{nq}"))
    a("s_waitcnt vmcnt(0) lgkmcnt(0)"); a("s_barrier")
    a(f"s_mov_b32 {sRedo}, -1")
    a(f"s_cmp_eq_u32 {sHead}, 0")
    a(f"s_cselect_b32 {sT0}, {16 * 393216}, 0"); a(f"s_cselect_b32 {sT1}, {16 * 384}, 0")
    a(f"s_cselect_b32 {sT2}, 0, {16 * 393216}")
    a(f"s_mov_b32 {vR}, {VS[0]}"); a(f"s_mov_b32 {vN}, {VS[1]}"); a(f"s_mov_b32 {vF}, {VS[2]}")
    a(f"s_cselect_b32 {vR}, {VS[1]}, {vR}"); a(f"s_cselect_b32 {vN}, {VS[2]}, {vN}"); a(f"s_cselect_b32 {vF}, {VS[0]}, {vF}")
    a(f"s_sub_u32 {sKend}, {sKend}, {sT0}"); a(f"s_sub_u32 {sVend}, {sVend}, {sT0}"); a(f"s_sub_u32 {sWend}, {sWend}, {sT1}")
    a(f"s_add_u32 {sKoff}, {sK0}, {sT2}"); a(f"s_mov_b32 {sVoff}, {sKoff}")
    a(f"s_mov_b32 {sWoff}, {sW0}"); a(f"s_mov_b32 {sXoff}, {sX0}")
    for i in rebase(vaddr, sVcur, vR): o.append(i)
    for q in range(nq): a(f"v_mov_b32 {Ci(q).sub(0)}, 0xff800000")
    a(f"s_mov_b32 {sLoop}, 16")
    o.append(label(f"L_slowl_{nq}"))
    spaced(job_tile(nq, 'K', kR, dummy, cfg))
    a("s_waitcnt vmcnt(0)"); a("s_barrier")
    for j in range(4):
        for s in range(6): o.append(rdK(j, s, dummy))
        a("s_waitcnt lgkmcnt(0)")
        for q in range(nq):
            for s in range(6): o.append(mfma(Sf(q), Kf(j & 1, s), Qf(q, s), 0 if s == 0 else Sf(q)))
        a("s_nop 7")
        for q in range(nq):
            m = Ci(q).sub(0); Sx = Sf(q)
            a(f"v_max3_f32 {m}, {m}, {Sx.sub(0)}, {Sx.sub(1)}"); a(f"v_max3_f32 {m}, {m}, {Sx.sub(2)}, {Sx.sub(3)}")
    a("s_barrier")
    a(f"s_sub_u32 {sLoop}, {sLoop}, 1"); a(f"s_cmp_lg_u32 {sLoop}, 0"); a(f"s_cbranch_scc1 L_slowl_{nq}")
    for r in (kR, kN, kF): spaced(job_tile(nq, 'K', r, dummy, cfg))
    a("s_waitcnt vmcnt(0)")
    for r in (vR, vN, vF): spaced(job_tile(nq, 'V', r, dummy, cfg))
    a("s_waitcnt vmcnt(0)"); a("s_barrier")
    for s in range(6): o.append(rdK(0, s, dummy))
    a("s_waitcnt lgkmcnt(0)")
    a(f"s_branch L_prol_{nq}")
    return o

def setup(cfg):
    o = []
    a = lambda t: o.append(raw(t))
    a("s_cmp_ge_u32 s2, 256"); a("s_cbranch_scc1 L_end")
    a("s_load_dwordx8 s[24:31], s[0:1], 0")
    a("s_load_dwordx8 s[32:39], s[0:1], 40")
    a("s_load_dwordx2 s[96:97], s[0:1], 32"); a("s_load_dwordx2 s[40:41], s[0:1], 72")
    a("s_load_dwordx4 s[44:47], s[0:1], 80")
    a("s_load_dwordx2 s[42:43], s[0:1], 96")
    if cfg.stamps: a("s_memrealtime s[56:57]")
    if cfg.codepf:
        a("s_getpc_b64 s[48:49]"); a("L_pc:")
        a("s_lshr_b32 s50, s2, 3"); a("s_lshl_b32 s50, s50, 6")
        a("v_add_u32 v2, s50, v0"); a("v_lshlrev_b32 v2, 7, v2")
        a("v_min_u32 v2, L_code_end-L_pc-4, v2")
        a("v_mov_b32 v3, s49"); a("v_add_co_u32 v2, vcc, s48, v2"); a("s_nop 1"); a("v_addc_co_u32 v3, vcc, 0, v3, vcc")
        a("v_cmp_gt_u32 vcc, 64, v0"); a("s_and_saveexec_b64 s[48:49], vcc"); a("s_cbranch_execz L_nopf")
        a(f"global_load_dword {vOne}, v[2:3], off")
        a("L_nopf:"); a("s_mov_b64 exec, s[48:49]")
    a("v_lshrrev_b32 v1, 6, v0"); a("v_and_b32 v0, 63, v0")
    a("v_readfirstlane_b32 s3, v1")
    a("s_lshr_b32 s50, s2, 3")
    a("s_bfe_u32 s51, s2, 0x10001"); a("s_lshl_b32 s51, s51, 2"); a("s_lshr_b32 s52, s50, 3"); a("s_add_u32 s51, s51, s52")
    a("s_and_b32 s52, s2, 1"); a("s_lshl_b32 s52, s52, 3"); a("s_and_b32 s53, s50, 7"); a("s_add_u32 s52, s52, s53")
    a("s_bfe_u32 s53, s2, 0x10002")
    a("v_lshrrev_b32 v1, 3, v0"); a("v_and_b32 v2, 7, v0")
    for m in range(3):
        a(f"v_add_u32 v3, {8 * m}, v1")
        a("v_mul_u32_u24 v4, 43, v3"); a("v_lshrrev_b32 v4, 7, v4")
        a("v_and_b32 v5, 6, v4"); a("v_xor_b32 v5, v5, v2"); a("v_lshlrev_b32 v5, 4, v5")
        a("v_lshlrev_b32 v6, 7, v1"); a(f"v_add_u32 {dKV[m]}, v5, v6")
        a("v_mul_u32_u24 v5, 3, v4"); a("v_sub_u32 v5, v3, v5"); a("v_lshlrev_b32 v5, 7, v5")
        a("v_bfe_u32 v6, v4, 1, 1"); a("v_lshlrev_b32 v6, 2, v6"); a("v_xor_b32 v6, v6, v2"); a("v_lshlrev_b32 v6, 4, v6"); a("v_add_u32 v5, v5, v6")
        a("v_lshrrev_b32 v6, 2, v4"); a("v_lshlrev_b32 v6, 4, v6"); a("v_and_b32 v7, 3, v4"); a("v_add_u32 v6, v6, v7")
        a("v_mul_u32_u24 v6, 12288, v6"); a("v_add_u32 v5, v5, v6")
        a(f"v_subrev_u32 {dW[m]}, {1024 * m}, v5")
    a("v_and_b32 v3, 6, v1"); a("v_xor_b32 v3, v3, v2"); a("v_lshlrev_b32 v3, 4, v3")
    a("v_mul_u32_u24 v4, 1280, v1"); a(f"v_add_u32 {dX}, v3, v4")
    a(f"v_lshlrev_b32 {vL16}, 4, v0")
    a("s_waitcnt lgkmcnt(0)")
    if cfg.stamps: a(f"v_writelane_b32 {vStamp}, s56, 30")
    a("s_cmp_eq_u32 s53, 0")
    for i in range(8): a(f"s_cselect_b32 s{24 + i}, s{24 + i}, s{32 + i}")
    a("s_cselect_b32 s96, s96, s40"); a("s_cselect_b32 s97, s97, s41"); a("s_mov_b32 s98, 7864320"); a("s_mov_b32 s99, 0x20000")
    a("s_mul_i32 s48, s51, 307200"); a("s_add_u32 s4, s24, s48"); a("s_addc_u32 s5, s25, 0"); a("s_mov_b32 s6, 307200"); a("s_mov_b32 s7, 0x20000")
    a("s_mov_b32 s8, s30"); a("s_mov_b32 s9, s31"); a("s_mov_b32 s10, 7864320"); a("s_mov_b32 s11, 0x20000")
    a("s_mul_i32 s48, s51, 12582912")
    a("s_add_u32 s12, s26, s48"); a("s_addc_u32 s13, s27, 0"); a("s_mov_b32 s14, 12582912"); a("s_mov_b32 s15, 0x20000")
    a("s_add_u32 s16, s28, s48"); a("s_addc_u32 s17, s29, 0"); a("s_mov_b32 s18, 12582912"); a("s_mov_b32 s19, 0x20000")
    a("s_lshl_b32 s48, s53, 3"); a("s_add_u32 s48, s48, s51"); a(f"s_lshl_b32 {sMyc}, s48, 2"); a("s_mul_i32 s48, s48, 2949120")
    a("s_add_u32 s20, s42, s48"); a("s_addc_u32 s21, s43, 0"); a("s_mov_b32 s22, 2949120"); a("s_mov_b32 s23, 0x20000")
    a("s_mov_b32 s64, s44"); a("s_mov_b32 s65, s45"); a("s_mov_b32 s66, 4915200"); a("s_mov_b32 s67, 0x20000")
    a(f"s_add_u32 s68, s42, {EXOFF}"); a("s_addc_u32 s69, s43, 0"); a(f"s_mov_b32 s70, {STOFF + 0x100000}"); a("s_mov_b32 s71, 0x20000")
    a("s_mov_b32 s72, s46"); a("s_mov_b32 s73, s47"); a("s_mov_b32 s74, 256"); a("s_mov_b32 s75, 0x20000")
    a("s_cmp_ge_u32 s50, 30"); a(f"s_cselect_b32 {sIdle}, 1, 0"); a("s_min_u32 s24, s50, 29")
    a("s_and_b32 s25, s24, 1"); a("s_lshr_b32 s24, s24, 1")
    a("s_mul_i32 s26, s24, 52"); a("s_lshr_b32 s26, s26, 8"); a("s_mul_i32 s27, s26, 5"); a("s_sub_u32 s27, s24, s27")
    a("s_lshl_b32 s26, s26, 1"); a("s_and_b32 s28, s3, 1"); a("s_add_u32 s26, s26, s28")
    a("s_cmp_ge_u32 s26, 3"); a("s_cselect_b32 s29, 1, 0"); a("s_mul_i32 s30, s29, 3"); a("s_sub_u32 s26, s26, s30")
    a("s_and_b32 s30, s2, 7"); a("s_lshl_b32 s30, s30, 1")
    a(f"s_lshl_b32 {sCnt}, s30, 2")
    a("s_add_u32 s30, s30, s29"); a("s_mul_i32 s31, s30, 2949120")
    a("s_add_u32 s60, s42, s31"); a("s_addc_u32 s61, s43, 0"); a("s_mov_b32 s62, 2949120"); a("s_mov_b32 s63, 0x20000")
    a("s_lshl_b32 s31, s25, 1"); a("s_lshr_b32 s32, s3, 1"); a("s_add_u32 s31, s31, s32")
    a(f"s_mul_i32 {sOb}, s31, {4 * 92160}"); a(f"s_mul_i32 s33, s26, {5 * 6144}"); a(f"s_add_u32 {sOb}, {sOb}, s33")
    a(f"s_mul_i32 {sWb}, s31, {4 * 192 * 1280}"); a("s_lshl_b32 s33, s27, 8"); a(f"s_add_u32 {sWb}, {sWb}, s33")
    a("s_xor_b32 s33, s28, s25"); a("s_lshl_b32 s33, s33, 7"); a(f"s_add_u32 {sWb}, {sWb}, s33")
    a(f"s_mul_i32 {sLb}, s32, {3 * SL}"); a("s_lshl_b32 s33, s28, 13"); a(f"s_add_u32 {sLb}, {sLb}, s33"); a(f"s_add_u32 {sLb}, {sLb}, 1024")
    a("s_and_b32 s30, s30, 7"); a("s_mul_i32 s30, s30, 240"); a("s_mul_i32 s33, s26, 80"); a("s_add_u32 s30, s30, s33")
    a(f"s_mul_i32 {sOutb}, s30, 2560"); a("s_mul_i32 s33, s53, 1280"); a(f"s_add_u32 {sOutb}, {sOutb}, s33")
    a("s_lshl_b32 s33, s27, 8"); a(f"s_add_u32 {sOutb}, {sOutb}, s33"); a("s_lshl_b32 s33, s31, 6"); a(f"s_add_u32 {sOutb}, {sOutb}, s33")
    a("s_lshl_b32 s33, s2, 2"); a("s_add_u32 s33, s33, s3"); a(f"s_mul_i32 {sExs}, s33, 10240"); a("s_xor_b32 s33, s33, 32"); a(f"s_mul_i32 {sExr}, s33, 10240")
    a("s_lshl_b32 s33, s2, 7"); a(f"s_add_u32 {sFs}, s33, {FLOFF}"); a("s_xor_b32 s33, s33, 1024"); a(f"s_add_u32 {sFr}, s33, {FLOFF}")
    a("s_and_b32 s33, s51, 1"); a("s_lshl_b32 s33, s33, 4"); a("s_add_u32 s33, s33, s52"); a("s_lshl_b32 s33, s33, 3")
    a("s_lshl_b32 s34, s53, 2"); a("s_add_u32 s33, s33, s34"); a("s_lshr_b32 s34, s51, 1"); a("s_add_u32 s33, s33, s34")
    a("s_lshl_b32 s33, s33, 7"); a(f"s_add_u32 {sSpin}, s33, {FLOFF}")
    a("s_and_b32 s48, s2, 3"); a("s_lshl_b32 s48, s48, 5"); a("s_add_u32 s48, s48, s50"); a(f"s_mul_i32 {sWopf}, s48, 61440")
    a(f"s_mov_b32 {sSig}, -1"); a(f"s_mov_b32 {sRedo}, 0")
    a(f"s_mov_b32 {sWave}, s3")
    if cfg.stamps > 1: a("s_mov_b32 s3, 512")
    a(f"s_mul_i32 {sKoff}, s52, 393216"); a(f"s_mul_i32 {sWoff}, s52, 384")
    a(f"s_mul_i32 {sXoff}, {sWave}, {64 * 1280}")
    a(f"s_mul_i32 {sOoff}, s52, 92160"); a(f"s_mul_i32 s48, {sWave}, {4 * 6144}"); a(f"s_add_u32 {sOoff}, {sOoff}, s48")
    a(f"s_mov_b32 {sTp}, s50")
    a(f"s_mov_b32 {kR}, {KS[0]}"); a(f"s_mov_b32 {kN}, {KS[1]}"); a(f"s_mov_b32 {kF}, {KS[2]}")
    a(f"s_mov_b32 {vR}, {VS[0]}"); a(f"s_mov_b32 {vN}, {VS[1]}"); a(f"s_mov_b32 {vF}, {VS[2]}")
    a(f"s_mov_b32 {sVcur}, 0"); a(f"s_mov_b32 {sWcur}, {VS[0]}")
    c = math.log2(math.e) / math.sqrt(192.0)
    a(f"s_mov_b32 s38, {fbits(c)}"); a(f"s_mov_b32 s39, {fbits(c)}")
    a(f"s_mov_b32 {sThr}, {fbits(2.0 ** cfg.thr)}")
    a(f"s_mov_b32 {sHead}, 0")
    a(f"s_cmp_eq_u32 {sWave}, 3"); a("s_cbranch_scc1 L_v3")
    return o

def lds_addr_setup(cfg):
    o = []
    def a(t):
        i = raw(t); i.nosim = True; o.append(i)
    a("v_and_b32 v1, 15, v0")
    a("v_lshrrev_b32 v2, 4, v0")
    a("v_and_b32 v3, 6, v1")
    a("v_xor_b32 v4, v2, v3")
    a("v_lshlrev_b32 v4, 4, v4")
    a("v_mul_u32_u24 v5, 384, v1")
    a(f"v_add_u32 {kaddr[0]}, v5, v4")
    a(f"v_xor_b32 v6, 64, v4"); a(f"v_add_u32 {kaddr[1]}, v5, v6")
    a("v_lshlrev_b32 v5, 7, v1"); a(f"v_add_u32 v5, {sXl[0]}, v5")
    a(f"v_add_u32 {xaddr[0]}, v5, v4"); a(f"v_add_u32 {xaddr[1]}, v5, v6")
    a("v_lshrrev_b32 v1, 2, v0"); a("v_and_b32 v3, 6, v1")
    a("v_bfe_u32 v4, v0, 1, 1"); a("v_xor_b32 v4, v4, v3"); a("v_lshlrev_b32 v4, 4, v4")
    a("v_and_b32 v5, 1, v0"); a("v_lshlrev_b32 v5, 3, v5")
    a("v_mul_u32_u24 v6, 384, v1"); a("v_add_u32 v5, v5, v6")
    for m in range(4):
        a(f"v_xor_b32 v6, {32 * m}, v4"); a(f"v_add_u32 {vaddr[m]}, v5, v6")
    a("v_and_b32 v3, 1, v2"); a(f"v_mul_u32_u24 v3, {12288 + cfg.wshift}, v3"); a(f"v_add_u32 v3, {VS[0]}, v3")
    a("v_lshrrev_b32 v4, 1, v2"); a("v_lshlrev_b32 v4, 2, v4"); a("v_bfe_u32 v5, v0, 2, 2"); a("v_add_u32 v4, v4, v5")
    a("v_mul_u32_u24 v4, 384, v4"); a("v_add_u32 v3, v3, v4")
    a("v_bfe_u32 v4, v0, 3, 1"); a("v_lshlrev_b32 v4, 2, v4"); a("v_and_b32 v5, 3, v0"); a("v_xor_b32 v4, v4, v5"); a("v_lshlrev_b32 v4, 4, v4")
    a(f"v_add_u32 {waddr[0]}, v3, v4"); a("v_xor_b32 v4, 64, v4"); a(f"v_add_u32 {waddr[1]}, v3, v4")
    return o

def setup_variant(nq, cfg):
    o = []
    def a(t):
        i = raw(t); i.nosim = True; o.append(i)
    if nq == 4:
        cm = kv_map(cfg)[1]
        a(f"s_mul_i32 {sGrp}, {sWave}, 3072")
        a(f"s_cmp_eq_u32 {sWave}, 1"); a(f"s_cselect_b32 {sT0}, {cm[1] * 3072}, 0"); a(f"s_add_u32 {sKoff}, {sKoff}, {sT0}")
        a(f"s_cmp_eq_u32 {sWave}, 2"); a(f"s_cselect_b32 {sT0}, {cm[2] * 3072}, 0"); a(f"s_add_u32 {sKoff}, {sKoff}, {sT0}")
        a(f"s_and_b32 {sT0}, {sWave}, 1"); a(f"s_lshl_b32 {sT0}, {sT0}, 2"); a(f"s_lshr_b32 {sT1}, {sWave}, 1"); a(f"s_lshl_b32 {sT1}, {sT1}, 5")
        a(f"s_add_u32 {sT0}, {sT0}, {sT1}"); a(f"s_mul_i32 {sT0}, {sT0}, 12288"); a(f"s_add_u32 {sWoff}, {sWoff}, {sT0}")
        a(f"s_lshl_b32 {sT0}, {sWave}, 13"); a(f"s_add_u32 {sXl[0]}, {sT0}, {KS[1]}"); a(f"s_add_u32 {sXl[1]}, {sT0}, {KS[2]}")
    else:
        a(f"s_mov_b32 {sXl[0]}, {EB}"); a(f"s_mov_b32 {sXl[1]}, {EB + 6144}")
        a("v_mov_b32 v1, 0"); a("s_mov_b64 exec, 1"); a(f"buffer_store_dword v1, off, {sEx}, {sSpin} sc1"); a("s_mov_b64 exec, -1")
    a(f"s_add_u32 {sKend}, {sKoff}, {16 * 3072 * kv_map(cfg)[0]}"); a(f"s_mov_b32 {sVend}, {sKend}")
    a(f"s_add_u32 {sWend}, {sWoff}, 7864320"); a(f"s_add_u32 {sXend}, {sXoff}, 1280")
    if cfg.rotkv:
        a(f"s_mul_i32 {sT0}, s2, 5"); a(f"s_lshr_b32 {sT1}, s2, 4"); a(f"s_add_u32 {sT0}, {sT0}, {sT1}"); a(f"s_and_b32 {sT0}, {sT0}, 15")
        a(f"s_mul_i32 {sT0}, {sT0}, {3072 * kv_map(cfg)[0]}"); a(f"s_add_u32 {sKoff}, {sKoff}, {sT0}")
    if cfg.rotq == 1:
        a(f"s_lshr_b32 {sT0}, {sTp}, 3"); a(f"s_lshl_b32 {sT0}, {sT0}, 1"); a(f"s_and_b32 {sT1}, {sTp}, 7"); a(f"s_add_u32 {sT0}, {sT0}, {sT1}")
        a(f"s_mul_i32 {sT0}, {sT0}, 5"); a(f"s_lshr_b32 {sT0}, {sT0}, 2")
        a(f"s_cmp_ge_u32 {sT0}, 10"); a(f"s_cselect_b32 {sT1}, 10, 0"); a(f"s_sub_u32 {sT0}, {sT0}, {sT1}")
    if cfg.rotq == 2:
        a(f"s_lshr_b32 {sT0}, {sTp}, 3"); a(f"s_xor_b32 {sT0}, {sT0}, {sTp}"); a(f"s_and_b32 {sT0}, {sT0}, 1"); a(f"s_mul_i32 {sT0}, {sT0}, 5")
    if cfg.rotq:
        a(f"s_mul_i32 {sT1}, {sT0}, 786432"); a(f"s_add_u32 {sWoff}, {sWoff}, {sT1}"); a(f"s_lshl_b32 {sT1}, {sT0}, 7"); a(f"s_add_u32 {sXoff}, {sXoff}, {sT1}")
    a(f"s_mov_b32 {sVoff}, {sKoff}")
    a(f"s_mov_b32 {sK0}, {sKoff}"); a(f"s_mov_b32 {sW0}, {sWoff}"); a(f"s_mov_b32 {sX0}, {sXoff}")
    def spaced(seq):
        for i in seq:
            o.append(i)
            if 'm0' in i.wr: o.append(nop(0))
    spaced(job_x(nq, 0, 0, cfg)); spaced(job_tile(nq, 'W', vR, absT('W', 0, 0), cfg))
    o.extend(lds_addr_setup(cfg))
    spaced(job_x(nq, 1, 0, cfg)); spaced(job_tile(nq, 'W', vN, absT('W', 0, 1), cfg))
    spaced(job_tile(nq, 'K', kR, absT('K', 0, 0), cfg))
    o.append(wait(need_vm=lambda c: [('x', 0, 0), ('W', 0, 0)], free=False)); o.append(barrier())
    dep = []
    for q in range(nq):
        for u in range(2):
            r = rdX(nq, 0, 0, q, u); dep += r.wr; o.append(r)
    for T in range(2):
        for (u, e) in UE: o.append(rdW(T, u, e, absT('W', 0, 0)))
    o.append(wait())
    spaced(job_x(nq, 2, 0, cfg, dep))
    o.append(wait())
    return o

def stamp(cfg, idx):
    if not cfg.stamps: return []
    return [raw("s_memrealtime s[56:57]"), raw("s_memtime s[58:59]"), raw("s_waitcnt lgkmcnt(0)"),
            raw(f"v_writelane_b32 {vStamp}, s56, {2 * idx}"), raw(f"v_writelane_b32 {vStamp}, s58, {2 * idx + 1}")]
def finish(cfg, idx):
    e = []
    if cfg.stamps:
        e += [raw("s_waitcnt vmcnt(0)")] + stamp(cfg, idx)
        e += [raw(f"s_lshl_b32 {sTp}, s2, 2"), raw(f"s_add_u32 {sTp}, {sTp}, {sWave}"), raw(f"s_lshl_b32 {sTp}, {sTp}, 8"),
              raw(f"s_add_u32 {sTp}, {sTp}, {STOFF}"), raw(f"v_lshrrev_b32 v0, 2, {vL16}"),
              raw(f"buffer_store_dword {vStamp}, v0, {sEx}, {sTp} offen")]
    return e + [raw("s_endpgm")]

def variant(nq, cfg, common):
    sfx = f"_{nq}"
    st = lambda i: stamp(cfg, i)
    su = setup_variant(nq, cfg) + st(0)
    q1 = qproj(nq, cfg, False); q1.add_wait_sites()
    q2 = qproj(nq, cfg, True); q2.add_wait_sites()
    cp = conv_prologue(nq, cfg)
    if cfg.w3all:
        jK = lambda: job_tile(nq, 'K', kF, tagK(3), cfg, groups=range(8))
        jV = lambda: job_tile(nq, 'V', vF, tagV(2), cfg, groups=range(4, 8))
        jL = lambda: [job_tile(nq, 'V', vF, tagV(3), cfg, groups=range(4), adv=False)]
    else:
        jK = lambda: job_tile(nq, 'K', kF, tagK(3), cfg)
        jV = lambda: job_tile(nq, 'V', vF, tagV(2), cfg)
        jL = lambda: []
    i0 = attn_iter(nq, 0, cfg, first_pv=True, jobs=[jK()], late=jL())
    i1 = attn_iter(nq, 1, cfg, jobs=[jV(), jK()], late=jL())
    i2 = attn_iter(nq, 0, cfg, jobs=[jV(), jK()], late=jL())
    fix = []
    for o_, d_ in ((sKoff, 16 * 393216), (sKend, 16 * 393216), (sVoff, 16 * 393216), (sVend, 16 * 393216), (sWoff, 16 * 384), (sWend, 16 * 384)):
        fix.append(salu("s_add_u32", o_, o_, d_))
    a13 = attn_iter(nq, 1, cfg, jobs=[jV(), fix, job_x(nq, 0, 1, cfg)])
    a14 = attn_iter(nq, 0, cfg, jobs=[job_tile(nq, 'W', vF, absT('W', 1, 0), cfg), job_x(nq, 1, 1, cfg)], next_k=False, k_rot=False)
    a15 = attn_last(nq, cfg, 'Q')
    pf = []
    if cfg.wopf and nq == 3:
        pf.append(valu("v_lshlrev_b32", V(243), 3, vL16))
        for i in range(8):
            pf.append(gload(V(244), V(243), sWo, sWopf, 0, "", op="buffer_load_dword"))
            pf[-1].wr = []
            pf.append(salu("s_add_u32", sWopf, sWopf, 8192 if i < 6 else 4096) if i < 7 else salu("s_sub_u32", sWopf, sWopf, 6 * 8192 + 4096))
    b13 = attn_iter(nq, 1, cfg, jobs=[jV(), pf], late=[calc_raddr()])
    b14 = attn_iter(nq, 0, cfg, jobs=[([poll_issue(0)] if nq == 3 else []), job_u(0, cfg)], next_k=False, k_rot=False)
    if nq == 3:
        gb = 12 * 9 - 1
        b14.put(gb, wait()); b14.put(gb, poll_check(0))
    b15 = attn_last(nq, cfg, 'P')
    pa = p_chunks(0, CS, nq, cfg)
    i0.place(smov(sLoop, 6), 20, 60)
    i2.place(salu("s_sub_u32", sLoop, sLoop, 1), 20, 60)
    for s in (i0, i1, i2, a13, a14, a15, b13, b14, b15): s.add_wait_sites()
    loopend = [scmp("s_cmp_lg_u32", sLoop, 0), raw(f"s_cbranch_scc1 L_loop{sfx}")]
    headbr = [scmp("s_cmp_lg_u32", sHead, 0), raw(f"s_cbranch_scc1 L_tail2{sfx}")]
    back = [smov(sHead, 1), raw(f"s_branch L_head{sfx}")]
    idlebr = [scmp("s_cmp_lg_u32", sIdle, 0), raw(f"s_cbranch_scc1 L_idle{sfx}"), wait()]
    idle = [label(f"L_idle{sfx}")]
    i = 0
    for s in range(6):
        for q in range(nq):
            idle += epi_block(q, s, TMP[i & 1], cfg); i += 1
    idle += [raw("s_waitcnt vmcnt(0)"), barrier()]
    if nq == 3: idle += [salu("s_add_u32", sSig, sMyc, 64), signal_add(sSig, False)]
    idle += finish(cfg, 8)
    L = lambda s: s.linear()
    s1, s3, s4, s5 = st(1), st(2), st(3), st(4)
    jump = [raw("s_branch L_pcommon")] if nq == 3 else []
    code = su + L(q1) + s1 + [label(f"L_head{sfx}")] + cp + L(i0) + [raw(".p2align 3", 'L', states=0), label(f"L_loop{sfx}")] + L(i1) + L(i2) + loopend + headbr \
        + L(a13) + L(a14) + L(a15) + s3 + L(q2) + s4 + back + slow_path(nq, cfg) + idle \
        + [label(f"L_tail2{sfx}")] + L(b13) + L(b14) + L(b15) + s5 + idlebr + L(pa) + jump
    tr = []
    def add(ins, **c): tr.extend((i, c) for i in ins)
    add(su, h=0, t=-9); add(L(q1) + s1, h=0, t=-5)
    for h in range(2):
        add(cp, h=h, t=-1); add(L(i0), h=h, t=0)
        for t in range(1, 13, 2):
            add(L(i1), h=h, t=t); add(L(i2), h=h, t=t + 1); add(loopend, h=h, t=t + 1)
        add(headbr, h=h, t=12)
        if h == 0:
            add(L(a13), h=0, t=13); add(L(a14), h=0, t=14); add(L(a15) + s3, h=0, t=15); add(L(q2) + s4, h=1, t=-5); add(back, h=1, t=-5)
        else:
            add(L(b13), h=1, t=13); add(L(b14), h=1, t=14); add(L(b15) + s5, h=1, t=15)
    tr_idle = tr + [(i, dict(h=1, t=16)) for i in idlebr[:2] + idle]
    add(idlebr + L(pa) + jump + common, h=1, t=16)
    info = dict(q1=q1, q2=q2, i0=i0, i1=i1, i2=i2, a13=a13, a14=a14, a15=a15, b13=b13, b14=b14, b15=b15, pa=pa)
    return code, tr, tr_idle, info

def sim_variant(nq, tr, cfg):
    ok = True
    for w in ([0, 1, 2] if nq == 4 else [3]):
        h0 = 5
        grp = w * 3072 if nq == 4 else 0
        k0 = [0, 4, 32, 0][w]
        ggrp = kv_map(cfg)[1][w] * 3072 if nq == 4 else 0
        kst = 3072 * kv_map(cfg)[0]
        rk = 7 if cfg.rotkv else 0; rq = 3 if cfg.rotq else 0
        init = {'wave': w, 'h0': h0, 'rk': rk, 'rq': rq, str(kR): KS[0], str(kN): KS[1], str(kF): KS[2], str(vR): VS[0], str(vN): VS[1], str(vF): VS[2],
                str(sVcur): 0, str(sWcur): VS[0], str(sKoff): h0 * 393216 + ggrp, str(sVoff): h0 * 393216 + ggrp, str(sWoff): h0 * 384 + k0 * 12288,
                str(sXoff): w * 64 * 1280, str(sOoff): h0 * 92160 + w * 4 * 6144, str(sGrp): grp,
                str(sXl[0]): (KS[1] + w * 8192 if nq == 4 else EB), str(sXl[1]): (KS[2] + w * 8192 if nq == 4 else EB + 6144),
                str(sOb): 1000000, str(sWb): 2000000, str(sLb): 3000}
        init[str(sKend)] = init[str(sKoff)] + 16 * kst; init[str(sVend)] = init[str(sKend)]
        init[str(sWend)] = init[str(sWoff)] + 7864320; init[str(sXend)] = init[str(sXoff)] + 1280
        init[str(sKoff)] += rk * kst; init[str(sVoff)] += rk * kst; init[str(sWoff)] += rq * 786432; init[str(sXoff)] += rq * 128
        for r in kaddr + vaddr: init[str(r)] = 0
        for r in waddr: init[str(r)] = VS[0]
        if not cfg.fake: ok = sim_scalar(tr, init, f"nq{nq} w{w}") and ok
    return ok

def build(cfg, name):
    su = setup(cfg)
    pb = p_chunks(CS, NCH, None, cfg)
    pre, fin = p_end(cfg)
    seq_after(pb, pre, len(pb.mf) - 75, len(pb.mf) - 20)
    common = [label("L_pcommon")] + stamp(cfg, 5) + pb.linear() + stamp(cfg, 6) + fin + finish(cfg, 7)
    c4, t4, ti4, inf4 = variant(4, cfg, common)
    c3, t3, ti3, inf3 = variant(3, cfg, common)
    for rep in range(2):
        for n, t in (("nq4", t4), ("nq3", t3), ("idle4", ti4), ("idle3", ti3)): derive_waits(t, n, verbose=(rep == 1 and n[0] == 'n'))
    ok = True
    for n, t in (("nq4", t4), ("nq3", t3), ("idle4", ti4), ("idle3", ti3)): ok = check_hazards(t, n) and ok
    ok = check_seqs(c4 + common) and check_seqs(c3) and ok
    ok = sim_variant(4, t4, cfg) and sim_variant(3, t3, cfg) and ok
    ok = check_lds({4: t4, 3: t3}) and ok
    for n, inf in (("nq4", inf4), ("nq3", inf3)): print(n, "model cycles:", {k: s.cycles() for k, s in inf.items()})
    print("common", pb.cycles())
    assert ok
    lines = [f".globl {name}", ".p2align 8", f".type {name},@function", f"{name}:"]
    lines += emit(su) + emit(c4) + emit(common) + ["L_end:", "s_endpgm", "L_v3:"] + emit(c3)
    out = []
    for l in lines: out += l.split("\n")
    return out

if __name__ == "__main__":
    print(len(build(Cfg(), "k_kernel")), "lines")
```

```python
import math, struct
from asmlib import *

SL = 24832
KS = [0, SL, 2 * SL]
VS = [3 * SL, 4 * SL, 5 * SL]
EB = 6 * SL
FLAG = EB + 12288
LDS_BYTES = 163840

sX, sW, sK, sV, sO = S(4, 4), S(8, 4), S(12, 4), S(16, 4), S(20, 4)
sWave = S(24)
kR, kN, kF = S(25), S(26), S(27)
vR, vN, vF = S(28), S(29), S(30)
sKoff, sVoff, sWoff, sXoff = S(31), S(32), S(33), S(34)
sLoop, sHead = S(35), S(36)
sThr = S(37)
sC2 = S(38, 2)
sGrp = S(40)
sT0, sT1, sT2, sT3, sT4 = S(41), S(42), S(43), S(47), S(55)
sXl = [S(44), S(45)]
sOoff = S(46)
sWcur, sVcur = S(48), S(49)
sTo = S(50)
sTx = S(51)
sBad = S(52, 2)
sWopf = S(54)
sTs = S(56, 4)
sOr, sOut, sEx, sDbg = S(60, 4), S(64, 4), S(68, 4), S(72, 4)
sOb, sWb, sLb, sOutb = S(76), S(77), S(78), S(79)
sExs, sExr, sFs, sFr = S(80), S(81), S(82), S(83)
sSig, sCnt, sMyc = S(84), S(85), S(86)
sRedo, sIdle = S(87), S(88)
sK0, sW0, sX0 = S(89), S(90), S(91)
sKend, sVend, sWend, sXend = S(92), S(93), S(94), S(95)
sWo = S(96, 4)
sSpin = S(100)
sTp = S(101)
OOB = 0x7fff0000
EXOFF = 0x3000000
FLOFF = 0xC00000
STOFF = 0x1000000

def blk(q, s): return q * 6 + s
def Qf(q, s): return V(8 * blk(q, s), 4)
def QACC(T, q): return V(8 * blk(q, T >> 1) + 4 * (T & 1), 4)
def U(i): return V(8 * i + 4, 4)
def Pf(par, q, u): return U(par * 8 + q * 2 + u)
def Sf(i): return U(16 + (i & 3))
def Ci(q): return U(20 + q)
def VB(b, u, e=None):
    return V(192 + 8 * b + 4 * u, 4) if e is None else V(192 + 8 * b + 4 * u + 2 * e, 2)
TMP = [V(216, 8), V(224, 8)]
def Lq(q): return V(232 + q)
kaddr = [V(236), V(237)]
vaddr = [V(238), V(239), V(240), V(241)]
waddr = [V(242), V(243)]
xaddr = [V(244), V(245)]
dKV = [V(246), V(247), V(248)]
dW = [V(249), V(250), V(251)]
dX = V(252)
vL16 = V(253)
vt0, vt1 = V(224), V(225)
vOne = V(254)
vStamp = V(255)
raddr = [V(249), V(250), V(251), V(242)]
def PACC(N, q): return V(4 * (N * 5 + q), 4)
def OF(b, q, u):
    i = 2 * q + u
    if b == 0: return A(192 + 4 * i, 4)
    if b == 1: return A(232 + 4 * i, 4) if i < 6 else U(20 + i - 6)
    return V(8 * (20 + i), 4) if i < 4 else A(4 * (i - 4), 4)
def Oacc(T, q): return A(4 * (T * 4 + q), 4)
def Kf(b, s): return A(192 + 24 * b + 4 * s, 4)
def Xf(par, q, u): return A(192 + 32 * par + 8 * q + 4 * u, 4)

def fbits(x): return "0x%08x" % struct.unpack("<I", struct.pack("<f", x))[0]

class Cfg:
    wshift = 8
    kvflags = "nt"
    wflags = ""
    xflags = ""
    oflags = "sc1"
    orflags = "sc1"
    woflags = ""
    pubchunk = 5
    kvperm = 1
    dbgst = 0
    xpace = 0
    l2pf = 0
    l2n = 3
    l2tot = 12
    l2fl = ""
    ntlate = 99
    outflags = ""
    thr = 40
    stamps = False
    fake = 0
    nostore = 0
    w3all = 1
    rotkv = 1
    rotq = 1
    codepf = 1
    wopf = 1

def tagK(dn): return lambda c: ('K', c['h'], c['t'] + dn)
def tagV(dn): return lambda c: ('V', c['h'], c['t'] + dn)
def absT(kind, dh, n): return lambda c: (kind, c['h'] + dh, n)
def slot_of(tile, nq):
    k, h, n = tile
    if k == 'K': return ('k', n % 3)
    if k == 'x': return ('k', 1 + n % 2) if nq == 4 else ('e', n % 2)
    if k == 'W': return ('v', (h * 26 + n) % 3)
    if k == 'V': return ('v', (h * 26 + 10 + n) % 3)
    if k == 'U': return ('kv', (n + 1) % 3)

def kv_map(cfg):
    return {0: (8, list(range(8))),
            1: (1, [0, 32, 64, 96, 16, 48, 80, 112]),
            2: (2, [0, 32, 64, 96, 1, 33, 65, 97]),
            3: (4, [0, 64, 1, 65, 2, 66, 3, 67])}[cfg.kvperm]
def slot_base(slot):
    return {'k': KS, 'v': VS, 'e': [EB, EB + 6144]}[slot[0]][slot[1]]
def exp_dma(ins, tag, nq, soff, imm, idx, cfg):
    def f(c, st):
        k, h, n = tag(c); w = st['wave']; base = slot_base(slot_of((k, h, n), nq)); hh = st['h0'] + 16 * h
        if k == 'x':
            el = base + (w * 8192 if nq == 4 else 0) + idx * 1024
            eg = w * 64 * 1280 + 128 * ((n + st['rq']) % 10) + idx * 10240
        else:
            i = idx + (3 * w if nq == 4 else 0); mm = i // 3
            n = (n + st['rq']) % 10 if k == 'W' else (n + st['rk']) % 16
            el = base + i * 1024
            if k == 'W':
                el += cfg.wshift if mm >= 4 else 0
                eg = hh * 384 + (64 * n + 32 * ((mm & 3) >> 1) + 4 * (mm & 1) + 8 * (mm >> 2)) * 12288 + (i % 3) * 1024
            else: eg = hh * 393216 + (n * kv_map(cfg)[0] + kv_map(cfg)[1][mm]) * 3072 + (i % 3) * 1024
        gl, gg = st.get('m0'), st.get(str(soff))
        if gl is None or gg is None or gl + imm != el or gg + imm != eg: return f"lds {gl}+{imm} vs {el}; glob {gg}+{imm} vs {eg} tile {(k, h, n)}"
    ins.expect = f
    return ins
def exp_rd(ins, addr, tag):
    def f(c, st):
        base = slot_base(slot_of(tag(c), 4))
        if st.get(str(addr)) != base: return f"base {st.get(str(addr))} vs {base} tile {tag(c)}"
    ins.expect = f
    return ins

def advance(off, end, step, span, on=True):
    o = [salu("s_add_u32", off, off, step)]
    if on:
        i = Ins(f"s_cmp_eq_u32 {off}, {end}\ns_cselect_b32 {sT4}, {span}, 0", 'S', rd=off.regs() + end.regs(), wr=['scc'] + sT4.regs(), states=2)
        i.cost = 2
        i.simfn = lambda st: st.__setitem__(str(sT4), span if st[str(off)] == st[str(end)] else 0)
        o += [i, salu("s_sub_u32", off, off, sT4)]
    return o

def job_tile(nq, kind, slotreg, tag, cfg, groups=None, adv=True, flo=None):
    srd, off, end, addr, fl = {'K': (sK, sKoff, sKend, dKV, cfg.kvflags), 'V': (sV, sVoff, sVend, dKV, cfg.kvflags),
                               'W': (sW, sWoff, sWend, dW, cfg.wflags)}[kind]
    sl = lambda c: slot_of(tag(c), nq)
    if flo is not None: fl = flo
    out = []
    if nq == 4:
        if groups is None:
            out.append(salu("s_add_u32", 'm0', slotreg, sGrp))
            for m in range(3): out.append(exp_dma(dma(addr[m], srd, off, 1024 * m, fl, tag=tag, slot=sl), tag, nq, off, 1024 * m, m, cfg))
    else:
        for mm in (range(3, 8) if groups is None else groups):
            if kind == 'W':
                k0 = 32 * ((mm & 3) >> 1) + 4 * (mm & 1) + 8 * (mm >> 2)
                go = k0 * 12288; lo = mm * 3072 + (cfg.wshift if mm >= 4 else 0)
            else:
                lo = mm * 3072; go = kv_map(cfg)[1][mm] * 3072
            out.append(salu("s_add_u32", 'm0', slotreg, lo))
            out.append(salu("s_add_u32", sT0, off, go))
            for m in range(3): out.append(exp_dma(dma(addr[m], srd, sT0, 1024 * m, fl, tag=tag, slot=sl), tag, nq, sT0, 1024 * m, 3 * mm + m, cfg))
    if adv:
        step = 786432 if kind == 'W' else 3072 * kv_map(cfg)[0]
        if cfg.fake and (kind != 'W' or cfg.fake > 1): step = 0
        out += advance(off, end, step, 7864320 if kind == 'W' else 16 * 3072 * kv_map(cfg)[0])
    return out

def job_x(nq, n, dh, cfg, dep=()):
    tag = absT('x', dh, n); sl = lambda c: slot_of(tag(c), nq)
    out = []
    for i in range(2 * nq):
        if i % 4 == 0: out.append(salu("s_add_u32", 'm0', sXl[n & 1], 1024 * i))
        out.append(salu("s_add_u32", sTx, sXoff, 10240 * i - 1024 * (i % 4)))
        d = dma(dX, sX, sTx, 1024 * (i % 4), 'nt' if n >= cfg.ntlate else cfg.xflags, tag=tag, slot=sl, private=True)
        exp_dma(d, tag, nq, sTx, 1024 * (i % 4), i, cfg)
        if i == 0: d.rd += list(dep)
        out.append(d)
    out += advance(sXoff, sXend, 0 if cfg.fake > 1 else 128, 1280)
    return out

def seq_after(sc, seq, lo, hi, even=False):
    seq = list(seq)
    SEQS.append(seq)
    hi = min(hi, len(sc.g) - 1)
    n = len(seq)
    nx = sum(1 for i in seq if i.kind == 'X'); kx = 0
    g = lo; prev = None; pg = None
    for k, ins in enumerate(seq):
        dl = max(g, min(hi, lo + ((k + 1) * (hi - lo + 1) + n - 1) // n - 1))
        if not even: dl = max(g, min(hi, hi - (n - 1 - k) // 2))
        g1 = g
        if even and ins.kind == 'X': g1 = max(g, min(dl, lo + (kx * (hi - lo + 1)) // nx))
        same_bad = prev is not None and ((prev.kind in 'VE' and ins.kind not in 'VE') or ('m0' in prev.wr and ins.dma))
        if same_bad and g1 == pg:
            if g1 + 1 <= hi: g1 += 1; dl = max(dl, g1)
            else:
                if 'm0' in prev.wr: sc.g[g1].append(nop(0))
                sc.g[g1].append(ins); prev = ins; pg = g1
                for rest in seq[k + 1:]:
                    if 'm0' in prev.wr and rest.dma: sc.g[g1].append(nop(0))
                    sc.g[g1].append(rest); prev = rest
                return g1
        r = sc.place(ins, g1, dl, force=True)
        if ins.kind == 'X': kx += 1
        g = r; pg = r; prev = ins
    return g

def place_even(sc, seq, lo, hi): return seq_after(sc, seq, lo, hi, even=True)

def rdK(j, s, tag): return exp_rd(dsread("ds_read_b128", Kf(j & 1, s), kaddr[s & 1], (j & 3) * 6144 + (s >> 1) * 128, tag), kaddr[s & 1], tag)
def rdV(T, u, e, tag):
    T %= 12
    return exp_rd(dsread("ds_read_b64_tr_b16", VB(T & 3, u, e), vaddr[T & 3], (32 * u + 16 * e) * 384 + (T >> 2) * 128, tag), vaddr[T & 3], tag)
def rdW(T, u, e, tag):
    T %= 12
    s, uu = T >> 1, T & 1
    return exp_rd(dsread("ds_read_b64_tr_b16", VB(T % 3, u, e), waddr[s & 1], (2 * u + e) * 3072 + (s >> 1) * 128 + 8 * uu, tag), waddr[s & 1], tag)
def rdX(nq, n, dh, q, u):
    d = SL if nq == 4 else 6144
    return dsread("ds_read_b128", Xf(n & 1, q, u), xaddr[u], (n & 1) * d + q * 2048, absT('x', dh, n), private=True)
UE = [(0, 0), (0, 1), (1, 0), (1, 1)]

def rebase(regs, cur, new):
    return [salu("s_sub_u32", sT1, new, cur), smov(cur, new)] + [valu("v_add_u32", r, sT1, r) for r in regs]
def rotate(r, n, f): return [smov(sT2, r), smov(r, n), smov(n, f), smov(f, sT2)]
def rebaseK():
    return [salu("s_sub_u32", sT3, kN, kR)] + [valu("v_add_u32", r, sT3, r) for r in kaddr]

def softmax_ops(Sx, q, j, par):
    e = [vexp(Sx.sub(r), Sx.sub(r)) for r in range(4)]
    a = [valu("v_add_f32", Lq(q), Lq(q), Sx.sub(r)) for r in range(4)]
    P = Pf(par, q, j >> 1)
    c = [valu("v_cvt_pk_bf16_f32", P.sub(2 * (j & 1) + i), Sx.sub(2 * i), Sx.sub(2 * i + 1)) for i in range(2)]
    return e, a, c

def attn_iter(nq, par, cfg, first_pv=False, jobs=(), next_k=True, k_rot=True, late=()):
    NG = 4 * nq
    mf = []
    for G in range(NG):
        j, q = divmod(G, nq)
        for s in range(6):
            mf.append(mfma(Sf(G), Kf(j & 1, s), Qf(q, s), Ci(q) if s == 0 else Sf(G)))
        for n in range(3 * G, 3 * G + 3):
            T, qq = divmod(n, nq)
            for u in range(2):
                mf.append(mfma(Oacc(T, qq), VB(T & 3, u), Pf(par, qq, u), 0 if (first_pv and u == 0) else Oacc(T, qq)))
    sc = Sched(mf)
    def pvpos(n): return 12 * (n // 3) + 6 + 2 * (n % 3)
    sm = []
    for G in range(NG):
        Gp = (G - 1) % NG
        j, q = divmod(Gp, nq)
        e, a, c = softmax_ops(Sf(Gp), q, j, par if G == 0 else par ^ 1)
        for r in range(4): sc.put(12 * G + 2 * r, e[r])
        sm.append((e, a, c))
    GB = 3 * nq
    bw = wait(need_vm=(lambda c: [('K', c['h'], c['t'] + 2), ('V', c['h'], c['t'] + 1)]), lgkm0=True, free=False)
    sc.put(12 * GB, bw, front=True)
    if cfg.stamps > 1 and nq == 4:
        sc.put(12 * GB, raw("s_memrealtime s[56:57]"), front=True)
        sc.put(12 * GB + 22, unit([f"v_cmp_eq_u32 vcc, s3, {vL16}", f"v_mov_b32 {vOne}, s56", "s_add_u32 s3, s3, 16", f"v_cndmask_b32 {vStamp}, {vStamp}, {vOne}, vcc"], 'V', cost=3))
    sc.put(12 * GB + 2, barrier(), front=True)
    bar = 12 * GB + 2
    reads = []
    for j in range(4):
        lo = 12 * nq * j
        nxt = (j == 3)
        tv, tk = (tagV(1), tagK(2)) if nxt else (tagV(0), tagK(1))
        for i in range(3):
            T = 3 * j + 3 + i
            l2 = lo if i == 0 else pvpos(nq * (T - 4) + nq - 1) + 1
            l2 = max(l2, lo)
            if nxt: l2 = max(l2, bar + 1)
            item = [(rdV(T, u, e, tv), l2) for (u, e) in UE]
            reads.append((l2, 0, item))
        if not nxt or next_k:
            l2 = max(lo, bar + 1) if nxt else lo
            reads.append((l2, 1, [(rdK(j + 1, s, tk), l2) for s in range(6)]))
    reads.sort(key=lambda x: (x[0], x[1]))
    g = 0
    lastpre = 0
    for _, _, item in reads:
        for ins, l2 in item:
            g = max(g, l2)
            while not (g % 12 in (1, 3, 5, 7, 8, 9) and not sc.g[g]) :
                g += 1
                if nq == 3 and g % 12 in (10, 11) and not sc.g[g]: break
            assert g < len(mf), "ds overflow"
            sc.put(g, ins)
            if g < bar: lastpre = g
    assert lastpre < 12 * GB
    upd = rebase(vaddr, sVcur, vN) + (rebaseK() if k_rot else [])
    for G in range(NG):
        e, a, c = sm[G]
        b = 12 * G
        if nq == 3 and G == 0:
            order = [(a[0], 1), (c[0], 3), (a[1], 5), (c[1], 7), (a[2], 8), (a[3], 9)]
        else:
            order = [(a[0], 1), (a[1], 3), (c[0], 5), (a[2], 7), (a[3], 8), (c[1], 9)]
        for ins, o in order: sc.put(b + o, ins)
    if nq == 3:
        for G in range(NG):
            sc.put(12 * G + 4, wait(), front=True)
            if G % 3 == 2: sc.put(12 * G + 11, wait())
    if cfg.xpace and nq == 4:
        for G in range(NG): sc.put(12 * G + 6, nop(cfg.xpace - 1))
    seq_after(sc, upd, lastpre, bar)
    gj = 0
    seq = [i for jb in jobs for i in jb]
    if seq: gj = place_even(sc, seq, 0, 12 * GB - (2 if nq == 3 else 13))
    rot = rotate(vR, vN, vF) + (rotate(kR, kN, kF) if k_rot else [])
    seq = [i for jb in late for i in jb]
    if any(i.kind == 'X' for i in seq):
        gr = seq_after(sc, rot, bar + 1, bar + 4)
        place_even(sc, seq, gr + 1, len(mf) - 2)
    else:
        seq_after(sc, rot + seq, bar + 1, len(mf) - 2)
    return sc

NCH = 24
PSLOT = [0, SL - 1024, 2 * SL - 1024]
def head_of(c):
    hh, cc = divmod(c, 3)
    return (hh if hh < 4 else 12 + hh), cc
def tagU(c): return lambda ctx: ('U', 0, c)
def job_o(c, cfg):
    h, cc = head_of(c)
    out = []
    for q in range(5):
        out.append(salu("s_add_u32", sTp, sOb, h * 92160 + cc * 2048 + q * 6144))
        for u in range(2):
            l = gload(OF(c % 3, q, u), vL16, sOr, sTp, 1024 * u, cfg.orflags)
            l.expect = lambda ctx, st, e=h * 92160 + cc * 2048 + q * 6144: None if st.get(str(sTp)) == st[str(sOb)] + e else "o off"
            out.append(l)
    return out
def job_u(c, cfg):
    h, cc = head_of(c)
    tag = tagU(c); sl = lambda ctx: slot_of(tag(ctx), 4)
    out = []
    for i in range(8):
        if i % 4 == 0: out.append(salu("s_add_u32", 'm0', sLb, PSLOT[(c + 1) % 3] + 1024 * i))
        out.append(salu("s_add_u32", sTx, sWb, (h * 192 + 64 * cc + 8 * i) * 1280 - 1024 * (i % 4)))
        d = dma(dX, sWo, sTx, 1024 * (i % 4), cfg.woflags, tag=tag, slot=sl)
        d.expect = lambda ctx, st, e=(h * 192 + 64 * cc + 8 * i) * 1280 - 1024 * (i % 4), el=PSLOT[(c + 1) % 3] + 4096 * (i // 4): \
            None if (st.get(str(sTx)) == st[str(sWb)] + e and st.get('m0') == st[str(sLb)] + el) else "u off"
        out.append(d)
    return out
def rdU(gs, u, e):
    c, N = divmod(gs, 8)
    return dsread("ds_read_b64_tr_b16", VB(gs % 3, u, e), raddr[N & 3],
                  PSLOT[(c + 1) % 3] + (N >> 2) * 8192 + (32 * u + 16 * e) * 128, tag=tagU(c))
def calc_raddr():
    o = [valu("v_lshrrev_b32", vt0, 6, vL16),
         valu("v_and_b32", vt1, 6, vt0),
         valu("v_lshlrev_b32", vt0, 7, vt0),
         valu("v_bfe_u32", raddr[0], vL16, 4, 1),
         valu("v_lshl_add_u32", vt0, raddr[0], 3, vt0),
         valu("v_bfe_u32", raddr[0], vL16, 5, 1),
         valu("v_xor_b32", vt1, vt1, raddr[0]),
         valu("v_lshlrev_b32", vt1, 4, vt1),
         salu("s_lshr_b32", sTp, sWave, 1), salu("s_lshl_b32", sTp, sTp, 6),
         valu("v_xor_b32", vt1, sTp, vt1),
         salu("s_lshr_b32", sTp, sWave, 1), salu("s_mul_i32", sTp, sTp, 3 * SL, scc=False), salu("s_add_u32", sTp, sTp, 1024),
         valu("v_add_u32", vt0, sTp, vt0)]
    for m in range(4):
        o += [valu("v_xor_b32", raddr[m], 32 * m, vt1), valu("v_add_u32", raddr[m], raddr[m], vt0)]
    for i in o: i.nosim = True
    return o
def unit(lines, kind='S', cost=None, rd=(), wr=(), **kw):
    i = Ins("\n".join(lines), kind, rd=rd, wr=wr, states=len([l for l in lines if not l.endswith(":")]), **kw)
    i.cost = cost if cost is not None else len(lines)
    i.nosim = True
    return i
_uid = [0]
def signal_add(off, guarded):
    _uid[0] += 1; n = _uid[0]
    l = [f"v_mov_b32 {vOne}, 1", "s_mov_b64 exec, 1", f"buffer_atomic_add {vOne}, off, {sDbg}, {off} sc1", "s_mov_b64 exec, -1"]
    if guarded: l = [f"s_cmp_eq_u32 {off}, -1", f"s_cbranch_scc1 L_nosig{n}"] + l + [f"s_mov_b32 {off}, -1", f"L_nosig{n}:"]
    u = unit(l, 'S', cost=8, wr=['scc'])
    u.states = 2
    return u
def poll_issue(gen):
    return gload_off(V(226, 2), sDbg, sCnt, 64 * gen)
def gload_off(D, srd, soff, off):
    op = {1: "buffer_load_dword", 2: "buffer_load_dwordx2"}[D.n]
    return Ins(f"{op} {D}, off, {srd}, {soff} offset:{off} sc1", 'X', rd=srd.regs() + soff.regs(), wr=D.regs())
def poll_check(gen):
    _uid[0] += 1; n = _uid[0]
    l = [f"s_mov_b32 {sSpin}, 0x80000", f"L_poll{n}:",
         "v_min_u32 v226, v226, v227", "s_nop 0", f"v_readfirstlane_b32 {sT0}, v226", "s_nop 3",
         f"s_cmp_ge_u32 {sT0}, 16", f"s_cbranch_scc1 L_pok{n}",
         "s_sleep 2", f"buffer_load_dwordx2 v[226:227], off, {sDbg}, {sCnt} offset:{64 * gen} sc1",
         f"s_sub_u32 {sSpin}, {sSpin}, 1", f"s_cmp_lg_u32 {sSpin}, 0", "s_waitcnt vmcnt(0)", f"s_cbranch_scc1 L_poll{n}", f"L_pok{n}:"]
    u = unit(l, 'S', cost=12, rd=['v226', 'v227'], wr=['v226', 'scc'] + sT0.regs())
    u.states = 0
    return u

def attn_last(nq, cfg, nxt):
    par = 1
    mf = []
    for T in range(12):
        for q in range(nq):
            for u in range(2): mf.append(mfma(Oacc(T, q), VB(T & 3, u), Pf(par, q, u), Oacc(T, q)))
    sc = Sched(mf)
    sp = 2 * nq
    e, a, c = softmax_ops(Sf(4 * nq - 1), nq - 1, 3, par)
    if nq == 4:
        for r in range(4): sc.put(r, e[r])
        sc.put(4, c[0]); sc.put(4, c[1]); sc.put(5, a[0]); sc.put(5, a[1])
        g0 = 6
    else:
        sc.put(0, e[0]); sc.put(0, e[1]); sc.put(1, e[2]); sc.put(1, e[3])
        sc.put(2, c[0]); sc.put(2, c[1]); sc.put(3, a[0]); sc.put(3, a[1])
        g0 = 4
    g = g0
    for T in range(3, 12):
        g = max(g, sp * (T - 3))
        for (u, ee) in UE:
            sc.put(g, rdV(T, u, ee, tagV(0))); g += 1
        sc.put(g - 1, wait())
    lastv = g - 1
    fin = [a[2], a[3]]
    for q in range(nq):
        t = vt0 if q % 2 == 0 else vt1
        for w in (32, 16):
            fin += [valu("v_mov_b32", t, Lq(q)), None, vperm(w, t, Lq(q)), valu("v_add_f32", Lq(q), Lq(q), t)]
    fin += [valu("v_add_f32", vt0, Lq(0), Lq(1)), valu("v_add_f32", vt0, vt0, Lq(2))]
    if nq == 4: fin.append(valu("v_add_f32", vt0, vt0, Lq(3)))
    fin.append(Ins(f"v_cmp_ngt_f32 {sBad}, {sThr}, {vt0}", 'V', rd=vt0.regs() + sThr.regs(), wr=sBad.regs()))
    SEQS.append([i for i in fin if i is not None])
    g = g0
    for ins in fin:
        if ins is None: g += 2; continue
        g = sc.place(ins, g, g + 8)
    for q in range(nq):
        g = sc.place(vrcp(Lq(q), Lq(q)), g + 1, g + 8)
    ginv = g
    chk = [salu("s_or_b32", sBad.sub(0), sBad.sub(0), sBad.sub(1)), salu("s_lshl_b32", sTp, sWave, 2), salu("s_add_u32", sTp, sTp, FLAG),
           valu("v_mov_b32", vt0, sBad.sub(0)), valu("v_mov_b32", vt1, sTp), dswrite("ds_write_b32", vt1, vt0, 0),
           valu("v_mov_b32", vOne, FLAG)]
    for i in chk: i.nosim = True
    g = seq_after(sc, chk, g + 1, g + 12)
    bar = sp * 10
    assert g < bar - 2
    gnext = g + 1
    if nxt == 'Q':
        w = wait(need_vm=lambda c: [('x', c['h'] + 1, 0)], free=False)
        gx = sc.place(w, sp * 3, sp * 4)
        dep = []
        for q in range(nq):
            for u in range(2):
                r = rdX(nq, 0, 1, q, u); dep += r.wr
                gx = sc.place(r, gx + 1, gx + 8)
        j1 = job_tile(nq, 'W', vF, absT('W', 1, 1), cfg) + job_tile(nq, 'K', kR, absT('K', 1, 0), cfg)
        ge = place_even(sc, j1, g0, sp * 7)
        ws = wait(); gw = sc.place(ws, max(gx + 4, ge), max(gx + 4, ge) + 4)
        place_even(sc, job_x(nq, 2, 1, cfg, dep), gw + 1, len(mf) - 1)
        need = lambda c: [('W', c['h'] + 1, 0)]
    else:
        place_even(sc, job_u(1, cfg), g0, gnext - 1)
        place_even(sc, job_o(0, cfg) + job_o(1, cfg), gnext, len(mf) - 1)
        need = lambda c: [('U', 0, 0)]
    bw = wait(need_vm=need, lgkm0=True, free=False)
    gb = sc.place(bw, bar - 1, bar)
    gb = sc.place(barrier(), gb, bar + 1)
    fl = dsread("ds_read_b128", V(228, 4), vOne, 0)
    g = sc.place(fl, gb + 1, gb + 2)
    if nxt == 'Q':
        seq_after(sc, rebase(waddr, sWcur, vN), lastv, gb)
        seq_after(sc, rotate(vR, vN, vF), gb + 1, len(mf) - 1)
    for T in range(2):
        g = max(g, sp * (10 + T) - 1)
        for (u, ee) in UE:
            r = rdW(T, u, ee, absT('W', 1, 0)) if nxt == 'Q' else rdU(T, u, ee)
            g = sc.place(r, min(len(mf) - 1, g + 1), min(len(mf) - 1, g + 2))
        sc.place(wait(), g, g)
    sc.post = [valu("v_or3_b32", V(228), V(228), V(229), V(230)), valu("v_or_b32", V(228), V(228), V(231)), nop(0),
               Ins(f"v_readfirstlane_b32 {sBad.sub(0)}, v228", 'V', rd=['v228'], wr=sBad.sub(0).regs()), nop(3),
               salu("s_andn2_b32", sBad.sub(0), sBad.sub(0), sRedo), raw(f"s_cbranch_scc1 L_slow_{nq}"), smov(sRedo, 0)]
    return sc

def epi_block(q, s, t, cfg, packed=False):
    ops = []
    for i in range(8):
        src = Oacc(2 * s + (i >> 2), q).sub(i & 3)
        ops.append(valu("v_accvgpr_read_b32", t.sub(i), src))
    for i in range(8): ops.append(valu("v_mul_f32", t.sub(i), t.sub(i), Lq(q)))
    for i in range(4): ops.append(valu("v_cvt_pk_bf16_f32", t.sub(i), t.sub(2 * i), t.sub(2 * i + 1)))
    ops.append(salu("s_add_u32", sTo, sOoff, q * 6144 + (4096 if s >= 4 else 0)))
    stv = gstore(t.sub(0, 4), vL16, sO, sTo, (s & 3) * 1024, cfg.oflags)
    def f(c, st):
        h = 0 if c['t'] < 0 else 1
        e = (st['h0'] + 16 * h) * 92160 + (4 * st['wave'] + q) * 6144 + s * 1024
        if st.get(str(sTo)) is None or st[str(sTo)] + (s & 3) * 1024 != e: return f"store off vs {e}"
    stv.expect = f
    if not cfg.nostore: ops.append(stv)
    return ops

def qproj(nq, cfg, epi):
    sp = 2 * nq; SN = 12 * sp
    mf = []
    for st in range(10):
        for T in range(12):
            for q in range(nq):
                for u in range(2):
                    mf.append(mfma(QACC(T, q), VB(T % 3, u), Xf(st & 1, q, u), 0 if (st == 0 and u == 0) else QACC(T, q)))
    sc = Sched(mf)
    for st in range(10):
        b = st * SN
        for T in range(10):
            g = b + sp * T
            for (u, e) in UE:
                sc.put(g, rdW(T + 2, u, e, absT('W', 0, st))); g += 1
            sc.put(g - 1, wait())
        lastw = g - 1
        need = [('W', st + 1)] if st < 9 else [('K', 0)]
        bw = wait(need_vm=(lambda c, need=need: [(k, c['h'], n) for k, n in need]), lgkm0=True, free=False)
        gb = b + sp * 10
        sc.put(gb, bw); sc.put(gb, barrier())
        g = gb
        if st < 9:
            seq_after(sc, rebase(waddr, sWcur, vN), lastw, gb)
            for T in range(2):
                g = max(g, b + sp * (10 + T) - 1)
                for (u, e) in UE:
                    g += 1; sc.put(g, rdW(T, u, e, absT('W', 0, st + 1)))
                sc.put(g, wait())
        else:
            seq_after(sc, rebase(vaddr, sVcur, vN), lastw, gb)
            for s in range(6):
                g += 1; sc.put(g, rdK(0, s, absT('K', 0, 0)))
        seq_after(sc, rotate(vR, vN, vF), gb + 1, b + SN - 1)
        dep = []
        gx = b + sp * 4
        if st < 9:
            w = wait(need_vm=(lambda c, st=st: [('x', c['h'], st + 1)]), free=False)
            gx = sc.place(w, gx, gx + sp)
            for q in range(nq):
                for u in range(2):
                    r = rdX(nq, st + 1, 0, q, u); dep += r.wr
                    gx = sc.place(r, gx + 1, gx + sp)
        b0 = b
        if st < 8: j1 = job_tile(nq, 'W', vF, absT('W', 0, st + 2), cfg, flo=('nt' if st + 2 >= cfg.ntlate else None))
        else:
            j1 = job_tile(nq, 'V', vF, absT('V', 0, st - 8), cfg) + job_tile(nq, 'K', kN if st == 8 else kF, absT('K', 0, st - 7), cfg)
        if cfg.l2pf and nq == 3 and st >= cfg.l2pf:
            assert cfg.kvperm == 1
            pre = []
            if st == cfg.l2pf: pre.append(valu("v_lshlrev_b32", vOne, 3, vL16))
            for i in range((st - cfg.l2pf) * cfg.l2n, min(cfg.l2tot, (st - cfg.l2pf + 1) * cfg.l2n)):
                pre.append(salu("s_add_u32", sT0, sKend, 393216 - 49152 - 8192 * (i // 2 + 1)))
                t = gload(V(191), vOne, sK if i % 2 == 0 else sV, sT0, 0, cfg.l2fl, op="buffer_load_dword"); t.wr = []
                pre.append(t)
            if pre:
                SEQS.append(pre)
                for i in pre: sc.put(b + 4, i)
                b0 = b + 5
        ge = place_even(sc, j1, b0, b + (sp * 4 - 1 if st < 7 and nq == 4 else sp * 6 if st < 7 else sp * 9))
        if st + 3 <= 9:
            ws = wait(); gw = sc.place(ws, max(gx + 4, ge), max(gx + 4, ge) + 4)
            place_even(sc, job_x(nq, st + 3, 0, cfg, dep), gw + 1, b + SN - 1)
    if epi:
        nb = 6 * nq
        step = (len(mf) - 60) // nb
        i = 0
        for s in range(6):
            for q in range(nq):
                seq_after(sc, epi_block(q, s, TMP[i & 1], cfg), 10 + i * step, 10 + (i + 1) * step - 1)
                i += 1
        seq_after(sc, [salu("s_add_u32", sOoff, sOoff, 16 * 92160), smov(sSig, sMyc)], len(mf) - 20, len(mf) - 1)
    return sc

def conv_prologue(nq, cfg):
    out = []
    cv = []
    for s in range(6):
        for q in range(nq):
            b = V(8 * blk(q, s), 8)
            for i in range(4): cv.append(valu("v_pk_mul_f32", b.sub(2 * i, 2), b.sub(2 * i, 2), sC2))
            for i in range(4): cv.append(valu("v_cvt_pk_bf16_f32", b.sub(i), b.sub(2 * i), b.sub(2 * i + 1)))
    j = job_tile(nq, 'V', vF, absT('V', 0, 2), cfg)
    k = 0
    for i, ins in enumerate(cv):
        out.append(ins)
        if i % 4 == 3 and k < len(j): out.append(j[k]); k += 1
    out += j[k:]
    for q in range(nq): out.append(valu("v_mov_b32", Ci(q).sub(0), "0xff800000"))
    out.append(label(f"L_prol_{nq}"))
    for q in range(nq): out.append(valu("v_mov_b32", Lq(q), 0))
    out.append(wait())
    NG = 4 * nq
    mf = []
    for G in range(NG):
        jj, q = divmod(G, nq)
        for s in range(6):
            mf.append(mfma(Sf(G), Kf(jj & 1, s), Qf(q, s), (0 if jj == 0 else Ci(q)) if s == 0 else Sf(G)))
    sc = Sched(mf)
    sc.pre = out
    gb = 6 * nq * 3
    for jj in range(3):
        g = 6 * nq * jj
        for s in range(6):
            sc.put(g, rdK(jj + 1, s, absT('K', 0, 0))); g += 2
    lastk = g - 2
    bw = wait(need_vm=(lambda c: 'all'), lgkm0=True, free=False)
    bw.vm = 0
    sc.put(gb - 1, bw); sc.put(gb - 1, barrier())
    if nq == 3: sc.put(gb - 1, signal_add(sSig, True))
    seq_after(sc, rebaseK(), lastk + 1, gb - 2)
    g = gb
    post = [rdK(4, s, absT('K', 0, 1)) for s in range(6)]
    for T in range(3): post += [rdV(T, u, e, absT('V', 0, 0)) for (u, e) in UE]
    for ins in post:
        sc.put(g, ins); g += 1
    assert g <= len(mf)
    rot = rotate(kR, kN, kF)
    for i, ins in enumerate(rot): sc.put(gb + i, ins)
    tail = []
    for G in range(NG - 1):
        jj, q = divmod(G, nq)
        Sx = Sf(G)
        ops = []
        if jj == 0:
            t = vt0; m = vt1
            ops += [valu("v_max3_f32", m, Sx.sub(0), Sx.sub(1), Sx.sub(2)), valu("v_max3_f32", m, m, Sx.sub(3), Ci(q).sub(0))]
            for w in (32, 16):
                ops += [valu("v_mov_b32", t, m), nop(1), vperm(w, t, m), valu("v_max_f32", m, m, t)]
            for r in range(4): ops.append(valu("v_sub_f32", Ci(q).sub(r), 0, m))
            for r in range(4): ops.append(valu("v_sub_f32", Sx.sub(r), Sx.sub(r), m))
        e, a, c = softmax_ops(Sx, q, jj, 0)
        ops += [e[0], e[1], a[0], e[2], a[1], e[3], c[0], a[2], a[3], c[1]]
        if G + 2 < NG:
            n = len(ops)
            for i, ins in enumerate(ops): sc.put(6 * (G + 2) + (i * 6) // n, ins)
        else:
            tail += ops
    sc.add_wait_sites()
    for jj in range(1, 4):
        sc.put(6 * nq * jj - 1, wait())
    return sc.linear() + tail + [wait()]

CS = 6
def p_chunks(c0, c1, nq, cfg):
    mf = []
    for c in range(c0, c1):
        for N in range(8):
            for q in range(5):
                for u in range(2):
                    mf.append(mfma(PACC(N, q), VB((8 * c + N) % 3, u), OF(c % 3, q, u), 0 if (c == 0 and u == 0) else PACC(N, q)))
    sc = Sched(mf)
    PUB = cfg.pubchunk
    for c in range(c0, c1):
        b = 80 * (c - c0)
        for N in range(6):
            for i, (u, e) in enumerate(UE): sc.put(b + 10 * N + i, rdU(8 * c + N + 2, u, e))
            sc.put(b + 10 * N + 3, wait())
        if c + 1 < NCH:
            bw = wait(need_vm=(lambda ctx, c=c: 'all' if c == PUB else [('U', 0, c + 1)]), lgkm0=True, free=False)
            if c == PUB: bw.vm = 0
            if c == 9:
                sc.put(b + 59, wait())
                _uid[0] += 1; n = _uid[0]
                sc.put(b + 59, unit([f"s_cmp_lg_u32 {sWave}, 3", f"s_cbranch_scc1 L_skip{n}"], cost=2, rd=['v226', 'v227']))
                pc = poll_check(1); pc.cost = 0; sc.put(b + 59, pc); sc.put(b + 59, label(f"L_skip{n}"))
            sc.put(b + 60, bw); sc.put(b + 60, barrier())
            if c == PUB and nq == 3:
                sc.put(b + 60, salu("s_add_u32", sSig, sMyc, 64)); sc.put(b + 60, signal_add(sSig, False))
            for i, (u, e) in enumerate(UE):
                sc.put(b + 61 + i, rdU(8 * c + 8, u, e)); sc.put(b + 70 + i, rdU(8 * c + 9, u, e))
            sc.put(b + 73, wait())
        else:
            sc.put(b + 63, wait())
        sc.put(b + 79, wait())
        if c == 9: sc.put(b + 14, poll_issue(1))
    first_reads = []
    if nq is not None:
        nb = 6 * nq
        span = 80 * PUB + 10
        step = (span - 4) / nb
        i = 0
        for s in range(6):
            for q in range(nq):
                ops = epi_block(q, s, TMP[i & 1], cfg)
                if s == 0: first_reads += ops[:8]
                ge = seq_after(sc, ops, 4 + int(i * step), 4 + int((i + 1) * step) - 1)
                if s == 0: gfirst = 4 + int(i * step) + 9
                i += 1
    for c in range(c0, c1):
        b = 80 * (c - c0)
        if c + 2 < NCH:
            ju, jo = job_u(c + 2, cfg), job_o(c + 2, cfg)
            if c == 0:
                place_even(sc, ju, b, b + 40)
                place_even(sc, jo[:6], b + 30, b + gfirst); place_even(sc, jo[6:], b + gfirst + 1, b + 78)
                for r in first_reads:
                    for l in jo:
                        if set(l.wr) & set(r.rd): SEQS.append([r, l])
            elif c == PUB:
                place_even(sc, ju, b, b + 24); place_even(sc, jo[:3], b, b + 24); place_even(sc, jo[3:], b + 61, b + 78)
            else:
                place_even(sc, ju, b, b + 78); place_even(sc, jo, b + 2, b + 78)
    sc.add_wait_sites()
    return sc

def p_end(cfg):
    wr, rd, oa = V(236), V(237), V(238)
    pre = [salu("s_and_b32", sTp, sWave, 1), salu("s_add_u32", sTp, sTp, 1), salu("s_mul_i32", sTp, sTp, SL, scc=False),
           salu("s_lshr_b32", sTx, sWave, 1), salu("s_mul_i32", sTx, sTx, 3 * SL, scc=False),
           salu("s_add_u32", sT0, sTp, sTx), valu("v_add_u32", wr, sT0, vL16),
           salu("s_sub_u32", sTx, 3 * SL, sTx), salu("s_add_u32", sT0, sTp, sTx), valu("v_add_u32", rd, sT0, vL16),
           valu("v_bfe_u32", oa, vL16, 4, 4), valu("v_mul_u32_u24", oa, 2560, oa),
           valu("v_lshrrev_b32", vt0, 8, vL16), valu("v_lshl_add_u32", oa, vt0, 3, oa)]
    for i in pre: i.nosim = True
    def T(pair, t): return PACC(2 * pair + t // 5, t % 5)
    def add(dst, src): return [valu("v_pk_add_f32", dst.sub(2 * i, 2), dst.sub(2 * i, 2), src.sub(2 * i, 2)) for i in range(2)]
    f = []
    for t in range(10): f.append(dswrite("ds_write_b128", wr, T(1, t), 1024 * (10 + t)))
    for t in range(10): f.append(dswrite("ds_write_b128", wr, T(3, t), 1024 * t))
    f += [wait(lgkm0=True), barrier()]
    for t in range(10): f.append(dsread("ds_read_b128", T(3, t), rd, 1024 * t))
    for t in range(10): f.append(dsread("ds_read_b128", T(1, t), rd, 1024 * (10 + t)))
    for t in range(10):
        f.append(wait()); f += add(T(2, t), T(3, t))
        if t % 4 == 0: f.append(salu("s_add_u32", sTp, sExs, 1024 * t))
        f.append(gstore(T(2, t), vL16, sEx, sTp, 1024 * (t % 4), "sc1"))
    for t in range(10):
        f.append(wait()); f += add(T(0, t), T(1, t))
    w = wait(need_vm=lambda c: 'all', free=False); w.vm = 0
    f += [w, barrier()]
    f.append(unit([f"s_cmp_lg_u32 {sWave}, 3", "s_cbranch_scc1 L_xok",
                   f"v_mov_b32 {vOne}, 1", "s_mov_b64 exec, 1", f"buffer_store_dword {vOne}, off, {sEx}, {sFs} sc1", "s_mov_b64 exec, -1",
                   f"s_mov_b32 {sSpin}, 0x80000", "L_xpoll:",
                   f"buffer_load_dword v226, off, {sEx}, {sFr} sc1", f"s_sub_u32 {sSpin}, {sSpin}, 1", "s_waitcnt vmcnt(0)",
                   f"v_readfirstlane_b32 {sTp}, v226", f"s_cmp_eq_u32 {sSpin}, 0", "s_cbranch_scc1 L_xok", "s_nop 1",
                   f"s_cmp_lg_u32 {sTp}, 1", "s_cbranch_scc1 L_xpoll", "L_xok:"]))
    f.append(barrier())
    for t in range(10):
        if t % 4 == 0: f.append(salu("s_add_u32", sTp, sExr, 1024 * t))
        f.append(gload(T(1, t), vL16, sEx, sTp, 1024 * (t % 4), "sc1"))
    for t in range(10):
        N, q = divmod(t, 5)
        ac = T(0, t)
        f.append(wait()); f += add(ac, T(1, t))
        for i in range(2): f.append(valu("v_cvt_pk_bf16_f32", ac.sub(i), ac.sub(2 * i), ac.sub(2 * i + 1)))
        f.append(salu("s_add_u32", sTp, sOutb, q * 16 * 2560))
        f.append(gstore(ac.sub(0, 2), oa, sOut, sTp, 32 * N, cfg.outflags))
    return pre, f

def slow_path(nq, cfg):
    o = []
    a = lambda t: o.append(raw(t))
    def spaced(seq):
        for i in seq:
            o.append(i)
            if 'm0' in i.wr: o.append(nop(0))
    dummy = lambda c: ('K', 0, 0)
    o.append(label(f"L_slow_{nq}"))
    a("s_waitcnt vmcnt(0) lgkmcnt(0)"); a("s_barrier")
    a(f"s_mov_b32 {sRedo}, -1")
    a(f"s_cmp_eq_u32 {sHead}, 0")
    a(f"s_cselect_b32 {sT0}, {16 * 393216}, 0"); a(f"s_cselect_b32 {sT1}, {16 * 384}, 0")
    a(f"s_cselect_b32 {sT2}, 0, {16 * 393216}")
    a(f"s_mov_b32 {vR}, {VS[0]}"); a(f"s_mov_b32 {vN}, {VS[1]}"); a(f"s_mov_b32 {vF}, {VS[2]}")
    a(f"s_cselect_b32 {vR}, {VS[1]}, {vR}"); a(f"s_cselect_b32 {vN}, {VS[2]}, {vN}"); a(f"s_cselect_b32 {vF}, {VS[0]}, {vF}")
    a(f"s_sub_u32 {sKend}, {sKend}, {sT0}"); a(f"s_sub_u32 {sVend}, {sVend}, {sT0}"); a(f"s_sub_u32 {sWend}, {sWend}, {sT1}")
    a(f"s_add_u32 {sKoff}, {sK0}, {sT2}"); a(f"s_mov_b32 {sVoff}, {sKoff}")
    a(f"s_mov_b32 {sWoff}, {sW0}"); a(f"s_mov_b32 {sXoff}, {sX0}")
    for i in rebase(vaddr, sVcur, vR): o.append(i)
    for q in range(nq): a(f"v_mov_b32 {Ci(q).sub(0)}, 0xff800000")
    a(f"s_mov_b32 {sLoop}, 16")
    o.append(label(f"L_slowl_{nq}"))
    spaced(job_tile(nq, 'K', kR, dummy, cfg))
    a("s_waitcnt vmcnt(0)"); a("s_barrier")
    for j in range(4):
        for s in range(6): o.append(rdK(j, s, dummy))
        a("s_waitcnt lgkmcnt(0)")
        for q in range(nq):
            for s in range(6): o.append(mfma(Sf(q), Kf(j & 1, s), Qf(q, s), 0 if s == 0 else Sf(q)))
        a("s_nop 7")
        for q in range(nq):
            m = Ci(q).sub(0); Sx = Sf(q)
            a(f"v_max3_f32 {m}, {m}, {Sx.sub(0)}, {Sx.sub(1)}"); a(f"v_max3_f32 {m}, {m}, {Sx.sub(2)}, {Sx.sub(3)}")
    a("s_barrier")
    a(f"s_sub_u32 {sLoop}, {sLoop}, 1"); a(f"s_cmp_lg_u32 {sLoop}, 0"); a(f"s_cbranch_scc1 L_slowl_{nq}")
    for r in (kR, kN, kF): spaced(job_tile(nq, 'K', r, dummy, cfg))
    a("s_waitcnt vmcnt(0)")
    for r in (vR, vN, vF): spaced(job_tile(nq, 'V', r, dummy, cfg))
    a("s_waitcnt vmcnt(0)"); a("s_barrier")
    for s in range(6): o.append(rdK(0, s, dummy))
    a("s_waitcnt lgkmcnt(0)")
    a(f"s_branch L_prol_{nq}")
    return o

def setup(cfg):
    o = []
    a = lambda t: o.append(raw(t))
    a("s_cmp_ge_u32 s2, 256"); a("s_cbranch_scc1 L_end")
    a("s_load_dwordx8 s[24:31], s[0:1], 0")
    a("s_load_dwordx8 s[32:39], s[0:1], 40")
    a("s_load_dwordx2 s[96:97], s[0:1], 32"); a("s_load_dwordx2 s[40:41], s[0:1], 72")
    a("s_load_dwordx4 s[44:47], s[0:1], 80")
    a("s_load_dwordx2 s[42:43], s[0:1], 96")
    if cfg.stamps: a("s_memrealtime s[56:57]")
    if cfg.codepf:
        a("s_getpc_b64 s[48:49]"); a("L_pc:")
        a("s_lshr_b32 s50, s2, 3"); a("s_lshl_b32 s50, s50, 6")
        a("v_add_u32 v2, s50, v0"); a("v_lshlrev_b32 v2, 7, v2")
        a("v_min_u32 v2, L_code_end-L_pc-4, v2")
        a("v_mov_b32 v3, s49"); a("v_add_co_u32 v2, vcc, s48, v2"); a("s_nop 1"); a("v_addc_co_u32 v3, vcc, 0, v3, vcc")
        a("v_cmp_gt_u32 vcc, 64, v0"); a("s_and_saveexec_b64 s[48:49], vcc"); a("s_cbranch_execz L_nopf")
        a(f"global_load_dword {vOne}, v[2:3], off")
        a("L_nopf:"); a("s_mov_b64 exec, s[48:49]")
    a("v_lshrrev_b32 v1, 6, v0"); a("v_and_b32 v0, 63, v0")
    a("v_readfirstlane_b32 s3, v1")
    a("s_lshr_b32 s50, s2, 3")
    a("s_bfe_u32 s51, s2, 0x10001"); a("s_lshl_b32 s51, s51, 2"); a("s_lshr_b32 s52, s50, 3"); a("s_add_u32 s51, s51, s52")
    a("s_and_b32 s52, s2, 1"); a("s_lshl_b32 s52, s52, 3"); a("s_and_b32 s53, s50, 7"); a("s_add_u32 s52, s52, s53")
    a("s_bfe_u32 s53, s2, 0x10002")
    a("v_lshrrev_b32 v1, 3, v0"); a("v_and_b32 v2, 7, v0")
    for m in range(3):
        a(f"v_add_u32 v3, {8 * m}, v1")
        a("v_mul_u32_u24 v4, 43, v3"); a("v_lshrrev_b32 v4, 7, v4")
        a("v_and_b32 v5, 6, v4"); a("v_xor_b32 v5, v5, v2"); a("v_lshlrev_b32 v5, 4, v5")
        a("v_lshlrev_b32 v6, 7, v1"); a(f"v_add_u32 {dKV[m]}, v5, v6")
        a("v_mul_u32_u24 v5, 3, v4"); a("v_sub_u32 v5, v3, v5"); a("v_lshlrev_b32 v5, 7, v5")
        a("v_bfe_u32 v6, v4, 1, 1"); a("v_lshlrev_b32 v6, 2, v6"); a("v_xor_b32 v6, v6, v2"); a("v_lshlrev_b32 v6, 4, v6"); a("v_add_u32 v5, v5, v6")
        a("v_lshrrev_b32 v6, 2, v4"); a("v_lshlrev_b32 v6, 4, v6"); a("v_and_b32 v7, 3, v4"); a("v_add_u32 v6, v6, v7")
        a("v_mul_u32_u24 v6, 12288, v6"); a("v_add_u32 v5, v5, v6")
        a(f"v_subrev_u32 {dW[m]}, {1024 * m}, v5")
    a("v_and_b32 v3, 6, v1"); a("v_xor_b32 v3, v3, v2"); a("v_lshlrev_b32 v3, 4, v3")
    a("v_mul_u32_u24 v4, 1280, v1"); a(f"v_add_u32 {dX}, v3, v4")
    a(f"v_lshlrev_b32 {vL16}, 4, v0")
    a("s_waitcnt lgkmcnt(0)")
    if cfg.stamps: a(f"v_writelane_b32 {vStamp}, s56, 30")
    a("s_cmp_eq_u32 s53, 0")
    for i in range(8): a(f"s_cselect_b32 s{24 + i}, s{24 + i}, s{32 + i}")
    a("s_cselect_b32 s96, s96, s40"); a("s_cselect_b32 s97, s97, s41"); a("s_mov_b32 s98, 7864320"); a("s_mov_b32 s99, 0x20000")
    a("s_mul_i32 s48, s51, 307200"); a("s_add_u32 s4, s24, s48"); a("s_addc_u32 s5, s25, 0"); a("s_mov_b32 s6, 307200"); a("s_mov_b32 s7, 0x20000")
    a("s_mov_b32 s8, s30"); a("s_mov_b32 s9, s31"); a("s_mov_b32 s10, 7864320"); a("s_mov_b32 s11, 0x20000")
    a("s_mul_i32 s48, s51, 12582912")
    a("s_add_u32 s12, s26, s48"); a("s_addc_u32 s13, s27, 0"); a("s_mov_b32 s14, 12582912"); a("s_mov_b32 s15, 0x20000")
    a("s_add_u32 s16, s28, s48"); a("s_addc_u32 s17, s29, 0"); a("s_mov_b32 s18, 12582912"); a("s_mov_b32 s19, 0x20000")
    a("s_lshl_b32 s48, s53, 3"); a("s_add_u32 s48, s48, s51"); a(f"s_lshl_b32 {sMyc}, s48, 2"); a("s_mul_i32 s48, s48, 2949120")
    a("s_add_u32 s20, s42, s48"); a("s_addc_u32 s21, s43, 0"); a("s_mov_b32 s22, 2949120"); a("s_mov_b32 s23, 0x20000")
    a("s_mov_b32 s64, s44"); a("s_mov_b32 s65, s45"); a("s_mov_b32 s66, 4915200"); a("s_mov_b32 s67, 0x20000")
    a(f"s_add_u32 s68, s42, {EXOFF}"); a("s_addc_u32 s69, s43, 0"); a(f"s_mov_b32 s70, {STOFF + 0x100000}"); a("s_mov_b32 s71, 0x20000")
    a("s_mov_b32 s72, s46"); a("s_mov_b32 s73, s47"); a("s_mov_b32 s74, 256"); a("s_mov_b32 s75, 0x20000")
    a("s_cmp_ge_u32 s50, 30"); a(f"s_cselect_b32 {sIdle}, 1, 0"); a("s_min_u32 s24, s50, 29")
    a("s_and_b32 s25, s24, 1"); a("s_lshr_b32 s24, s24, 1")
    a("s_mul_i32 s26, s24, 52"); a("s_lshr_b32 s26, s26, 8"); a("s_mul_i32 s27, s26, 5"); a("s_sub_u32 s27, s24, s27")
    a("s_lshl_b32 s26, s26, 1"); a("s_and_b32 s28, s3, 1"); a("s_add_u32 s26, s26, s28")
    a("s_cmp_ge_u32 s26, 3"); a("s_cselect_b32 s29, 1, 0"); a("s_mul_i32 s30, s29, 3"); a("s_sub_u32 s26, s26, s30")
    a("s_and_b32 s30, s2, 7"); a("s_lshl_b32 s30, s30, 1")
    a(f"s_lshl_b32 {sCnt}, s30, 2")
    a("s_add_u32 s30, s30, s29"); a("s_mul_i32 s31, s30, 2949120")
    a("s_add_u32 s60, s42, s31"); a("s_addc_u32 s61, s43, 0"); a("s_mov_b32 s62, 2949120"); a("s_mov_b32 s63, 0x20000")
    a("s_lshl_b32 s31, s25, 1"); a("s_lshr_b32 s32, s3, 1"); a("s_add_u32 s31, s31, s32")
    a(f"s_mul_i32 {sOb}, s31, {4 * 92160}"); a(f"s_mul_i32 s33, s26, {5 * 6144}"); a(f"s_add_u32 {sOb}, {sOb}, s33")
    a(f"s_mul_i32 {sWb}, s31, {4 * 192 * 1280}"); a("s_lshl_b32 s33, s27, 8"); a(f"s_add_u32 {sWb}, {sWb}, s33")
    a("s_xor_b32 s33, s28, s25"); a("s_lshl_b32 s33, s33, 7"); a(f"s_add_u32 {sWb}, {sWb}, s33")
    a(f"s_mul_i32 {sLb}, s32, {3 * SL}"); a("s_lshl_b32 s33, s28, 13"); a(f"s_add_u32 {sLb}, {sLb}, s33"); a(f"s_add_u32 {sLb}, {sLb}, 1024")
    a("s_and_b32 s30, s30, 7"); a("s_mul_i32 s30, s30, 240"); a("s_mul_i32 s33, s26, 80"); a("s_add_u32 s30, s30, s33")
    a(f"s_mul_i32 {sOutb}, s30, 2560"); a("s_mul_i32 s33, s53, 1280"); a(f"s_add_u32 {sOutb}, {sOutb}, s33")
    a("s_lshl_b32 s33, s27, 8"); a(f"s_add_u32 {sOutb}, {sOutb}, s33"); a("s_lshl_b32 s33, s31, 6"); a(f"s_add_u32 {sOutb}, {sOutb}, s33")
    a("s_lshl_b32 s33, s2, 2"); a("s_add_u32 s33, s33, s3"); a(f"s_mul_i32 {sExs}, s33, 10240"); a("s_xor_b32 s33, s33, 32"); a(f"s_mul_i32 {sExr}, s33, 10240")
    a("s_lshl_b32 s33, s2, 7"); a(f"s_add_u32 {sFs}, s33, {FLOFF}"); a("s_xor_b32 s33, s33, 1024"); a(f"s_add_u32 {sFr}, s33, {FLOFF}")
    a("s_and_b32 s33, s51, 1"); a("s_lshl_b32 s33, s33, 4"); a("s_add_u32 s33, s33, s52"); a("s_lshl_b32 s33, s33, 3")
    a("s_lshl_b32 s34, s53, 2"); a("s_add_u32 s33, s33, s34"); a("s_lshr_b32 s34, s51, 1"); a("s_add_u32 s33, s33, s34")
    a("s_lshl_b32 s33, s33, 7"); a(f"s_add_u32 {sSpin}, s33, {FLOFF}")
    a("s_and_b32 s48, s2, 3"); a("s_lshl_b32 s48, s48, 5"); a("s_add_u32 s48, s48, s50"); a(f"s_mul_i32 {sWopf}, s48, 61440")
    if cfg.dbgst: a(f"s_add_u32 {sMyc}, {sMyc}, 128"); a(f"s_add_u32 {sCnt}, {sCnt}, 128")
    a(f"s_mov_b32 {sSig}, -1"); a(f"s_mov_b32 {sRedo}, 0")
    a(f"s_mov_b32 {sWave}, s3")
    if cfg.stamps > 1: a("s_mov_b32 s3, 512")
    a(f"s_mul_i32 {sKoff}, s52, 393216"); a(f"s_mul_i32 {sWoff}, s52, 384")
    a(f"s_mul_i32 {sXoff}, {sWave}, {64 * 1280}")
    a(f"s_mul_i32 {sOoff}, s52, 92160"); a(f"s_mul_i32 s48, {sWave}, {4 * 6144}"); a(f"s_add_u32 {sOoff}, {sOoff}, s48")
    a(f"s_mov_b32 {sTp}, s50")
    a(f"s_mov_b32 {kR}, {KS[0]}"); a(f"s_mov_b32 {kN}, {KS[1]}"); a(f"s_mov_b32 {kF}, {KS[2]}")
    a(f"s_mov_b32 {vR}, {VS[0]}"); a(f"s_mov_b32 {vN}, {VS[1]}"); a(f"s_mov_b32 {vF}, {VS[2]}")
    a(f"s_mov_b32 {sVcur}, 0"); a(f"s_mov_b32 {sWcur}, {VS[0]}")
    c = math.log2(math.e) / math.sqrt(192.0)
    a(f"s_mov_b32 s38, {fbits(c)}"); a(f"s_mov_b32 s39, {fbits(c)}")
    a(f"s_mov_b32 {sThr}, {fbits(2.0 ** cfg.thr)}")
    a(f"s_mov_b32 {sHead}, 0")
    a(f"s_cmp_eq_u32 {sWave}, 3"); a("s_cbranch_scc1 L_v3")
    return o

def lds_addr_setup(cfg):
    o = []
    def a(t):
        i = raw(t); i.nosim = True; o.append(i)
    a("v_and_b32 v1, 15, v0")
    a("v_lshrrev_b32 v2, 4, v0")
    a("v_and_b32 v3, 6, v1")
    a("v_xor_b32 v4, v2, v3")
    a("v_lshlrev_b32 v4, 4, v4")
    a("v_mul_u32_u24 v5, 384, v1")
    a(f"v_add_u32 {kaddr[0]}, v5, v4")
    a(f"v_xor_b32 v6, 64, v4"); a(f"v_add_u32 {kaddr[1]}, v5, v6")
    a("v_lshlrev_b32 v5, 7, v1"); a(f"v_add_u32 v5, {sXl[0]}, v5")
    a(f"v_add_u32 {xaddr[0]}, v5, v4"); a(f"v_add_u32 {xaddr[1]}, v5, v6")
    a("v_lshrrev_b32 v1, 2, v0"); a("v_and_b32 v3, 6, v1")
    a("v_bfe_u32 v4, v0, 1, 1"); a("v_xor_b32 v4, v4, v3"); a("v_lshlrev_b32 v4, 4, v4")
    a("v_and_b32 v5, 1, v0"); a("v_lshlrev_b32 v5, 3, v5")
    a("v_mul_u32_u24 v6, 384, v1"); a("v_add_u32 v5, v5, v6")
    for m in range(4):
        a(f"v_xor_b32 v6, {32 * m}, v4"); a(f"v_add_u32 {vaddr[m]}, v5, v6")
    a("v_and_b32 v3, 1, v2"); a(f"v_mul_u32_u24 v3, {12288 + cfg.wshift}, v3"); a(f"v_add_u32 v3, {VS[0]}, v3")
    a("v_lshrrev_b32 v4, 1, v2"); a("v_lshlrev_b32 v4, 2, v4"); a("v_bfe_u32 v5, v0, 2, 2"); a("v_add_u32 v4, v4, v5")
    a("v_mul_u32_u24 v4, 384, v4"); a("v_add_u32 v3, v3, v4")
    a("v_bfe_u32 v4, v0, 3, 1"); a("v_lshlrev_b32 v4, 2, v4"); a("v_and_b32 v5, 3, v0"); a("v_xor_b32 v4, v4, v5"); a("v_lshlrev_b32 v4, 4, v4")
    a(f"v_add_u32 {waddr[0]}, v3, v4"); a("v_xor_b32 v4, 64, v4"); a(f"v_add_u32 {waddr[1]}, v3, v4")
    return o

def setup_variant(nq, cfg):
    o = []
    def a(t):
        i = raw(t); i.nosim = True; o.append(i)
    if nq == 4:
        cm = kv_map(cfg)[1]
        a(f"s_mul_i32 {sGrp}, {sWave}, 3072")
        a(f"s_cmp_eq_u32 {sWave}, 1"); a(f"s_cselect_b32 {sT0}, {cm[1] * 3072}, 0"); a(f"s_add_u32 {sKoff}, {sKoff}, {sT0}")
        a(f"s_cmp_eq_u32 {sWave}, 2"); a(f"s_cselect_b32 {sT0}, {cm[2] * 3072}, 0"); a(f"s_add_u32 {sKoff}, {sKoff}, {sT0}")
        a(f"s_and_b32 {sT0}, {sWave}, 1"); a(f"s_lshl_b32 {sT0}, {sT0}, 2"); a(f"s_lshr_b32 {sT1}, {sWave}, 1"); a(f"s_lshl_b32 {sT1}, {sT1}, 5")
        a(f"s_add_u32 {sT0}, {sT0}, {sT1}"); a(f"s_mul_i32 {sT0}, {sT0}, 12288"); a(f"s_add_u32 {sWoff}, {sWoff}, {sT0}")
        a(f"s_lshl_b32 {sT0}, {sWave}, 13"); a(f"s_add_u32 {sXl[0]}, {sT0}, {KS[1]}"); a(f"s_add_u32 {sXl[1]}, {sT0}, {KS[2]}")
    else:
        a(f"s_mov_b32 {sXl[0]}, {EB}"); a(f"s_mov_b32 {sXl[1]}, {EB + 6144}")
        a("v_mov_b32 v1, 0"); a("s_mov_b64 exec, 1"); a(f"buffer_store_dword v1, off, {sEx}, {sSpin} sc1"); a("s_mov_b64 exec, -1")
    a(f"s_add_u32 {sKend}, {sKoff}, {16 * 3072 * kv_map(cfg)[0]}"); a(f"s_mov_b32 {sVend}, {sKend}")
    a(f"s_add_u32 {sWend}, {sWoff}, 7864320"); a(f"s_add_u32 {sXend}, {sXoff}, 1280")
    if cfg.rotkv:
        a(f"s_mul_i32 {sT0}, s2, 5"); a(f"s_lshr_b32 {sT1}, s2, 4"); a(f"s_add_u32 {sT0}, {sT0}, {sT1}"); a(f"s_and_b32 {sT0}, {sT0}, 15")
        a(f"s_mul_i32 {sT0}, {sT0}, {3072 * kv_map(cfg)[0]}"); a(f"s_add_u32 {sKoff}, {sKoff}, {sT0}")
    if cfg.rotq == 1:
        a(f"s_lshr_b32 {sT0}, {sTp}, 3"); a(f"s_lshl_b32 {sT0}, {sT0}, 1"); a(f"s_and_b32 {sT1}, {sTp}, 7"); a(f"s_add_u32 {sT0}, {sT0}, {sT1}")
        a(f"s_mul_i32 {sT0}, {sT0}, 5"); a(f"s_lshr_b32 {sT0}, {sT0}, 2")
        a(f"s_cmp_ge_u32 {sT0}, 10"); a(f"s_cselect_b32 {sT1}, 10, 0"); a(f"s_sub_u32 {sT0}, {sT0}, {sT1}")
    if cfg.rotq == 2:
        a(f"s_lshr_b32 {sT0}, {sTp}, 3"); a(f"s_xor_b32 {sT0}, {sT0}, {sTp}"); a(f"s_and_b32 {sT0}, {sT0}, 1"); a(f"s_mul_i32 {sT0}, {sT0}, 5")
    if cfg.rotq:
        a(f"s_mul_i32 {sT1}, {sT0}, 786432"); a(f"s_add_u32 {sWoff}, {sWoff}, {sT1}"); a(f"s_lshl_b32 {sT1}, {sT0}, 7"); a(f"s_add_u32 {sXoff}, {sXoff}, {sT1}")
    a(f"s_mov_b32 {sVoff}, {sKoff}")
    a(f"s_mov_b32 {sK0}, {sKoff}"); a(f"s_mov_b32 {sW0}, {sWoff}"); a(f"s_mov_b32 {sX0}, {sXoff}")
    def spaced(seq):
        for i in seq:
            o.append(i)
            if 'm0' in i.wr: o.append(nop(0))
    spaced(job_x(nq, 0, 0, cfg)); spaced(job_tile(nq, 'W', vR, absT('W', 0, 0), cfg))
    o.extend(lds_addr_setup(cfg))
    spaced(job_x(nq, 1, 0, cfg)); spaced(job_tile(nq, 'W', vN, absT('W', 0, 1), cfg))
    spaced(job_tile(nq, 'K', kR, absT('K', 0, 0), cfg))
    o.append(wait(need_vm=lambda c: [('x', 0, 0), ('W', 0, 0)], free=False)); o.append(barrier())
    dep = []
    for q in range(nq):
        for u in range(2):
            r = rdX(nq, 0, 0, q, u); dep += r.wr; o.append(r)
    for T in range(2):
        for (u, e) in UE: o.append(rdW(T, u, e, absT('W', 0, 0)))
    o.append(wait())
    spaced(job_x(nq, 2, 0, cfg, dep))
    o.append(wait())
    return o

def stamp(cfg, idx):
    if not cfg.stamps: return []
    return [raw("s_memrealtime s[56:57]"), raw("s_memtime s[58:59]"), raw("s_waitcnt lgkmcnt(0)"),
            raw(f"v_writelane_b32 {vStamp}, s56, {2 * idx}"), raw(f"v_writelane_b32 {vStamp}, s58, {2 * idx + 1}")]
def finish(cfg, idx):
    e = []
    if cfg.stamps:
        e += [raw("s_waitcnt vmcnt(0)")] + stamp(cfg, idx)
        e += [raw(f"s_lshl_b32 {sTp}, s2, 2"), raw(f"s_add_u32 {sTp}, {sTp}, {sWave}"), raw(f"s_lshl_b32 {sTp}, {sTp}, 8"),
              raw(f"s_add_u32 {sTp}, {sTp}, {STOFF}"), raw(f"v_lshrrev_b32 v0, 2, {vL16}"),
              raw(f"buffer_store_dword {vStamp}, v0, {sEx}, {sTp} offen")]
        if cfg.dbgst and idx == 7:
            e += [raw(f"v_not_b32 v1, {vStamp}"), raw(f"v_cmp_eq_u32 vcc, 480, {vL16}"), raw("s_nop 1"), raw(f"v_cndmask_b32 v1, {vStamp}, v1, vcc"),
                  raw(f"v_lshrrev_b32 v0, 3, {vL16}"), raw("s_mov_b32 exec_lo, 0x40005555"), raw("s_mov_b32 exec_hi, 0"),
                  raw(f"buffer_atomic_umax v1, v0, {sDbg}, 0 offen sc1"), raw("s_mov_b64 exec, -1")]
    return e + [raw("s_endpgm")]

def variant(nq, cfg, common):
    sfx = f"_{nq}"
    st = lambda i: stamp(cfg, i)
    su = setup_variant(nq, cfg) + st(0)
    q1 = qproj(nq, cfg, False); q1.add_wait_sites()
    q2 = qproj(nq, cfg, True); q2.add_wait_sites()
    cp = conv_prologue(nq, cfg)
    if cfg.w3all:
        jK = lambda: job_tile(nq, 'K', kF, tagK(3), cfg, groups=range(8))
        jV = lambda: job_tile(nq, 'V', vF, tagV(2), cfg, groups=range(4, 8))
        jL = lambda: [job_tile(nq, 'V', vF, tagV(3), cfg, groups=range(4), adv=False)]
    else:
        jK = lambda: job_tile(nq, 'K', kF, tagK(3), cfg)
        jV = lambda: job_tile(nq, 'V', vF, tagV(2), cfg)
        jL = lambda: []
    i0 = attn_iter(nq, 0, cfg, first_pv=True, jobs=[jK()], late=jL())
    i1 = attn_iter(nq, 1, cfg, jobs=[jV(), jK()], late=jL())
    i2 = attn_iter(nq, 0, cfg, jobs=[jV(), jK()], late=jL())
    fix = []
    for o_, d_ in ((sKoff, 16 * 393216), (sKend, 16 * 393216), (sVoff, 16 * 393216), (sVend, 16 * 393216), (sWoff, 16 * 384), (sWend, 16 * 384)):
        fix.append(salu("s_add_u32", o_, o_, d_))
    a13 = attn_iter(nq, 1, cfg, jobs=[jV(), fix, job_x(nq, 0, 1, cfg)])
    a14 = attn_iter(nq, 0, cfg, jobs=[job_tile(nq, 'W', vF, absT('W', 1, 0), cfg), job_x(nq, 1, 1, cfg)], next_k=False, k_rot=False)
    a15 = attn_last(nq, cfg, 'Q')
    pf = []
    if cfg.wopf and nq == 3:
        pf.append(valu("v_lshlrev_b32", V(243), 3, vL16))
        for i in range(8):
            pf.append(gload(V(244), V(243), sWo, sWopf, 0, "", op="buffer_load_dword"))
            pf[-1].wr = []
            pf.append(salu("s_add_u32", sWopf, sWopf, 8192 if i < 6 else 4096) if i < 7 else salu("s_sub_u32", sWopf, sWopf, 6 * 8192 + 4096))
    b13 = attn_iter(nq, 1, cfg, jobs=[jV(), pf], late=[calc_raddr()])
    b14 = attn_iter(nq, 0, cfg, jobs=[([poll_issue(0)] if nq == 3 else []), job_u(0, cfg)], next_k=False, k_rot=False)
    if nq == 3:
        gb = 12 * 9 - 1
        b14.put(gb, wait()); b14.put(gb, poll_check(0))
    b15 = attn_last(nq, cfg, 'P')
    pa = p_chunks(0, CS, nq, cfg)
    i0.place(smov(sLoop, 6), 20, 60)
    i2.place(salu("s_sub_u32", sLoop, sLoop, 1), 20, 60)
    for s in (i0, i1, i2, a13, a14, a15, b13, b14, b15): s.add_wait_sites()
    loopend = [scmp("s_cmp_lg_u32", sLoop, 0), raw(f"s_cbranch_scc1 L_loop{sfx}")]
    headbr = [scmp("s_cmp_lg_u32", sHead, 0), raw(f"s_cbranch_scc1 L_tail2{sfx}")]
    back = [smov(sHead, 1), raw(f"s_branch L_head{sfx}")]
    idlebr = [scmp("s_cmp_lg_u32", sIdle, 0), raw(f"s_cbranch_scc1 L_idle{sfx}"), wait()]
    idle = [label(f"L_idle{sfx}")]
    i = 0
    for s in range(6):
        for q in range(nq):
            idle += epi_block(q, s, TMP[i & 1], cfg); i += 1
    idle += [raw("s_waitcnt vmcnt(0)"), barrier()]
    if nq == 3: idle += [salu("s_add_u32", sSig, sMyc, 64), signal_add(sSig, False)]
    idle += finish(cfg, 8)
    L = lambda s: s.linear()
    s1, s3, s4, s5 = st(1), st(2), st(3), st(4)
    jump = [raw("s_branch L_pcommon")] if nq == 3 else []
    code = su + L(q1) + s1 + [label(f"L_head{sfx}")] + cp + L(i0) + [raw(".p2align 3", 'L', states=0), label(f"L_loop{sfx}")] + L(i1) + L(i2) + loopend + headbr \
        + L(a13) + L(a14) + L(a15) + s3 + L(q2) + s4 + back + slow_path(nq, cfg) + idle \
        + [label(f"L_tail2{sfx}")] + L(b13) + L(b14) + L(b15) + s5 + idlebr + L(pa) + jump
    tr = []
    def add(ins, **c): tr.extend((i, c) for i in ins)
    add(su, h=0, t=-9); add(L(q1) + s1, h=0, t=-5)
    for h in range(2):
        add(cp, h=h, t=-1); add(L(i0), h=h, t=0)
        for t in range(1, 13, 2):
            add(L(i1), h=h, t=t); add(L(i2), h=h, t=t + 1); add(loopend, h=h, t=t + 1)
        add(headbr, h=h, t=12)
        if h == 0:
            add(L(a13), h=0, t=13); add(L(a14), h=0, t=14); add(L(a15) + s3, h=0, t=15); add(L(q2) + s4, h=1, t=-5); add(back, h=1, t=-5)
        else:
            add(L(b13), h=1, t=13); add(L(b14), h=1, t=14); add(L(b15) + s5, h=1, t=15)
    tr_idle = tr + [(i, dict(h=1, t=16)) for i in idlebr[:2] + idle]
    add(idlebr + L(pa) + jump + common, h=1, t=16)
    info = dict(q1=q1, q2=q2, i0=i0, i1=i1, i2=i2, a13=a13, a14=a14, a15=a15, b13=b13, b14=b14, b15=b15, pa=pa)
    return code, tr, tr_idle, info

def sim_variant(nq, tr, cfg):
    ok = True
    for w in ([0, 1, 2] if nq == 4 else [3]):
        h0 = 5
        grp = w * 3072 if nq == 4 else 0
        k0 = [0, 4, 32, 0][w]
        ggrp = kv_map(cfg)[1][w] * 3072 if nq == 4 else 0
        kst = 3072 * kv_map(cfg)[0]
        rk = 7 if cfg.rotkv else 0; rq = 3 if cfg.rotq else 0
        init = {'wave': w, 'h0': h0, 'rk': rk, 'rq': rq, str(kR): KS[0], str(kN): KS[1], str(kF): KS[2], str(vR): VS[0], str(vN): VS[1], str(vF): VS[2],
                str(sVcur): 0, str(sWcur): VS[0], str(sKoff): h0 * 393216 + ggrp, str(sVoff): h0 * 393216 + ggrp, str(sWoff): h0 * 384 + k0 * 12288,
                str(sXoff): w * 64 * 1280, str(sOoff): h0 * 92160 + w * 4 * 6144, str(sGrp): grp,
                str(sXl[0]): (KS[1] + w * 8192 if nq == 4 else EB), str(sXl[1]): (KS[2] + w * 8192 if nq == 4 else EB + 6144),
                str(sOb): 1000000, str(sWb): 2000000, str(sLb): 3000}
        init[str(sKend)] = init[str(sKoff)] + 16 * kst; init[str(sVend)] = init[str(sKend)]
        init[str(sWend)] = init[str(sWoff)] + 7864320; init[str(sXend)] = init[str(sXoff)] + 1280
        init[str(sKoff)] += rk * kst; init[str(sVoff)] += rk * kst; init[str(sWoff)] += rq * 786432; init[str(sXoff)] += rq * 128
        for r in kaddr + vaddr: init[str(r)] = 0
        for r in waddr: init[str(r)] = VS[0]
        if not cfg.fake: ok = sim_scalar(tr, init, f"nq{nq} w{w}") and ok
    return ok

def build(cfg, name):
    su = setup(cfg)
    pb = p_chunks(CS, NCH, None, cfg)
    pre, fin = p_end(cfg)
    seq_after(pb, pre, len(pb.mf) - 75, len(pb.mf) - 20)
    common = [label("L_pcommon")] + stamp(cfg, 5) + pb.linear() + stamp(cfg, 6) + fin + finish(cfg, 7)
    c4, t4, ti4, inf4 = variant(4, cfg, common)
    c3, t3, ti3, inf3 = variant(3, cfg, common)
    for rep in range(2):
        for n, t in (("nq4", t4), ("nq3", t3), ("idle4", ti4), ("idle3", ti3)): derive_waits(t, n, verbose=(rep == 1 and n[0] == 'n'))
    ok = True
    for n, t in (("nq4", t4), ("nq3", t3), ("idle4", ti4), ("idle3", ti3)): ok = check_hazards(t, n) and ok
    ok = check_seqs(c4 + common) and check_seqs(c3) and ok
    ok = sim_variant(4, t4, cfg) and sim_variant(3, t3, cfg) and ok
    ok = check_lds({4: t4, 3: t3}) and ok
    for n, inf in (("nq4", inf4), ("nq3", inf3)): print(n, "model cycles:", {k: s.cycles() for k, s in inf.items()})
    print("common", pb.cycles())
    assert ok
    lines = [f".globl {name}", ".p2align 8", f".type {name},@function", f"{name}:"]
    lines += emit(su) + emit(c4) + emit(common) + ["L_end:", "s_endpgm", "L_v3:"] + emit(c3)
    out = []
    for l in lines: out += l.split("\n")
    return out

if __name__ == "__main__":
    print(len(build(Cfg(), "k_kernel")), "lines")
```

```python
import math, struct
from asmlib import *

SL = 24832
KS = [0, SL, 2 * SL]
VS = [3 * SL, 4 * SL, 5 * SL]
EB = 6 * SL
FLAG = EB + 12288
LDS_BYTES = 163840

sX, sW, sK, sV, sO = S(4, 4), S(8, 4), S(12, 4), S(16, 4), S(20, 4)
sWave = S(24)
kR, kN, kF = S(25), S(26), S(27)
vR, vN, vF = S(28), S(29), S(30)
sKoff, sVoff, sWoff, sXoff = S(31), S(32), S(33), S(34)
sLoop, sHead = S(35), S(36)
sThr = S(37)
sC2 = S(38, 2)
sGrp = S(40)
sT0, sT1, sT2, sT3, sT4 = S(41), S(42), S(43), S(47), S(55)
sXl = [S(44), S(45)]
sOoff = S(46)
sWcur, sVcur = S(48), S(49)
sTo = S(50)
sTx = S(51)
sBad = S(52, 2)
sWopf = S(54)
sTs = S(56, 4)
sOr, sOut, sEx, sDbg = S(60, 4), S(64, 4), S(68, 4), S(72, 4)
sOb, sWb, sLb, sOutb = S(76), S(77), S(78), S(79)
sExs, sExr, sFs, sFr = S(80), S(81), S(82), S(83)
sRw, sRx = S(0), S(1)
sSig, sCnt, sMyc = S(84), S(85), S(86)
sRedo, sIdle = S(87), S(88)
sK0, sW0, sX0 = S(89), S(90), S(91)
sKend, sVend, sWend, sXend = S(92), S(93), S(94), S(95)
sWo = S(96, 4)
sSpin = S(100)
sTp = S(101)
OOB = 0x7fff0000
EXOFF = 0x3000000
FLOFF = 0xC00000
STOFF = 0x1000000

def blk(q, s): return q * 6 + s
def Qf(q, s): return V(8 * blk(q, s), 4)
def QACC(T, q): return V(8 * blk(q, T >> 1) + 4 * (T & 1), 4)
def U(i): return V(8 * i + 4, 4)
def Pf(par, q, u): return U(par * 8 + q * 2 + u)
def Sf(i): return U(16 + (i & 3))
def Ci(q): return U(20 + q)
def VB(b, u, e=None):
    return V(192 + 8 * b + 4 * u, 4) if e is None else V(192 + 8 * b + 4 * u + 2 * e, 2)
TMP = [V(216, 8), V(224, 8)]
def Lq(q): return V(232 + q)
kaddr = [V(236), V(237)]
vaddr = [V(238), V(239), V(240), V(241)]
waddr = [V(242), V(243)]
xaddr = [V(244), V(245)]
dKV = [V(246), V(247), V(248)]
dW = [V(249), V(250), V(251)]
dX = V(252)
vL16 = V(253)
vt0, vt1 = V(224), V(225)
vOne = V(254)
vStamp = V(255)
raddr = [V(249), V(250), V(251), V(242)]
def PACC(N, q): return V(4 * (N * 5 + q), 4)
def OF(b, q, u):
    i = 2 * q + u
    if b == 0: return A(192 + 4 * i, 4)
    if b == 1: return A(232 + 4 * i, 4) if i < 6 else U(20 + i - 6)
    return V(8 * (20 + i), 4) if i < 4 else A(4 * (i - 4), 4)
def Oacc(T, q): return A(4 * (T * 4 + q), 4)
def Lacc(q): return A(240 + 4 * q, 4)
ONES = V(232, 4)
def Kf(b, s): return A(192 + 24 * b + 4 * s, 4)
def Xf(par, q, u): return A(192 + 32 * par + 8 * q + 4 * u, 4)

def fbits(x): return "0x%08x" % struct.unpack("<I", struct.pack("<f", x))[0]

class Cfg:
    wshift = 8
    kvflags = "nt"
    wflags = ""
    xflags = ""
    oflags = "sc1"
    orflags = "sc1"
    woflags = ""
    pubchunk = 5
    epist = 9
    xend = 120
    ctouch = 2
    kvperm = 1
    lmfma = 1
    dbgst = 0
    xpace = 0
    l2pf = 0
    l2n = 3
    l2tot = 12
    l2fl = ""
    ntlate = 99
    outflags = ""
    thr = 40
    stamps = False
    fake = 0
    nostore = 0
    w3all = 1
    rotkv = 1
    rotq = 1
    codepf = 1
    wopf = 1

def tagK(dn): return lambda c: ('K', c['h'], c['t'] + dn)
def tagV(dn): return lambda c: ('V', c['h'], c['t'] + dn)
def absT(kind, dh, n): return lambda c: (kind, c['h'] + dh, n)
def slot_of(tile, nq):
    k, h, n = tile
    if k == 'K': return ('k', n % 3)
    if k == 'x': return ('k', 1 + n % 2) if nq == 4 else ('e', n % 2)
    if k == 'W': return ('v', (h * 26 + n) % 3)
    if k == 'V': return ('v', (h * 26 + 10 + n) % 3)
    if k == 'U': return ('kv', (n + 1) % 3)

def kv_map(cfg):
    return {0: (8, list(range(8))),
            1: (1, [0, 32, 64, 96, 16, 48, 80, 112]),
            2: (2, [0, 32, 64, 96, 1, 33, 65, 97]),
            3: (4, [0, 64, 1, 65, 2, 66, 3, 67])}[cfg.kvperm]
def slot_base(slot):
    return {'k': KS, 'v': VS, 'e': [EB, EB + 6144]}[slot[0]][slot[1]]
def exp_dma(ins, tag, nq, soff, imm, idx, cfg):
    def f(c, st):
        k, h, n = tag(c); w = st['wave']; base = slot_base(slot_of((k, h, n), nq)); hh = st['h0'] + 16 * h
        if k == 'x':
            el = base + (w * 8192 if nq == 4 else 0) + idx * 1024
            eg = w * 64 * 1280 + 128 * ((n + st['rq'] * h) % 10) + idx * 10240
        else:
            i = idx + (3 * w if nq == 4 else 0); mm = i // 3
            n = (n + st['rq'] * h) % 10 if k == 'W' else (n + st['rk']) % 16
            el = base + i * 1024
            if k == 'W':
                el += cfg.wshift if mm >= 4 else 0
                eg = hh * 384 + (64 * n + 32 * ((mm & 3) >> 1) + 4 * (mm & 1) + 8 * (mm >> 2)) * 12288 + (i % 3) * 1024
            else: eg = hh * 393216 + (n * kv_map(cfg)[0] + kv_map(cfg)[1][mm]) * 3072 + (i % 3) * 1024
        gl, gg = st.get('m0'), st.get(str(soff))
        if gl is None or gg is None or gl + imm != el or gg + imm != eg: return f"lds {gl}+{imm} vs {el}; glob {gg}+{imm} vs {eg} tile {(k, h, n)}"
    ins.expect = f
    return ins
def exp_rd(ins, addr, tag):
    def f(c, st):
        base = slot_base(slot_of(tag(c), 4))
        if st.get(str(addr)) != base: return f"base {st.get(str(addr))} vs {base} tile {tag(c)}"
    ins.expect = f
    return ins

def advance(off, end, step, span, on=True):
    o = [salu("s_add_u32", off, off, step)]
    if on:
        i = Ins(f"s_cmp_eq_u32 {off}, {end}\ns_cselect_b32 {sT4}, {span}, 0", 'S', rd=off.regs() + end.regs(), wr=['scc'] + sT4.regs(), states=2)
        i.cost = 2
        i.simfn = lambda st: st.__setitem__(str(sT4), span if st[str(off)] == st[str(end)] else 0)
        o += [i, salu("s_sub_u32", off, off, sT4)]
    return o

def job_tile(nq, kind, slotreg, tag, cfg, groups=None, adv=True, flo=None):
    srd, off, end, addr, fl = {'K': (sK, sKoff, sKend, dKV, cfg.kvflags), 'V': (sV, sVoff, sVend, dKV, cfg.kvflags),
                               'W': (sW, sWoff, sWend, dW, cfg.wflags)}[kind]
    sl = lambda c: slot_of(tag(c), nq)
    if flo is not None: fl = flo
    out = []
    if nq == 4:
        if groups is None:
            out.append(salu("s_add_u32", 'm0', slotreg, sGrp))
            for m in range(3): out.append(exp_dma(dma(addr[m], srd, off, 1024 * m, fl, tag=tag, slot=sl), tag, nq, off, 1024 * m, m, cfg))
    else:
        for mm in (range(3, 8) if groups is None else groups):
            if kind == 'W':
                k0 = 32 * ((mm & 3) >> 1) + 4 * (mm & 1) + 8 * (mm >> 2)
                go = k0 * 12288; lo = mm * 3072 + (cfg.wshift if mm >= 4 else 0)
            else:
                lo = mm * 3072; go = kv_map(cfg)[1][mm] * 3072
            out.append(salu("s_add_u32", 'm0', slotreg, lo))
            out.append(salu("s_add_u32", sT0, off, go))
            for m in range(3): out.append(exp_dma(dma(addr[m], srd, sT0, 1024 * m, fl, tag=tag, slot=sl), tag, nq, sT0, 1024 * m, 3 * mm + m, cfg))
    if adv and (nq == 3 or kind == 'W'):
        step = 786432 if kind == 'W' else 3072 * kv_map(cfg)[0]
        if cfg.fake and (kind != 'W' or cfg.fake > 1): step = 0
        out += advance(off, end, step, 7864320 if kind == 'W' else 16 * 3072 * kv_map(cfg)[0])
    return out

def job_x(nq, n, dh, cfg, dep=()):
    tag = absT('x', dh, n); sl = lambda c: slot_of(tag(c), nq)
    out = []
    for i in range(2 * nq):
        if i % 4 == 0: out.append(salu("s_add_u32", 'm0', sXl[n & 1], 1024 * i))
        out.append(salu("s_add_u32", sTx, sXoff, 10240 * i - 1024 * (i % 4)))
        d = dma(dX, sX, sTx, 1024 * (i % 4), 'nt' if n >= cfg.ntlate else cfg.xflags, tag=tag, slot=sl, private=True)
        exp_dma(d, tag, nq, sTx, 1024 * (i % 4), i, cfg)
        if i == 0: d.rd += list(dep)
        out.append(d)
    out += advance(sXoff, sXend, 0 if cfg.fake > 1 else 128, 1280)
    return out

def bstamp(sc, gw, gl):
    sc.put(gw, raw("s_memrealtime s[56:57]"), front=True)
    sc.put(gl, unit([f"v_cmp_eq_u32 vcc, s3, {vL16}", f"v_mov_b32 {vOne}, s56", "s_add_u32 s3, s3, 16", f"v_cndmask_b32 {vStamp}, {vStamp}, {vOne}, vcc"], 'V', cost=3))
def code_touch(targets, regs, guard=None, alt=None):
    lo, hi_, dummy = V(regs), V(regs + 1), V(regs + 2)
    _uid[0] += 1; n0 = _uid[0]
    l = [f"s_cmp_lg_u32 {guard[0]}, {guard[1]}", f"s_cbranch_scc1 L_cts{n0}"] if guard else []
    def one(target):
        _uid[0] += 1; n = _uid[0]
        return ["s_getpc_b64 s[58:59]", f"L_ct{n}:", f"s_add_u32 s58, s58, {target}-L_ct{n}", f"s_addc_u32 s59, s59, 0-(({target}-L_ct{n})>>63)",
                "s_and_b32 s58, s58, 0xfffff000",
                f"v_lshrrev_b32 {lo}, 7, {vL16}", f"v_lshlrev_b32 {lo}, 12, {lo}", f"v_and_b32 {hi_}, 0x70, {vL16}", f"v_lshl_add_u32 {lo}, {hi_}, 3, {lo}",
                f"v_min_u32 {lo}, L_code_end-({target})-4, {lo}",
                f"v_mov_b32 {hi_}, s59", f"v_add_co_u32 {lo}, vcc, s58, {lo}", "s_nop 1", f"v_addc_co_u32 {hi_}, vcc, 0, {hi_}, vcc",
                f"global_load_dword {dummy}, v[{lo.a}:{hi_.a}], off"]
    if alt: l += [f"s_cmp_lg_u32 {sHead}, 0", f"s_cbranch_scc1 L_cta{n0}"]
    for t in targets: l += one(t)
    if alt:
        l += [f"s_branch L_cts{n0}", f"L_cta{n0}:"]
        for t in alt: l += one(t)
    l.append(f"L_cts{n0}:")
    u = unit(l, 'S', cost=2 if guard else 18 * len(targets), wr=['scc', 'vcc'])
    u.states = 1
    return u
def lchain(q, par, first):
    o = [mfma(Lacc(q), ONES, Pf(par, q, u), 0 if (first and u == 0) else Lacc(q)) for u in range(2)]
    for i in o: i.cost = 4
    return o

def seq_after(sc, seq, lo, hi, even=False):
    seq = list(seq)
    SEQS.append(seq)
    hi = min(hi, len(sc.g) - 1)
    n = len(seq)
    nx = sum(1 for i in seq if i.kind == 'X'); kx = 0
    g = lo; prev = None; pg = None
    for k, ins in enumerate(seq):
        dl = max(g, min(hi, lo + ((k + 1) * (hi - lo + 1) + n - 1) // n - 1))
        if not even: dl = max(g, min(hi, hi - (n - 1 - k) // 2))
        g1 = g
        if even and ins.kind == 'X': g1 = max(g, min(dl, lo + (kx * (hi - lo + 1)) // nx))
        same_bad = prev is not None and ((prev.kind in 'VE' and ins.kind not in 'VE') or ('m0' in prev.wr and ins.dma))
        if same_bad and g1 == pg:
            if g1 + 1 <= hi: g1 += 1; dl = max(dl, g1)
            else:
                if 'm0' in prev.wr: sc.g[g1].append(nop(0))
                sc.g[g1].append(ins); prev = ins; pg = g1
                for rest in seq[k + 1:]:
                    if 'm0' in prev.wr and rest.dma: sc.g[g1].append(nop(0))
                    sc.g[g1].append(rest); prev = rest
                return g1
        r = sc.place(ins, g1, dl, force=True)
        if ins.kind == 'X': kx += 1
        g = r; pg = r; prev = ins
    return g

def place_even(sc, seq, lo, hi): return seq_after(sc, seq, lo, hi, even=True)

def rdK(j, s, tag): return exp_rd(dsread("ds_read_b128", Kf(j & 1, s), kaddr[s & 1], (j & 3) * 6144 + (s >> 1) * 128, tag), kaddr[s & 1], tag)
def rdV(T, u, e, tag):
    T %= 12
    return exp_rd(dsread("ds_read_b64_tr_b16", VB(T & 3, u, e), vaddr[T & 3], (32 * u + 16 * e) * 384 + (T >> 2) * 128, tag), vaddr[T & 3], tag)
def rdW(T, u, e, tag):
    T %= 12
    s, uu = T >> 1, T & 1
    return exp_rd(dsread("ds_read_b64_tr_b16", VB(T % 3, u, e), waddr[s & 1], (2 * u + e) * 3072 + (s >> 1) * 128 + 8 * uu, tag), waddr[s & 1], tag)
def rdX(nq, n, dh, q, u):
    d = SL if nq == 4 else 6144
    return dsread("ds_read_b128", Xf(n & 1, q, u), xaddr[u], (n & 1) * d + q * 2048, absT('x', dh, n), private=True)
UE = [(0, 0), (0, 1), (1, 0), (1, 1)]

def rebase(regs, cur, new):
    return [salu("s_sub_u32", sT1, new, cur), smov(cur, new)] + [valu("v_add_u32", r, sT1, r) for r in regs]
def rotate(r, n, f): return [smov(sT2, r), smov(r, n), smov(n, f), smov(f, sT2)]
def rebaseK():
    return [salu("s_sub_u32", sT3, kN, kR)] + [valu("v_add_u32", r, sT3, r) for r in kaddr]

def softmax_ops(Sx, q, j, par):
    e = [vexp(Sx.sub(r), Sx.sub(r)) for r in range(4)]
    a = [valu("v_add_f32", Lq(q), Lq(q), Sx.sub(r)) for r in range(4)]
    P = Pf(par, q, j >> 1)
    c = [valu("v_cvt_pk_bf16_f32", P.sub(2 * (j & 1) + i), Sx.sub(2 * i), Sx.sub(2 * i + 1)) for i in range(2)]
    return e, a, c

def attn_iter(nq, par, cfg, first_pv=False, jobs=(), next_k=True, k_rot=True, late=()):
    NG = 4 * nq
    mf = []
    for G in range(NG):
        j, q = divmod(G, nq)
        for s in range(6):
            mf.append(mfma(Sf(G), Kf(j & 1, s), Qf(q, s), Ci(q) if s == 0 else Sf(G)))
        for n in range(3 * G, 3 * G + 3):
            T, qq = divmod(n, nq)
            for u in range(2):
                mf.append(mfma(Oacc(T, qq), VB(T & 3, u), Pf(par, qq, u), 0 if (first_pv and u == 0) else Oacc(T, qq)))
    sc = Sched(mf)
    def pvpos(n): return 12 * (n // 3) + 6 + 2 * (n % 3)
    sm = []
    for G in range(NG):
        Gp = (G - 1) % NG
        j, q = divmod(Gp, nq)
        e, a, c = softmax_ops(Sf(Gp), q, j, par if G == 0 else par ^ 1)
        for r in range(4): sc.put(12 * G + 2 * r, e[r])
        sm.append((e, a, c))
    GB = 3 * nq
    bw = wait(need_vm=(lambda c: [('K', c['h'], c['t'] + 2), ('V', c['h'], c['t'] + 1)]), lgkm0=True, free=False)
    sc.put(12 * GB, bw, front=True)
    if cfg.stamps == 2 and nq == 4: bstamp(sc, 12 * GB, 12 * GB + 22)
    sc.put(12 * GB + 2, barrier(), front=True)
    bar = 12 * GB + 2
    reads = []
    for j in range(4):
        lo = 12 * nq * j
        nxt = (j == 3)
        tv, tk = (tagV(1), tagK(2)) if nxt else (tagV(0), tagK(1))
        for i in range(3):
            T = 3 * j + 3 + i
            l2 = lo if i == 0 else pvpos(nq * (T - 4) + nq - 1) + 1
            l2 = max(l2, lo)
            if nxt: l2 = max(l2, bar + 1)
            item = [(rdV(T, u, e, tv), l2) for (u, e) in UE]
            reads.append((l2, 0, item))
        if not nxt or next_k:
            l2 = max(lo, bar + 1) if nxt else lo
            reads.append((l2, 1, [(rdK(j + 1, s, tk), l2) for s in range(6)]))
    reads.sort(key=lambda x: (x[0], x[1]))
    g = 0
    lastpre = 0
    for _, _, item in reads:
        for ins, l2 in item:
            g = max(g, l2)
            while not (g % 12 in (1, 3, 5, 7, 8, 9) and not sc.g[g]) :
                g += 1
                if nq == 3 and g % 12 in (10, 11) and not sc.g[g]: break
            assert g < len(mf), "ds overflow"
            sc.put(g, ins)
            if g < bar: lastpre = g
    assert lastpre < 12 * GB
    upd = rebase(vaddr, sVcur, vN) + (rebaseK() if k_rot else [])
    for G in range(NG):
        e, a, c = sm[G]
        b = 12 * G
        if nq == 3 and G == 0:
            order = [(a[0], 1), (c[0], 3), (a[1], 5), (c[1], 7), (a[2], 8), (a[3], 9)]
        else:
            order = [(a[0], 1), (a[1], 3), (c[0], 5), (a[2], 7), (a[3], 8), (c[1], 9)]
        for ins, o in order:
            if not (cfg.lmfma and ins in a): sc.put(b + o, ins)
    if nq == 3:
        for G in range(NG):
            sc.put(12 * G + 4, wait(), front=True)
            if G % 3 == 2: sc.put(12 * G + 11, wait())
    if cfg.xpace and nq == 4:
        for G in range(NG): sc.put(12 * G + 6, nop(cfg.xpace - 1))
    seq_after(sc, upd, lastpre, bar)
    gj = 0
    seq = [i for jb in jobs for i in jb]
    if seq: gj = place_even(sc, seq, 0, 12 * GB - (2 if nq == 3 else 13))
    rot = rotate(vR, vN, vF) + (rotate(kR, kN, kF) if k_rot else [])
    sc.extra = [(12 * (4 * q + 2) + 11, lchain(q, par, first_pv)) for q in range(nq)] if cfg.lmfma else []
    seq = [i for jb in late for i in jb]
    if any(i.kind == 'X' for i in seq):
        gr = seq_after(sc, rot, bar + 1, bar + 4)
        place_even(sc, seq, gr + 1, len(mf) - 2)
    else:
        seq_after(sc, rot + seq, bar + 1, len(mf) - 2)
    return sc

NCH = 24
PSLOT = [0, SL - 1024, 2 * SL - 1024]
def head_of(c):
    hh, cc = divmod(c, 3)
    return (hh if hh < 4 else 12 + hh), cc
def tagU(c): return lambda ctx: ('U', 0, c)
def job_o(c, cfg):
    h, cc = head_of(c)
    out = []
    for q in range(5):
        out.append(salu("s_add_u32", sTp, sOb, h * 92160 + cc * 2048 + q * 6144))
        for u in range(2):
            l = gload(OF(c % 3, q, u), vL16, sOr, sTp, 1024 * u, cfg.orflags)
            l.expect = lambda ctx, st, e=h * 92160 + cc * 2048 + q * 6144: None if st.get(str(sTp)) == st[str(sOb)] + e else "o off"
            out.append(l)
    return out
def job_u(c, cfg):
    h, cc = head_of(c)
    tag = tagU(c); sl = lambda ctx: slot_of(tag(ctx), 4)
    out = []
    for i in range(8):
        if i % 4 == 0: out.append(salu("s_add_u32", 'm0', sLb, PSLOT[(c + 1) % 3] + 1024 * i))
        out.append(salu("s_add_u32", sTx, sWb, (h * 192 + 64 * cc + 8 * i) * 1280 - 1024 * (i % 4)))
        d = dma(dX, sWo, sTx, 1024 * (i % 4), cfg.woflags, tag=tag, slot=sl)
        d.expect = lambda ctx, st, e=(h * 192 + 64 * cc + 8 * i) * 1280 - 1024 * (i % 4), el=PSLOT[(c + 1) % 3] + 4096 * (i // 4): \
            None if (st.get(str(sTx)) == st[str(sWb)] + e and st.get('m0') == st[str(sLb)] + el) else "u off"
        out.append(d)
    return out
SPAN = [divmod(gs, 8) for gs in range(176)] + [(22, N) for N in (6, 7, 4, 5)] + [(23, N) for N in (6, 7, 4, 5)] \
    + [(22, N) for N in (0, 1, 2, 3)] + [(23, N) for N in (2, 3, 0, 1)]
def rdU(gs, u, e):
    c, N = SPAN[gs]
    return dsread("ds_read_b64_tr_b16", VB(gs % 3, u, e), raddr[N & 3],
                  PSLOT[(c + 1) % 3] + (N >> 2) * 8192 + (32 * u + 16 * e) * 128, tag=tagU(c))
def calc_raddr():
    o = [valu("v_lshrrev_b32", vt0, 6, vL16),
         valu("v_and_b32", vt1, 6, vt0),
         valu("v_lshlrev_b32", vt0, 7, vt0),
         valu("v_bfe_u32", raddr[0], vL16, 4, 1),
         valu("v_lshl_add_u32", vt0, raddr[0], 3, vt0),
         valu("v_bfe_u32", raddr[0], vL16, 5, 1),
         valu("v_xor_b32", vt1, vt1, raddr[0]),
         valu("v_lshlrev_b32", vt1, 4, vt1),
         salu("s_lshr_b32", sTp, sWave, 1), salu("s_lshl_b32", sTp, sTp, 6),
         valu("v_xor_b32", vt1, sTp, vt1),
         salu("s_lshr_b32", sTp, sWave, 1), salu("s_mul_i32", sTp, sTp, 3 * SL, scc=False), salu("s_add_u32", sTp, sTp, 1024),
         valu("v_add_u32", vt0, sTp, vt0)]
    for m in range(4):
        o += [valu("v_xor_b32", raddr[m], 32 * m, vt1), valu("v_add_u32", raddr[m], raddr[m], vt0)]
    for i in o: i.nosim = True
    return o
def unit(lines, kind='S', cost=None, rd=(), wr=(), **kw):
    i = Ins("\n".join(lines), kind, rd=rd, wr=wr, states=len([l for l in lines if not l.endswith(":")]), **kw)
    i.cost = cost if cost is not None else len(lines)
    i.nosim = True
    return i
_uid = [0]
def signal_add(off, guarded):
    _uid[0] += 1; n = _uid[0]
    l = [f"v_mov_b32 {vOne}, 1", "s_mov_b64 exec, 1", f"buffer_atomic_add {vOne}, off, {sDbg}, {off} sc1", "s_mov_b64 exec, -1"]
    if guarded: l = [f"s_cmp_eq_u32 {off}, -1", f"s_cbranch_scc1 L_nosig{n}"] + l + [f"s_mov_b32 {off}, -1", f"L_nosig{n}:"]
    u = unit(l, 'S', cost=8, wr=['scc'])
    u.states = 2
    return u
def poll_issue(gen):
    return gload_off(V(226, 2), sDbg, sCnt, 0) if gen == 0 else gload_off(V(226), sDbg, sMyc, 64)
def gload_off(D, srd, soff, off):
    op = {1: "buffer_load_dword", 2: "buffer_load_dwordx2"}[D.n]
    return Ins(f"{op} {D}, off, {srd}, {soff} offset:{off} sc1", 'X', rd=srd.regs() + soff.regs(), wr=D.regs())
def poll_check(gen):
    _uid[0] += 1; n = _uid[0]
    l = [f"s_mov_b32 {sSpin}, 0x80000", f"L_poll{n}:"] + (["v_min_u32 v226, v226, v227", "s_nop 0"] if gen == 0 else []) + \
        [f"v_readfirstlane_b32 {sT0}, v226", "s_nop 3",
         f"s_cmp_ge_u32 {sT0}, 32", f"s_cbranch_scc1 L_pok{n}",
         "s_sleep 2", poll_issue(gen).text,
         f"s_sub_u32 {sSpin}, {sSpin}, 1", f"s_cmp_lg_u32 {sSpin}, 0", "s_waitcnt vmcnt(0)", f"s_cbranch_scc1 L_poll{n}", f"L_pok{n}:"]
    u = unit(l, 'S', cost=12, rd=['v226', 'v227'], wr=['v226', 'scc'] + sT0.regs())
    u.states = 0
    return u

def attn_last(nq, cfg, nxt):
    par = 1
    mf = []
    for T in range(12):
        for q in range(nq):
            for u in range(2): mf.append(mfma(Oacc(T, q), VB(T & 3, u), Pf(par, q, u), Oacc(T, q)))
    sc = Sched(mf)
    sp = 2 * nq
    e, a, c = softmax_ops(Sf(4 * nq - 1), nq - 1, 3, par)
    if nq == 4:
        for r in range(4): sc.put(r, e[r])
        sc.put(4, c[0]); sc.put(4, c[1])
        g0 = 6
    else:
        sc.put(0, e[0]); sc.put(0, e[1]); sc.put(1, e[2]); sc.put(1, e[3])
        sc.put(2, c[0]); sc.put(2, c[1])
        g0 = 4
    if not cfg.lmfma: sc.put(g0 - 1, a[0]); sc.put(g0 - 1, a[1])
    else: sc.put(g0 - 1, nop(0))
    g = g0
    for T in range(3, 12):
        g = max(g, sp * (T - 3))
        for (u, ee) in UE:
            sc.put(g, rdV(T, u, ee, tagV(0))); g += 1
        sc.put(g - 1, wait())
    lastv = g - 1
    if cfg.lmfma:
        sc.extra = [(sp - 1, [i for q in range(nq) for i in lchain(q, par, False)])]
        fin = [None] * ((sp + 8 - g0) // 2) + [valu("v_accvgpr_read_b32", Lq(q), Lacc(q).sub(0)) for q in range(nq)]
    else:
        fin = [a[2], a[3]]
        for q in range(nq):
            t = vt0 if q % 2 == 0 else vt1
            for w in (32, 16):
                fin += [valu("v_mov_b32", t, Lq(q)), None, vperm(w, t, Lq(q)), valu("v_add_f32", Lq(q), Lq(q), t)]
    fin += [valu("v_add_f32", vt0, Lq(0), Lq(1)), valu("v_add_f32", vt0, vt0, Lq(2))]
    if nq == 4: fin.append(valu("v_add_f32", vt0, vt0, Lq(3)))
    fin.append(Ins(f"v_cmp_ngt_f32 {sBad}, {sThr}, {vt0}", 'V', rd=vt0.regs() + sThr.regs(), wr=sBad.regs()))
    SEQS.append([i for i in fin if i is not None])
    g = g0
    for ins in fin:
        if ins is None: g += 2; continue
        g = sc.place(ins, g, g + 8)
    for q in range(nq):
        g = sc.place(vrcp(Lq(q), Lq(q)), g + 1, g + 8)
    ginv = g
    chk = [salu("s_or_b32", sBad.sub(0), sBad.sub(0), sBad.sub(1)), salu("s_lshl_b32", sTp, sWave, 2), salu("s_add_u32", sTp, sTp, FLAG),
           valu("v_mov_b32", vt0, sBad.sub(0)), valu("v_mov_b32", vt1, sTp), dswrite("ds_write_b32", vt1, vt0, 0),
           valu("v_mov_b32", vOne, FLAG)]
    for i in chk: i.nosim = True
    g = seq_after(sc, chk, g + 1, g + 12)
    bar = sp * 10
    assert g < bar - 2
    gnext = g + 1
    if nxt == 'Q':
        w = wait(need_vm=lambda c: [('x', c['h'] + 1, 0)], free=False)
        gx = sc.place(w, sp * 3, sp * 4)
        dep = []
        for q in range(nq):
            for u in range(2):
                r = rdX(nq, 0, 1, q, u); dep += r.wr
                gx = sc.place(r, gx + 1, gx + 8)
        j1 = job_tile(nq, 'W', vF, absT('W', 1, 1), cfg)
        ge = place_even(sc, j1, g0, sp * 7)
        ws = wait(); gw = sc.place(ws, max(gx + 4, ge), max(gx + 4, ge) + 4)
        place_even(sc, job_x(nq, 2, 1, cfg, dep), gw + 1, len(mf) - 1)
        need = lambda c: [('W', c['h'] + 1, 0)]
    else:
        place_even(sc, job_u(1, cfg), g0, gnext - 1)
        place_even(sc, job_o(0, cfg) + job_o(1, cfg), gnext, len(mf) - 1)
        need = lambda c: [('U', 0, 0)]
    bw = wait(need_vm=need, lgkm0=True, free=False)
    gb = sc.place(bw, bar - 1, bar)
    gb = sc.place(barrier(), gb, bar + 1)
    fl = dsread("ds_read_b128", V(228, 4), vOne, 0)
    g = sc.place(fl, gb + 1, gb + 2)
    if nxt == 'Q':
        seq_after(sc, rebase(waddr, sWcur, vN), lastv, gb)
        seq_after(sc, rotate(vR, vN, vF), gb + 1, len(mf) - 1)
    for T in range(2):
        g = max(g, sp * (10 + T) - 1)
        for (u, ee) in UE:
            r = rdW(T, u, ee, absT('W', 1, 0)) if nxt == 'Q' else rdU(T, u, ee)
            g = sc.place(r, min(len(mf) - 1, g + 1), min(len(mf) - 1, g + 2))
        sc.place(wait(), g, g)
    sc.post = [valu("v_or3_b32", V(228), V(228), V(229), V(230)), valu("v_or_b32", V(228), V(228), V(231)), nop(0),
               Ins(f"v_readfirstlane_b32 {sBad.sub(0)}, v228", 'V', rd=['v228'], wr=sBad.sub(0).regs()), nop(3),
               salu("s_andn2_b32", sBad.sub(0), sBad.sub(0), sRedo), raw(f"s_cbranch_scc1 L_slow_{nq}"), smov(sRedo, 0)]
    return sc

def epi_block(q, s, t, cfg, packed=False):
    ops = []
    for i in range(8):
        src = Oacc(2 * s + (i >> 2), q).sub(i & 3)
        ops.append(valu("v_accvgpr_read_b32", t.sub(i), src))
    for i in range(8): ops.append(valu("v_mul_f32", t.sub(i), t.sub(i), Lq(q)))
    for i in range(4): ops.append(valu("v_cvt_pk_bf16_f32", t.sub(i), t.sub(2 * i), t.sub(2 * i + 1)))
    ops.append(salu("s_add_u32", sTo, sOoff, q * 6144 + (4096 if s >= 4 else 0)))
    stv = gstore(t.sub(0, 4), vL16, sO, sTo, (s & 3) * 1024, cfg.oflags)
    def f(c, st):
        h = 0 if c['t'] < 0 else 1
        e = (st['h0'] + 16 * h) * 92160 + (4 * st['wave'] + q) * 6144 + s * 1024
        if st.get(str(sTo)) is None or st[str(sTo)] + (s & 3) * 1024 != e: return f"store off vs {e}"
    stv.expect = f
    if not cfg.nostore: ops.append(stv)
    return ops

def qproj(nq, cfg, epi):
    sp = 2 * nq; SN = 12 * sp
    mf = []
    for st in range(10):
        for T in range(12):
            for q in range(nq):
                for u in range(2):
                    mf.append(mfma(QACC(T, q), VB(T % 3, u), Xf(st & 1, q, u), 0 if (st == 0 and u == 0) else QACC(T, q)))
    sc = Sched(mf)
    drain = None
    for st in range(10):
        b = st * SN
        for T in range(10):
            g = b + sp * T
            for (u, e) in UE:
                sc.put(g, rdW(T + 2, u, e, absT('W', 0, st))); g += 1
            sc.put(g - 1, wait())
        lastw = g - 1
        need = [('W', st + 1)] if st < 9 else [('K', 0)]
        bw = wait(need_vm=(lambda c, need=need: [(k, c['h'], n) for k, n in need]), lgkm0=True, free=False)
        gb = b + sp * 10
        if epi and st == 9 and nq == 4: bw.vm = 0; drain = bw
        sc.put(gb, bw); sc.put(gb, barrier())
        if epi and st == 9 and nq == 3: sc.put(gb, signal_add(sMyc, False))
        if cfg.stamps == 3: bstamp(sc, gb, gb + 5)
        g = gb
        if st < 9:
            seq_after(sc, rebase(waddr, sWcur, vN), lastw, gb)
            for T in range(2):
                g = max(g, b + sp * (10 + T) - 1)
                for (u, e) in UE:
                    g += 1; sc.put(g, rdW(T, u, e, absT('W', 0, st + 1)))
                sc.put(g, wait())
        else:
            seq_after(sc, rebase(vaddr, sVcur, vN), lastw, gb)
            for s in range(6):
                g += 1; sc.put(g, rdK(0, s, absT('K', 0, 0)))
        seq_after(sc, rotate(vR, vN, vF), gb + 1, b + SN - 1)
        dep = []
        gx = b + sp * 4
        if st < 9:
            w = wait(need_vm=(lambda c, st=st: [('x', c['h'], st + 1)]), free=False)
            gx = sc.place(w, gx, gx + sp)
            for q in range(nq):
                for u in range(2):
                    r = rdX(nq, st + 1, 0, q, u); dep += r.wr
                    gx = sc.place(r, gx + 1, gx + sp)
        if st < 8: j1 = job_tile(nq, 'W', vF, absT('W', 0, st + 2), cfg)
        elif st == 8: j1 = job_tile(nq, 'V', vF, absT('V', 0, 0), cfg, groups=range(8))
        else: j1 = job_tile(nq, 'K', kN, absT('K', 0, 1), cfg, groups=range(8))
        ge = b
        if j1: ge = place_even(sc, j1, b, b + (sp * 4 - 1 if (nq == 4 or st == 7) else sp * 6 if st < 7 else sp * 10 - 2 if st == 8 else sp * 8))
        if st == 7 and nq == 3:
            if epi:
                dr = wait(need_vm=lambda c: 'all', free=False); dr.vm = 0; drain = dr
                ge = sc.place(dr, ge + 8, ge + 9)
            place_even(sc, job_tile(nq, 'K', kR, absT('K', 0, 0), cfg, groups=range(8)), ge + 1, b + SN - 1)
        if st + 3 <= 9:
            ws = wait(); gw = sc.place(ws, max(gx + 4, ge), max(gx + 4, ge) + 4)
            place_even(sc, job_x(nq, st + 3, 0, cfg, dep), gw + 1, b + SN - 1)
    if epi:
        nb = 6 * nq
        step = (SN * (cfg.epist if nq == 4 else 7) - 20) // nb
        i = 0
        for s in range(6):
            for q in range(nq):
                ops = epi_block(q, s, TMP[i & 1], cfg)
                seq_after(sc, ops, 10 + i * step, 10 + (i + 1) * step - 1)
                SEQS.append([ops[-1], drain])
                i += 1
        seq_after(sc, [salu("s_add_u32", sOoff, sOoff, 16 * 92160)], len(mf) - 20, len(mf) - 1)
    return sc

def conv_prologue(nq, cfg):
    out = []
    cv = []
    for s in range(6):
        for q in range(nq):
            b = V(8 * blk(q, s), 8)
            for i in range(4): cv.append(valu("v_pk_mul_f32", b.sub(2 * i, 2), b.sub(2 * i, 2), sC2))
            for i in range(4): cv.append(valu("v_cvt_pk_bf16_f32", b.sub(i), b.sub(2 * i), b.sub(2 * i + 1)))
    j = job_tile(nq, 'V', vN, absT('V', 0, 1), cfg, groups=range(8))
    k = 0
    for i, ins in enumerate(cv):
        out.append(ins)
        if i % 3 == 2 and k < len(j): out.append(j[k]); k += 1
    out += j[k:]
    for q in range(nq): out.append(valu("v_mov_b32", Ci(q).sub(0), "0xff800000"))
    out.append(label(f"L_prol_{nq}"))
    if cfg.lmfma == 0:
        for q in range(nq): out.append(valu("v_mov_b32", Lq(q), 0))
    elif cfg.lmfma == 2:
        for q in range(4): out.append(valu("v_mov_b32", Lq(q), "0x3f803f80"))
    else:
        out += [valu("v_and_b32", vt0, 48, vL16), valu("v_mov_b32", vt1, "0x3f803f80"),
                Ins(f"v_cmp_eq_u32 vcc, 0, {vt0}", 'V', rd=vt0.regs(), wr=['vcc']), nop(1)]
        for q in range(4): out.append(valu("v_cndmask_b32", Lq(q), 0, vt1, 'vcc'))
    out.append(wait())
    NG = 4 * nq
    mf = []
    for G in range(NG):
        jj, q = divmod(G, nq)
        for s in range(6):
            mf.append(mfma(Sf(G), Kf(jj & 1, s), Qf(q, s), (0 if jj == 0 else Ci(q)) if s == 0 else Sf(G)))
    sc = Sched(mf)
    sc.pre = out
    gb = 6 * nq * 3
    for jj in range(3):
        g = 6 * nq * jj
        for s in range(6):
            sc.put(g, rdK(jj + 1, s, absT('K', 0, 0))); g += 2
    lastk = g - 2
    bw = wait(need_vm=(lambda c: [('K', c['h'], 1), ('V', c['h'], 0)]), lgkm0=True, free=False)
    sc.put(gb - 1, bw); sc.put(gb - 1, barrier())
    seq_after(sc, rebaseK(), lastk + 1, gb - 2)
    g = gb
    post = [rdK(4, s, absT('K', 0, 1)) for s in range(6)]
    for T in range(3): post += [rdV(T, u, e, absT('V', 0, 0)) for (u, e) in UE]
    for ins in post:
        sc.put(g, ins); g += 1
    assert g <= len(mf)
    rot = rotate(kR, kN, kF)
    for i, ins in enumerate(rot): sc.put(gb + i, ins)
    if nq == 3:
        place_even(sc, job_tile(nq, 'K', kF, absT('K', 0, 2), cfg, groups=range(8)), 0, gb - 3)
        place_even(sc, job_tile(nq, 'V', vF, absT('V', 0, 2), cfg, groups=range(4), adv=False), gb, len(mf) - 1)
    tail = []
    for G in range(NG - 1):
        jj, q = divmod(G, nq)
        Sx = Sf(G)
        ops = []
        if jj == 0:
            t = vt0; m = vt1
            ops += [valu("v_max3_f32", m, Sx.sub(0), Sx.sub(1), Sx.sub(2)), valu("v_max3_f32", m, m, Sx.sub(3), Ci(q).sub(0))]
            for w in (32, 16):
                ops += [valu("v_mov_b32", t, m), nop(1), vperm(w, t, m), valu("v_max_f32", m, m, t)]
            for r in range(4): ops.append(valu("v_sub_f32", Ci(q).sub(r), 0, m))
            for r in range(4): ops.append(valu("v_sub_f32", Sx.sub(r), Sx.sub(r), m))
        e, a, c = softmax_ops(Sx, q, jj, 0)
        ops += [e[0], e[1], e[2], e[3], c[0], c[1]] if cfg.lmfma else [e[0], e[1], a[0], e[2], a[1], e[3], c[0], a[2], a[3], c[1]]
        if G + 2 < NG:
            n = len(ops)
            for i, ins in enumerate(ops): sc.put(6 * (G + 2) + (i * 6) // n, ins)
        else:
            tail += ops
    sc.add_wait_sites()
    for jj in range(1, 4):
        sc.put(6 * nq * jj - 1, wait())
    return sc.linear() + tail + [wait()]

CS = 6
def p_chunks(c0, c1, nq, cfg):
    mf = []
    for c in range(c0, c1):
        for N in range(8):
            for q in range(5):
                for u in range(2):
                    mf.append(mfma(PACC(N, q), VB((8 * c + N) % 3, u), OF(c % 3, q, u), 0 if (c == 0 and u == 0) else PACC(N, q)))
    sc = Sched(mf)
    PUB = cfg.pubchunk
    for c in range(c0, c1):
        b = 80 * (c - c0)
        for N in range(6):
            for i, (u, e) in enumerate(UE): sc.put(b + 10 * N + i, rdU(8 * c + N + 2, u, e))
            sc.put(b + 10 * N + 3, wait())
        if c + 1 < NCH:
            bw = wait(need_vm=(lambda ctx, c=c: 'all' if c == PUB else [('U', 0, c + 1)]), lgkm0=True, free=False)
            if c == PUB: bw.vm = 0; drain = bw
            if c == 9:
                sc.put(b + 59, wait())
                _uid[0] += 1; n = _uid[0]
                sc.put(b + 59, unit([f"s_cmp_lg_u32 {sWave}, 3", f"s_cbranch_scc1 L_skip{n}"], cost=2, rd=['v226', 'v227']))
                pc = poll_check(1); pc.cost = 0; sc.put(b + 59, pc); sc.put(b + 59, label(f"L_skip{n}"))
            sc.put(b + 60, bw); sc.put(b + 60, barrier())
            if cfg.stamps == 4: bstamp(sc, b + 60, b + 66)
            if c == PUB and nq == 3:
                sc.put(b + 60, salu("s_add_u32", sSig, sMyc, 64)); sc.put(b + 60, signal_add(sSig, False))
            for i, (u, e) in enumerate(UE):
                sc.put(b + 61 + i, rdU(8 * c + 8, u, e)); sc.put(b + 70 + i, rdU(8 * c + 9, u, e))
            sc.put(b + 73, wait())
        else:
            sc.put(b + 63, wait())
        sc.put(b + 79, wait())
        if c == 9: sc.put(b + 14, poll_issue(1))
    first_reads = []
    if nq is not None:
        nb = 6 * nq
        span = 80 * PUB + 10
        step = (span - 4) / nb
        i = 0
        for s in range(6):
            for q in range(nq):
                ops = epi_block(q, s, TMP[i & 1], cfg)
                if s == 0: first_reads += ops[:8]
                SEQS.append([ops[-1], drain])
                ge = seq_after(sc, ops, 4 + int(i * step), 4 + int((i + 1) * step) - 1)
                if s == 0: gfirst = 4 + int(i * step) + 9
                i += 1
    for c in range(c0, c1):
        b = 80 * (c - c0)
        if c + 2 < NCH:
            ju, jo = job_u(c + 2, cfg), job_o(c + 2, cfg)
            if c == 0:
                place_even(sc, ju, b, b + 40)
                place_even(sc, jo[:6], b + 30, b + gfirst); place_even(sc, jo[6:], b + gfirst + 1, b + 78)
                for r in first_reads:
                    for l in jo:
                        if set(l.wr) & set(r.rd): SEQS.append([r, l])
            elif c == PUB:
                place_even(sc, ju, b, b + 24); place_even(sc, jo[:3], b, b + 24); place_even(sc, jo[3:], b + 61, b + 78)
            else:
                hi_ = 58 if c == NCH - 3 else 78
                place_even(sc, ju, b, b + hi_); place_even(sc, jo, b + 2, b + hi_)
    sc.add_wait_sites()
    return sc

def p_tail(cfg):
    mf = []
    for gs in range(176, 192):
        c, N = SPAN[gs]
        for q in range(5):
            for u in range(2): mf.append(mfma(PACC(N, q), VB(gs % 3, u), OF(c % 3, q, u), PACC(N, q)))
    sc = Sched(mf)
    for k in range(14):
        o = 1 if k == 2 else 0
        for i, (u, e) in enumerate(UE): sc.put(10 * k + i + o, rdU(178 + k, u, e))
        sc.put(10 * k + 3 + o, wait())
    sc.put(143, wait())
    sc.put(20, wait(need_vm=lambda ctx: [('U', 0, 23)], free=False)); sc.put(20, barrier())
    sc.put(39, wait())
    wA, rA, wB, rB, oa = V(236), V(237), V(238), V(239), V(240)
    pre = [salu("s_and_b32", sTp, sWave, 1), salu("s_lshr_b32", sTx, sWave, 1), salu("s_mul_i32", sTx, sTx, 3 * SL, scc=False),
           salu("s_sub_u32", sT1, 3 * SL, sTx),
           salu("s_mul_i32", sT0, sTp, 10240, scc=False), salu("s_add_u32", sT0, sT0, SL), valu("v_add_u32", vt0, sT0, vL16),
           valu("v_add_u32", wA, sTx, vt0), valu("v_add_u32", rA, sT1, vt0),
           salu("s_mul_i32", sT0, sTp, 2 * SL, scc=False), salu("s_add_u32", sT0, sT0, 9216), valu("v_add_u32", vt0, sT0, vL16),
           valu("v_add_u32", wB, sTx, vt0), valu("v_add_u32", rB, sT1, vt0),
           valu("v_bfe_u32", oa, vL16, 4, 4), valu("v_mul_u32_u24", oa, 2560, oa),
           valu("v_lshrrev_b32", vt0, 8, vL16), valu("v_lshl_add_u32", oa, vt0, 3, oa)]
    for i in pre: i.nosim = True
    seq_after(sc, pre, 0, 38)
    def T(pair, t): return PACC(2 * pair + t // 5, t % 5)
    def wr(addr, tile, off):
        i = dswrite("ds_write_b128", addr, tile, off); i.cost = 3
        return i
    free = lambda lo, n: [g for g in range(lo, 160) if g % 10 >= 4][:n]
    for t, g in enumerate(free(56, 10)): sc.put(g, wr(wA, T(3, t), 1024 * t))
    sc.put(78, wait(lgkm0=True, free=False)); sc.put(78, barrier())
    rg = free(79, 10)
    for t, g in enumerate(rg): sc.put(g, dsread("ds_read_b128", T(3, t), rA, 1024 * t))
    seq = []
    for t in range(10):
        seq += [wait()] + [valu("v_add_f32", T(2, t).sub(i), T(2, t).sub(i), T(3, t).sub(i)) for i in range(4)]
        if t % 4 == 0: seq.append(salu("s_add_u32", sTp, sExs, 1024 * t))
        seq.append(gstore(T(2, t), vL16, sEx, sTp, 1024 * (t % 4), "sc1"))
    seq_after(sc, seq, 90, cfg.xend)
    for t, g in enumerate([136, 137, 138, 139, 144, 146, 148, 150, 152, 154]): sc.put(g, wr(wB, T(1, t), 1024 * t))
    sc.add_wait_sites()
    def add(dst, src): return [valu("v_pk_add_f32", dst.sub(2 * i, 2), dst.sub(2 * i, 2), src.sub(2 * i, 2)) for i in range(2)]
    w = wait(need_vm=lambda c: 'all', lgkm0=True, free=False); w.vm = 0
    f = [w, barrier()]
    f.append(unit([f"s_cmp_lg_u32 {sWave}, 3", "s_cbranch_scc1 L_xset",
                   f"v_mov_b32 {vOne}, 1", "s_mov_b64 exec, 1", f"buffer_store_dword {vOne}, off, {sEx}, {sFs} sc1", "s_mov_b64 exec, -1",
                   f"buffer_load_dword v226, off, {sEx}, {sFr} sc1", "L_xset:"]))
    for t in range(10): f.append(dsread("ds_read_b128", T(1, t), rB, 1024 * t))
    for t in range(10):
        f.append(wait()); f += add(T(0, t), T(1, t))
    f.append(unit([f"s_cmp_lg_u32 {sWave}, 3", "s_cbranch_scc1 L_xok", f"s_mov_b32 {sSpin}, 0x80000", "L_xpoll:",
                   "s_waitcnt vmcnt(0)", f"v_readfirstlane_b32 {sTp}, v226", f"s_sub_u32 {sSpin}, {sSpin}, 1",
                   f"s_cmp_eq_u32 {sSpin}, 0", "s_cbranch_scc1 L_xok", "s_nop 0",
                   f"s_cmp_eq_u32 {sTp}, 1", "s_cbranch_scc1 L_xok",
                   f"buffer_load_dword v226, off, {sEx}, {sFr} sc1", "s_branch L_xpoll", "L_xok:"]))
    f.append(barrier())
    for t in range(10):
        if t % 4 == 0: f.append(salu("s_add_u32", sTp, sExr, 1024 * t))
        f.append(gload(T(1, t), vL16, sEx, sTp, 1024 * (t % 4), "sc1"))
    for t in range(10):
        N, q = divmod(t, 5)
        ac = T(0, t)
        f.append(wait()); f += add(ac, T(1, t))
        for i in range(2): f.append(valu("v_cvt_pk_bf16_f32", ac.sub(i), ac.sub(2 * i), ac.sub(2 * i + 1)))
        f.append(salu("s_add_u32", sTp, sOutb, q * 16 * 2560))
        f.append(gstore(ac.sub(0, 2), oa, sOut, sTp, 32 * N, cfg.outflags))
    return sc, f

def slow_path(nq, cfg):
    o = []
    a = lambda t: o.append(raw(t))
    def spaced(seq):
        for i in seq:
            o.append(i)
            if 'm0' in i.wr: o.append(nop(0))
    dummy = lambda c: ('K', 0, 0)
    o.append(label(f"L_slow_{nq}"))
    a("s_waitcnt vmcnt(0) lgkmcnt(0)"); a("s_barrier")
    a(f"s_mov_b32 {sRedo}, -1")
    a(f"s_cmp_eq_u32 {sHead}, 0")
    a(f"s_cselect_b32 {sT0}, {16 * 393216}, 0"); a(f"s_cselect_b32 {sT1}, {16 * 384}, 0")
    a(f"s_cselect_b32 {sT2}, 0, {16 * 393216}")
    a(f"s_mov_b32 {vR}, {VS[0]}"); a(f"s_mov_b32 {vN}, {VS[1]}"); a(f"s_mov_b32 {vF}, {VS[2]}")
    a(f"s_cselect_b32 {vR}, {VS[1]}, {vR}"); a(f"s_cselect_b32 {vN}, {VS[2]}, {vN}"); a(f"s_cselect_b32 {vF}, {VS[0]}, {vF}")
    a(f"s_sub_u32 {sKend}, {sKend}, {sT0}"); a(f"s_sub_u32 {sVend}, {sVend}, {sT0}"); a(f"s_sub_u32 {sWend}, {sWend}, {sT1}")
    a(f"s_add_u32 {sKoff}, {sK0}, {sT2}"); a(f"s_mov_b32 {sVoff}, {sKoff}")
    a(f"s_mov_b32 {sWoff}, {sW0}"); a(f"s_mov_b32 {sXoff}, {sX0}")
    for i in rebase(vaddr, sVcur, vR): o.append(i)
    for q in range(nq): a(f"v_mov_b32 {Ci(q).sub(0)}, 0xff800000")
    a(f"s_mov_b32 {sLoop}, 16")
    o.append(label(f"L_slowl_{nq}"))
    spaced(job_tile(nq, 'K', kR, dummy, cfg, groups=range(8)))
    a("s_waitcnt vmcnt(0)"); a("s_barrier")
    for j in range(4):
        for s in range(6): o.append(rdK(j, s, dummy))
        a("s_waitcnt lgkmcnt(0)")
        for q in range(nq):
            for s in range(6): o.append(mfma(Sf(q), Kf(j & 1, s), Qf(q, s), 0 if s == 0 else Sf(q)))
        a("s_nop 7")
        for q in range(nq):
            m = Ci(q).sub(0); Sx = Sf(q)
            a(f"v_max3_f32 {m}, {m}, {Sx.sub(0)}, {Sx.sub(1)}"); a(f"v_max3_f32 {m}, {m}, {Sx.sub(2)}, {Sx.sub(3)}")
    a("s_barrier")
    a(f"s_sub_u32 {sLoop}, {sLoop}, 1"); a(f"s_cmp_lg_u32 {sLoop}, 0"); a(f"s_cbranch_scc1 L_slowl_{nq}")
    for r in (kR, kN): spaced(job_tile(nq, 'K', r, dummy, cfg, groups=range(8)))
    a("s_waitcnt vmcnt(0)")
    for r in (vR, vN): spaced(job_tile(nq, 'V', r, dummy, cfg, groups=range(8)))
    a("s_waitcnt vmcnt(0)"); a("s_barrier")
    for s in range(6): o.append(rdK(0, s, dummy))
    a("s_waitcnt lgkmcnt(0)")
    a(f"s_branch L_prol_{nq}")
    return o

def setup(cfg):
    o = []
    a = lambda t: o.append(raw(t))
    a("s_cmp_ge_u32 s2, 256"); a("s_cbranch_scc1 L_end")
    a("s_load_dwordx8 s[24:31], s[0:1], 0")
    a("s_load_dwordx8 s[32:39], s[0:1], 40")
    a("s_load_dwordx2 s[96:97], s[0:1], 32"); a("s_load_dwordx2 s[40:41], s[0:1], 72")
    a("s_load_dwordx4 s[44:47], s[0:1], 80")
    a("s_load_dwordx2 s[42:43], s[0:1], 96")
    if cfg.stamps: a("s_memrealtime s[56:57]")
    if cfg.codepf:
        a("s_getpc_b64 s[48:49]"); a("L_pc:")
        a("s_lshr_b32 s50, s2, 3"); a("s_lshl_b32 s50, s50, 6")
        a("v_add_u32 v2, s50, v0"); a("v_lshlrev_b32 v2, 7, v2")
        a("v_min_u32 v2, L_code_end-L_pc-4, v2")
        a("v_mov_b32 v3, s49"); a("v_add_co_u32 v2, vcc, s48, v2"); a("s_nop 1"); a("v_addc_co_u32 v3, vcc, 0, v3, vcc")
        a("v_cmp_gt_u32 vcc, 64, v0"); a("s_and_saveexec_b64 s[48:49], vcc"); a("s_cbranch_execz L_nopf")
        a(f"global_load_dword {vOne}, v[2:3], off")
        a("L_nopf:"); a("s_mov_b64 exec, s[48:49]")
    a("v_lshrrev_b32 v1, 6, v0"); a("v_and_b32 v0, 63, v0")
    a("v_readfirstlane_b32 s3, v1")
    a("s_lshr_b32 s50, s2, 3")
    a("s_bfe_u32 s51, s2, 0x10001"); a("s_lshl_b32 s51, s51, 2"); a("s_lshr_b32 s52, s50, 3"); a("s_add_u32 s51, s51, s52")
    a("s_and_b32 s52, s2, 1"); a("s_lshl_b32 s52, s52, 3"); a("s_and_b32 s53, s50, 7"); a("s_add_u32 s52, s52, s53")
    a("s_bfe_u32 s53, s2, 0x10002")
    a("v_lshrrev_b32 v1, 3, v0"); a("v_and_b32 v2, 7, v0")
    for m in range(3):
        a(f"v_add_u32 v3, {8 * m}, v1")
        a("v_mul_u32_u24 v4, 43, v3"); a("v_lshrrev_b32 v4, 7, v4")
        a("v_and_b32 v5, 6, v4"); a("v_xor_b32 v5, v5, v2"); a("v_lshlrev_b32 v5, 4, v5")
        a("v_lshlrev_b32 v6, 7, v1"); a(f"v_add_u32 {dKV[m]}, v5, v6")
        a("v_mul_u32_u24 v5, 3, v4"); a("v_sub_u32 v5, v3, v5"); a("v_lshlrev_b32 v5, 7, v5")
        a("v_bfe_u32 v6, v4, 1, 1"); a("v_lshlrev_b32 v6, 2, v6"); a("v_xor_b32 v6, v6, v2"); a("v_lshlrev_b32 v6, 4, v6"); a("v_add_u32 v5, v5, v6")
        a("v_lshrrev_b32 v6, 2, v4"); a("v_lshlrev_b32 v6, 4, v6"); a("v_and_b32 v7, 3, v4"); a("v_add_u32 v6, v6, v7")
        a("v_mul_u32_u24 v6, 12288, v6"); a("v_add_u32 v5, v5, v6")
        a(f"v_subrev_u32 {dW[m]}, {1024 * m}, v5")
    a("v_and_b32 v3, 6, v1"); a("v_xor_b32 v3, v3, v2"); a("v_lshlrev_b32 v3, 4, v3")
    a("v_mul_u32_u24 v4, 1280, v1"); a(f"v_add_u32 {dX}, v3, v4")
    a(f"v_lshlrev_b32 {vL16}, 4, v0")
    a("s_waitcnt lgkmcnt(0)")
    if cfg.stamps:
        a(f"v_writelane_b32 {vStamp}, s56, 30"); a("s_getreg_b32 s56, hwreg(HW_REG_XCC_ID)"); a(f"v_writelane_b32 {vStamp}, s56, 31")
    a("s_cmp_eq_u32 s53, 0")
    for i in range(8): a(f"s_cselect_b32 s{24 + i}, s{24 + i}, s{32 + i}")
    a("s_cselect_b32 s96, s96, s40"); a("s_cselect_b32 s97, s97, s41"); a("s_mov_b32 s98, 7864320"); a("s_mov_b32 s99, 0x20000")
    a("s_mul_i32 s48, s51, 307200"); a("s_add_u32 s4, s24, s48"); a("s_addc_u32 s5, s25, 0"); a("s_mov_b32 s6, 307200"); a("s_mov_b32 s7, 0x20000")
    a("s_mov_b32 s8, s30"); a("s_mov_b32 s9, s31"); a("s_mov_b32 s10, 7864320"); a("s_mov_b32 s11, 0x20000")
    a("s_mul_i32 s48, s51, 12582912")
    a("s_add_u32 s12, s26, s48"); a("s_addc_u32 s13, s27, 0"); a("s_mov_b32 s14, 12582912"); a("s_mov_b32 s15, 0x20000")
    a("s_add_u32 s16, s28, s48"); a("s_addc_u32 s17, s29, 0"); a("s_mov_b32 s18, 12582912"); a("s_mov_b32 s19, 0x20000")
    a("s_lshl_b32 s48, s53, 3"); a("s_add_u32 s48, s48, s51"); a("s_mul_i32 s48, s48, 2949120")
    a("s_add_u32 s20, s42, s48"); a("s_addc_u32 s21, s43, 0"); a("s_mov_b32 s22, 2949120"); a("s_mov_b32 s23, 0x20000")
    a("s_mov_b32 s64, s44"); a("s_mov_b32 s65, s45"); a("s_mov_b32 s66, 4915200"); a("s_mov_b32 s67, 0x20000")
    a(f"s_add_u32 s68, s42, {EXOFF}"); a("s_addc_u32 s69, s43, 0"); a(f"s_mov_b32 s70, {STOFF + 0x100000}"); a("s_mov_b32 s71, 0x20000")
    a("s_mov_b32 s72, s46"); a("s_mov_b32 s73, s47"); a("s_mov_b32 s74, 256"); a("s_mov_b32 s75, 0x20000")
    a("s_cmp_ge_u32 s50, 30"); a(f"s_cselect_b32 {sIdle}, 1, 0"); a("s_min_u32 s24, s50, 29")
    a("s_and_b32 s25, s2, 1")
    a("s_mul_i32 s26, s24, 52"); a("s_lshr_b32 s26, s26, 8"); a("s_mul_i32 s27, s26, 5"); a("s_sub_u32 s27, s24, s27")
    a("s_lshl_b32 s26, s26, 1"); a("s_and_b32 s28, s3, 1"); a("s_add_u32 s26, s26, s28")
    a("s_mul_i32 s29, s26, 43"); a("s_lshr_b32 s29, s29, 7"); a("s_mul_i32 s30, s29, 3"); a("s_sub_u32 s26, s26, s30")
    a("s_and_b32 s30, s2, 7"); a(f"s_lshl_b32 {sMyc}, s30, 2"); a(f"s_and_b32 {sCnt}, {sMyc}, 24")
    a("s_and_b32 s30, s2, 6"); a("s_lshl_b32 s30, s30, 1")
    a("s_add_u32 s30, s30, s29"); a("s_mul_i32 s31, s30, 2949120")
    a("s_add_u32 s60, s42, s31"); a("s_addc_u32 s61, s43, 0"); a("s_mov_b32 s62, 2949120"); a("s_mov_b32 s63, 0x20000")
    a("s_lshl_b32 s31, s25, 1"); a("s_lshr_b32 s32, s3, 1"); a("s_add_u32 s31, s31, s32")
    a(f"s_mul_i32 {sOb}, s31, {4 * 92160}"); a(f"s_mul_i32 s33, s26, {5 * 6144}"); a(f"s_add_u32 {sOb}, {sOb}, s33")
    a(f"s_mul_i32 {sWb}, s31, {4 * 192 * 1280}"); a("s_lshl_b32 s33, s27, 8"); a(f"s_add_u32 {sWb}, {sWb}, s33")
    a("s_xor_b32 s33, s28, s25"); a("s_lshl_b32 s33, s33, 7"); a(f"s_add_u32 {sWb}, {sWb}, s33")
    a(f"s_mul_i32 {sLb}, s32, {3 * SL}"); a("s_lshl_b32 s33, s28, 13"); a(f"s_add_u32 {sLb}, {sLb}, s33"); a(f"s_add_u32 {sLb}, {sLb}, 1024")
    a("s_and_b32 s30, s30, 7"); a("s_mul_i32 s30, s30, 240"); a("s_mul_i32 s33, s26, 80"); a("s_add_u32 s30, s30, s33")
    a(f"s_mul_i32 {sOutb}, s30, 2560"); a("s_mul_i32 s33, s53, 1280"); a(f"s_add_u32 {sOutb}, {sOutb}, s33")
    a("s_lshl_b32 s33, s27, 8"); a(f"s_add_u32 {sOutb}, {sOutb}, s33"); a("s_lshl_b32 s33, s31, 6"); a(f"s_add_u32 {sOutb}, {sOutb}, s33")
    a("s_lshl_b32 s33, s2, 2"); a("s_add_u32 s33, s33, s3"); a(f"s_mul_i32 {sExs}, s33, 10240"); a("s_xor_b32 s33, s33, 4"); a(f"s_mul_i32 {sExr}, s33, 10240")
    a("s_lshl_b32 s33, s2, 7"); a(f"s_add_u32 {sFs}, s33, {FLOFF}"); a("s_xor_b32 s33, s33, 128"); a(f"s_add_u32 {sFr}, s33, {FLOFF}")
    a("s_and_b32 s48, s2, 3"); a("s_lshl_b32 s48, s48, 5"); a("s_add_u32 s48, s48, s50"); a(f"s_mul_i32 {sWopf}, s48, 61440")
    if cfg.dbgst: a(f"s_add_u32 {sMyc}, {sMyc}, 128"); a(f"s_add_u32 {sCnt}, {sCnt}, 128")
    a(f"s_mov_b32 {sRedo}, 0")
    a(f"s_mov_b32 {sWave}, s3")
    if cfg.stamps > 1: a("s_mov_b32 s3, 512")
    a(f"s_mul_i32 {sKoff}, s52, 393216"); a(f"s_mul_i32 {sWoff}, s52, 384")
    a(f"s_mul_i32 {sXoff}, {sWave}, {64 * 1280}")
    a(f"s_mul_i32 {sOoff}, s52, 92160"); a(f"s_mul_i32 s48, {sWave}, {4 * 6144}"); a(f"s_add_u32 {sOoff}, {sOoff}, s48")
    a(f"s_mov_b32 {sTp}, s50")
    a(f"s_mov_b32 {kR}, {KS[0]}"); a(f"s_mov_b32 {kN}, {KS[1]}"); a(f"s_mov_b32 {kF}, {KS[2]}")
    a(f"s_mov_b32 {vR}, {VS[0]}"); a(f"s_mov_b32 {vN}, {VS[1]}"); a(f"s_mov_b32 {vF}, {VS[2]}")
    a(f"s_mov_b32 {sVcur}, 0"); a(f"s_mov_b32 {sWcur}, {VS[0]}")
    c = math.log2(math.e) / math.sqrt(192.0)
    a(f"s_mov_b32 s38, {fbits(c)}"); a(f"s_mov_b32 s39, {fbits(c)}")
    a(f"s_mov_b32 {sThr}, {fbits(2.0 ** cfg.thr)}")
    a(f"s_mov_b32 {sHead}, 0")
    a(f"s_cmp_eq_u32 {sWave}, 3"); a("s_cbranch_scc1 L_v3")
    return o

def lds_addr_setup(cfg):
    o = []
    def a(t):
        i = raw(t); i.nosim = True; o.append(i)
    a("v_and_b32 v1, 15, v0")
    a("v_lshrrev_b32 v2, 4, v0")
    a("v_and_b32 v3, 6, v1")
    a("v_xor_b32 v4, v2, v3")
    a("v_lshlrev_b32 v4, 4, v4")
    a("v_mul_u32_u24 v5, 384, v1")
    a(f"v_add_u32 {kaddr[0]}, v5, v4")
    a(f"v_xor_b32 v6, 64, v4"); a(f"v_add_u32 {kaddr[1]}, v5, v6")
    a("v_lshlrev_b32 v5, 7, v1"); a(f"v_add_u32 v5, {sXl[0]}, v5")
    a(f"v_add_u32 {xaddr[0]}, v5, v4"); a(f"v_add_u32 {xaddr[1]}, v5, v6")
    a("v_lshrrev_b32 v1, 2, v0"); a("v_and_b32 v3, 6, v1")
    a("v_bfe_u32 v4, v0, 1, 1"); a("v_xor_b32 v4, v4, v3"); a("v_lshlrev_b32 v4, 4, v4")
    a("v_and_b32 v5, 1, v0"); a("v_lshlrev_b32 v5, 3, v5")
    a("v_mul_u32_u24 v6, 384, v1"); a("v_add_u32 v5, v5, v6")
    for m in range(4):
        a(f"v_xor_b32 v6, {32 * m}, v4"); a(f"v_add_u32 {vaddr[m]}, v5, v6")
    a("v_and_b32 v3, 1, v2"); a(f"v_mul_u32_u24 v3, {12288 + cfg.wshift}, v3"); a(f"v_add_u32 v3, {VS[0]}, v3")
    a("v_lshrrev_b32 v4, 1, v2"); a("v_lshlrev_b32 v4, 2, v4"); a("v_bfe_u32 v5, v0, 2, 2"); a("v_add_u32 v4, v4, v5")
    a("v_mul_u32_u24 v4, 384, v4"); a("v_add_u32 v3, v3, v4")
    a("v_bfe_u32 v4, v0, 3, 1"); a("v_lshlrev_b32 v4, 2, v4"); a("v_and_b32 v5, 3, v0"); a("v_xor_b32 v4, v4, v5"); a("v_lshlrev_b32 v4, 4, v4")
    a(f"v_add_u32 {waddr[0]}, v3, v4"); a("v_xor_b32 v4, 64, v4"); a(f"v_add_u32 {waddr[1]}, v3, v4")
    return o

def setup_variant(nq, cfg):
    o = []
    def a(t):
        i = raw(t); i.nosim = True; o.append(i)
    if nq == 4:
        a(f"s_mul_i32 {sGrp}, {sWave}, 3072")
        a(f"s_and_b32 {sT0}, {sWave}, 1"); a(f"s_lshl_b32 {sT0}, {sT0}, 2"); a(f"s_lshr_b32 {sT1}, {sWave}, 1"); a(f"s_lshl_b32 {sT1}, {sT1}, 5")
        a(f"s_add_u32 {sT0}, {sT0}, {sT1}"); a(f"s_mul_i32 {sT0}, {sT0}, 12288"); a(f"s_add_u32 {sWoff}, {sWoff}, {sT0}")
        a(f"s_lshl_b32 {sT0}, {sWave}, 13"); a(f"s_add_u32 {sXl[0]}, {sT0}, {KS[1]}"); a(f"s_add_u32 {sXl[1]}, {sT0}, {KS[2]}")
    else:
        a(f"s_mov_b32 {sXl[0]}, {EB}"); a(f"s_mov_b32 {sXl[1]}, {EB + 6144}")
        a("v_mov_b32 v1, 0"); a("s_mov_b64 exec, 1"); a(f"buffer_store_dword v1, off, {sEx}, {sFs} sc1"); a("s_mov_b64 exec, -1")
    a(f"s_add_u32 {sKend}, {sKoff}, {16 * 3072 * kv_map(cfg)[0]}"); a(f"s_mov_b32 {sVend}, {sKend}")
    a(f"s_add_u32 {sWend}, {sWoff}, 7864320"); a(f"s_add_u32 {sXend}, {sXoff}, 1280")
    if cfg.rotkv:
        a(f"s_mul_i32 {sT0}, s2, 5"); a(f"s_lshr_b32 {sT1}, s2, 4"); a(f"s_add_u32 {sT0}, {sT0}, {sT1}"); a(f"s_and_b32 {sT0}, {sT0}, 15")
        a(f"s_mul_i32 {sT0}, {sT0}, {3072 * kv_map(cfg)[0]}"); a(f"s_add_u32 {sKoff}, {sKoff}, {sT0}")
    if cfg.rotq == 1:
        a(f"s_lshr_b32 {sT0}, {sTp}, 3"); a(f"s_lshl_b32 {sT0}, {sT0}, 1"); a(f"s_and_b32 {sT1}, {sTp}, 7"); a(f"s_add_u32 {sT0}, {sT0}, {sT1}")
        a(f"s_mul_i32 {sT0}, {sT0}, 5"); a(f"s_lshr_b32 {sT0}, {sT0}, 2")
        a(f"s_cmp_ge_u32 {sT0}, 10"); a(f"s_cselect_b32 {sT1}, 10, 0"); a(f"s_sub_u32 {sT0}, {sT0}, {sT1}")
    if cfg.rotq == 2:
        a(f"s_lshr_b32 {sT0}, {sTp}, 3"); a(f"s_xor_b32 {sT0}, {sT0}, {sTp}"); a(f"s_and_b32 {sT0}, {sT0}, 1"); a(f"s_mul_i32 {sT0}, {sT0}, 5")
    if cfg.rotq:
        a(f"s_mul_i32 {sRw}, {sT0}, 786432"); a(f"s_lshl_b32 {sRx}, {sT0}, 7")
    a(f"s_mov_b32 {sVoff}, {sKoff}")
    a(f"s_mov_b32 {sK0}, {sKoff}"); a(f"s_mov_b32 {sW0}, {sWoff}"); a(f"s_mov_b32 {sX0}, {sXoff}")
    def spaced(seq):
        for i in seq:
            o.append(i)
            if 'm0' in i.wr: o.append(nop(0))
    spaced(job_x(nq, 0, 0, cfg)); spaced(job_tile(nq, 'W', vR, absT('W', 0, 0), cfg))
    o.extend(lds_addr_setup(cfg))
    spaced(job_x(nq, 1, 0, cfg)); spaced(job_tile(nq, 'W', vN, absT('W', 0, 1), cfg))
    o.append(wait(need_vm=lambda c: [('x', 0, 0), ('W', 0, 0)], free=False)); o.append(barrier())
    dep = []
    for q in range(nq):
        for u in range(2):
            r = rdX(nq, 0, 0, q, u); dep += r.wr; o.append(r)
    for T in range(2):
        for (u, e) in UE: o.append(rdW(T, u, e, absT('W', 0, 0)))
    o.append(wait())
    spaced(job_x(nq, 2, 0, cfg, dep))
    o.append(wait())
    return o

def stamp(cfg, idx):
    if not cfg.stamps: return []
    return [raw("s_memrealtime s[56:57]"), raw("s_memtime s[58:59]"), raw("s_waitcnt lgkmcnt(0)"),
            raw(f"v_writelane_b32 {vStamp}, s56, {2 * idx}"), raw(f"v_writelane_b32 {vStamp}, s58, {2 * idx + 1}")]
def finish(cfg, idx):
    e = []
    if cfg.stamps:
        e += [raw("s_waitcnt vmcnt(0)")] + stamp(cfg, idx)
        e += [raw(f"s_lshl_b32 {sTp}, s2, 2"), raw(f"s_add_u32 {sTp}, {sTp}, {sWave}"), raw(f"s_lshl_b32 {sTp}, {sTp}, 8"),
              raw(f"s_add_u32 {sTp}, {sTp}, {STOFF}"), raw(f"v_lshrrev_b32 v0, 2, {vL16}"),
              raw(f"buffer_store_dword {vStamp}, v0, {sEx}, {sTp} offen")]
        if cfg.dbgst == 2 and idx == 7:
            e += [raw("s_cmp_ge_u32 s2, 16"), raw("s_cbranch_scc1 L_nox"), raw("s_getreg_b32 s56, hwreg(HW_REG_XCC_ID)"), raw("s_add_u32 s56, s56, 100"),
                  raw("v_mov_b32 v1, s56"), raw("s_lshl_b32 s57, s2, 2"), raw(f"buffer_store_dword v1, off, {sDbg}, s57"), raw("L_nox:")]
        if cfg.dbgst == 1 and idx == 7:
            e += [raw(f"v_not_b32 v1, {vStamp}"), raw(f"v_cmp_eq_u32 vcc, 480, {vL16}"), raw("s_nop 1"), raw(f"v_cndmask_b32 v1, {vStamp}, v1, vcc"),
                  raw(f"v_lshrrev_b32 v0, 3, {vL16}"), raw("s_mov_b32 exec_lo, 0x40005555"), raw("s_mov_b32 exec_hi, 0"),
                  raw(f"buffer_atomic_umax v1, v0, {sDbg}, 0 offen sc1"), raw("s_mov_b64 exec, -1")]
    return e + [raw("s_endpgm")]

def variant(nq, cfg, common):
    sfx = f"_{nq}"
    st = lambda i: stamp(cfg, i)
    su = setup_variant(nq, cfg) + st(0)
    q1 = qproj(nq, cfg, False); q1.add_wait_sites()
    q2 = qproj(nq, cfg, True); q2.add_wait_sites()
    cp = conv_prologue(nq, cfg)
    jK = lambda: job_tile(nq, 'K', kF, tagK(3), cfg, groups=range(8))
    jV = lambda: job_tile(nq, 'V', vF, tagV(2), cfg, groups=range(4, 8))
    jL = lambda: [job_tile(nq, 'V', vF, tagV(3), cfg, groups=range(4), adv=False)]
    i0 = attn_iter(nq, 0, cfg, first_pv=True, jobs=[jV(), jK()], late=jL())
    i1 = attn_iter(nq, 1, cfg, jobs=[jV(), jK()], late=jL())
    i2 = attn_iter(nq, 0, cfg, jobs=[jV(), jK()], late=jL())
    fix = []
    for o_, d_ in ((sKoff, 16 * 393216), (sKend, 16 * 393216), (sVoff, 16 * 393216), (sVend, 16 * 393216), (sWoff, 16 * 384), (sWend, 16 * 384)):
        if nq == 3 or o_ in (sWoff, sWend): fix.append(salu("s_add_u32", o_, o_, d_))
    if cfg.rotq: fix += [salu("s_add_u32", sWoff, sWoff, sRw), salu("s_add_u32", sXoff, sXoff, sRx)]
    a13 = attn_iter(nq, 1, cfg, jobs=[jV(), fix, job_x(nq, 0, 1, cfg)])
    a14 = attn_iter(nq, 0, cfg, jobs=[job_tile(nq, 'W', vF, absT('W', 1, 0), cfg), job_x(nq, 1, 1, cfg)], next_k=False, k_rot=False)
    a15 = attn_last(nq, cfg, 'Q')
    pf = []
    if cfg.wopf and nq == 3:
        pf.append(valu("v_lshlrev_b32", V(243), 3, vL16))
        for i in range(8):
            pf.append(gload(V(244), V(243), sWo, sWopf, 0, "", op="buffer_load_dword"))
            pf[-1].wr = []
            pf.append(salu("s_add_u32", sWopf, sWopf, 8192 if i < 6 else 4096) if i < 7 else salu("s_sub_u32", sWopf, sWopf, 6 * 8192 + 4096))
    b13 = attn_iter(nq, 1, cfg, jobs=[jV(), pf], late=[calc_raddr()])
    b14 = attn_iter(nq, 0, cfg, jobs=[([poll_issue(0)] if nq == 3 else []), job_u(0, cfg)], next_k=False, k_rot=False)
    if nq == 3:
        gb = 12 * 9 - 1
        b14.put(gb, wait()); b14.put(gb, poll_check(0))
    b15 = attn_last(nq, cfg, 'P')
    pa = p_chunks(0, CS, nq, cfg)
    if cfg.ctouch and nq == 3:
        i1.put(10, code_touch(["L_tail1_4", "L_tail1_3"], 144, guard=(sLoop, 1), alt=["L_tail2_4", "L_tail2_3"]))
        q2.put(72 * 2 + 5, code_touch(["L_tail1_4+16384", "L_tail1_3+16384"], 144))
        q2.put(72 * 8 + 5, code_touch(["L_head_4", "L_head_3"], 144))
        if cfg.ctouch > 1: q1.put(72 * 6 + 5, code_touch(["L_head_4", "L_head_3"], 144))
        pa.put(80 * 3 + 9, code_touch(["L_pcommon"], 246))
    i0.place(smov(sLoop, 6), 20, 60)
    i2.place(salu("s_sub_u32", sLoop, sLoop, 1), 20, 60)
    for s in (i0, i1, i2, a13, a14, a15, b13, b14, b15):
        s.add_wait_sites()
        for g_, ins_ in getattr(s, 'extra', []):
            for i_ in ins_: s.put(g_, i_)
    loopend = [scmp("s_cmp_lg_u32", sLoop, 0), raw(f"s_cbranch_scc1 L_loop{sfx}")]
    headbr = [scmp("s_cmp_lg_u32", sHead, 0), raw(f"s_cbranch_scc1 L_tail2{sfx}")]
    back = [smov(sHead, 1), raw(f"s_branch L_head{sfx}")]
    idlebr = [scmp("s_cmp_lg_u32", sIdle, 0), raw(f"s_cbranch_scc1 L_idle{sfx}"), wait()]
    idle = [label(f"L_idle{sfx}")]
    i = 0
    for s in range(6):
        for q in range(nq):
            idle += epi_block(q, s, TMP[i & 1], cfg); i += 1
    idle += [raw("s_waitcnt vmcnt(0)"), barrier()]
    if nq == 3: idle += [salu("s_add_u32", sSig, sMyc, 64), signal_add(sSig, False)]
    idle += finish(cfg, 8)
    L = lambda s: s.linear()
    s1, s3, s4, s5 = st(1), st(2), st(3), st(4)
    jump = [raw("s_branch L_pcommon")] if nq == 3 else []
    code = su + L(q1) + s1 + [label(f"L_head{sfx}")] + cp + L(i0) + [raw(".p2align 3", 'L', states=0), label(f"L_loop{sfx}")] + L(i1) + L(i2) + loopend + headbr \
        + [label(f"L_tail1{sfx}")] + L(a13) + L(a14) + L(a15) + s3 + L(q2) + s4 + back + slow_path(nq, cfg) + idle \
        + [raw(".p2align 12", 'L', states=0), label(f"L_tail2{sfx}")] + L(b13) + L(b14) + L(b15) + s5 + idlebr + L(pa) + jump
    tr = []
    def add(ins, **c): tr.extend((i, c) for i in ins)
    add(su, h=0, t=-9); add(L(q1) + s1, h=0, t=-5)
    for h in range(2):
        add(cp, h=h, t=-1); add(L(i0), h=h, t=0)
        for t in range(1, 13, 2):
            add(L(i1), h=h, t=t); add(L(i2), h=h, t=t + 1); add(loopend, h=h, t=t + 1)
        add(headbr, h=h, t=12)
        if h == 0:
            add(L(a13), h=0, t=13); add(L(a14), h=0, t=14); add(L(a15) + s3, h=0, t=15); add(L(q2) + s4, h=1, t=-5); add(back, h=1, t=-5)
        else:
            add(L(b13), h=1, t=13); add(L(b14), h=1, t=14); add(L(b15) + s5, h=1, t=15)
    tr_idle = tr + [(i, dict(h=1, t=16)) for i in idlebr[:2] + idle]
    add(idlebr + L(pa) + jump + common, h=1, t=16)
    info = dict(q1=q1, q2=q2, i0=i0, i1=i1, i2=i2, a13=a13, a14=a14, a15=a15, b13=b13, b14=b14, b15=b15, pa=pa)
    return code, tr, tr_idle, info

def sim_variant(nq, tr, cfg):
    ok = True
    for w in ([0, 1, 2] if nq == 4 else [3]):
        h0 = 5
        grp = w * 3072 if nq == 4 else 0
        k0 = [0, 4, 32, 0][w]
        ggrp = kv_map(cfg)[1][w] * 3072 if nq == 4 else 0
        kst = 3072 * kv_map(cfg)[0]
        rk = 7 if cfg.rotkv else 0; rq = 3 if cfg.rotq else 0
        init = {'wave': w, 'h0': h0, 'rk': rk, 'rq': rq, str(kR): KS[0], str(kN): KS[1], str(kF): KS[2], str(vR): VS[0], str(vN): VS[1], str(vF): VS[2],
                str(sVcur): 0, str(sWcur): VS[0], str(sKoff): h0 * 393216 + ggrp, str(sVoff): h0 * 393216 + ggrp, str(sWoff): h0 * 384 + k0 * 12288,
                str(sXoff): w * 64 * 1280, str(sOoff): h0 * 92160 + w * 4 * 6144, str(sGrp): grp,
                str(sXl[0]): (KS[1] + w * 8192 if nq == 4 else EB), str(sXl[1]): (KS[2] + w * 8192 if nq == 4 else EB + 6144),
                str(sOb): 1000000, str(sWb): 2000000, str(sLb): 3000}
        init[str(sKend)] = init[str(sKoff)] + 16 * kst; init[str(sVend)] = init[str(sKend)]
        init[str(sWend)] = init[str(sWoff)] + 7864320; init[str(sXend)] = init[str(sXoff)] + 1280
        init[str(sKoff)] += rk * kst; init[str(sVoff)] += rk * kst; init[str(sRw)] = rq * 786432; init[str(sRx)] = rq * 128
        for r in kaddr + vaddr: init[str(r)] = 0
        for r in waddr: init[str(r)] = VS[0]
        if not cfg.fake: ok = sim_scalar(tr, init, f"nq{nq} w{w}") and ok
    return ok

def build(cfg, name):
    su = setup(cfg)
    pb = p_chunks(CS, NCH - 2, None, cfg)
    if cfg.ctouch: pb.put(80 * 7 + 9, code_touch(["L_pcommon+12288"], 246, guard=(sWave, 3)))
    pt, fin = p_tail(cfg)
    common = [label("L_pcommon")] + stamp(cfg, 5) + pb.linear() + pt.linear() + stamp(cfg, 6) + fin + finish(cfg, 7)
    c4, t4, ti4, inf4 = variant(4, cfg, common)
    c3, t3, ti3, inf3 = variant(3, cfg, common)
    for rep in range(2):
        for n, t in (("nq4", t4), ("nq3", t3), ("idle4", ti4), ("idle3", ti3)): derive_waits(t, n, verbose=(rep == 1 and n[0] == 'n'))
    ok = True
    for n, t in (("nq4", t4), ("nq3", t3), ("idle4", ti4), ("idle3", ti3)): ok = check_hazards(t, n) and ok
    ok = check_seqs(c4 + common) and check_seqs(c3) and ok
    ok = sim_variant(4, t4, cfg) and sim_variant(3, t3, cfg) and ok
    ok = check_lds({4: t4, 3: t3}) and ok
    for n, inf in (("nq4", inf4), ("nq3", inf3)): print(n, "model cycles:", {k: s.cycles() for k, s in inf.items()})
    print("common", pb.cycles(), pt.cycles())
    assert ok
    lines = [f".globl {name}", ".p2align 8", f".type {name},@function", f"{name}:"]
    lines += emit(su) + emit(c4) + emit(common) + ["L_end:", "s_endpgm", "L_v3:"] + emit(c3)
    out = []
    for l in lines: out += l.split("\n")
    return out

if __name__ == "__main__":
    print(len(build(Cfg(), "k_kernel")), "lines")
```

```python
import math, struct
from asmlib import *

SL = 24832
KS = [0, SL, 2 * SL]
VS = [3 * SL, 4 * SL, 5 * SL]
EB = 6 * SL
FLAG = EB + 12288
LDS_BYTES = 163840

sX, sW, sK, sV, sO = S(4, 4), S(8, 4), S(12, 4), S(16, 4), S(20, 4)
sWave = S(24)
kR, kN, kF = S(25), S(26), S(27)
vR, vN, vF = S(28), S(29), S(30)
sKoff, sVoff, sWoff, sXoff = S(31), S(32), S(33), S(34)
sLoop, sHead = S(35), S(36)
sThr = S(37)
sC2 = S(38, 2)
sGrp = S(40)
sT0, sT1, sT2, sT3, sT4 = S(41), S(42), S(43), S(47), S(55)
sXl = [S(44), S(45)]
sOoff = S(46)
sWcur, sVcur = S(48), S(49)
sTo = S(50)
sTx = S(51)
sBad = S(52, 2)
sWopf = S(54)
sTs = S(56, 4)
sOr, sOut, sEx, sDbg = S(60, 4), S(64, 4), S(68, 4), S(72, 4)
sOb, sWb, sLb, sOutb = S(76), S(77), S(78), S(79)
sExs, sExr, sFs, sFr = S(80), S(81), S(82), S(83)
sRw, sRx = S(0), S(1)
sSig, sCnt, sMyc = S(84), S(85), S(86)
sRedo, sIdle = S(87), S(88)
sK0, sW0, sX0 = S(89), S(90), S(91)
sKend, sVend, sWend, sXend = S(92), S(93), S(94), S(95)
sWo = S(96, 4)
sSpin = S(100)
sTp = S(101)
sHc, sHn, sJmp, sStol = S(25), S(26), S(27), S(28)
sOc, sWc, sOn, sWn = S(29), S(30), S(31), S(32)
sA18 = S(33)
OOB = 0x7fff0000
EXOFF = 0x3000000
FLOFF = 0xC00000
STOFF = 0x1000000

def blk(q, s): return q * 6 + s
def Qf(q, s): return V(8 * blk(q, s), 4)
def QACC(T, q): return V(8 * blk(q, T >> 1) + 4 * (T & 1), 4)
def U(i): return V(8 * i + 4, 4)
def Pf(par, q, u): return U(par * 8 + q * 2 + u)
def Sf(i): return U(16 + (i & 3))
def Ci(q): return U(20 + q)
def VB(b, u, e=None):
    return V(192 + 8 * b + 4 * u, 4) if e is None else V(192 + 8 * b + 4 * u + 2 * e, 2)
TMP = [V(216, 8), V(224, 8)]
def Lq(q): return V(232 + q)
kaddr = [V(236), V(237)]
vaddr = [V(238), V(239), V(240), V(241)]
waddr = [V(242), V(243)]
xaddr = [V(244), V(245)]
dKV = [V(246), V(247), V(248)]
dW = [V(249), V(250), V(251)]
dX = V(252)
vL16 = V(253)
vt0, vt1 = V(224), V(225)
vOne = V(254)
vStamp = V(255)
raddr = [V(249), V(250), V(251), V(242)]
def PACC(N, q): return V(4 * (N * 5 + q), 4)
def OF(b, q, u):
    i = 2 * q + u
    if b == 0: return A(192 + 4 * i, 4)
    if b == 1: return A(232 + 4 * i, 4) if i < 6 else U(20 + i - 6)
    return V(8 * (20 + i), 4) if i < 4 else A(4 * (i - 4), 4)
def Oacc(T, q): return A(4 * (T * 4 + q), 4)
def Lacc(q): return A(240 + 4 * q, 4)
ONES = V(232, 4)
def Kf(b, s): return A(192 + 24 * b + 4 * s, 4)
def Xf(par, q, u): return A(192 + 32 * par + 8 * q + 4 * u, 4)

def fbits(x): return "0x%08x" % struct.unpack("<I", struct.pack("<f", x))[0]

class Cfg:
    wshift = 8
    kvflags = "nt"
    wflags = ""
    xflags = ""
    oflags = "sc1"
    orflags = "sc1"
    woflags = ""
    pubchunk = 3
    epist = 9
    balance = 1
    twoloops = 1
    gentle = 4
    pfake = 0
    pclus = 0
    prd = 1
    pskip = 0
    markchunk = 0
    xend = 120
    ctouch = 2
    kvperm = 1
    lmfma = 1
    dbgst = 0
    xpace = 0
    l2pf = 0
    l2n = 3
    l2tot = 12
    l2fl = ""
    ntlate = 99
    outflags = ""
    thr = 40
    stamps = False
    fake = 0
    nostore = 0
    w3all = 1
    rotkv = 1
    rotq = 1
    codepf = 1
    wopf = 1

def tagK(dn): return lambda c: ('K', c['h'], c['t'] + dn)
def tagV(dn): return lambda c: ('V', c['h'], c['t'] + dn)
def absT(kind, dh, n): return lambda c: (kind, c['h'] + dh, n)
def slot_of(tile, nq):
    k, h, n = tile
    if k == 'K': return ('k', n % 3)
    if k == 'x': return ('k', 1 + n % 2) if nq == 4 else ('e', n % 2)
    if k == 'W': return ('v', (h * 26 + n) % 3)
    if k == 'V': return ('v', (h * 26 + 10 + n) % 3)
    if k == 'U': return ('kv', (n + 1) % 3)

def kv_map(cfg):
    return {0: (8, list(range(8))),
            1: (1, [0, 32, 64, 96, 16, 48, 80, 112]),
            2: (2, [0, 32, 64, 96, 1, 33, 65, 97]),
            3: (4, [0, 64, 1, 65, 2, 66, 3, 67])}[cfg.kvperm]
def slot_base(slot):
    return {'k': KS, 'v': VS, 'e': [EB, EB + 6144]}[slot[0]][slot[1]]
def exp_dma(ins, tag, nq, soff, imm, idx, cfg):
    def f(c, st):
        k, h, n = tag(c); w = st['wave']; base = slot_base(slot_of((k, h, n), nq)); hh = st['h0'] + 16 * h
        if k == 'x':
            el = base + (w * 8192 if nq == 4 else 0) + idx * 1024
            eg = w * 64 * 1280 + 128 * ((n + st['rq'] * h) % 10) + idx * 10240
        else:
            i = idx + (3 * w if nq == 4 else 0); mm = i // 3
            n = (n + st['rq'] * h) % 10 if k == 'W' else (n + st['rk']) % 16
            el = base + i * 1024
            if k == 'W':
                el += cfg.wshift if mm >= 4 else 0
                eg = hh * 384 + (64 * n + 32 * ((mm & 3) >> 1) + 4 * (mm & 1) + 8 * (mm >> 2)) * 12288 + (i % 3) * 1024
            else: eg = hh * 393216 + (n * kv_map(cfg)[0] + kv_map(cfg)[1][mm]) * 3072 + (i % 3) * 1024
        gl, gg = st.get('m0'), st.get(str(soff))
        if gl is None or gg is None or gl + imm != el or gg + imm != eg: return f"lds {gl}+{imm} vs {el}; glob {gg}+{imm} vs {eg} tile {(k, h, n)}"
    ins.expect = f
    return ins
def exp_rd(ins, addr, tag):
    def f(c, st):
        base = slot_base(slot_of(tag(c), 4))
        if st.get(str(addr)) != base: return f"base {st.get(str(addr))} vs {base} tile {tag(c)}"
    ins.expect = f
    return ins

def advance(off, end, step, span, on=True):
    o = [salu("s_add_u32", off, off, step)]
    if on:
        i = Ins(f"s_cmp_eq_u32 {off}, {end}\ns_cselect_b32 {sT4}, {span}, 0", 'S', rd=off.regs() + end.regs(), wr=['scc'] + sT4.regs(), states=2)
        i.cost = 2
        i.simfn = lambda st: st.__setitem__(str(sT4), span if st[str(off)] == st[str(end)] else 0)
        o += [i, salu("s_sub_u32", off, off, sT4)]
    return o

def job_tile(nq, kind, slotreg, tag, cfg, groups=None, adv=True, flo=None):
    srd, off, end, addr, fl = {'K': (sK, sKoff, sKend, dKV, cfg.kvflags), 'V': (sV, sVoff, sVend, dKV, cfg.kvflags),
                               'W': (sW, sWoff, sWend, dW, cfg.wflags)}[kind]
    sl = lambda c: slot_of(tag(c), nq)
    if flo is not None: fl = flo
    out = []
    if nq == 4:
        if groups is None:
            out.append(salu("s_add_u32", 'm0', slotreg, sGrp))
            for m in range(3): out.append(exp_dma(dma(addr[m], srd, off, 1024 * m, fl, tag=tag, slot=sl), tag, nq, off, 1024 * m, m, cfg))
    else:
        for mm in (range(3, 8) if groups is None else groups):
            if kind == 'W':
                k0 = 32 * ((mm & 3) >> 1) + 4 * (mm & 1) + 8 * (mm >> 2)
                go = k0 * 12288; lo = mm * 3072 + (cfg.wshift if mm >= 4 else 0)
            else:
                lo = mm * 3072; go = kv_map(cfg)[1][mm] * 3072
            out.append(salu("s_add_u32", 'm0', slotreg, lo))
            out.append(salu("s_add_u32", sT0, off, go))
            for m in range(3): out.append(exp_dma(dma(addr[m], srd, sT0, 1024 * m, fl, tag=tag, slot=sl), tag, nq, sT0, 1024 * m, 3 * mm + m, cfg))
    if adv and (nq == 3 or kind == 'W'):
        step = 786432 if kind == 'W' else 3072 * kv_map(cfg)[0]
        if cfg.fake and (kind != 'W' or cfg.fake > 1): step = 0
        out += advance(off, end, step, 7864320 if kind == 'W' else 16 * 3072 * kv_map(cfg)[0])
    return out

def job_x(nq, n, dh, cfg, dep=()):
    tag = absT('x', dh, n); sl = lambda c: slot_of(tag(c), nq)
    out = []
    for i in range(2 * nq):
        if i % 4 == 0: out.append(salu("s_add_u32", 'm0', sXl[n & 1], 1024 * i))
        out.append(salu("s_add_u32", sTx, sXoff, 10240 * i - 1024 * (i % 4)))
        d = dma(dX, sX, sTx, 1024 * (i % 4), 'nt' if n >= cfg.ntlate else cfg.xflags, tag=tag, slot=sl, private=True)
        exp_dma(d, tag, nq, sTx, 1024 * (i % 4), i, cfg)
        if i == 0: d.rd += list(dep)
        out.append(d)
    out += advance(sXoff, sXend, 0 if cfg.fake > 1 else 128, 1280)
    return out

def bstamp(sc, gw, gl):
    sc.put(gw, raw("s_memrealtime s[56:57]"), front=True)
    sc.put(gl, unit([f"v_cmp_eq_u32 vcc, s3, {vL16}", f"v_mov_b32 {vOne}, s56", "s_add_u32 s3, s3, 16", f"v_cndmask_b32 {vStamp}, {vStamp}, {vOne}, vcc"], 'V', cost=3))
def code_touch(targets, regs, guard=None, alt=None):
    lo, hi_, dummy = V(regs), V(regs + 1), V(regs + 2)
    _uid[0] += 1; n0 = _uid[0]
    l = [f"s_cmp_lg_u32 {guard[0]}, {guard[1]}", f"s_cbranch_scc1 L_cts{n0}"] if guard else []
    def one(target):
        _uid[0] += 1; n = _uid[0]
        return ["s_getpc_b64 s[58:59]", f"L_ct{n}:", f"s_add_u32 s58, s58, {target}-L_ct{n}", f"s_addc_u32 s59, s59, 0-(({target}-L_ct{n})>>63)",
                "s_and_b32 s58, s58, 0xfffff000",
                f"v_lshrrev_b32 {lo}, 7, {vL16}", f"v_lshlrev_b32 {lo}, 12, {lo}", f"v_and_b32 {hi_}, 0x70, {vL16}", f"v_lshl_add_u32 {lo}, {hi_}, 3, {lo}",
                f"v_min_u32 {lo}, L_code_end-({target})-4, {lo}",
                f"v_mov_b32 {hi_}, s59", f"v_add_co_u32 {lo}, vcc, s58, {lo}", "s_nop 1", f"v_addc_co_u32 {hi_}, vcc, 0, {hi_}, vcc",
                f"global_load_dword {dummy}, v[{lo.a}:{hi_.a}], off"]
    if alt: l += [f"s_cmp_lg_u32 {sHead}, 0", f"s_cbranch_scc1 L_cta{n0}"]
    for t in targets: l += one(t)
    if alt:
        l += [f"s_branch L_cts{n0}", f"L_cta{n0}:"]
        for t in alt: l += one(t)
    l.append(f"L_cts{n0}:")
    u = unit(l, 'S', cost=2 if guard else 18 * len(targets), wr=['scc', 'vcc'])
    u.states = 1
    return u
def lchain(q, par, first):
    o = [mfma(Lacc(q), ONES, Pf(par, q, u), 0 if (first and u == 0) else Lacc(q)) for u in range(2)]
    for i in o: i.cost = 4
    return o

def seq_after(sc, seq, lo, hi, even=False):
    seq = list(seq)
    SEQS.append(seq)
    hi = min(hi, len(sc.g) - 1)
    n = len(seq)
    nx = sum(1 for i in seq if i.kind == 'X'); kx = 0
    g = lo; prev = None; pg = None
    for k, ins in enumerate(seq):
        dl = max(g, min(hi, lo + ((k + 1) * (hi - lo + 1) + n - 1) // n - 1))
        if not even: dl = max(g, min(hi, hi - (n - 1 - k) // 2))
        g1 = g
        if even and ins.kind == 'X': g1 = max(g, min(dl, lo + (kx * (hi - lo + 1)) // nx))
        same_bad = prev is not None and ((prev.kind in 'VE' and ins.kind not in 'VE') or ('m0' in prev.wr and ins.dma))
        if same_bad and g1 == pg:
            if g1 + 1 <= hi: g1 += 1; dl = max(dl, g1)
            else:
                if 'm0' in prev.wr: sc.g[g1].append(nop(0))
                sc.g[g1].append(ins); prev = ins; pg = g1
                for rest in seq[k + 1:]:
                    if 'm0' in prev.wr and rest.dma: sc.g[g1].append(nop(0))
                    sc.g[g1].append(rest); prev = rest
                return g1
        r = sc.place(ins, g1, dl, force=True)
        if ins.kind == 'X': kx += 1
        g = r; pg = r; prev = ins
    return g

def place_even(sc, seq, lo, hi): return seq_after(sc, seq, lo, hi, even=True)

def rdK(j, s, tag): return exp_rd(dsread("ds_read_b128", Kf(j & 1, s), kaddr[s & 1], (j & 3) * 6144 + (s >> 1) * 128, tag), kaddr[s & 1], tag)
def rdV(T, u, e, tag):
    T %= 12
    return exp_rd(dsread("ds_read_b64_tr_b16", VB(T & 3, u, e), vaddr[T & 3], (32 * u + 16 * e) * 384 + (T >> 2) * 128, tag), vaddr[T & 3], tag)
def rdW(T, u, e, tag):
    T %= 12
    s, uu = T >> 1, T & 1
    return exp_rd(dsread("ds_read_b64_tr_b16", VB(T % 3, u, e), waddr[s & 1], (2 * u + e) * 3072 + (s >> 1) * 128 + 8 * uu, tag), waddr[s & 1], tag)
def rdX(nq, n, dh, q, u):
    d = SL if nq == 4 else 6144
    return dsread("ds_read_b128", Xf(n & 1, q, u), xaddr[u], (n & 1) * d + q * 2048, absT('x', dh, n), private=True)
UE = [(0, 0), (0, 1), (1, 0), (1, 1)]

def rebase(regs, cur, new):
    return [salu("s_sub_u32", sT1, new, cur), smov(cur, new)] + [valu("v_add_u32", r, sT1, r) for r in regs]
def rotate(r, n, f): return [smov(sT2, r), smov(r, n), smov(n, f), smov(f, sT2)]
def rebaseK():
    return [salu("s_sub_u32", sT3, kN, kR)] + [valu("v_add_u32", r, sT3, r) for r in kaddr]

def softmax_ops(Sx, q, j, par):
    e = [vexp(Sx.sub(r), Sx.sub(r)) for r in range(4)]
    a = [valu("v_add_f32", Lq(q), Lq(q), Sx.sub(r)) for r in range(4)]
    P = Pf(par, q, j >> 1)
    c = [valu("v_cvt_pk_bf16_f32", P.sub(2 * (j & 1) + i), Sx.sub(2 * i), Sx.sub(2 * i + 1)) for i in range(2)]
    return e, a, c

def attn_iter(nq, par, cfg, first_pv=False, jobs=(), next_k=True, k_rot=True, late=(), gentle=False):
    NG = 4 * nq
    mf = []
    for G in range(NG):
        j, q = divmod(G, nq)
        for s in range(6):
            mf.append(mfma(Sf(G), Kf(j & 1, s), Qf(q, s), Ci(q) if s == 0 else Sf(G)))
        for n in range(3 * G, 3 * G + 3):
            T, qq = divmod(n, nq)
            for u in range(2):
                mf.append(mfma(Oacc(T, qq), VB(T & 3, u), Pf(par, qq, u), 0 if (first_pv and u == 0) else Oacc(T, qq)))
    sc = Sched(mf)
    def pvpos(n): return 12 * (n // 3) + 6 + 2 * (n % 3)
    sm = []
    for G in range(NG):
        Gp = (G - 1) % NG
        j, q = divmod(Gp, nq)
        e, a, c = softmax_ops(Sf(Gp), q, j, par if G == 0 else par ^ 1)
        eg = [0, 2, 4, 6]
        if gentle and cfg.gentle:
            lv = cfg.gentle // 2 + (cfg.gentle % 2) * (G % 2)
            eg = [[0, 2, 4, 6], [2, 2, 4, 6], [2, 2, 6, 6], [4, 4, 4, 4]][lv]
        for r in range(4): sc.put(12 * G + eg[r], e[r])
        sm.append((e, a, c))
    GB = 3 * nq
    bw = wait(need_vm=(lambda c: [('K', c['h'], c['t'] + 2), ('V', c['h'], c['t'] + 1)]), lgkm0=True, free=False)
    sc.put(12 * GB, bw, front=True)
    if cfg.stamps == 2 and nq == 4: bstamp(sc, 12 * GB, 12 * GB + 22)
    sc.put(12 * GB + 2, barrier(), front=True)
    bar = 12 * GB + 2
    reads = []
    for j in range(4):
        lo = 12 * nq * j
        nxt = (j == 3)
        tv, tk = (tagV(1), tagK(2)) if nxt else (tagV(0), tagK(1))
        for i in range(3):
            T = 3 * j + 3 + i
            l2 = lo if i == 0 else pvpos(nq * (T - 4) + nq - 1) + 1
            l2 = max(l2, lo)
            if nxt: l2 = max(l2, bar + 1)
            item = [(rdV(T, u, e, tv), l2) for (u, e) in UE]
            reads.append((l2, 0, item))
        if not nxt or next_k:
            l2 = max(lo, bar + 1) if nxt else lo
            reads.append((l2, 1, [(rdK(j + 1, s, tk), l2) for s in range(6)]))
    reads.sort(key=lambda x: (x[0], x[1]))
    g = 0
    lastpre = 0
    for _, _, item in reads:
        for ins, l2 in item:
            g = max(g, l2)
            while not (g % 12 in (1, 3, 5, 7, 8, 9) and not sc.g[g]) :
                g += 1
                if nq == 3 and g % 12 in (10, 11) and not sc.g[g]: break
            assert g < len(mf), "ds overflow"
            sc.put(g, ins)
            if g < bar: lastpre = g
    assert lastpre < 12 * GB
    upd = rebase(vaddr, sVcur, vN) + (rebaseK() if k_rot else [])
    for G in range(NG):
        e, a, c = sm[G]
        b = 12 * G
        if nq == 3 and G == 0:
            order = [(a[0], 1), (c[0], 3), (a[1], 5), (c[1], 7), (a[2], 8), (a[3], 9)]
        else:
            order = [(a[0], 1), (a[1], 3), (c[0], 5), (a[2], 7), (a[3], 8), (c[1], 9)]
        for ins, o in order:
            if not (cfg.lmfma and ins in a): sc.put(b + o, ins)
    if nq == 3:
        for G in range(NG):
            sc.put(12 * G + 4, wait(), front=True)
            if G % 3 == 2: sc.put(12 * G + 11, wait())
    if cfg.xpace and nq == 4 and gentle:
        for G in range(NG): sc.put(12 * G + 6, nop(cfg.xpace - 1))
    seq_after(sc, upd, lastpre, bar)
    gj = 0
    seq = [i for jb in jobs for i in jb]
    if seq: gj = place_even(sc, seq, 0, 12 * GB - (2 if nq == 3 else 13))
    rot = rotate(vR, vN, vF) + (rotate(kR, kN, kF) if k_rot else [])
    sc.extra = [(12 * (4 * q + 2) + 11, lchain(q, par, first_pv)) for q in range(nq)] if cfg.lmfma else []
    seq = [i for jb in late for i in jb]
    if any(i.kind == 'X' for i in seq):
        gr = seq_after(sc, rot, bar + 1, bar + 4)
        place_even(sc, seq, gr + 1, len(mf) - 2)
    else:
        seq_after(sc, rot + seq, bar + 1, len(mf) - 2)
    return sc

NCH = 24
PSLOT = [0, SL - 1024, 2 * SL - 1024]
def head_of(c):
    hh, cc = divmod(c, 3)
    return (hh if hh < 4 else 12 + hh), cc
def tagU(c): return lambda ctx: ('U', 0, c + ctx.get('dc', 0))
def job_o(c, cfg, dyn=None):
    h, cc = head_of(c)
    if cfg.pfake & 1: h = 0; dyn = None
    out = []
    for q in range(5):
        out.append(salu("s_add_u32", sTp, dyn or sOb, (0 if dyn else h * 92160) + cc * 2048 + q * 6144))
        for u in range(2):
            l = gload(OF(c % 3, q, u), vL16, sOr, sTp, 1024 * u, cfg.orflags)
            l.expect = lambda ctx, st, q=q: None if st.get(str(sTp)) == st[str(sOb)] + ctx['heads'][(c + ctx.get('dc', 0)) // 3] * 92160 + cc * 2048 + q * 6144 else "o off"
            if cfg.pskip & 1 and (q, u) != (0, 0): continue
            if cfg.pskip & 4 and q >= 4: continue
            out.append(l)
    return out
def job_u(c, cfg, dyn=None):
    h, cc = head_of(c)
    if cfg.pfake & 2: h = 0; dyn = None
    tag = tagU(c); sl = lambda ctx: slot_of(tag(ctx), 4)
    out = []
    for i in range(8):
        if i % 4 == 0: out.append(salu("s_add_u32", 'm0', sLb, PSLOT[(c + 1) % 3] + 1024 * i))
        out.append(salu("s_add_u32", sTx, dyn or sWb, ((0 if dyn else h * 192) + 64 * cc + 8 * i) * 1280 - 1024 * (i % 4)))
        d = dma(dX, sWo, sTx, 1024 * (i % 4), cfg.woflags, tag=tag, slot=sl)
        d.expect = lambda ctx, st, i=i, el=PSLOT[(c + 1) % 3] + 4096 * (i // 4): \
            None if (st.get(str(sTx)) == st[str(sWb)] + (ctx['heads'][(c + ctx.get('dc', 0)) // 3] * 192 + 64 * cc + 8 * i) * 1280 - 1024 * (i % 4)
                     and st.get('m0') == st[str(sLb)] + el) else "u off"
        if cfg.pskip & 2 and i != 7: continue
        out.append(d)
    return out
def next_head():
    l = [f"s_mov_b32 {sHc}, {sHn}", f"s_mov_b32 {sOc}, {sOn}", f"s_mov_b32 {sWc}, {sWn}",
         f"s_add_u32 {sHn}, {sHc}, 1",
         f"s_cmp_eq_u32 {sHn}, {sJmp}", f"s_cselect_b32 {sHn}, 16, {sHn}",
         f"s_cmp_eq_u32 {sHc}, 18", f"s_cselect_b32 {sHn}, {sA18}, {sHn}",
         f"s_cmp_eq_u32 {sHc}, {sStol}", f"s_cselect_b32 {sHn}, 19, {sHn}",
         f"s_mul_i32 {sOn}, {sHn}, 92160", f"s_add_u32 {sOn}, {sOn}, {sOb}",
         f"s_mul_i32 {sWn}, {sHn}, {192 * 1280}", f"s_add_u32 {sWn}, {sWn}, {sWb}"]
    out = []
    for grp in (l[0:1], l[1:2], l[2:3], l[3:4], l[4:6], l[6:8], l[8:10], l[10:11], l[11:12], l[12:13], l[13:14]):
        out.append(unit(grp, 'S', wr=['scc']))
    def sim(st):
        st[str(sHc)] = st[str(sHn)]; st[str(sOc)] = st[str(sOn)]; st[str(sWc)] = st[str(sWn)]
        c_ = st[str(sHc)]; n = c_ + 1
        if n == st[str(sJmp)]: n = 16
        if c_ == 18: n = st[str(sA18)]
        if c_ == st[str(sStol)]: n = 19
        st[str(sHn)] = n; st[str(sOn)] = st[str(sOb)] + n * 92160; st[str(sWn)] = st[str(sWb)] + n * 192 * 1280
    def kill(st):
        st['save'] = {k: st[k] for k in (str(sHc), str(sHn), str(sOc), str(sWc), str(sOn), str(sWn)) if k in st}
        for k in st['save']: del st[k]
    def fin(st):
        st.update(st['save']); sim(st)
    out[0].simfn = kill; out[-1].simfn = fin
    return out
def flag_store(off, val):
    u = unit([f"v_mov_b32 {vOne}, {val}", "s_mov_b64 exec, 1", f"buffer_store_dword {vOne}, off, {sEx}, {sFs} offset:{off} sc1", "s_mov_b64 exec, -1"], 'S', cost=7)
    u.states = 2
    return u
SPAN = [divmod(gs, 8) for gs in range(176)] + [(22, N) for N in (6, 7, 4, 5)] + [(23, N) for N in (6, 7, 4, 5)] \
    + [(22, N) for N in (0, 1, 2, 3)] + [(23, N) for N in (2, 3, 0, 1)]
def rdU(gs, u, e):
    c, N = SPAN[gs]
    return dsread("ds_read_b64_tr_b16", VB(gs % 3, u, e), raddr[N & 3],
                  PSLOT[(c + 1) % 3] + (N >> 2) * 8192 + (32 * u + 16 * e) * 128, tag=tagU(c))
def calc_raddr():
    o = [valu("v_lshrrev_b32", vt0, 6, vL16),
         valu("v_and_b32", vt1, 6, vt0),
         valu("v_lshlrev_b32", vt0, 7, vt0),
         valu("v_bfe_u32", raddr[0], vL16, 4, 1),
         valu("v_lshl_add_u32", vt0, raddr[0], 3, vt0),
         valu("v_bfe_u32", raddr[0], vL16, 5, 1),
         valu("v_xor_b32", vt1, vt1, raddr[0]),
         valu("v_lshlrev_b32", vt1, 4, vt1),
         salu("s_lshr_b32", sTp, sWave, 1), salu("s_lshl_b32", sTp, sTp, 6),
         valu("v_xor_b32", vt1, sTp, vt1),
         salu("s_lshr_b32", sTp, sWave, 1), salu("s_mul_i32", sTp, sTp, 3 * SL, scc=False), salu("s_add_u32", sTp, sTp, 1024),
         valu("v_add_u32", vt0, sTp, vt0)]
    for m in range(4):
        o += [valu("v_xor_b32", raddr[m], 32 * m, vt1), valu("v_add_u32", raddr[m], raddr[m], vt0)]
    for i in o: i.nosim = True
    return o
def unit(lines, kind='S', cost=None, rd=(), wr=(), **kw):
    i = Ins("\n".join(lines), kind, rd=rd, wr=wr, states=len([l for l in lines if not l.endswith(":")]), **kw)
    i.cost = cost if cost is not None else len(lines)
    i.nosim = True
    return i
_uid = [0]
def signal_add(off, guarded):
    _uid[0] += 1; n = _uid[0]
    l = [f"v_mov_b32 {vOne}, 1", "s_mov_b64 exec, 1", f"buffer_atomic_add {vOne}, off, {sDbg}, {off} sc1", "s_mov_b64 exec, -1"]
    if guarded: l = [f"s_cmp_eq_u32 {off}, -1", f"s_cbranch_scc1 L_nosig{n}"] + l + [f"s_mov_b32 {off}, -1", f"L_nosig{n}:"]
    u = unit(l, 'S', cost=8, wr=['scc'])
    u.states = 2
    return u
def poll_issue(gen):
    return gload_off(V(226, 2), sDbg, sCnt, 0) if gen == 0 else gload_off(V(226), sDbg, sMyc, 64)
def gload_off(D, srd, soff, off):
    op = {1: "buffer_load_dword", 2: "buffer_load_dwordx2"}[D.n]
    return Ins(f"{op} {D}, off, {srd}, {soff} offset:{off} sc1", 'X', rd=srd.regs() + soff.regs(), wr=D.regs())
def cond_load(D, srd, soff, off, cmp_lines, vtmp):
    a = unit(cmp_lines + [f"s_cselect_b32 {sT0}, 0, 0x7ff00000", f"v_mov_b32 {vtmp}, {sT0}"], 'S', wr=['scc'] + sT0.regs() + vtmp.regs())
    b = Ins(f"buffer_load_dword {D}, {vtmp}, {srd}, {soff} offen offset:{off} sc1", 'X', rd=srd.regs() + soff.regs() + vtmp.regs(), wr=D.regs())
    return a, b
def poll_check(gen):
    _uid[0] += 1; n = _uid[0]
    l = [f"s_mov_b32 {sSpin}, 0x80000", f"L_poll{n}:"] + (["v_min_u32 v226, v226, v227", "s_nop 0"] if gen == 0 else []) + \
        [f"v_readfirstlane_b32 {sT0}, v226", "s_nop 3",
         f"s_cmp_ge_u32 {sT0}, 32", f"s_cbranch_scc1 L_pok{n}",
         "s_sleep 2", poll_issue(gen).text,
         f"s_sub_u32 {sSpin}, {sSpin}, 1", f"s_cmp_lg_u32 {sSpin}, 0", "s_waitcnt vmcnt(0)", f"s_cbranch_scc1 L_poll{n}", f"L_pok{n}:"]
    u = unit(l, 'S', cost=12, rd=['v226', 'v227'], wr=['v226', 'scc'] + sT0.regs())
    u.states = 0
    return u

def attn_last(nq, cfg, nxt):
    par = 1
    mf = []
    for T in range(12):
        for q in range(nq):
            for u in range(2): mf.append(mfma(Oacc(T, q), VB(T & 3, u), Pf(par, q, u), Oacc(T, q)))
    sc = Sched(mf)
    sp = 2 * nq
    e, a, c = softmax_ops(Sf(4 * nq - 1), nq - 1, 3, par)
    if nq == 4:
        for r in range(4): sc.put(r, e[r])
        sc.put(4, c[0]); sc.put(4, c[1])
        g0 = 6
    else:
        sc.put(0, e[0]); sc.put(0, e[1]); sc.put(1, e[2]); sc.put(1, e[3])
        sc.put(2, c[0]); sc.put(2, c[1])
        g0 = 4
    if not cfg.lmfma: sc.put(g0 - 1, a[0]); sc.put(g0 - 1, a[1])
    else: sc.put(g0 - 1, nop(0))
    g = g0
    for T in range(3, 12):
        g = max(g, sp * (T - 3))
        for (u, ee) in UE:
            sc.put(g, rdV(T, u, ee, tagV(0))); g += 1
        sc.put(g - 1, wait())
    lastv = g - 1
    if cfg.lmfma:
        sc.extra = [(sp - 1, [i for q in range(nq) for i in lchain(q, par, False)])]
        fin = [None] * ((sp + 8 - g0) // 2) + [valu("v_accvgpr_read_b32", Lq(q), Lacc(q).sub(0)) for q in range(nq)]
    else:
        fin = [a[2], a[3]]
        for q in range(nq):
            t = vt0 if q % 2 == 0 else vt1
            for w in (32, 16):
                fin += [valu("v_mov_b32", t, Lq(q)), None, vperm(w, t, Lq(q)), valu("v_add_f32", Lq(q), Lq(q), t)]
    fin += [valu("v_add_f32", vt0, Lq(0), Lq(1)), valu("v_add_f32", vt0, vt0, Lq(2))]
    if nq == 4: fin.append(valu("v_add_f32", vt0, vt0, Lq(3)))
    fin.append(Ins(f"v_cmp_ngt_f32 {sBad}, {sThr}, {vt0}", 'V', rd=vt0.regs() + sThr.regs(), wr=sBad.regs()))
    SEQS.append([i for i in fin if i is not None])
    g = g0
    for ins in fin:
        if ins is None: g += 2; continue
        g = sc.place(ins, g, g + 8)
    for q in range(nq):
        g = sc.place(vrcp(Lq(q), Lq(q)), g + 1, g + 8)
    ginv = g
    chk = [unit([f"s_cmp_lg_u64 {sBad}, 0", f"s_cselect_b32 {sBad.sub(0)}, 1, 0"], rd=sBad.regs(), wr=['scc'] + sBad.regs()),
           salu("s_lshl_b32", sTp, sWave, 2), salu("s_add_u32", sTp, sTp, FLAG), valu("v_mov_b32", vt0, sBad.sub(0))]
    if nxt == 'P' and nq == 3 and cfg.balance:
        sc.put(0, gload_off(V(226), sEx, sFr, 4), front=True)
        chk += [wait(), valu("v_lshl_or_b32", vt0, V(226), 1, vt0)]
    chk += [valu("v_mov_b32", vt1, sTp), dswrite("ds_write_b32", vt1, vt0, 0),
           valu("v_mov_b32", vOne, FLAG)]
    for i in chk: i.nosim = True
    g = seq_after(sc, chk, g + 1, g + 12)
    bar = sp * 10
    assert g < bar - 2
    gnext = g + 1
    if nxt == 'Q':
        w = wait(need_vm=lambda c: [('x', c['h'] + 1, 0)], free=False)
        gx = sc.place(w, sp * 3, sp * 4)
        dep = []
        for q in range(nq):
            for u in range(2):
                r = rdX(nq, 0, 1, q, u); dep += r.wr
                gx = sc.place(r, gx + 1, gx + 8)
        j1 = job_tile(nq, 'W', vF, absT('W', 1, 1), cfg)
        ge = place_even(sc, j1, g0, sp * 7)
        ws = wait(); gw = sc.place(ws, max(gx + 4, ge), max(gx + 4, ge) + 4)
        place_even(sc, job_x(nq, 2, 1, cfg, dep), gw + 1, len(mf) - 1)
        need = lambda c: [('W', c['h'] + 1, 0)]
    else:
        place_even(sc, job_u(1, cfg), g0, gnext - 1)
        place_even(sc, job_o(0, cfg) + job_o(1, cfg), gnext, len(mf) - 1)
        need = lambda c: [('U', 0, 0)]
    bw = wait(need_vm=need, lgkm0=True, free=False)
    gb = sc.place(bw, bar - 1, bar)
    gb = sc.place(barrier(), gb, bar + 1)
    fl = dsread("ds_read_b128", V(228, 4), vOne, 0)
    g = sc.place(fl, gb + 1, gb + 2)
    if nxt == 'Q':
        seq_after(sc, rebase(waddr, sWcur, vN), lastv, gb)
        seq_after(sc, rotate(vR, vN, vF), gb + 1, len(mf) - 1)
    for T in range(2):
        g = max(g, sp * (10 + T) - 1)
        for (u, ee) in UE:
            r = rdW(T, u, ee, absT('W', 1, 0)) if nxt == 'Q' else rdU(T, u, ee)
            g = sc.place(r, min(len(mf) - 1, g + 1), min(len(mf) - 1, g + 2))
        sc.place(wait(), g, g)
    sc.post = [valu("v_or3_b32", V(228), V(228), V(229), V(230)), valu("v_or_b32", V(228), V(228), V(231)), nop(0),
               Ins(f"v_readfirstlane_b32 {sBad.sub(0)}, v228", 'V', rd=['v228'], wr=sBad.sub(0).regs()), nop(3),
               salu("s_and_b32", sBad.sub(1), sBad.sub(0), 1),
               salu("s_andn2_b32", sBad.sub(1), sBad.sub(1), sRedo), raw(f"s_cbranch_scc1 L_slow_{nq}"), smov(sRedo, 0)]
    return sc

def epi_block(q, s, t, cfg, packed=False):
    ops = []
    for i in range(8):
        src = Oacc(2 * s + (i >> 2), q).sub(i & 3)
        ops.append(valu("v_accvgpr_read_b32", t.sub(i), src))
    for i in range(8): ops.append(valu("v_mul_f32", t.sub(i), t.sub(i), Lq(q)))
    for i in range(4): ops.append(valu("v_cvt_pk_bf16_f32", t.sub(i), t.sub(2 * i), t.sub(2 * i + 1)))
    ops.append(salu("s_add_u32", sTo, sOoff, q * 6144 + (4096 if s >= 4 else 0)))
    stv = gstore(t.sub(0, 4), vL16, sO, sTo, (s & 3) * 1024, cfg.oflags)
    def f(c, st):
        h = 0 if c['t'] < 0 else 1
        e = (st['h0'] + 16 * h) * 92160 + (4 * st['wave'] + q) * 6144 + s * 1024
        if st.get(str(sTo)) is None or st[str(sTo)] + (s & 3) * 1024 != e: return f"store off vs {e}"
    stv.expect = f
    if not cfg.nostore: ops.append(stv)
    return ops

def qproj(nq, cfg, epi):
    sp = 2 * nq; SN = 12 * sp
    mf = []
    for st in range(10):
        for T in range(12):
            for q in range(nq):
                for u in range(2):
                    mf.append(mfma(QACC(T, q), VB(T % 3, u), Xf(st & 1, q, u), 0 if (st == 0 and u == 0) else QACC(T, q)))
    sc = Sched(mf)
    drain = None
    for st in range(10):
        b = st * SN
        for T in range(10):
            g = b + sp * T
            for (u, e) in UE:
                sc.put(g, rdW(T + 2, u, e, absT('W', 0, st))); g += 1
            sc.put(g - 1, wait())
        lastw = g - 1
        need = [('W', st + 1)] if st < 9 else [('K', 0)]
        bw = wait(need_vm=(lambda c, need=need: [(k, c['h'], n) for k, n in need]), lgkm0=True, free=False)
        gb = b + sp * 10
        if epi and st == 9 and nq == 4: bw.vm = 0; drain = bw
        sc.put(gb, bw); sc.put(gb, barrier())
        if epi and st == 9 and nq == 3: sc.put(gb, signal_add(sMyc, False))
        if cfg.stamps == 3: bstamp(sc, gb, gb + 5)
        g = gb
        if st < 9:
            seq_after(sc, rebase(waddr, sWcur, vN), lastw, gb)
            for T in range(2):
                g = max(g, b + sp * (10 + T) - 1)
                for (u, e) in UE:
                    g += 1; sc.put(g, rdW(T, u, e, absT('W', 0, st + 1)))
                sc.put(g, wait())
        else:
            seq_after(sc, rebase(vaddr, sVcur, vN), lastw, gb)
            for s in range(6):
                g += 1; sc.put(g, rdK(0, s, absT('K', 0, 0)))
        seq_after(sc, rotate(vR, vN, vF), gb + 1, b + SN - 1)
        dep = []
        gx = b + sp * 4
        if st < 9:
            w = wait(need_vm=(lambda c, st=st: [('x', c['h'], st + 1)]), free=False)
            gx = sc.place(w, gx, gx + sp)
            for q in range(nq):
                for u in range(2):
                    r = rdX(nq, st + 1, 0, q, u); dep += r.wr
                    gx = sc.place(r, gx + 1, gx + sp)
        if st < 8: j1 = job_tile(nq, 'W', vF, absT('W', 0, st + 2), cfg)
        elif st == 8: j1 = job_tile(nq, 'V', vF, absT('V', 0, 0), cfg, groups=range(8))
        else: j1 = job_tile(nq, 'K', kN, absT('K', 0, 1), cfg, groups=range(8))
        ge = b
        if j1: ge = place_even(sc, j1, b, b + (sp * 4 - 1 if (nq == 4 or st == 7) else sp * 6 if st < 7 else sp * 10 - 2 if st == 8 else sp * 8))
        if st == 7 and nq == 3:
            if epi:
                dr = wait(need_vm=lambda c: 'all', free=False); dr.vm = 0; drain = dr
                ge = sc.place(dr, ge + 8, ge + 9)
            place_even(sc, job_tile(nq, 'K', kR, absT('K', 0, 0), cfg, groups=range(8)), ge + 1, b + SN - 1)
        if st + 3 <= 9:
            ws = wait(); gw = sc.place(ws, max(gx + 4, ge), max(gx + 4, ge) + 4)
            place_even(sc, job_x(nq, st + 3, 0, cfg, dep), gw + 1, b + SN - 1)
    if epi:
        nb = 6 * nq
        step = (SN * (cfg.epist if nq == 4 else 7) - 20) // nb
        i = 0
        for s in range(6):
            for q in range(nq):
                ops = epi_block(q, s, TMP[i & 1], cfg)
                seq_after(sc, ops, 10 + i * step, 10 + (i + 1) * step - 1)
                SEQS.append([ops[-1], drain])
                i += 1
        seq_after(sc, [salu("s_add_u32", sOoff, sOoff, 16 * 92160)], len(mf) - 20, len(mf) - 1)
    return sc

def conv_prologue(nq, cfg):
    out = []
    cv = []
    for s in range(6):
        for q in range(nq):
            b = V(8 * blk(q, s), 8)
            for i in range(4): cv.append(valu("v_pk_mul_f32", b.sub(2 * i, 2), b.sub(2 * i, 2), sC2))
            for i in range(4): cv.append(valu("v_cvt_pk_bf16_f32", b.sub(i), b.sub(2 * i), b.sub(2 * i + 1)))
    j = job_tile(nq, 'V', vN, absT('V', 0, 1), cfg, groups=range(8))
    k = 0
    for i, ins in enumerate(cv):
        out.append(ins)
        if i % 3 == 2 and k < len(j): out.append(j[k]); k += 1
    out += j[k:]
    for q in range(nq): out.append(valu("v_mov_b32", Ci(q).sub(0), "0xff800000"))
    out.append(label(f"L_prol_{nq}"))
    if cfg.lmfma == 0:
        for q in range(nq): out.append(valu("v_mov_b32", Lq(q), 0))
    elif cfg.lmfma == 2:
        for q in range(4): out.append(valu("v_mov_b32", Lq(q), "0x3f803f80"))
    else:
        out += [valu("v_and_b32", vt0, 48, vL16), valu("v_mov_b32", vt1, "0x3f803f80"),
                Ins(f"v_cmp_eq_u32 vcc, 0, {vt0}", 'V', rd=vt0.regs(), wr=['vcc']), nop(1)]
        for q in range(4): out.append(valu("v_cndmask_b32", Lq(q), 0, vt1, 'vcc'))
    out.append(wait())
    NG = 4 * nq
    mf = []
    for G in range(NG):
        jj, q = divmod(G, nq)
        for s in range(6):
            mf.append(mfma(Sf(G), Kf(jj & 1, s), Qf(q, s), (0 if jj == 0 else Ci(q)) if s == 0 else Sf(G)))
    sc = Sched(mf)
    sc.pre = out
    gb = 6 * nq * 3
    for jj in range(3):
        g = 6 * nq * jj
        for s in range(6):
            sc.put(g, rdK(jj + 1, s, absT('K', 0, 0))); g += 2
    lastk = g - 2
    bw = wait(need_vm=(lambda c: [('K', c['h'], 1), ('V', c['h'], 0)]), lgkm0=True, free=False)
    sc.put(gb - 1, bw); sc.put(gb - 1, barrier())
    seq_after(sc, rebaseK(), lastk + 1, gb - 2)
    g = gb
    post = [rdK(4, s, absT('K', 0, 1)) for s in range(6)]
    for T in range(3): post += [rdV(T, u, e, absT('V', 0, 0)) for (u, e) in UE]
    for ins in post:
        sc.put(g, ins); g += 1
    assert g <= len(mf)
    rot = rotate(kR, kN, kF)
    for i, ins in enumerate(rot): sc.put(gb + i, ins)
    if nq == 3:
        place_even(sc, job_tile(nq, 'K', kF, absT('K', 0, 2), cfg, groups=range(8)), 0, gb - 3)
        place_even(sc, job_tile(nq, 'V', vF, absT('V', 0, 2), cfg, groups=range(4), adv=False), gb, len(mf) - 1)
    tail = []
    for G in range(NG - 1):
        jj, q = divmod(G, nq)
        Sx = Sf(G)
        ops = []
        if jj == 0:
            t = vt0; m = vt1
            ops += [valu("v_max3_f32", m, Sx.sub(0), Sx.sub(1), Sx.sub(2)), valu("v_max3_f32", m, m, Sx.sub(3), Ci(q).sub(0))]
            for w in (32, 16):
                ops += [valu("v_mov_b32", t, m), nop(1), vperm(w, t, m), valu("v_max_f32", m, m, t)]
            for r in range(4): ops.append(valu("v_sub_f32", Ci(q).sub(r), 0, m))
            for r in range(4): ops.append(valu("v_sub_f32", Sx.sub(r), Sx.sub(r), m))
        e, a, c = softmax_ops(Sx, q, jj, 0)
        ops += [e[0], e[1], e[2], e[3], c[0], c[1]] if cfg.lmfma else [e[0], e[1], a[0], e[2], a[1], e[3], c[0], a[2], a[3], c[1]]
        if G + 2 < NG:
            n = len(ops)
            for i, ins in enumerate(ops): sc.put(6 * (G + 2) + (i * 6) // n, ins)
        else:
            tail += ops
    sc.add_wait_sites()
    for jj in range(1, 4):
        sc.put(6 * nq * jj - 1, wait())
    return sc.linear() + tail + [wait()]

CS = 6
def merge_jobs(ju, jo):
    def split(j):
        out = []; cur = []
        for i in j:
            cur.append(i)
            if i.kind == 'X': out.append(cur); cur = []
        return out
    a, b = split(ju), split(jo)
    items = sorted([((k + 0.5) / len(a), 0, x) for k, x in enumerate(a)] + [((k + 0.5) / len(b), 1, x) for k, x in enumerate(b)], key=lambda t: t[:2])
    return [i for _, _, x in items for i in x]
def p_chunks(c0, c1, nq, cfg, loop=False):
    mf = []
    for c in range(c0, c1):
        for N in range(8):
            for q in range(5):
                for u in range(2):
                    mf.append(mfma(PACC(N, q), VB((8 * c + N) % 3, u), OF(c % 3, q, u), 0 if (c == 0 and u == 0) else PACC(N, q)))
    sc = Sched(mf)
    PUB = cfg.pubchunk
    for c in range(c0, c1):
        b = 80 * (c - c0)
        for N in range(6):
            RP = [0, 1, 5, 6] if (cfg.prd and N < 5) else [0, 1, 3, 4] if cfg.prd else [0, 1, 2, 3]
            for i, (u, e) in enumerate(UE): sc.put(b + 10 * N + RP[i], rdU(8 * c + N + 2, u, e))
            sc.put(b + 10 * N + RP[3], wait())
        bw = wait(need_vm=(lambda ctx, c=c: 'all' if c == PUB else [tagU(c + 1)(ctx)]), lgkm0=True, free=False)
        if c == PUB: bw.vm = 0; drain = bw
        if loop and c == c0:
            a_, b_ = cond_load(V(226), sDbg, sMyc, 64, [f"s_lshl_b32 {sT0}, {sHn}, 2", f"s_add_u32 {sT0}, {sT0}, {sWave}", f"s_cmp_eq_u32 {sT0}, 67"], V(228))
            sc.put(b + 8, a_); sc.put(b + 14, b_)
            sc.put(b + 59, wait())
            _uid[0] += 1; n = _uid[0]
            sc.put(b + 59, unit([f"s_add_u32 {sT0}, {sWave}, {sHn}", f"s_cmp_lg_u32 {sHn}, 16", f"s_cbranch_scc1 L_skip{n}",
                                 f"s_cmp_lg_u32 {sT0}, 19", f"s_cbranch_scc1 L_skip{n}"], cost=3, rd=['v226'], wr=['scc'] + sT0.regs()))
            pc = poll_check(1); pc.cost = 0; sc.put(b + 59, pc); sc.put(b + 59, label(f"L_skip{n}"))
        if loop and c == c0 + 2:
            a_, b_ = cond_load(V(227), sEx, sFr, 8, [f"s_cmp_eq_u32 {sHc}, 17"], V(229))
            sc.put(b - 72, a_); sc.put(b - 66, b_)
            sc.put(b + 9, wait())
            _uid[0] += 1; n = _uid[0]
            u_ = unit([f"s_cmp_lg_u32 {sHc}, 17", f"s_cbranch_scc1 L_dok{n}", f"s_mov_b32 {sSpin}, 0x80000", f"L_dp{n}:",
                       f"v_readfirstlane_b32 {sT0}, v227", "s_nop 3", f"s_cmp_eq_u32 {sT0}, 1", f"s_cselect_b32 {sA18}, {sStol}, 19",
                       f"s_cmp_lg_u32 {sT0}, 0", f"s_cbranch_scc1 L_dok{n}", "s_sleep 2", gload_off(V(227), sEx, sFr, 8).text,
                       f"s_sub_u32 {sSpin}, {sSpin}, 1", f"s_cmp_lg_u32 {sSpin}, 0", "s_waitcnt vmcnt(0)", f"s_cbranch_scc1 L_dp{n}", f"L_dok{n}:"],
                      cost=2, rd=['v227'], wr=['scc'] + sT0.regs())
            u_.states = 1
            sc.put(b + 9, u_)
        sc.put(b + 60, bw); sc.put(b + 60, barrier())
        if cfg.stamps == 4: bstamp(sc, b + 60, b + 69)
        if c == PUB and nq == 3:
            sc.put(b + 60, salu("s_add_u32", sSig, sMyc, 64)); sc.put(b + 60, signal_add(sSig, False))
        if c == cfg.markchunk and nq == 3: sc.put(b + 60, flag_store(4, 1))
        if c == 0 and nq == 3: sc.put(b + 9, salu("s_sub_u32", sT0, sJmp, 2)); sc.put(b + 9, flag_store(8, sT0))
        for i, (u, e) in enumerate(UE):
            sc.put(b + 60 + ([1, 3, 5, 6] if cfg.prd else [1, 2, 3, 4])[i], rdU(8 * c + 8, u, e)); sc.put(b + 70 + ([0, 1, 5, 6] if cfg.prd else [0, 1, 2, 3])[i], rdU(8 * c + 9, u, e))
        sc.put(b + (76 if cfg.prd else 73), wait())
        sc.put(b + 79, wait())
    first_reads = []
    if nq is not None:
        nb = 6 * nq
        span = 80 * PUB + 10
        step = (span - 4) / nb
        i = 0
        for s in range(6):
            for q in range(nq):
                ops = epi_block(q, s, TMP[i & 1], cfg)
                if s == 0: first_reads += ops[:8]
                SEQS.append([ops[-1], drain])
                ge = seq_after(sc, ops, 4 + int(i * step), 4 + int((i + 1) * step) - 1)
                if s == 0: gfirst = 4 + int(i * step) + 9
                i += 1
    for c in range(c0, c1):
        b = 80 * (c - c0)
        if c + 2 < NCH:
            ju, jo = job_u(c + 2, cfg), job_o(c + 2, cfg)
            if loop:
                ju, jo = job_u(c + 2, cfg, sWc if c == c0 else sWn), job_o(c + 2, cfg, sOc if c == c0 else sOn)
            if loop and c == c0 + 2:
                if cfg.prd: g1 = g2 = place_even(sc, merge_jobs(ju, jo), b, b + 72)
                elif cfg.pclus: g2 = place_even(sc, jo, b, b + 36); g1 = place_even(sc, ju, b + 37, b + 66)
                else: g1 = place_even(sc, ju, b, b + 64); g2 = place_even(sc, jo, b + 2, b + 64)
                seq_after(sc, next_head(), max(g1, g2) + 1, b + 78)
            elif c == 0:
                place_even(sc, ju, b, b + 40)
                place_even(sc, jo[:6], b + 30, b + gfirst); place_even(sc, jo[6:], b + gfirst + 1, b + 78)
                for r in first_reads:
                    for l in jo:
                        if set(l.wr) & set(r.rd): SEQS.append([r, l])
            elif c == PUB:
                place_even(sc, ju, b, b + 24); place_even(sc, jo[:3], b, b + 24); place_even(sc, jo[3:], b + 61, b + 78)
            else:
                hi_ = 58 if c == NCH - 3 else 78
                if cfg.prd: place_even(sc, merge_jobs(ju, jo), b, b + hi_)
                elif cfg.pclus and c != NCH - 3: place_even(sc, jo, b, b + 42); place_even(sc, ju, b + 43, b + hi_)
                else: place_even(sc, ju, b, b + hi_); place_even(sc, jo, b + 2, b + hi_)
    sc.add_wait_sites()
    return sc

def p_tail(cfg):
    mf = []
    for gs in range(176, 192):
        c, N = SPAN[gs]
        for q in range(5):
            for u in range(2): mf.append(mfma(PACC(N, q), VB(gs % 3, u), OF(c % 3, q, u), PACC(N, q)))
    sc = Sched(mf)
    for k in range(14):
        o = 1 if k == 2 else 0
        for i, (u, e) in enumerate(UE): sc.put(10 * k + i + o, rdU(178 + k, u, e))
        sc.put(10 * k + 3 + o, wait())
    sc.put(143, wait())
    sc.put(20, wait(need_vm=lambda ctx: [tagU(23)(ctx)], free=False)); sc.put(20, barrier())
    sc.put(39, wait())
    wA, rA, wB, rB, oa = V(236), V(237), V(238), V(239), V(240)
    pre = [salu("s_and_b32", sTp, sWave, 1), salu("s_lshr_b32", sTx, sWave, 1), salu("s_mul_i32", sTx, sTx, 3 * SL, scc=False),
           salu("s_sub_u32", sT1, 3 * SL, sTx),
           salu("s_mul_i32", sT0, sTp, 10240, scc=False), salu("s_add_u32", sT0, sT0, SL), valu("v_add_u32", vt0, sT0, vL16),
           valu("v_add_u32", wA, sTx, vt0), valu("v_add_u32", rA, sT1, vt0),
           salu("s_mul_i32", sT0, sTp, 2 * SL, scc=False), salu("s_add_u32", sT0, sT0, 9216), valu("v_add_u32", vt0, sT0, vL16),
           valu("v_add_u32", wB, sTx, vt0), valu("v_add_u32", rB, sT1, vt0),
           valu("v_bfe_u32", oa, vL16, 4, 4), valu("v_mul_u32_u24", oa, 2560, oa),
           valu("v_lshrrev_b32", vt0, 8, vL16), valu("v_lshl_add_u32", oa, vt0, 3, oa)]
    for i in pre: i.nosim = True
    seq_after(sc, pre, 0, 38)
    def T(pair, t): return PACC(2 * pair + t // 5, t % 5)
    def wr(addr, tile, off):
        i = dswrite("ds_write_b128", addr, tile, off); i.cost = 3
        return i
    free = lambda lo, n: [g for g in range(lo, 160) if g % 10 >= 4][:n]
    for t, g in enumerate(free(56, 10)): sc.put(g, wr(wA, T(3, t), 1024 * t))
    sc.put(78, wait(lgkm0=True, free=False)); sc.put(78, barrier())
    rg = free(79, 10)
    for t, g in enumerate(rg): sc.put(g, dsread("ds_read_b128", T(3, t), rA, 1024 * t))
    seq = []
    for t in range(10):
        seq += [wait()] + [valu("v_add_f32", T(2, t).sub(i), T(2, t).sub(i), T(3, t).sub(i)) for i in range(4)]
        if t % 4 == 0: seq.append(salu("s_add_u32", sTp, sExs, 1024 * t))
        seq.append(gstore(T(2, t), vL16, sEx, sTp, 1024 * (t % 4), "sc1"))
    seq_after(sc, seq, 90, cfg.xend)
    for t, g in enumerate([136, 137, 138, 139, 144, 146, 148, 150, 152, 154]): sc.put(g, wr(wB, T(1, t), 1024 * t))
    sc.add_wait_sites()
    def add(dst, src): return [valu("v_pk_add_f32", dst.sub(2 * i, 2), dst.sub(2 * i, 2), src.sub(2 * i, 2)) for i in range(2)]
    w = wait(need_vm=lambda c: 'all', lgkm0=True, free=False); w.vm = 0
    f = [w, barrier()]
    f.append(unit([f"s_cmp_lg_u32 {sWave}, 3", "s_cbranch_scc1 L_xset",
                   f"v_mov_b32 {vOne}, 1", "s_mov_b64 exec, 1", f"buffer_store_dword {vOne}, off, {sEx}, {sFs} sc1", "s_mov_b64 exec, -1",
                   f"buffer_load_dword v226, off, {sEx}, {sFr} sc1", "L_xset:"]))
    for t in range(10): f.append(dsread("ds_read_b128", T(1, t), rB, 1024 * t))
    for t in range(10):
        f.append(wait()); f += add(T(0, t), T(1, t))
    f.append(unit([f"s_cmp_lg_u32 {sWave}, 3", "s_cbranch_scc1 L_xok", f"s_mov_b32 {sSpin}, 0x80000", "L_xpoll:",
                   "s_waitcnt vmcnt(0)", f"v_readfirstlane_b32 {sTp}, v226", f"s_sub_u32 {sSpin}, {sSpin}, 1",
                   f"s_cmp_eq_u32 {sSpin}, 0", "s_cbranch_scc1 L_xok", "s_nop 0",
                   f"s_cmp_eq_u32 {sTp}, 1", "s_cbranch_scc1 L_xok",
                   f"buffer_load_dword v226, off, {sEx}, {sFr} sc1", "s_branch L_xpoll", "L_xok:"]))
    f.append(barrier())
    for t in range(10):
        if t % 4 == 0: f.append(salu("s_add_u32", sTp, sExr, 1024 * t))
        f.append(gload(T(1, t), vL16, sEx, sTp, 1024 * (t % 4), "sc1"))
    for t in range(10):
        N, q = divmod(t, 5)
        ac = T(0, t)
        f.append(wait()); f += add(ac, T(1, t))
        for i in range(2): f.append(valu("v_cvt_pk_bf16_f32", ac.sub(i), ac.sub(2 * i), ac.sub(2 * i + 1)))
        f.append(salu("s_add_u32", sTp, sOutb, q * 16 * 2560))
        f.append(gstore(ac.sub(0, 2), oa, sOut, sTp, 32 * N, cfg.outflags))
    return sc, f

def slow_path(nq, cfg):
    o = []
    a = lambda t: o.append(raw(t))
    def spaced(seq):
        for i in seq:
            o.append(i)
            if 'm0' in i.wr: o.append(nop(0))
    dummy = lambda c: ('K', 0, 0)
    o.append(label(f"L_slow_{nq}"))
    a("s_waitcnt vmcnt(0) lgkmcnt(0)"); a("s_barrier")
    a(f"s_mov_b32 {sRedo}, -1")
    a(f"s_cmp_eq_u32 {sHead}, 0")
    a(f"s_cselect_b32 {sT0}, {16 * 393216}, 0"); a(f"s_cselect_b32 {sT1}, {16 * 384}, 0")
    a(f"s_cselect_b32 {sT2}, 0, {16 * 393216}")
    a(f"s_mov_b32 {vR}, {VS[0]}"); a(f"s_mov_b32 {vN}, {VS[1]}"); a(f"s_mov_b32 {vF}, {VS[2]}")
    a(f"s_cselect_b32 {vR}, {VS[1]}, {vR}"); a(f"s_cselect_b32 {vN}, {VS[2]}, {vN}"); a(f"s_cselect_b32 {vF}, {VS[0]}, {vF}")
    a(f"s_sub_u32 {sKend}, {sKend}, {sT0}"); a(f"s_sub_u32 {sVend}, {sVend}, {sT0}"); a(f"s_sub_u32 {sWend}, {sWend}, {sT1}")
    a(f"s_add_u32 {sKoff}, {sK0}, {sT2}"); a(f"s_mov_b32 {sVoff}, {sKoff}")
    a(f"s_mov_b32 {sWoff}, {sW0}"); a(f"s_mov_b32 {sXoff}, {sX0}")
    for i in rebase(vaddr, sVcur, vR): o.append(i)
    for q in range(nq): a(f"v_mov_b32 {Ci(q).sub(0)}, 0xff800000")
    a(f"s_mov_b32 {sLoop}, 16")
    o.append(label(f"L_slowl_{nq}"))
    spaced(job_tile(nq, 'K', kR, dummy, cfg, groups=range(8)))
    a("s_waitcnt vmcnt(0)"); a("s_barrier")
    for j in range(4):
        for s in range(6): o.append(rdK(j, s, dummy))
        a("s_waitcnt lgkmcnt(0)")
        for q in range(nq):
            for s in range(6): o.append(mfma(Sf(q), Kf(j & 1, s), Qf(q, s), 0 if s == 0 else Sf(q)))
        a("s_nop 7")
        for q in range(nq):
            m = Ci(q).sub(0); Sx = Sf(q)
            a(f"v_max3_f32 {m}, {m}, {Sx.sub(0)}, {Sx.sub(1)}"); a(f"v_max3_f32 {m}, {m}, {Sx.sub(2)}, {Sx.sub(3)}")
    a("s_barrier")
    a(f"s_sub_u32 {sLoop}, {sLoop}, 1"); a(f"s_cmp_lg_u32 {sLoop}, 0"); a(f"s_cbranch_scc1 L_slowl_{nq}")
    for r in (kR, kN): spaced(job_tile(nq, 'K', r, dummy, cfg, groups=range(8)))
    a("s_waitcnt vmcnt(0)")
    for r in (vR, vN): spaced(job_tile(nq, 'V', r, dummy, cfg, groups=range(8)))
    a("s_waitcnt vmcnt(0)"); a("s_barrier")
    for s in range(6): o.append(rdK(0, s, dummy))
    a("s_waitcnt lgkmcnt(0)")
    a(f"s_branch L_prol_{nq}")
    return o

def setup(cfg):
    o = []
    a = lambda t: o.append(raw(t))
    a("s_cmp_ge_u32 s2, 256"); a("s_cbranch_scc1 L_end")
    a("s_load_dwordx8 s[24:31], s[0:1], 0")
    a("s_load_dwordx8 s[32:39], s[0:1], 40")
    a("s_load_dwordx2 s[96:97], s[0:1], 32"); a("s_load_dwordx2 s[40:41], s[0:1], 72")
    a("s_load_dwordx4 s[44:47], s[0:1], 80")
    a("s_load_dwordx2 s[42:43], s[0:1], 96")
    if cfg.stamps: a("s_memrealtime s[56:57]")
    if cfg.codepf:
        a("s_getpc_b64 s[48:49]"); a("L_pc:")
        a("s_lshr_b32 s50, s2, 3"); a("s_lshl_b32 s50, s50, 6")
        a("v_add_u32 v2, s50, v0"); a("v_lshlrev_b32 v2, 7, v2")
        a("v_min_u32 v2, L_code_end-L_pc-4, v2")
        a("v_mov_b32 v3, s49"); a("v_add_co_u32 v2, vcc, s48, v2"); a("s_nop 1"); a("v_addc_co_u32 v3, vcc, 0, v3, vcc")
        a("v_cmp_gt_u32 vcc, 64, v0"); a("s_and_saveexec_b64 s[48:49], vcc"); a("s_cbranch_execz L_nopf")
        a(f"global_load_dword {vOne}, v[2:3], off")
        a("L_nopf:"); a("s_mov_b64 exec, s[48:49]")
    a("v_lshrrev_b32 v1, 6, v0"); a("v_and_b32 v0, 63, v0")
    a("v_readfirstlane_b32 s3, v1")
    a("s_lshr_b32 s50, s2, 3")
    a("s_bfe_u32 s51, s2, 0x10001"); a("s_lshl_b32 s51, s51, 2"); a("s_lshr_b32 s52, s50, 3"); a("s_add_u32 s51, s51, s52")
    a("s_and_b32 s52, s2, 1"); a("s_lshl_b32 s52, s52, 3"); a("s_and_b32 s53, s50, 7"); a("s_add_u32 s52, s52, s53")
    a("s_bfe_u32 s53, s2, 0x10002")
    a("v_lshrrev_b32 v1, 3, v0"); a("v_and_b32 v2, 7, v0")
    for m in range(3):
        a(f"v_add_u32 v3, {8 * m}, v1")
        a("v_mul_u32_u24 v4, 43, v3"); a("v_lshrrev_b32 v4, 7, v4")
        a("v_and_b32 v5, 6, v4"); a("v_xor_b32 v5, v5, v2"); a("v_lshlrev_b32 v5, 4, v5")
        a("v_lshlrev_b32 v6, 7, v1"); a(f"v_add_u32 {dKV[m]}, v5, v6")
        a("v_mul_u32_u24 v5, 3, v4"); a("v_sub_u32 v5, v3, v5"); a("v_lshlrev_b32 v5, 7, v5")
        a("v_bfe_u32 v6, v4, 1, 1"); a("v_lshlrev_b32 v6, 2, v6"); a("v_xor_b32 v6, v6, v2"); a("v_lshlrev_b32 v6, 4, v6"); a("v_add_u32 v5, v5, v6")
        a("v_lshrrev_b32 v6, 2, v4"); a("v_lshlrev_b32 v6, 4, v6"); a("v_and_b32 v7, 3, v4"); a("v_add_u32 v6, v6, v7")
        a("v_mul_u32_u24 v6, 12288, v6"); a("v_add_u32 v5, v5, v6")
        a(f"v_subrev_u32 {dW[m]}, {1024 * m}, v5")
    a("v_and_b32 v3, 6, v1"); a("v_xor_b32 v3, v3, v2"); a("v_lshlrev_b32 v3, 4, v3")
    a("v_mul_u32_u24 v4, 1280, v1"); a(f"v_add_u32 {dX}, v3, v4")
    a(f"v_lshlrev_b32 {vL16}, 4, v0")
    a("s_waitcnt lgkmcnt(0)")
    if cfg.stamps:
        a(f"v_writelane_b32 {vStamp}, s56, 30"); a("s_getreg_b32 s56, hwreg(HW_REG_XCC_ID)"); a(f"v_writelane_b32 {vStamp}, s56, 31")
    a("s_cmp_eq_u32 s53, 0")
    for i in range(8): a(f"s_cselect_b32 s{24 + i}, s{24 + i}, s{32 + i}")
    a("s_cselect_b32 s96, s96, s40"); a("s_cselect_b32 s97, s97, s41"); a("s_mov_b32 s98, 7864320"); a("s_mov_b32 s99, 0x20000")
    a("s_mul_i32 s48, s51, 307200"); a("s_add_u32 s4, s24, s48"); a("s_addc_u32 s5, s25, 0"); a("s_mov_b32 s6, 307200"); a("s_mov_b32 s7, 0x20000")
    a("s_mov_b32 s8, s30"); a("s_mov_b32 s9, s31"); a("s_mov_b32 s10, 7864320"); a("s_mov_b32 s11, 0x20000")
    a("s_mul_i32 s48, s51, 12582912")
    a("s_add_u32 s12, s26, s48"); a("s_addc_u32 s13, s27, 0"); a("s_mov_b32 s14, 12582912"); a("s_mov_b32 s15, 0x20000")
    a("s_add_u32 s16, s28, s48"); a("s_addc_u32 s17, s29, 0"); a("s_mov_b32 s18, 12582912"); a("s_mov_b32 s19, 0x20000")
    a("s_lshl_b32 s48, s53, 3"); a("s_add_u32 s48, s48, s51"); a("s_mul_i32 s48, s48, 2949120")
    a("s_add_u32 s20, s42, s48"); a("s_addc_u32 s21, s43, 0"); a("s_mov_b32 s22, 2949120"); a("s_mov_b32 s23, 0x20000")
    a("s_mov_b32 s64, s44"); a("s_mov_b32 s65, s45"); a("s_mov_b32 s66, 4915200"); a("s_mov_b32 s67, 0x20000")
    a(f"s_add_u32 s68, s42, {EXOFF}"); a("s_addc_u32 s69, s43, 0"); a(f"s_mov_b32 s70, {STOFF + 0x100000}"); a("s_mov_b32 s71, 0x20000")
    a("s_mov_b32 s72, s46"); a("s_mov_b32 s73, s47"); a("s_mov_b32 s74, 256"); a("s_mov_b32 s75, 0x20000")
    a("s_cmp_ge_u32 s50, 30"); a(f"s_cselect_b32 {sIdle}, 1, 0"); a("s_min_u32 s24, s50, 29")
    a("s_and_b32 s25, s2, 1")
    a("s_mul_i32 s26, s24, 52"); a("s_lshr_b32 s26, s26, 8"); a("s_mul_i32 s27, s26, 5"); a("s_sub_u32 s27, s24, s27")
    a("s_lshl_b32 s26, s26, 1"); a("s_and_b32 s28, s3, 1"); a("s_add_u32 s26, s26, s28")
    a("s_mul_i32 s29, s26, 43"); a("s_lshr_b32 s29, s29, 7"); a("s_mul_i32 s30, s29, 3"); a("s_sub_u32 s26, s26, s30")
    a("s_and_b32 s30, s2, 7"); a(f"s_lshl_b32 {sMyc}, s30, 2"); a(f"s_and_b32 {sCnt}, {sMyc}, 24")
    a("s_and_b32 s30, s2, 6"); a("s_lshl_b32 s30, s30, 1")
    a("s_add_u32 s30, s30, s29"); a("s_mul_i32 s31, s30, 2949120")
    a("s_add_u32 s60, s42, s31"); a("s_addc_u32 s61, s43, 0"); a("s_mov_b32 s62, 2949120"); a("s_mov_b32 s63, 0x20000")
    a("s_lshl_b32 s31, s25, 1"); a("s_lshr_b32 s32, s3, 1"); a("s_add_u32 s31, s31, s32")
    a(f"s_mul_i32 {sOb}, s31, {4 * 92160}"); a(f"s_mul_i32 s33, s26, {5 * 6144}"); a(f"s_add_u32 {sOb}, {sOb}, s33")
    a(f"s_mul_i32 {sWb}, s31, {4 * 192 * 1280}"); a("s_lshl_b32 s33, s27, 8"); a(f"s_add_u32 {sWb}, {sWb}, s33")
    a("s_xor_b32 s33, s28, s25"); a("s_lshl_b32 s33, s33, 7"); a(f"s_add_u32 {sWb}, {sWb}, s33")
    a(f"s_mul_i32 {sLb}, s32, {3 * SL}"); a("s_lshl_b32 s33, s28, 13"); a(f"s_add_u32 {sLb}, {sLb}, s33"); a(f"s_add_u32 {sLb}, {sLb}, 1024")
    a("s_and_b32 s30, s30, 7"); a("s_mul_i32 s30, s30, 240"); a("s_mul_i32 s33, s26, 80"); a("s_add_u32 s30, s30, s33")
    a(f"s_mul_i32 {sOutb}, s30, 2560"); a("s_mul_i32 s33, s53, 1280"); a(f"s_add_u32 {sOutb}, {sOutb}, s33")
    a("s_lshl_b32 s33, s27, 8"); a(f"s_add_u32 {sOutb}, {sOutb}, s33"); a("s_lshl_b32 s33, s31, 6"); a(f"s_add_u32 {sOutb}, {sOutb}, s33")
    a("s_lshl_b32 s33, s2, 2"); a("s_add_u32 s33, s33, s3"); a(f"s_mul_i32 {sExs}, s33, 10240"); a("s_xor_b32 s33, s33, 4"); a(f"s_mul_i32 {sExr}, s33, 10240")
    a("s_lshl_b32 s33, s2, 7"); a(f"s_add_u32 {sFs}, s33, {FLOFF}"); a("s_xor_b32 s33, s33, 128"); a(f"s_add_u32 {sFr}, s33, {FLOFF}")
    a("s_and_b32 s48, s2, 3"); a("s_lshl_b32 s48, s48, 5"); a("s_add_u32 s48, s48, s50"); a(f"s_mul_i32 {sWopf}, s48, 61440")
    if cfg.dbgst: a(f"s_add_u32 {sMyc}, {sMyc}, 128"); a(f"s_add_u32 {sCnt}, {sCnt}, 128")
    a(f"s_mov_b32 {sRedo}, 0")
    a(f"s_mov_b32 {sWave}, s3")
    if cfg.stamps > 1: a("s_mov_b32 s3, 512")
    a(f"s_mul_i32 {sKoff}, s52, 393216"); a(f"s_mul_i32 {sWoff}, s52, 384")
    a(f"s_mul_i32 {sXoff}, {sWave}, {64 * 1280}")
    a(f"s_mul_i32 {sOoff}, s52, 92160"); a(f"s_mul_i32 s48, {sWave}, {4 * 6144}"); a(f"s_add_u32 {sOoff}, {sOoff}, s48")
    a(f"s_mov_b32 {sTp}, s50")
    a(f"s_mov_b32 {kR}, {KS[0]}"); a(f"s_mov_b32 {kN}, {KS[1]}"); a(f"s_mov_b32 {kF}, {KS[2]}")
    a(f"s_mov_b32 {vR}, {VS[0]}"); a(f"s_mov_b32 {vN}, {VS[1]}"); a(f"s_mov_b32 {vF}, {VS[2]}")
    a(f"s_mov_b32 {sVcur}, 0"); a(f"s_mov_b32 {sWcur}, {VS[0]}")
    c = math.log2(math.e) / math.sqrt(192.0)
    a(f"s_mov_b32 s38, {fbits(c)}"); a(f"s_mov_b32 s39, {fbits(c)}")
    a(f"s_mov_b32 {sThr}, {fbits(2.0 ** cfg.thr)}")
    a(f"s_mov_b32 {sHead}, 0")
    a(f"s_cmp_eq_u32 {sWave}, 3"); a("s_cbranch_scc1 L_v3")
    return o

def lds_addr_setup(cfg):
    o = []
    def a(t):
        i = raw(t); i.nosim = True; o.append(i)
    a("v_and_b32 v1, 15, v0")
    a("v_lshrrev_b32 v2, 4, v0")
    a("v_and_b32 v3, 6, v1")
    a("v_xor_b32 v4, v2, v3")
    a("v_lshlrev_b32 v4, 4, v4")
    a("v_mul_u32_u24 v5, 384, v1")
    a(f"v_add_u32 {kaddr[0]}, v5, v4")
    a(f"v_xor_b32 v6, 64, v4"); a(f"v_add_u32 {kaddr[1]}, v5, v6")
    a("v_lshlrev_b32 v5, 7, v1"); a(f"v_add_u32 v5, {sXl[0]}, v5")
    a(f"v_add_u32 {xaddr[0]}, v5, v4"); a(f"v_add_u32 {xaddr[1]}, v5, v6")
    a("v_lshrrev_b32 v1, 2, v0"); a("v_and_b32 v3, 6, v1")
    a("v_bfe_u32 v4, v0, 1, 1"); a("v_xor_b32 v4, v4, v3"); a("v_lshlrev_b32 v4, 4, v4")
    a("v_and_b32 v5, 1, v0"); a("v_lshlrev_b32 v5, 3, v5")
    a("v_mul_u32_u24 v6, 384, v1"); a("v_add_u32 v5, v5, v6")
    for m in range(4):
        a(f"v_xor_b32 v6, {32 * m}, v4"); a(f"v_add_u32 {vaddr[m]}, v5, v6")
    a("v_and_b32 v3, 1, v2"); a(f"v_mul_u32_u24 v3, {12288 + cfg.wshift}, v3"); a(f"v_add_u32 v3, {VS[0]}, v3")
    a("v_lshrrev_b32 v4, 1, v2"); a("v_lshlrev_b32 v4, 2, v4"); a("v_bfe_u32 v5, v0, 2, 2"); a("v_add_u32 v4, v4, v5")
    a("v_mul_u32_u24 v4, 384, v4"); a("v_add_u32 v3, v3, v4")
    a("v_bfe_u32 v4, v0, 3, 1"); a("v_lshlrev_b32 v4, 2, v4"); a("v_and_b32 v5, 3, v0"); a("v_xor_b32 v4, v4, v5"); a("v_lshlrev_b32 v4, 4, v4")
    a(f"v_add_u32 {waddr[0]}, v3, v4"); a("v_xor_b32 v4, 64, v4"); a(f"v_add_u32 {waddr[1]}, v3, v4")
    return o

def setup_variant(nq, cfg):
    o = []
    def a(t):
        i = raw(t); i.nosim = True; o.append(i)
    if nq == 4:
        a(f"s_mul_i32 {sGrp}, {sWave}, 3072")
        a(f"s_and_b32 {sT0}, {sWave}, 1"); a(f"s_lshl_b32 {sT0}, {sT0}, 2"); a(f"s_lshr_b32 {sT1}, {sWave}, 1"); a(f"s_lshl_b32 {sT1}, {sT1}, 5")
        a(f"s_add_u32 {sT0}, {sT0}, {sT1}"); a(f"s_mul_i32 {sT0}, {sT0}, 12288"); a(f"s_add_u32 {sWoff}, {sWoff}, {sT0}")
        a(f"s_lshl_b32 {sT0}, {sWave}, 13"); a(f"s_add_u32 {sXl[0]}, {sT0}, {KS[1]}"); a(f"s_add_u32 {sXl[1]}, {sT0}, {KS[2]}")
    else:
        a(f"s_mov_b32 {sXl[0]}, {EB}"); a(f"s_mov_b32 {sXl[1]}, {EB + 6144}")
        a("v_mov_b32 v1, 0"); a("v_lshlrev_b32 v2, 2, v0"); a("s_mov_b64 exec, 15"); a(f"buffer_store_dword v1, v2, {sEx}, {sFs} offen sc1"); a("s_mov_b64 exec, -1")
    a(f"s_add_u32 {sKend}, {sKoff}, {16 * 3072 * kv_map(cfg)[0]}"); a(f"s_mov_b32 {sVend}, {sKend}")
    a(f"s_add_u32 {sWend}, {sWoff}, 7864320"); a(f"s_add_u32 {sXend}, {sXoff}, 1280")
    if cfg.rotkv:
        a(f"s_mul_i32 {sT0}, s2, 5"); a(f"s_lshr_b32 {sT1}, s2, 4"); a(f"s_add_u32 {sT0}, {sT0}, {sT1}"); a(f"s_and_b32 {sT0}, {sT0}, 15")
        a(f"s_mul_i32 {sT0}, {sT0}, {3072 * kv_map(cfg)[0]}"); a(f"s_add_u32 {sKoff}, {sKoff}, {sT0}")
    if cfg.rotq == 1:
        a(f"s_lshr_b32 {sT0}, {sTp}, 3"); a(f"s_lshl_b32 {sT0}, {sT0}, 1"); a(f"s_and_b32 {sT1}, {sTp}, 7"); a(f"s_add_u32 {sT0}, {sT0}, {sT1}")
        a(f"s_mul_i32 {sT0}, {sT0}, 5"); a(f"s_lshr_b32 {sT0}, {sT0}, 2")
        a(f"s_cmp_ge_u32 {sT0}, 10"); a(f"s_cselect_b32 {sT1}, 10, 0"); a(f"s_sub_u32 {sT0}, {sT0}, {sT1}")
    if cfg.rotq == 2:
        a(f"s_lshr_b32 {sT0}, {sTp}, 3"); a(f"s_xor_b32 {sT0}, {sT0}, {sTp}"); a(f"s_and_b32 {sT0}, {sT0}, 1"); a(f"s_mul_i32 {sT0}, {sT0}, 5")
    if cfg.rotq:
        a(f"s_mul_i32 {sRw}, {sT0}, 786432"); a(f"s_lshl_b32 {sRx}, {sT0}, 7")
    a(f"s_mov_b32 {sVoff}, {sKoff}")
    a(f"s_mov_b32 {sK0}, {sKoff}"); a(f"s_mov_b32 {sW0}, {sWoff}"); a(f"s_mov_b32 {sX0}, {sXoff}")
    def spaced(seq):
        for i in seq:
            o.append(i)
            if 'm0' in i.wr: o.append(nop(0))
    spaced(job_x(nq, 0, 0, cfg)); spaced(job_tile(nq, 'W', vR, absT('W', 0, 0), cfg))
    o.extend(lds_addr_setup(cfg))
    spaced(job_x(nq, 1, 0, cfg)); spaced(job_tile(nq, 'W', vN, absT('W', 0, 1), cfg))
    o.append(wait(need_vm=lambda c: [('x', 0, 0), ('W', 0, 0)], free=False)); o.append(barrier())
    dep = []
    for q in range(nq):
        for u in range(2):
            r = rdX(nq, 0, 0, q, u); dep += r.wr; o.append(r)
    for T in range(2):
        for (u, e) in UE: o.append(rdW(T, u, e, absT('W', 0, 0)))
    o.append(wait())
    spaced(job_x(nq, 2, 0, cfg, dep))
    o.append(wait())
    return o

def stamp(cfg, idx):
    if not cfg.stamps: return []
    return [raw("s_memrealtime s[56:57]"), raw("s_memtime s[58:59]"), raw("s_waitcnt lgkmcnt(0)"),
            raw(f"v_writelane_b32 {vStamp}, s56, {2 * idx}"), raw(f"v_writelane_b32 {vStamp}, s58, {2 * idx + 1}")]
def finish(cfg, idx):
    e = []
    if cfg.stamps:
        e += [raw("s_waitcnt vmcnt(0)")] + stamp(cfg, idx)
        e += [raw(f"s_lshl_b32 {sTp}, s2, 2"), raw(f"s_add_u32 {sTp}, {sTp}, {sWave}"), raw(f"s_lshl_b32 {sTp}, {sTp}, 8"),
              raw(f"s_add_u32 {sTp}, {sTp}, {STOFF}"), raw(f"v_lshrrev_b32 v0, 2, {vL16}"),
              raw(f"buffer_store_dword {vStamp}, v0, {sEx}, {sTp} offen")]
        if cfg.dbgst == 2 and idx == 7:
            e += [raw("s_cmp_ge_u32 s2, 16"), raw("s_cbranch_scc1 L_nox"), raw("s_getreg_b32 s56, hwreg(HW_REG_XCC_ID)"), raw("s_add_u32 s56, s56, 100"),
                  raw("v_mov_b32 v1, s56"), raw("s_lshl_b32 s57, s2, 2"), raw(f"buffer_store_dword v1, off, {sDbg}, s57"), raw("L_nox:")]
        if cfg.dbgst == 1 and idx == 7:
            e += [raw(f"v_not_b32 v1, {vStamp}"), raw(f"v_cmp_eq_u32 vcc, 480, {vL16}"), raw("s_nop 1"), raw(f"v_cndmask_b32 v1, {vStamp}, v1, vcc"),
                  raw(f"v_lshrrev_b32 v0, 3, {vL16}"), raw("s_mov_b32 exec_lo, 0x40005555"), raw("s_mov_b32 exec_hi, 0"),
                  raw(f"buffer_atomic_umax v1, v0, {sDbg}, 0 offen sc1"), raw("s_mov_b64 exec, -1")]
    return e + [raw("s_endpgm")]

def variant(nq, cfg, common):
    sfx = f"_{nq}"
    st = lambda i: stamp(cfg, i)
    su = setup_variant(nq, cfg) + st(0)
    q1 = qproj(nq, cfg, False); q1.add_wait_sites()
    q2 = qproj(nq, cfg, True); q2.add_wait_sites()
    cp = conv_prologue(nq, cfg)
    jK = lambda: job_tile(nq, 'K', kF, tagK(3), cfg, groups=range(8))
    jV = lambda: job_tile(nq, 'V', vF, tagV(2), cfg, groups=range(4, 8))
    jL = lambda: [job_tile(nq, 'V', vF, tagV(3), cfg, groups=range(4), adv=False)]
    i0 = attn_iter(nq, 0, cfg, first_pv=True, jobs=[jV(), jK()], late=jL())
    i1 = attn_iter(nq, 1, cfg, jobs=[jV(), jK()], late=jL())
    i2 = attn_iter(nq, 0, cfg, jobs=[jV(), jK()], late=jL())
    two = nq == 4 and cfg.twoloops
    if two:
        j1, j2 = i1, i2
        i1 = attn_iter(nq, 1, cfg, jobs=[jV(), jK()], late=jL(), gentle=True)
        i2 = attn_iter(nq, 0, cfg, jobs=[jV(), jK()], late=jL(), gentle=True)
        j2.place(salu("s_sub_u32", sLoop, sLoop, 1), 20, 60)
    fix = []
    for o_, d_ in ((sKoff, 16 * 393216), (sKend, 16 * 393216), (sVoff, 16 * 393216), (sVend, 16 * 393216), (sWoff, 16 * 384), (sWend, 16 * 384)):
        if nq == 3 or o_ in (sWoff, sWend): fix.append(salu("s_add_u32", o_, o_, d_))
    if cfg.rotq: fix += [salu("s_add_u32", sWoff, sWoff, sRw), salu("s_add_u32", sXoff, sXoff, sRx)]
    a13 = attn_iter(nq, 1, cfg, jobs=[jV(), fix, job_x(nq, 0, 1, cfg)])
    a14 = attn_iter(nq, 0, cfg, jobs=[job_tile(nq, 'W', vF, absT('W', 1, 0), cfg), job_x(nq, 1, 1, cfg)], next_k=False, k_rot=False)
    a15 = attn_last(nq, cfg, 'Q')
    pf = []
    if cfg.wopf and nq == 3:
        pf.append(valu("v_lshlrev_b32", V(243), 3, vL16))
        for i in range(8):
            pf.append(gload(V(244), V(243), sWo, sWopf, 0, "", op="buffer_load_dword"))
            pf[-1].wr = []
            pf.append(salu("s_add_u32", sWopf, sWopf, 8192 if i < 6 else 4096) if i < 7 else salu("s_sub_u32", sWopf, sWopf, 6 * 8192 + 4096))
    b13 = attn_iter(nq, 1, cfg, jobs=[jV(), pf], late=[calc_raddr()])
    b14 = attn_iter(nq, 0, cfg, jobs=[([poll_issue(0)] if nq == 3 else []), job_u(0, cfg)], next_k=False, k_rot=False)
    if nq == 3:
        gb = 12 * 9 - 1
        b14.put(gb, wait()); b14.put(gb, poll_check(0))
    b15 = attn_last(nq, cfg, 'P')
    pa = p_chunks(0, CS, nq, cfg)
    ini = [salu("s_lshr_b32", sJmp, sBad.sub(0), 1), salu("s_sub_u32", sJmp, 4, sJmp),
           salu("s_and_b32", sStol, S(2), 1), salu("s_lshl_b32", sStol, sStol, 4), salu("s_sub_u32", sStol, 11, sStol),
           smov(sA18, 19), smov(sHn, 2), salu("s_add_u32", sOn, sOb, 2 * 92160), salu("s_add_u32", sWn, sWb, 2 * 192 * 1280)]
    ini[1].simfn = lambda st: st.__setitem__(str(sJmp), st['jmp'])
    ini[4].simfn = lambda st: st.__setitem__(str(sStol), 11)
    ini[5].simfn = lambda st: st.__setitem__(str(sA18), st['after18'])
    seq_after(pa, ini[:2], 0, 7); seq_after(pa, ini[2:] + next_head(), 400, 470)
    if cfg.ctouch and nq == 3:
        i1.put(10, code_touch(["L_tail1_4", "L_tail1_3"], 144, guard=(sLoop, 1), alt=["L_tail2_4", "L_tail2_3"]))
        q2.put(72 * 2 + 5, code_touch(["L_tail1_4+16384", "L_tail1_3+16384"], 144))
        q2.put(72 * 8 + 5, code_touch(["L_head_4", "L_head_3"] + (["L_tail2_4"] if cfg.twoloops else []), 144))
        if cfg.ctouch > 1: q1.put(72 * 6 + 5, code_touch(["L_head_4", "L_head_3"], 144))
        pa.put(80 * 3 + 9, code_touch(["L_pcommon"], 246))
    i0.place(smov(sLoop, 6), 20, 60)
    i2.place(salu("s_sub_u32", sLoop, sLoop, 1), 20, 60)
    for s in (i0, i1, i2, a13, a14, a15, b13, b14, b15) + ((j1, j2) if two else ()):
        s.add_wait_sites()
        for g_, ins_ in getattr(s, 'extra', []):
            for i_ in ins_: s.put(g_, i_)
    loopend = [scmp("s_cmp_lg_u32", sLoop, 0), raw(f"s_cbranch_scc1 L_loop{sfx}")]
    loopend2 = [scmp("s_cmp_lg_u32", sLoop, 0), raw(f"s_cbranch_scc1 L_tail2{sfx}")]
    headbr = [scmp("s_cmp_lg_u32", sHead, 0), raw(f"s_cbranch_scc1 L_tail2{sfx}")]
    back = [smov(sHead, 1), raw(f"s_branch L_head{sfx}")]
    idlebr = [scmp("s_cmp_lg_u32", sIdle, 0), raw(f"s_cbranch_scc1 L_idle{sfx}"), wait()]
    idle = [label(f"L_idle{sfx}")]
    i = 0
    for s in range(6):
        for q in range(nq):
            idle += epi_block(q, s, TMP[i & 1], cfg); i += 1
    idle += [raw("s_waitcnt vmcnt(0)"), barrier()]
    if nq == 3: idle += [salu("s_add_u32", sSig, sMyc, 64), signal_add(sSig, False)]
    idle += finish(cfg, 8)
    L = lambda s: s.linear()
    s1, s3, s4, s5 = st(1), st(2), st(3), st(4)
    jump = [raw("s_branch L_pcommon")] if nq == 3 else []
    code = su + L(q1) + s1 + [label(f"L_head{sfx}")] + cp + L(i0) + (headbr if two else []) + [raw(".p2align 3", 'L', states=0), label(f"L_loop{sfx}")] + L(i1) + L(i2) + loopend + ([] if two else headbr) \
        + [label(f"L_tail1{sfx}")] + L(a13) + L(a14) + L(a15) + s3 + L(q2) + s4 + back + slow_path(nq, cfg) + idle \
        + [raw(".p2align 12", 'L', states=0), label(f"L_tail2{sfx}")] + (L(j1) + L(j2) + loopend2 if two else []) + L(b13) + L(b14) + L(b15) + s5 + idlebr + L(pa) + jump
    tr = []
    def add(ins, **c): tr.extend((i, c) for i in ins)
    add(su, h=0, t=-9); add(L(q1) + s1, h=0, t=-5)
    for h in range(2):
        add(cp, h=h, t=-1); add(L(i0), h=h, t=0)
        for t in range(1, 13, 2):
            if two and t == 1: add(headbr, h=h, t=0)
            if two and h == 1: add(L(j1), h=h, t=t); add(L(j2), h=h, t=t + 1); add(loopend2, h=h, t=t + 1)
            else: add(L(i1), h=h, t=t); add(L(i2), h=h, t=t + 1); add(loopend, h=h, t=t + 1)
        if not two: add(headbr, h=h, t=12)
        if h == 0:
            add(L(a13), h=0, t=13); add(L(a14), h=0, t=14); add(L(a15) + s3, h=0, t=15); add(L(q2) + s4, h=1, t=-5); add(back, h=1, t=-5)
        else:
            add(L(b13), h=1, t=13); add(L(b14), h=1, t=14); add(L(b15) + s5, h=1, t=15)
    tr_idle = tr + [(i, dict(h=1, t=16)) for i in idlebr[:2] + idle]
    trs = []
    cpre, cloop, cpost = common
    for heads in ([0, 1, 2, 3, 16, 17, 18, 19], [0, 1, 2, 16, 17, 18, 19], [0, 1, 2, 3, 16, 17, 18, 11, 19]):
        t2 = [(i, dict(c, heads=heads)) for i, c in tr]
        t2 += [(i, dict(h=1, t=16, heads=heads)) for i in idlebr + L(pa) + jump + cpre]
        for p in range(len(heads) - 3): t2 += [(i, dict(h=1, t=16, heads=heads, dc=3 * p)) for i in cloop]
        t2 += [(i, dict(h=1, t=16, heads=heads, dc=3 * (len(heads) - 8))) for i in cpost]
        trs.append(t2)
    tr = trs
    info = dict(q1=q1, q2=q2, i0=i0, i1=i1, i2=i2, a13=a13, a14=a14, a15=a15, b13=b13, b14=b14, b15=b15, pa=pa)
    return code, tr, tr_idle, info

def sim_variant(nq, tr, cfg, jmp, a18):
    ok = True
    for w in ([0, 1, 2] if nq == 4 else [3]):
        h0 = 5
        grp = w * 3072 if nq == 4 else 0
        k0 = [0, 4, 32, 0][w]
        ggrp = kv_map(cfg)[1][w] * 3072 if nq == 4 else 0
        kst = 3072 * kv_map(cfg)[0]
        rk = 7 if cfg.rotkv else 0; rq = 3 if cfg.rotq else 0
        init = {'wave': w, 'jmp': jmp, 'after18': a18, 'h0': h0, 'rk': rk, 'rq': rq, str(kR): KS[0], str(kN): KS[1], str(kF): KS[2], str(vR): VS[0], str(vN): VS[1], str(vF): VS[2],
                str(sVcur): 0, str(sWcur): VS[0], str(sKoff): h0 * 393216 + ggrp, str(sVoff): h0 * 393216 + ggrp, str(sWoff): h0 * 384 + k0 * 12288,
                str(sXoff): w * 64 * 1280, str(sOoff): h0 * 92160 + w * 4 * 6144, str(sGrp): grp,
                str(sXl[0]): (KS[1] + w * 8192 if nq == 4 else EB), str(sXl[1]): (KS[2] + w * 8192 if nq == 4 else EB + 6144),
                str(sOb): 1000000, str(sWb): 2000000, str(sLb): 3000}
        init[str(sKend)] = init[str(sKoff)] + 16 * kst; init[str(sVend)] = init[str(sKend)]
        init[str(sWend)] = init[str(sWoff)] + 7864320; init[str(sXend)] = init[str(sXoff)] + 1280
        init[str(sKoff)] += rk * kst; init[str(sVoff)] += rk * kst; init[str(sRw)] = rq * 786432; init[str(sRx)] = rq * 128
        for r in kaddr + vaddr: init[str(r)] = 0
        for r in waddr: init[str(r)] = VS[0]
        if not cfg.fake and not cfg.pfake: ok = sim_scalar(tr, init, f"nq{nq} w{w}") and ok
    return ok

def build(cfg, name):
    su = setup(cfg)
    pl = p_chunks(CS, CS + 3, None, cfg, loop=True)
    pb = p_chunks(NCH - 3, NCH - 2, None, cfg)
    if cfg.ctouch: pl.put(89, code_touch(["L_ptail"], 246, guard=(sHc, 17)))
    pt, fin = p_tail(cfg)
    cpre = [label("L_pcommon")] + stamp(cfg, 5) + [raw(".p2align 3", 'L', states=0), label("L_ploop")]
    cloop = pl.linear() + [scmp("s_cmp_lg_u32", sHc, 19), raw("s_cbranch_scc1 L_ploop")]
    cpost = [label("L_ptail")] + pb.linear() + pt.linear() + stamp(cfg, 6) + fin + finish(cfg, 7)
    parts = (cpre, cloop, cpost)
    common = cpre + cloop + cpost
    c4, t4, ti4, inf4 = variant(4, cfg, parts)
    c3, t3, ti3, inf3 = variant(3, cfg, parts)
    alltr = [("nq4", t) for t in t4] + [("nq3", t) for t in t3] + [("idle4", ti4), ("idle3", ti3)]
    for rep in range(2):
        for n, t in alltr: derive_waits(t, n)
    ok = True
    for n, t in (("nq4", t4[0]), ("nq3", t3[0]), ("idle4", ti4), ("idle3", ti3)): ok = check_hazards(t, n) and ok
    ok = check_seqs(c4 + common) and check_seqs(c3) and ok
    for k, (jmp, a18) in enumerate(((4, 19), (3, 19), (4, 11))):
        ok = sim_variant(4, t4[k], cfg, jmp, a18) and sim_variant(3, t3[k], cfg, jmp, a18) and ok
        ok = check_lds({4: t4[k], 3: t3[k]}) and ok
    for n, inf in (("nq4", inf4), ("nq3", inf3)): print(n, "model cycles:", {k: s.cycles() for k, s in inf.items()})
    print("common", pl.cycles(), pb.cycles(), pt.cycles())
    assert ok
    lines = [f".globl {name}", ".p2align 8", f".type {name},@function", f"{name}:"]
    lines += emit(su) + emit(c4) + emit(common) + ["L_end:", "s_endpgm", "L_v3:"] + emit(c3)
    out = []
    for l in lines: out += l.split("\n")
    return out

if __name__ == "__main__":
    print(len(build(Cfg(), "k_kernel")), "lines")
```

```python
import math, struct
from asmlib import *

SL = 24832
KS = [0, SL, 2 * SL]
VS = [3 * SL, 4 * SL, 5 * SL]
EB = 6 * SL
FLAG = EB + 12288
LDS_BYTES = 163840

sX, sW, sK, sV, sO = S(4, 4), S(8, 4), S(12, 4), S(16, 4), S(20, 4)
sWave = S(24)
kR, kN, kF = S(25), S(26), S(27)
vR, vN, vF = S(28), S(29), S(30)
sKoff, sVoff, sWoff, sXoff = S(31), S(32), S(33), S(34)
sLoop, sHead = S(35), S(36)
sThr = S(37)
sC2 = S(38, 2)
sGrp = S(40)
sT0, sT1, sT2, sT3, sT4 = S(41), S(42), S(43), S(47), S(55)
sXl = [S(44), S(45)]
sOoff = S(46)
sWcur, sVcur = S(48), S(49)
sTo = S(50)
sTx = S(51)
sBad = S(52, 2)
sWopf = S(54)
sTs = S(56, 4)
sOr, sOut, sEx, sDbg = S(60, 4), S(64, 4), S(68, 4), S(72, 4)
sOb, sWb, sLb, sOutb = S(76), S(77), S(78), S(79)
sExs, sExr, sFs, sFr = S(80), S(81), S(82), S(83)
sRw, sRx = S(0), S(1)
sSig, sCnt, sMyc = S(84), S(85), S(86)
sRedo, sIdle = S(87), S(88)
sK0, sW0, sX0 = S(89), S(90), S(91)
sKend, sVend, sWend, sXend = S(92), S(93), S(94), S(95)
sWo = S(96, 4)
sSpin = S(100)
sTp = S(101)
sHc, sHn, sJmp, sStol = S(25), S(26), S(27), S(28)
sOc, sWc, sOn, sWn = S(29), S(30), S(31), S(32)
sA18 = S(33)
OOB = 0x7fff0000
EXOFF = 0x3000000
FLOFF = 0xC00000
STOFF = 0x1000000

def blk(q, s): return q * 6 + s
def Qf(q, s): return V(8 * blk(q, s), 4)
def QACC(T, q): return V(8 * blk(q, T >> 1) + 4 * (T & 1), 4)
def U(i): return V(8 * i + 4, 4)
def Pf(par, q, u): return U(par * 8 + q * 2 + u)
def Sf(i): return U(16 + (i & 3))
def Ci(q): return U(20 + q)
def VB(b, u, e=None):
    return V(192 + 8 * b + 4 * u, 4) if e is None else V(192 + 8 * b + 4 * u + 2 * e, 2)
TMP = [V(216, 8), V(224, 8)]
def Lq(q): return V(232 + q)
kaddr = [V(236), V(237)]
vaddr = [V(238), V(239), V(240), V(241)]
waddr = [V(242), V(243)]
xaddr = [V(244), V(245)]
dKV = [V(246), V(247), V(248)]
dW = [V(249), V(250), V(251)]
dX = V(252)
vL16 = V(253)
vt0, vt1 = V(224), V(225)
vOne = V(254)
vStamp = V(255)
raddr = [V(249), V(250), V(251), V(242)]
def PACC(N, q): return V(4 * (N * 5 + q), 4)
def OF(b, q, u):
    i = 2 * q + u
    if b == 0: return A(192 + 4 * i, 4)
    if b == 1: return A(232 + 4 * i, 4) if i < 6 else U(20 + i - 6)
    return V(8 * (20 + i), 4) if i < 4 else A(4 * (i - 4), 4)
def Oacc(T, q): return A(4 * (T * 4 + q), 4)
def Lacc(q): return A(240 + 4 * q, 4)
ONES = V(232, 4)
def Kf(b, s): return A(192 + 24 * b + 4 * s, 4)
def Xf(par, q, u): return A(192 + 32 * par + 8 * q + 4 * u, 4)

def fbits(x): return "0x%08x" % struct.unpack("<I", struct.pack("<f", x))[0]

class Cfg:
    wshift = 8
    kvflags = "nt"
    wflags = ""
    xflags = ""
    oflags = "sc1"
    orflags = "sc1"
    woflags = ""
    pubchunk = 3
    epist = 9
    balance = 1
    spinat = -2
    twoloops = 1
    gentle = 4
    pfake = 0
    pclus = 0
    prd = 1
    pskip = 0
    markchunk = 0
    xend = 120
    ctouch = 2
    kvperm = 1
    lmfma = 1
    dbgst = 0
    xpace = 0
    l2pf = 0
    l2n = 3
    l2tot = 12
    l2fl = ""
    ntlate = 99
    outflags = ""
    thr = 40
    stamps = False
    fake = 0
    nostore = 0
    w3all = 1
    rotkv = 1
    rotq = 1
    codepf = 1
    wopf = 1

def tagK(dn): return lambda c: ('K', c['h'], c['t'] + dn)
def tagV(dn): return lambda c: ('V', c['h'], c['t'] + dn)
def absT(kind, dh, n): return lambda c: (kind, c['h'] + dh, n)
def slot_of(tile, nq):
    k, h, n = tile
    if k == 'K': return ('k', n % 3)
    if k == 'x': return ('k', 1 + n % 2) if nq == 4 else ('e', n % 2)
    if k == 'W': return ('v', (h * 26 + n) % 3)
    if k == 'V': return ('v', (h * 26 + 10 + n) % 3)
    if k == 'U': return ('kv', (n + 1) % 3)

def kv_map(cfg):
    return {0: (8, list(range(8))),
            1: (1, [0, 32, 64, 96, 16, 48, 80, 112]),
            2: (2, [0, 32, 64, 96, 1, 33, 65, 97]),
            3: (4, [0, 64, 1, 65, 2, 66, 3, 67])}[cfg.kvperm]
def slot_base(slot):
    return {'k': KS, 'v': VS, 'e': [EB, EB + 6144]}[slot[0]][slot[1]]
def exp_dma(ins, tag, nq, soff, imm, idx, cfg):
    def f(c, st):
        k, h, n = tag(c); w = st['wave']; base = slot_base(slot_of((k, h, n), nq)); hh = st['h0'] + 16 * h
        if k == 'x':
            el = base + (w * 8192 if nq == 4 else 0) + idx * 1024
            eg = w * 64 * 1280 + 128 * ((n + st['rq'] * h) % 10) + idx * 10240
        else:
            i = idx + (3 * w if nq == 4 else 0); mm = i // 3
            n = (n + st['rq'] * h) % 10 if k == 'W' else (n + st['rk']) % 16
            el = base + i * 1024
            if k == 'W':
                el += cfg.wshift if mm >= 4 else 0
                eg = hh * 384 + (64 * n + 32 * ((mm & 3) >> 1) + 4 * (mm & 1) + 8 * (mm >> 2)) * 12288 + (i % 3) * 1024
            else: eg = hh * 393216 + (n * kv_map(cfg)[0] + kv_map(cfg)[1][mm]) * 3072 + (i % 3) * 1024
        gl, gg = st.get('m0'), st.get(str(soff))
        if gl is None or gg is None or gl + imm != el or gg + imm != eg: return f"lds {gl}+{imm} vs {el}; glob {gg}+{imm} vs {eg} tile {(k, h, n)}"
    ins.expect = f
    return ins
def exp_rd(ins, addr, tag):
    def f(c, st):
        base = slot_base(slot_of(tag(c), 4))
        if st.get(str(addr)) != base: return f"base {st.get(str(addr))} vs {base} tile {tag(c)}"
    ins.expect = f
    return ins

def advance(off, end, step, span, on=True):
    o = [salu("s_add_u32", off, off, step)]
    if on:
        i = Ins(f"s_cmp_eq_u32 {off}, {end}\ns_cselect_b32 {sT4}, {span}, 0", 'S', rd=off.regs() + end.regs(), wr=['scc'] + sT4.regs(), states=2)
        i.cost = 2
        i.simfn = lambda st: st.__setitem__(str(sT4), span if st[str(off)] == st[str(end)] else 0)
        o += [i, salu("s_sub_u32", off, off, sT4)]
    return o

def job_tile(nq, kind, slotreg, tag, cfg, groups=None, adv=True, flo=None):
    srd, off, end, addr, fl = {'K': (sK, sKoff, sKend, dKV, cfg.kvflags), 'V': (sV, sVoff, sVend, dKV, cfg.kvflags),
                               'W': (sW, sWoff, sWend, dW, cfg.wflags)}[kind]
    sl = lambda c: slot_of(tag(c), nq)
    if flo is not None: fl = flo
    out = []
    if nq == 4:
        if groups is None:
            out.append(salu("s_add_u32", 'm0', slotreg, sGrp))
            for m in range(3): out.append(exp_dma(dma(addr[m], srd, off, 1024 * m, fl, tag=tag, slot=sl), tag, nq, off, 1024 * m, m, cfg))
    else:
        for mm in (range(3, 8) if groups is None else groups):
            if kind == 'W':
                k0 = 32 * ((mm & 3) >> 1) + 4 * (mm & 1) + 8 * (mm >> 2)
                go = k0 * 12288; lo = mm * 3072 + (cfg.wshift if mm >= 4 else 0)
            else:
                lo = mm * 3072; go = kv_map(cfg)[1][mm] * 3072
            out.append(salu("s_add_u32", 'm0', slotreg, lo))
            out.append(salu("s_add_u32", sT0, off, go))
            for m in range(3): out.append(exp_dma(dma(addr[m], srd, sT0, 1024 * m, fl, tag=tag, slot=sl), tag, nq, sT0, 1024 * m, 3 * mm + m, cfg))
    if adv and (nq == 3 or kind == 'W'):
        step = 786432 if kind == 'W' else 3072 * kv_map(cfg)[0]
        if cfg.fake and (kind != 'W' or cfg.fake > 1): step = 0
        out += advance(off, end, step, 7864320 if kind == 'W' else 16 * 3072 * kv_map(cfg)[0])
    return out

def job_x(nq, n, dh, cfg, dep=()):
    tag = absT('x', dh, n); sl = lambda c: slot_of(tag(c), nq)
    out = []
    for i in range(2 * nq):
        if i % 4 == 0: out.append(salu("s_add_u32", 'm0', sXl[n & 1], 1024 * i))
        out.append(salu("s_add_u32", sTx, sXoff, 10240 * i - 1024 * (i % 4)))
        d = dma(dX, sX, sTx, 1024 * (i % 4), 'nt' if n >= cfg.ntlate else cfg.xflags, tag=tag, slot=sl, private=True)
        exp_dma(d, tag, nq, sTx, 1024 * (i % 4), i, cfg)
        if i == 0: d.rd += list(dep)
        out.append(d)
    out += advance(sXoff, sXend, 0 if cfg.fake > 1 else 128, 1280)
    return out

def bstamp(sc, gw, gl):
    sc.put(gw, raw("s_memrealtime s[56:57]"), front=True)
    sc.put(gl, unit([f"v_cmp_eq_u32 vcc, s3, {vL16}", f"v_mov_b32 {vOne}, s56", "s_add_u32 s3, s3, 16", f"v_cndmask_b32 {vStamp}, {vStamp}, {vOne}, vcc"], 'V', cost=3))
def code_touch(targets, regs, guard=None, alt=None):
    lo, hi_, dummy = V(regs), V(regs + 1), V(regs + 2)
    _uid[0] += 1; n0 = _uid[0]
    l = [f"s_cmp_lg_u32 {guard[0]}, {guard[1]}", f"s_cbranch_scc1 L_cts{n0}"] if guard else []
    def one(target):
        _uid[0] += 1; n = _uid[0]
        return ["s_getpc_b64 s[58:59]", f"L_ct{n}:", f"s_add_u32 s58, s58, {target}-L_ct{n}", f"s_addc_u32 s59, s59, 0-(({target}-L_ct{n})>>63)",
                "s_and_b32 s58, s58, 0xfffff000",
                f"v_lshrrev_b32 {lo}, 7, {vL16}", f"v_lshlrev_b32 {lo}, 12, {lo}", f"v_and_b32 {hi_}, 0x70, {vL16}", f"v_lshl_add_u32 {lo}, {hi_}, 3, {lo}",
                f"v_min_u32 {lo}, L_code_end-({target})-4, {lo}",
                f"v_mov_b32 {hi_}, s59", f"v_add_co_u32 {lo}, vcc, s58, {lo}", "s_nop 1", f"v_addc_co_u32 {hi_}, vcc, 0, {hi_}, vcc",
                f"global_load_dword {dummy}, v[{lo.a}:{hi_.a}], off"]
    if alt: l += [f"s_cmp_lg_u32 {sHead}, 0", f"s_cbranch_scc1 L_cta{n0}"]
    for t in targets: l += one(t)
    if alt:
        l += [f"s_branch L_cts{n0}", f"L_cta{n0}:"]
        for t in alt: l += one(t)
    l.append(f"L_cts{n0}:")
    u = unit(l, 'S', cost=2 if guard else 18 * len(targets), wr=['scc', 'vcc'])
    u.states = 1
    return u
def lchain(q, par, first):
    o = [mfma(Lacc(q), ONES, Pf(par, q, u), 0 if (first and u == 0) else Lacc(q)) for u in range(2)]
    for i in o: i.cost = 4
    return o

def seq_after(sc, seq, lo, hi, even=False):
    seq = list(seq)
    SEQS.append(seq)
    hi = min(hi, len(sc.g) - 1)
    n = len(seq)
    nx = sum(1 for i in seq if i.kind == 'X'); kx = 0
    g = lo; prev = None; pg = None
    for k, ins in enumerate(seq):
        dl = max(g, min(hi, lo + ((k + 1) * (hi - lo + 1) + n - 1) // n - 1))
        if not even: dl = max(g, min(hi, hi - (n - 1 - k) // 2))
        g1 = g
        if even and ins.kind == 'X': g1 = max(g, min(dl, lo + (kx * (hi - lo + 1)) // nx))
        same_bad = prev is not None and ((prev.kind in 'VE' and ins.kind not in 'VE') or ('m0' in prev.wr and ins.dma))
        if same_bad and g1 == pg:
            if g1 + 1 <= hi: g1 += 1; dl = max(dl, g1)
            else:
                if 'm0' in prev.wr: sc.g[g1].append(nop(0))
                sc.g[g1].append(ins); prev = ins; pg = g1
                for rest in seq[k + 1:]:
                    if 'm0' in prev.wr and rest.dma: sc.g[g1].append(nop(0))
                    sc.g[g1].append(rest); prev = rest
                return g1
        r = sc.place(ins, g1, dl, force=True)
        if ins.kind == 'X': kx += 1
        g = r; pg = r; prev = ins
    return g

def place_even(sc, seq, lo, hi): return seq_after(sc, seq, lo, hi, even=True)

def rdK(j, s, tag): return exp_rd(dsread("ds_read_b128", Kf(j & 1, s), kaddr[s & 1], (j & 3) * 6144 + (s >> 1) * 128, tag), kaddr[s & 1], tag)
def rdV(T, u, e, tag):
    T %= 12
    return exp_rd(dsread("ds_read_b64_tr_b16", VB(T & 3, u, e), vaddr[T & 3], (32 * u + 16 * e) * 384 + (T >> 2) * 128, tag), vaddr[T & 3], tag)
def rdW(T, u, e, tag):
    T %= 12
    s, uu = T >> 1, T & 1
    return exp_rd(dsread("ds_read_b64_tr_b16", VB(T % 3, u, e), waddr[s & 1], (2 * u + e) * 3072 + (s >> 1) * 128 + 8 * uu, tag), waddr[s & 1], tag)
def rdX(nq, n, dh, q, u):
    d = SL if nq == 4 else 6144
    return dsread("ds_read_b128", Xf(n & 1, q, u), xaddr[u], (n & 1) * d + q * 2048, absT('x', dh, n), private=True)
UE = [(0, 0), (0, 1), (1, 0), (1, 1)]

def rebase(regs, cur, new):
    return [salu("s_sub_u32", sT1, new, cur), smov(cur, new)] + [valu("v_add_u32", r, sT1, r) for r in regs]
def rotate(r, n, f): return [smov(sT2, r), smov(r, n), smov(n, f), smov(f, sT2)]
def rebaseK():
    return [salu("s_sub_u32", sT3, kN, kR)] + [valu("v_add_u32", r, sT3, r) for r in kaddr]

def softmax_ops(Sx, q, j, par):
    e = [vexp(Sx.sub(r), Sx.sub(r)) for r in range(4)]
    a = [valu("v_add_f32", Lq(q), Lq(q), Sx.sub(r)) for r in range(4)]
    P = Pf(par, q, j >> 1)
    c = [valu("v_cvt_pk_bf16_f32", P.sub(2 * (j & 1) + i), Sx.sub(2 * i), Sx.sub(2 * i + 1)) for i in range(2)]
    return e, a, c

def attn_iter(nq, par, cfg, first_pv=False, jobs=(), next_k=True, k_rot=True, late=(), gentle=False):
    NG = 4 * nq
    mf = []
    for G in range(NG):
        j, q = divmod(G, nq)
        for s in range(6):
            mf.append(mfma(Sf(G), Kf(j & 1, s), Qf(q, s), Ci(q) if s == 0 else Sf(G)))
        for n in range(3 * G, 3 * G + 3):
            T, qq = divmod(n, nq)
            for u in range(2):
                mf.append(mfma(Oacc(T, qq), VB(T & 3, u), Pf(par, qq, u), 0 if (first_pv and u == 0) else Oacc(T, qq)))
    sc = Sched(mf)
    def pvpos(n): return 12 * (n // 3) + 6 + 2 * (n % 3)
    sm = []
    for G in range(NG):
        Gp = (G - 1) % NG
        j, q = divmod(Gp, nq)
        e, a, c = softmax_ops(Sf(Gp), q, j, par if G == 0 else par ^ 1)
        eg = [0, 2, 4, 6]
        if gentle and cfg.gentle:
            lv = cfg.gentle // 2 + (cfg.gentle % 2) * (G % 2)
            eg = [[0, 2, 4, 6], [2, 2, 4, 6], [2, 2, 6, 6], [4, 4, 4, 4]][lv]
        for r in range(4): sc.put(12 * G + eg[r], e[r])
        sm.append((e, a, c))
    GB = 3 * nq
    bw = wait(need_vm=(lambda c: [('K', c['h'], c['t'] + 2), ('V', c['h'], c['t'] + 1)]), lgkm0=True, free=False)
    sc.put(12 * GB, bw, front=True)
    if cfg.stamps == 2 and nq == 4: bstamp(sc, 12 * GB, 12 * GB + 22)
    sc.put(12 * GB + 2, barrier(), front=True)
    bar = 12 * GB + 2
    reads = []
    for j in range(4):
        lo = 12 * nq * j
        nxt = (j == 3)
        tv, tk = (tagV(1), tagK(2)) if nxt else (tagV(0), tagK(1))
        for i in range(3):
            T = 3 * j + 3 + i
            l2 = lo if i == 0 else pvpos(nq * (T - 4) + nq - 1) + 1
            l2 = max(l2, lo)
            if nxt: l2 = max(l2, bar + 1)
            item = [(rdV(T, u, e, tv), l2) for (u, e) in UE]
            reads.append((l2, 0, item))
        if not nxt or next_k:
            l2 = max(lo, bar + 1) if nxt else lo
            reads.append((l2, 1, [(rdK(j + 1, s, tk), l2) for s in range(6)]))
    reads.sort(key=lambda x: (x[0], x[1]))
    g = 0
    lastpre = 0
    for _, _, item in reads:
        for ins, l2 in item:
            g = max(g, l2)
            while not (g % 12 in (1, 3, 5, 7, 8, 9) and not sc.g[g]) :
                g += 1
                if nq == 3 and g % 12 in (10, 11) and not sc.g[g]: break
            assert g < len(mf), "ds overflow"
            sc.put(g, ins)
            if g < bar: lastpre = g
    assert lastpre < 12 * GB
    upd = rebase(vaddr, sVcur, vN) + (rebaseK() if k_rot else [])
    for G in range(NG):
        e, a, c = sm[G]
        b = 12 * G
        if nq == 3 and G == 0:
            order = [(a[0], 1), (c[0], 3), (a[1], 5), (c[1], 7), (a[2], 8), (a[3], 9)]
        else:
            order = [(a[0], 1), (a[1], 3), (c[0], 5), (a[2], 7), (a[3], 8), (c[1], 9)]
        for ins, o in order:
            if not (cfg.lmfma and ins in a): sc.put(b + o, ins)
    if nq == 3:
        for G in range(NG):
            sc.put(12 * G + 4, wait(), front=True)
            if G % 3 == 2: sc.put(12 * G + 11, wait())
    if cfg.xpace and nq == 4 and gentle:
        for G in range(NG): sc.put(12 * G + 6, nop(cfg.xpace - 1))
    seq_after(sc, upd, lastpre, bar)
    gj = 0
    seq = [i for jb in jobs for i in jb]
    if seq: gj = place_even(sc, seq, 0, 12 * GB - (2 if nq == 3 else 13))
    rot = rotate(vR, vN, vF) + (rotate(kR, kN, kF) if k_rot else [])
    sc.extra = [(12 * (4 * q + 2) + 11, lchain(q, par, first_pv)) for q in range(nq)] if cfg.lmfma else []
    seq = [i for jb in late for i in jb]
    if any(i.kind == 'X' for i in seq):
        gr = seq_after(sc, rot, bar + 1, bar + 4)
        place_even(sc, seq, gr + 1, len(mf) - 2)
    else:
        seq_after(sc, rot + seq, bar + 1, len(mf) - 2)
    return sc

NCH = 24
PSLOT = [0, SL - 1024, 2 * SL - 1024]
def head_of(c):
    hh, cc = divmod(c, 3)
    return (hh if hh < 4 else 12 + hh), cc
def tagU(c): return lambda ctx: ('U', 0, c + ctx.get('dc', 0))
def job_o(c, cfg, dyn=None):
    h, cc = head_of(c)
    if cfg.pfake & 1: h = 0; dyn = None
    out = []
    for q in range(5):
        out.append(salu("s_add_u32", sTp, dyn or sOb, (0 if dyn else h * 92160) + cc * 2048 + q * 6144))
        for u in range(2):
            l = gload(OF(c % 3, q, u), vL16, sOr, sTp, 1024 * u, cfg.orflags)
            l.expect = lambda ctx, st, q=q: None if st.get(str(sTp)) == st[str(sOb)] + ctx['heads'][(c + ctx.get('dc', 0)) // 3] * 92160 + cc * 2048 + q * 6144 else "o off"
            if cfg.pskip & 1 and (q, u) != (0, 0): continue
            if cfg.pskip & 4 and q >= 4: continue
            out.append(l)
    return out
def job_u(c, cfg, dyn=None):
    h, cc = head_of(c)
    if cfg.pfake & 2: h = 0; dyn = None
    tag = tagU(c); sl = lambda ctx: slot_of(tag(ctx), 4)
    out = []
    for i in range(8):
        if i % 4 == 0: out.append(salu("s_add_u32", 'm0', sLb, PSLOT[(c + 1) % 3] + 1024 * i))
        out.append(salu("s_add_u32", sTx, dyn or sWb, ((0 if dyn else h * 192) + 64 * cc + 8 * i) * 1280 - 1024 * (i % 4)))
        d = dma(dX, sWo, sTx, 1024 * (i % 4), cfg.woflags, tag=tag, slot=sl)
        d.expect = lambda ctx, st, i=i, el=PSLOT[(c + 1) % 3] + 4096 * (i // 4): \
            None if (st.get(str(sTx)) == st[str(sWb)] + (ctx['heads'][(c + ctx.get('dc', 0)) // 3] * 192 + 64 * cc + 8 * i) * 1280 - 1024 * (i % 4)
                     and st.get('m0') == st[str(sLb)] + el) else "u off"
        if cfg.pskip & 2 and i != 7: continue
        out.append(d)
    return out
def next_head():
    l = [f"s_mov_b32 {sHc}, {sHn}", f"s_mov_b32 {sOc}, {sOn}", f"s_mov_b32 {sWc}, {sWn}",
         f"s_add_u32 {sHn}, {sHc}, 1",
         f"s_cmp_eq_u32 {sHn}, {sJmp}", f"s_cselect_b32 {sHn}, 16, {sHn}",
         f"s_cmp_eq_u32 {sHc}, 18", f"s_cselect_b32 {sHn}, {sA18}, {sHn}",
         f"s_cmp_eq_u32 {sHc}, {sStol}", f"s_cselect_b32 {sHn}, 19, {sHn}",
         f"s_mul_i32 {sOn}, {sHn}, 92160", f"s_add_u32 {sOn}, {sOn}, {sOb}",
         f"s_mul_i32 {sWn}, {sHn}, {192 * 1280}", f"s_add_u32 {sWn}, {sWn}, {sWb}"]
    out = []
    for grp in (l[0:1], l[1:2], l[2:3], l[3:4], l[4:6], l[6:8], l[8:10], l[10:11], l[11:12], l[12:13], l[13:14]):
        out.append(unit(grp, 'S', wr=['scc']))
    def sim(st):
        st[str(sHc)] = st[str(sHn)]; st[str(sOc)] = st[str(sOn)]; st[str(sWc)] = st[str(sWn)]
        c_ = st[str(sHc)]; n = c_ + 1
        if n == st[str(sJmp)]: n = 16
        if c_ == 18: n = st[str(sA18)]
        if c_ == st[str(sStol)]: n = 19
        st[str(sHn)] = n; st[str(sOn)] = st[str(sOb)] + n * 92160; st[str(sWn)] = st[str(sWb)] + n * 192 * 1280
    def kill(st):
        st['save'] = {k: st[k] for k in (str(sHc), str(sHn), str(sOc), str(sWc), str(sOn), str(sWn)) if k in st}
        for k in st['save']: del st[k]
    def fin(st):
        st.update(st['save']); sim(st)
    out[0].simfn = kill; out[-1].simfn = fin
    return out
def flag_store(off, val):
    u = unit([f"v_mov_b32 {vOne}, {val}", "s_mov_b64 exec, 1", f"buffer_store_dword {vOne}, off, {sEx}, {sFs} offset:{off} sc1", "s_mov_b64 exec, -1"], 'S', cost=7)
    u.states = 2
    return u
SPAN = [divmod(gs, 8) for gs in range(176)] + [(22, N) for N in (6, 7, 4, 5)] + [(23, N) for N in (6, 7, 4, 5)] \
    + [(22, N) for N in (0, 1, 2, 3)] + [(23, N) for N in (2, 3, 0, 1)]
def rdU(gs, u, e):
    c, N = SPAN[gs]
    return dsread("ds_read_b64_tr_b16", VB(gs % 3, u, e), raddr[N & 3],
                  PSLOT[(c + 1) % 3] + (N >> 2) * 8192 + (32 * u + 16 * e) * 128, tag=tagU(c))
def calc_raddr():
    o = [valu("v_lshrrev_b32", vt0, 6, vL16),
         valu("v_and_b32", vt1, 6, vt0),
         valu("v_lshlrev_b32", vt0, 7, vt0),
         valu("v_bfe_u32", raddr[0], vL16, 4, 1),
         valu("v_lshl_add_u32", vt0, raddr[0], 3, vt0),
         valu("v_bfe_u32", raddr[0], vL16, 5, 1),
         valu("v_xor_b32", vt1, vt1, raddr[0]),
         valu("v_lshlrev_b32", vt1, 4, vt1),
         salu("s_lshr_b32", sTp, sWave, 1), salu("s_lshl_b32", sTp, sTp, 6),
         valu("v_xor_b32", vt1, sTp, vt1),
         salu("s_lshr_b32", sTp, sWave, 1), salu("s_mul_i32", sTp, sTp, 3 * SL, scc=False), salu("s_add_u32", sTp, sTp, 1024),
         valu("v_add_u32", vt0, sTp, vt0)]
    for m in range(4):
        o += [valu("v_xor_b32", raddr[m], 32 * m, vt1), valu("v_add_u32", raddr[m], raddr[m], vt0)]
    for i in o: i.nosim = True
    return o
def unit(lines, kind='S', cost=None, rd=(), wr=(), **kw):
    i = Ins("\n".join(lines), kind, rd=rd, wr=wr, states=len([l for l in lines if not l.endswith(":")]), **kw)
    i.cost = cost if cost is not None else len(lines)
    i.nosim = True
    return i
_uid = [0]
def signal_add(off, guarded):
    _uid[0] += 1; n = _uid[0]
    l = [f"v_mov_b32 {vOne}, 1", "s_mov_b64 exec, 1", f"buffer_atomic_add {vOne}, off, {sDbg}, {off} sc1", "s_mov_b64 exec, -1"]
    if guarded: l = [f"s_cmp_eq_u32 {off}, -1", f"s_cbranch_scc1 L_nosig{n}"] + l + [f"s_mov_b32 {off}, -1", f"L_nosig{n}:"]
    u = unit(l, 'S', cost=8, wr=['scc'])
    u.states = 2
    return u
def poll_issue(gen):
    return gload_off(V(226, 2), sDbg, sCnt, 0) if gen == 0 else gload_off(V(226), sDbg, sMyc, 64)
def gload_off(D, srd, soff, off):
    op = {1: "buffer_load_dword", 2: "buffer_load_dwordx2"}[D.n]
    return Ins(f"{op} {D}, off, {srd}, {soff} offset:{off} sc1", 'X', rd=srd.regs() + soff.regs(), wr=D.regs())
def cond_load(D, srd, soff, off, cmp_lines, vtmp):
    a = unit(cmp_lines + [f"s_cselect_b32 {sT0}, 0, 0x7ff00000", f"v_mov_b32 {vtmp}, {sT0}"], 'S', wr=['scc'] + sT0.regs() + vtmp.regs())
    b = Ins(f"buffer_load_dword {D}, {vtmp}, {srd}, {soff} offen offset:{off} sc1", 'X', rd=srd.regs() + soff.regs() + vtmp.regs(), wr=D.regs())
    return a, b
def poll_check(gen):
    _uid[0] += 1; n = _uid[0]
    l = [f"s_mov_b32 {sSpin}, 0x80000", f"L_poll{n}:"] + (["v_min_u32 v226, v226, v227", "s_nop 0"] if gen == 0 else []) + \
        [f"v_readfirstlane_b32 {sT0}, v226", "s_nop 3",
         f"s_cmp_ge_u32 {sT0}, 32", f"s_cbranch_scc1 L_pok{n}",
         "s_sleep 2", poll_issue(gen).text,
         f"s_sub_u32 {sSpin}, {sSpin}, 1", f"s_cmp_lg_u32 {sSpin}, 0", "s_waitcnt vmcnt(0)", f"s_cbranch_scc1 L_poll{n}", f"L_pok{n}:"]
    u = unit(l, 'S', cost=12, rd=['v226', 'v227'], wr=['v226', 'scc'] + sT0.regs())
    u.states = 0
    return u

def attn_last(nq, cfg, nxt):
    par = 1
    mf = []
    for T in range(12):
        for q in range(nq):
            for u in range(2): mf.append(mfma(Oacc(T, q), VB(T & 3, u), Pf(par, q, u), Oacc(T, q)))
    sc = Sched(mf)
    sp = 2 * nq
    e, a, c = softmax_ops(Sf(4 * nq - 1), nq - 1, 3, par)
    if nq == 4:
        for r in range(4): sc.put(r, e[r])
        sc.put(4, c[0]); sc.put(4, c[1])
        g0 = 6
    else:
        sc.put(0, e[0]); sc.put(0, e[1]); sc.put(1, e[2]); sc.put(1, e[3])
        sc.put(2, c[0]); sc.put(2, c[1])
        g0 = 4
    if not cfg.lmfma: sc.put(g0 - 1, a[0]); sc.put(g0 - 1, a[1])
    else: sc.put(g0 - 1, nop(0))
    g = g0
    for T in range(3, 12):
        g = max(g, sp * (T - 3))
        for (u, ee) in UE:
            sc.put(g, rdV(T, u, ee, tagV(0))); g += 1
        sc.put(g - 1, wait())
    lastv = g - 1
    if cfg.lmfma:
        sc.extra = [(sp - 1, [i for q in range(nq) for i in lchain(q, par, False)])]
        fin = [None] * ((sp + 8 - g0) // 2) + [valu("v_accvgpr_read_b32", Lq(q), Lacc(q).sub(0)) for q in range(nq)]
    else:
        fin = [a[2], a[3]]
        for q in range(nq):
            t = vt0 if q % 2 == 0 else vt1
            for w in (32, 16):
                fin += [valu("v_mov_b32", t, Lq(q)), None, vperm(w, t, Lq(q)), valu("v_add_f32", Lq(q), Lq(q), t)]
    fin += [valu("v_add_f32", vt0, Lq(0), Lq(1)), valu("v_add_f32", vt0, vt0, Lq(2))]
    if nq == 4: fin.append(valu("v_add_f32", vt0, vt0, Lq(3)))
    fin.append(Ins(f"v_cmp_ngt_f32 {sBad}, {sThr}, {vt0}", 'V', rd=vt0.regs() + sThr.regs(), wr=sBad.regs()))
    SEQS.append([i for i in fin if i is not None])
    g = g0
    for ins in fin:
        if ins is None: g += 2; continue
        g = sc.place(ins, g, g + 8)
    for q in range(nq):
        g = sc.place(vrcp(Lq(q), Lq(q)), g + 1, g + 8)
    ginv = g
    chk = [unit([f"s_cmp_lg_u64 {sBad}, 0", f"s_cselect_b32 {sBad.sub(0)}, 1, 0"], rd=sBad.regs(), wr=['scc'] + sBad.regs()),
           salu("s_lshl_b32", sTp, sWave, 2), salu("s_add_u32", sTp, sTp, FLAG), valu("v_mov_b32", vt0, sBad.sub(0))]
    if nxt == 'P' and nq == 3 and cfg.balance:
        sc.put(0, gload_off(V(226), sEx, sFr, 4), front=True)
        chk += [wait(), valu("v_lshl_or_b32", vt0, V(226), 1, vt0)]
    chk += [valu("v_mov_b32", vt1, sTp), dswrite("ds_write_b32", vt1, vt0, 0),
           valu("v_mov_b32", vOne, FLAG)]
    for i in chk: i.nosim = True
    g = seq_after(sc, chk, g + 1, g + 12)
    bar = sp * 10
    assert g < bar - 2
    gnext = g + 1
    if nxt == 'Q':
        w = wait(need_vm=lambda c: [('x', c['h'] + 1, 0)], free=False)
        gx = sc.place(w, sp * 3, sp * 4)
        dep = []
        for q in range(nq):
            for u in range(2):
                r = rdX(nq, 0, 1, q, u); dep += r.wr
                gx = sc.place(r, gx + 1, gx + 8)
        j1 = job_tile(nq, 'W', vF, absT('W', 1, 1), cfg)
        ge = place_even(sc, j1, g0, sp * 7)
        ws = wait(); gw = sc.place(ws, max(gx + 4, ge), max(gx + 4, ge) + 4)
        place_even(sc, job_x(nq, 2, 1, cfg, dep), gw + 1, len(mf) - 1)
        need = lambda c: [('W', c['h'] + 1, 0)]
    else:
        place_even(sc, job_u(1, cfg), g0, gnext - 1)
        place_even(sc, job_o(0, cfg) + job_o(1, cfg), gnext, len(mf) - 1)
        need = lambda c: [('U', 0, 0)]
    bw = wait(need_vm=need, lgkm0=True, free=False)
    gb = sc.place(bw, bar - 1, bar)
    gb = sc.place(barrier(), gb, bar + 1)
    fl = dsread("ds_read_b128", V(228, 4), vOne, 0)
    g = sc.place(fl, gb + 1, gb + 2)
    if nxt == 'Q':
        seq_after(sc, rebase(waddr, sWcur, vN), lastv, gb)
        seq_after(sc, rotate(vR, vN, vF), gb + 1, len(mf) - 1)
    for T in range(2):
        g = max(g, sp * (10 + T) - 1)
        for (u, ee) in UE:
            r = rdW(T, u, ee, absT('W', 1, 0)) if nxt == 'Q' else rdU(T, u, ee)
            g = sc.place(r, min(len(mf) - 1, g + 1), min(len(mf) - 1, g + 2))
        sc.place(wait(), g, g)
    sc.post = [valu("v_or3_b32", V(228), V(228), V(229), V(230)), valu("v_or_b32", V(228), V(228), V(231)), nop(0),
               Ins(f"v_readfirstlane_b32 {sBad.sub(0)}, v228", 'V', rd=['v228'], wr=sBad.sub(0).regs()), nop(3),
               salu("s_and_b32", sBad.sub(1), sBad.sub(0), 1),
               salu("s_andn2_b32", sBad.sub(1), sBad.sub(1), sRedo), raw(f"s_cbranch_scc1 L_slow_{nq}"), smov(sRedo, 0)]
    return sc

def epi_block(q, s, t, cfg, packed=False):
    ops = []
    for i in range(8):
        src = Oacc(2 * s + (i >> 2), q).sub(i & 3)
        ops.append(valu("v_accvgpr_read_b32", t.sub(i), src))
    for i in range(8): ops.append(valu("v_mul_f32", t.sub(i), t.sub(i), Lq(q)))
    for i in range(4): ops.append(valu("v_cvt_pk_bf16_f32", t.sub(i), t.sub(2 * i), t.sub(2 * i + 1)))
    ops.append(salu("s_add_u32", sTo, sOoff, q * 6144 + (4096 if s >= 4 else 0)))
    stv = gstore(t.sub(0, 4), vL16, sO, sTo, (s & 3) * 1024, cfg.oflags)
    def f(c, st):
        h = 0 if c['t'] < 0 else 1
        e = (st['h0'] + 16 * h) * 92160 + (4 * st['wave'] + q) * 6144 + s * 1024
        if st.get(str(sTo)) is None or st[str(sTo)] + (s & 3) * 1024 != e: return f"store off vs {e}"
    stv.expect = f
    if not cfg.nostore: ops.append(stv)
    return ops

def qproj(nq, cfg, epi):
    sp = 2 * nq; SN = 12 * sp
    mf = []
    for st in range(10):
        for T in range(12):
            for q in range(nq):
                for u in range(2):
                    mf.append(mfma(QACC(T, q), VB(T % 3, u), Xf(st & 1, q, u), 0 if (st == 0 and u == 0) else QACC(T, q)))
    sc = Sched(mf)
    drain = None
    for st in range(10):
        b = st * SN
        for T in range(10):
            g = b + sp * T
            for (u, e) in UE:
                sc.put(g, rdW(T + 2, u, e, absT('W', 0, st))); g += 1
            sc.put(g - 1, wait())
        lastw = g - 1
        need = [('W', st + 1)] if st < 9 else [('K', 0)]
        bw = wait(need_vm=(lambda c, need=need: [(k, c['h'], n) for k, n in need]), lgkm0=True, free=False)
        gb = b + sp * 10
        if epi and st == 9 and nq == 4: bw.vm = 0; drain = bw
        sc.put(gb, bw); sc.put(gb, barrier())
        if epi and st == 9 and nq == 3: sc.put(gb, signal_add(sMyc, False))
        if cfg.stamps == 3: bstamp(sc, gb, gb + 5)
        g = gb
        if st < 9:
            seq_after(sc, rebase(waddr, sWcur, vN), lastw, gb)
            for T in range(2):
                g = max(g, b + sp * (10 + T) - 1)
                for (u, e) in UE:
                    g += 1; sc.put(g, rdW(T, u, e, absT('W', 0, st + 1)))
                sc.put(g, wait())
        else:
            seq_after(sc, rebase(vaddr, sVcur, vN), lastw, gb)
            for s in range(6):
                g += 1; sc.put(g, rdK(0, s, absT('K', 0, 0)))
        seq_after(sc, rotate(vR, vN, vF), gb + 1, b + SN - 1)
        dep = []
        gx = b + sp * 4
        if st < 9:
            w = wait(need_vm=(lambda c, st=st: [('x', c['h'], st + 1)]), free=False)
            gx = sc.place(w, gx, gx + sp)
            for q in range(nq):
                for u in range(2):
                    r = rdX(nq, st + 1, 0, q, u); dep += r.wr
                    gx = sc.place(r, gx + 1, gx + sp)
        if st < 8: j1 = job_tile(nq, 'W', vF, absT('W', 0, st + 2), cfg)
        elif st == 8: j1 = job_tile(nq, 'V', vF, absT('V', 0, 0), cfg, groups=range(8))
        else: j1 = job_tile(nq, 'K', kN, absT('K', 0, 1), cfg, groups=range(8))
        ge = b
        if j1: ge = place_even(sc, j1, b, b + (sp * 4 - 1 if (nq == 4 or st == 7) else sp * 6 if st < 7 else sp * 10 - 2 if st == 8 else sp * 8))
        if st == 7 and nq == 3:
            if epi:
                dr = wait(need_vm=lambda c: 'all', free=False); dr.vm = 0; drain = dr
                ge = sc.place(dr, ge + 8, ge + 9)
            place_even(sc, job_tile(nq, 'K', kR, absT('K', 0, 0), cfg, groups=range(8)), ge + 1, b + SN - 1)
        if st + 3 <= 9:
            ws = wait(); gw = sc.place(ws, max(gx + 4, ge), max(gx + 4, ge) + 4)
            place_even(sc, job_x(nq, st + 3, 0, cfg, dep), gw + 1, b + SN - 1)
    if epi:
        nb = 6 * nq
        step = (SN * (cfg.epist if nq == 4 else 7) - 20) // nb
        i = 0
        for s in range(6):
            for q in range(nq):
                ops = epi_block(q, s, TMP[i & 1], cfg)
                seq_after(sc, ops, 10 + i * step, 10 + (i + 1) * step - 1)
                SEQS.append([ops[-1], drain])
                i += 1
        seq_after(sc, [salu("s_add_u32", sOoff, sOoff, 16 * 92160)], len(mf) - 20, len(mf) - 1)
    return sc

def conv_prologue(nq, cfg):
    out = []
    cv = []
    for s in range(6):
        for q in range(nq):
            b = V(8 * blk(q, s), 8)
            for i in range(4): cv.append(valu("v_pk_mul_f32", b.sub(2 * i, 2), b.sub(2 * i, 2), sC2))
            for i in range(4): cv.append(valu("v_cvt_pk_bf16_f32", b.sub(i), b.sub(2 * i), b.sub(2 * i + 1)))
    j = job_tile(nq, 'V', vN, absT('V', 0, 1), cfg, groups=range(8))
    k = 0
    for i, ins in enumerate(cv):
        out.append(ins)
        if i % 3 == 2 and k < len(j): out.append(j[k]); k += 1
    out += j[k:]
    for q in range(nq): out.append(valu("v_mov_b32", Ci(q).sub(0), "0xff800000"))
    out.append(label(f"L_prol_{nq}"))
    if cfg.lmfma == 0:
        for q in range(nq): out.append(valu("v_mov_b32", Lq(q), 0))
    elif cfg.lmfma == 2:
        for q in range(4): out.append(valu("v_mov_b32", Lq(q), "0x3f803f80"))
    else:
        out += [valu("v_and_b32", vt0, 48, vL16), valu("v_mov_b32", vt1, "0x3f803f80"),
                Ins(f"v_cmp_eq_u32 vcc, 0, {vt0}", 'V', rd=vt0.regs(), wr=['vcc']), nop(1)]
        for q in range(4): out.append(valu("v_cndmask_b32", Lq(q), 0, vt1, 'vcc'))
    out.append(wait())
    NG = 4 * nq
    mf = []
    for G in range(NG):
        jj, q = divmod(G, nq)
        for s in range(6):
            mf.append(mfma(Sf(G), Kf(jj & 1, s), Qf(q, s), (0 if jj == 0 else Ci(q)) if s == 0 else Sf(G)))
    sc = Sched(mf)
    sc.pre = out
    gb = 6 * nq * 3
    for jj in range(3):
        g = 6 * nq * jj
        for s in range(6):
            sc.put(g, rdK(jj + 1, s, absT('K', 0, 0))); g += 2
    lastk = g - 2
    bw = wait(need_vm=(lambda c: [('K', c['h'], 1), ('V', c['h'], 0)]), lgkm0=True, free=False)
    sc.put(gb - 1, bw); sc.put(gb - 1, barrier())
    seq_after(sc, rebaseK(), lastk + 1, gb - 2)
    g = gb
    post = [rdK(4, s, absT('K', 0, 1)) for s in range(6)]
    for T in range(3): post += [rdV(T, u, e, absT('V', 0, 0)) for (u, e) in UE]
    for ins in post:
        sc.put(g, ins); g += 1
    assert g <= len(mf)
    rot = rotate(kR, kN, kF)
    for i, ins in enumerate(rot): sc.put(gb + i, ins)
    if nq == 3:
        place_even(sc, job_tile(nq, 'K', kF, absT('K', 0, 2), cfg, groups=range(8)), 0, gb - 3)
        place_even(sc, job_tile(nq, 'V', vF, absT('V', 0, 2), cfg, groups=range(4), adv=False), gb, len(mf) - 1)
    tail = []
    for G in range(NG - 1):
        jj, q = divmod(G, nq)
        Sx = Sf(G)
        ops = []
        if jj == 0:
            t = vt0; m = vt1
            ops += [valu("v_max3_f32", m, Sx.sub(0), Sx.sub(1), Sx.sub(2)), valu("v_max3_f32", m, m, Sx.sub(3), Ci(q).sub(0))]
            for w in (32, 16):
                ops += [valu("v_mov_b32", t, m), nop(1), vperm(w, t, m), valu("v_max_f32", m, m, t)]
            for r in range(4): ops.append(valu("v_sub_f32", Ci(q).sub(r), 0, m))
            for r in range(4): ops.append(valu("v_sub_f32", Sx.sub(r), Sx.sub(r), m))
        e, a, c = softmax_ops(Sx, q, jj, 0)
        ops += [e[0], e[1], e[2], e[3], c[0], c[1]] if cfg.lmfma else [e[0], e[1], a[0], e[2], a[1], e[3], c[0], a[2], a[3], c[1]]
        if G + 2 < NG:
            n = len(ops)
            for i, ins in enumerate(ops): sc.put(6 * (G + 2) + (i * 6) // n, ins)
        else:
            tail += ops
    sc.add_wait_sites()
    for jj in range(1, 4):
        sc.put(6 * nq * jj - 1, wait())
    return sc.linear() + tail + [wait()]

CS = 6
def merge_jobs(ju, jo):
    def split(j):
        out = []; cur = []
        for i in j:
            cur.append(i)
            if i.kind == 'X': out.append(cur); cur = []
        return out
    a, b = split(ju), split(jo)
    items = sorted([((k + 0.5) / len(a), 0, x) for k, x in enumerate(a)] + [((k + 0.5) / len(b), 1, x) for k, x in enumerate(b)], key=lambda t: t[:2])
    return [i for _, _, x in items for i in x]
def p_chunks(c0, c1, nq, cfg, loop=False):
    mf = []
    for c in range(c0, c1):
        for N in range(8):
            for q in range(5):
                for u in range(2):
                    mf.append(mfma(PACC(N, q), VB((8 * c + N) % 3, u), OF(c % 3, q, u), 0 if (c == 0 and u == 0) else PACC(N, q)))
    sc = Sched(mf)
    PUB = cfg.pubchunk
    for c in range(c0, c1):
        b = 80 * (c - c0)
        for N in range(6):
            RP = [0, 1, 5, 6] if (cfg.prd and N < 5) else [0, 1, 3, 4] if cfg.prd else [0, 1, 2, 3]
            for i, (u, e) in enumerate(UE): sc.put(b + 10 * N + RP[i], rdU(8 * c + N + 2, u, e))
            sc.put(b + 10 * N + RP[3], wait())
        bw = wait(need_vm=(lambda ctx, c=c: 'all' if c == PUB else [tagU(c + 1)(ctx)]), lgkm0=True, free=False)
        if c == PUB: bw.vm = 0; drain = bw
        if loop and c == c0:
            a_, b_ = cond_load(V(226), sDbg, sMyc, 64, [f"s_lshl_b32 {sT0}, {sHn}, 2", f"s_add_u32 {sT0}, {sT0}, {sWave}", f"s_cmp_eq_u32 {sT0}, 67"], V(228))
            sc.put(b + 8, a_); sc.put(b + 14, b_)
            sc.put(b + 59, wait())
            _uid[0] += 1; n = _uid[0]
            sc.put(b + 59, unit([f"s_add_u32 {sT0}, {sWave}, {sHn}", f"s_cmp_lg_u32 {sHn}, 16", f"s_cbranch_scc1 L_skip{n}",
                                 f"s_cmp_lg_u32 {sT0}, 19", f"s_cbranch_scc1 L_skip{n}"], cost=3, rd=['v226'], wr=['scc'] + sT0.regs()))
            pc = poll_check(1); pc.cost = 0; sc.put(b + 59, pc); sc.put(b + 59, label(f"L_skip{n}"))
        if loop and c == c0 + 2:
            a_, b_ = cond_load(V(227), sEx, sFr, 8, [f"s_cmp_eq_u32 {sHc}, 17"], V(229))
            sc.put(b - 72, a_); sc.put(b - 66, b_)
            sc.put(b + 9, wait())
            _uid[0] += 1; n = _uid[0]
            u_ = unit([f"s_cmp_lg_u32 {sHc}, 17", f"s_cbranch_scc1 L_dok{n}", f"s_mov_b32 {sSpin}, 0x80000", f"L_dp{n}:",
                       f"v_readfirstlane_b32 {sT0}, v227", "s_nop 3", f"s_cmp_eq_u32 {sT0}, 1", f"s_cselect_b32 {sA18}, {sStol}, 19",
                       f"s_cmp_lg_u32 {sT0}, 0", f"s_cbranch_scc1 L_dok{n}", "s_sleep 2", gload_off(V(227), sEx, sFr, 8).text,
                       f"s_sub_u32 {sSpin}, {sSpin}, 1", f"s_cmp_lg_u32 {sSpin}, 0", "s_waitcnt vmcnt(0)", f"s_cbranch_scc1 L_dp{n}", f"L_dok{n}:"],
                      cost=2, rd=['v227'], wr=['scc'] + sT0.regs())
            u_.states = 1
            sc.put(b + 9, u_)
        sc.put(b + 60, bw); sc.put(b + 60, barrier())
        if cfg.stamps == 4: bstamp(sc, b + 60, b + 69)
        if c == PUB and nq == 3:
            sc.put(b + 60, salu("s_add_u32", sSig, sMyc, 64)); sc.put(b + 60, signal_add(sSig, False))
        if c == cfg.markchunk and nq == 3: sc.put(b + 60, flag_store(4, 1))
        if c == 0 and nq == 3: sc.put(b + 9, salu("s_sub_u32", sT0, sJmp, 2)); sc.put(b + 9, flag_store(8, sT0))
        for i, (u, e) in enumerate(UE):
            sc.put(b + 60 + ([1, 3, 5, 6] if cfg.prd else [1, 2, 3, 4])[i], rdU(8 * c + 8, u, e)); sc.put(b + 70 + ([0, 1, 5, 6] if cfg.prd else [0, 1, 2, 3])[i], rdU(8 * c + 9, u, e))
        sc.put(b + (76 if cfg.prd else 73), wait())
        sc.put(b + 79, wait())
    first_reads = []
    if nq is not None:
        nb = 6 * nq
        span = 80 * PUB + 10
        step = (span - 4) / nb
        i = 0
        for s in range(6):
            for q in range(nq):
                ops = epi_block(q, s, TMP[i & 1], cfg)
                if s == 0: first_reads += ops[:8]
                SEQS.append([ops[-1], drain])
                ge = seq_after(sc, ops, 4 + int(i * step), 4 + int((i + 1) * step) - 1)
                if s == 0: gfirst = 4 + int(i * step) + 9
                i += 1
    for c in range(c0, c1):
        b = 80 * (c - c0)
        if c + 2 < NCH:
            ju, jo = job_u(c + 2, cfg), job_o(c + 2, cfg)
            if loop:
                ju, jo = job_u(c + 2, cfg, sWc if c == c0 else sWn), job_o(c + 2, cfg, sOc if c == c0 else sOn)
            if loop and c == c0 + 2:
                if cfg.prd: g1 = g2 = place_even(sc, merge_jobs(ju, jo), b, b + 72)
                elif cfg.pclus: g2 = place_even(sc, jo, b, b + 36); g1 = place_even(sc, ju, b + 37, b + 66)
                else: g1 = place_even(sc, ju, b, b + 64); g2 = place_even(sc, jo, b + 2, b + 64)
                seq_after(sc, next_head(), max(g1, g2) + 1, b + 78)
            elif c == 0:
                place_even(sc, ju, b, b + 40)
                place_even(sc, jo[:6], b + 30, b + gfirst); place_even(sc, jo[6:], b + gfirst + 1, b + 78)
                for r in first_reads:
                    for l in jo:
                        if set(l.wr) & set(r.rd): SEQS.append([r, l])
            elif c == PUB:
                place_even(sc, ju, b, b + 24); place_even(sc, jo[:3], b, b + 24); place_even(sc, jo[3:], b + 61, b + 78)
            else:
                hi_ = 58 if c == NCH - 3 else 78
                if cfg.prd: place_even(sc, merge_jobs(ju, jo), b, b + hi_)
                elif cfg.pclus and c != NCH - 3: place_even(sc, jo, b, b + 42); place_even(sc, ju, b + 43, b + hi_)
                else: place_even(sc, ju, b, b + hi_); place_even(sc, jo, b + 2, b + hi_)
    sc.add_wait_sites()
    return sc

def p_tail(cfg):
    mf = []
    for gs in range(176, 192):
        c, N = SPAN[gs]
        for q in range(5):
            for u in range(2): mf.append(mfma(PACC(N, q), VB(gs % 3, u), OF(c % 3, q, u), PACC(N, q)))
    sc = Sched(mf)
    for k in range(14):
        o = 1 if k == 2 else 0
        for i, (u, e) in enumerate(UE): sc.put(10 * k + i + o, rdU(178 + k, u, e))
        sc.put(10 * k + 3 + o, wait())
    sc.put(143, wait())
    sc.put(20, wait(need_vm=lambda ctx: [tagU(23)(ctx)], free=False)); sc.put(20, barrier())
    sc.put(39, wait())
    wA, rA, wB, rB, oa = V(236), V(237), V(238), V(239), V(240)
    pre = [salu("s_and_b32", sTp, sWave, 1), salu("s_lshr_b32", sTx, sWave, 1), salu("s_mul_i32", sTx, sTx, 3 * SL, scc=False),
           salu("s_sub_u32", sT1, 3 * SL, sTx),
           salu("s_mul_i32", sT0, sTp, 10240, scc=False), salu("s_add_u32", sT0, sT0, SL), valu("v_add_u32", vt0, sT0, vL16),
           valu("v_add_u32", wA, sTx, vt0), valu("v_add_u32", rA, sT1, vt0),
           salu("s_mul_i32", sT0, sTp, 2 * SL, scc=False), salu("s_add_u32", sT0, sT0, 9216), valu("v_add_u32", vt0, sT0, vL16),
           valu("v_add_u32", wB, sTx, vt0), valu("v_add_u32", rB, sT1, vt0),
           valu("v_bfe_u32", oa, vL16, 4, 4), valu("v_mul_u32_u24", oa, 2560, oa),
           valu("v_lshrrev_b32", vt0, 8, vL16), valu("v_lshl_add_u32", oa, vt0, 3, oa)]
    for i in pre: i.nosim = True
    seq_after(sc, pre, 0, 38)
    def T(pair, t): return PACC(2 * pair + t // 5, t % 5)
    def wr(addr, tile, off):
        i = dswrite("ds_write_b128", addr, tile, off); i.cost = 3
        return i
    free = lambda lo, n: [g for g in range(lo, 160) if g % 10 >= 4][:n]
    for t, g in enumerate(free(56, 10)): sc.put(g, wr(wA, T(3, t), 1024 * t))
    sc.put(78, wait(lgkm0=True, free=False)); sc.put(78, barrier())
    rg = free(79, 10)
    for t, g in enumerate(rg): sc.put(g, dsread("ds_read_b128", T(3, t), rA, 1024 * t))
    seq = []
    for t in range(10):
        seq += [wait()] + [valu("v_add_f32", T(2, t).sub(i), T(2, t).sub(i), T(3, t).sub(i)) for i in range(4)]
        if t % 4 == 0: seq.append(salu("s_add_u32", sTp, sExs, 1024 * t))
        seq.append(gstore(T(2, t), vL16, sEx, sTp, 1024 * (t % 4), "sc1"))
    seq_after(sc, seq, 90, cfg.xend)
    for t, g in enumerate([136, 137, 138, 139, 144, 146, 148, 150, 152, 154]): sc.put(g, wr(wB, T(1, t), 1024 * t))
    sc.add_wait_sites()
    def add(dst, src): return [valu("v_pk_add_f32", dst.sub(2 * i, 2), dst.sub(2 * i, 2), src.sub(2 * i, 2)) for i in range(2)]
    w = wait(need_vm=lambda c: 'all', lgkm0=True, free=False); w.vm = 0
    f = [w, barrier()]
    f.append(unit([f"s_cmp_lg_u32 {sWave}, 3", "s_cbranch_scc1 L_xset",
                   f"v_mov_b32 {vOne}, 1", "s_mov_b64 exec, 1", f"buffer_store_dword {vOne}, off, {sEx}, {sFs} sc1", "s_mov_b64 exec, -1",
                   f"buffer_load_dword v226, off, {sEx}, {sFr} sc1", "L_xset:"]))
    for t in range(10): f.append(dsread("ds_read_b128", T(1, t), rB, 1024 * t))
    for t in range(10):
        f.append(wait()); f += add(T(0, t), T(1, t))
    f.append(unit([f"s_cmp_lg_u32 {sWave}, 3", "s_cbranch_scc1 L_xok", f"s_mov_b32 {sSpin}, 0x80000", "L_xpoll:",
                   "s_waitcnt vmcnt(0)", f"v_readfirstlane_b32 {sTp}, v226", f"s_sub_u32 {sSpin}, {sSpin}, 1",
                   f"s_cmp_eq_u32 {sSpin}, 0", "s_cbranch_scc1 L_xok", "s_nop 0",
                   f"s_cmp_eq_u32 {sTp}, 1", "s_cbranch_scc1 L_xok",
                   f"buffer_load_dword v226, off, {sEx}, {sFr} sc1", "s_branch L_xpoll", "L_xok:"]))
    f.append(barrier())
    for t in range(10):
        if t % 4 == 0: f.append(salu("s_add_u32", sTp, sExr, 1024 * t))
        f.append(gload(T(1, t), vL16, sEx, sTp, 1024 * (t % 4), "sc1"))
    for t in range(10):
        N, q = divmod(t, 5)
        ac = T(0, t)
        f.append(wait()); f += add(ac, T(1, t))
        for i in range(2): f.append(valu("v_cvt_pk_bf16_f32", ac.sub(i), ac.sub(2 * i), ac.sub(2 * i + 1)))
        f.append(salu("s_add_u32", sTp, sOutb, q * 16 * 2560))
        f.append(gstore(ac.sub(0, 2), oa, sOut, sTp, 32 * N, cfg.outflags))
    return sc, f

def slow_path(nq, cfg):
    o = []
    a = lambda t: o.append(raw(t))
    def spaced(seq):
        for i in seq:
            o.append(i)
            if 'm0' in i.wr: o.append(nop(0))
    dummy = lambda c: ('K', 0, 0)
    o.append(label(f"L_slow_{nq}"))
    a("s_waitcnt vmcnt(0) lgkmcnt(0)"); a("s_barrier")
    a(f"s_mov_b32 {sRedo}, -1")
    a(f"s_cmp_eq_u32 {sHead}, 0")
    a(f"s_cselect_b32 {sT0}, {16 * 393216}, 0"); a(f"s_cselect_b32 {sT1}, {16 * 384}, 0")
    a(f"s_cselect_b32 {sT2}, 0, {16 * 393216}")
    a(f"s_mov_b32 {vR}, {VS[0]}"); a(f"s_mov_b32 {vN}, {VS[1]}"); a(f"s_mov_b32 {vF}, {VS[2]}")
    a(f"s_cselect_b32 {vR}, {VS[1]}, {vR}"); a(f"s_cselect_b32 {vN}, {VS[2]}, {vN}"); a(f"s_cselect_b32 {vF}, {VS[0]}, {vF}")
    a(f"s_sub_u32 {sKend}, {sKend}, {sT0}"); a(f"s_sub_u32 {sVend}, {sVend}, {sT0}"); a(f"s_sub_u32 {sWend}, {sWend}, {sT1}")
    a(f"s_add_u32 {sKoff}, {sK0}, {sT2}"); a(f"s_mov_b32 {sVoff}, {sKoff}")
    a(f"s_mov_b32 {sWoff}, {sW0}"); a(f"s_mov_b32 {sXoff}, {sX0}")
    for i in rebase(vaddr, sVcur, vR): o.append(i)
    for q in range(nq): a(f"v_mov_b32 {Ci(q).sub(0)}, 0xff800000")
    a(f"s_mov_b32 {sLoop}, 16")
    o.append(label(f"L_slowl_{nq}"))
    spaced(job_tile(nq, 'K', kR, dummy, cfg, groups=range(8)))
    a("s_waitcnt vmcnt(0)"); a("s_barrier")
    for j in range(4):
        for s in range(6): o.append(rdK(j, s, dummy))
        a("s_waitcnt lgkmcnt(0)")
        for q in range(nq):
            for s in range(6): o.append(mfma(Sf(q), Kf(j & 1, s), Qf(q, s), 0 if s == 0 else Sf(q)))
        a("s_nop 7")
        for q in range(nq):
            m = Ci(q).sub(0); Sx = Sf(q)
            a(f"v_max3_f32 {m}, {m}, {Sx.sub(0)}, {Sx.sub(1)}"); a(f"v_max3_f32 {m}, {m}, {Sx.sub(2)}, {Sx.sub(3)}")
    a("s_barrier")
    a(f"s_sub_u32 {sLoop}, {sLoop}, 1"); a(f"s_cmp_lg_u32 {sLoop}, 0"); a(f"s_cbranch_scc1 L_slowl_{nq}")
    for r in (kR, kN): spaced(job_tile(nq, 'K', r, dummy, cfg, groups=range(8)))
    a("s_waitcnt vmcnt(0)")
    for r in (vR, vN): spaced(job_tile(nq, 'V', r, dummy, cfg, groups=range(8)))
    a("s_waitcnt vmcnt(0)"); a("s_barrier")
    for s in range(6): o.append(rdK(0, s, dummy))
    a("s_waitcnt lgkmcnt(0)")
    a(f"s_branch L_prol_{nq}")
    return o

def setup(cfg):
    o = []
    a = lambda t: o.append(raw(t))
    a("s_cmp_ge_u32 s2, 256"); a("s_cbranch_scc1 L_end")
    a("s_load_dwordx8 s[24:31], s[0:1], 0")
    a("s_load_dwordx8 s[32:39], s[0:1], 40")
    a("s_load_dwordx2 s[96:97], s[0:1], 32"); a("s_load_dwordx2 s[40:41], s[0:1], 72")
    a("s_load_dwordx4 s[44:47], s[0:1], 80")
    a("s_load_dwordx2 s[42:43], s[0:1], 96")
    if cfg.stamps or cfg.spinat == -1: a("s_memrealtime s[56:57]")
    if cfg.codepf:
        a("s_getpc_b64 s[48:49]"); a("L_pc:")
        a("s_lshr_b32 s50, s2, 3"); a("s_lshl_b32 s50, s50, 6")
        a("v_add_u32 v2, s50, v0"); a("v_lshlrev_b32 v2, 7, v2")
        a("v_min_u32 v2, L_code_end-L_pc-4, v2")
        a("v_mov_b32 v3, s49"); a("v_add_co_u32 v2, vcc, s48, v2"); a("s_nop 1"); a("v_addc_co_u32 v3, vcc, 0, v3, vcc")
        a("v_cmp_gt_u32 vcc, 64, v0"); a("s_and_saveexec_b64 s[48:49], vcc"); a("s_cbranch_execz L_nopf")
        a(f"global_load_dword {vOne}, v[2:3], off")
        a("L_nopf:"); a("s_mov_b64 exec, s[48:49]")
    a("v_lshrrev_b32 v1, 6, v0"); a("v_and_b32 v0, 63, v0")
    a("v_readfirstlane_b32 s3, v1")
    a("s_lshr_b32 s50, s2, 3")
    a("s_bfe_u32 s51, s2, 0x10001"); a("s_lshl_b32 s51, s51, 2"); a("s_lshr_b32 s52, s50, 3"); a("s_add_u32 s51, s51, s52")
    a("s_and_b32 s52, s2, 1"); a("s_lshl_b32 s52, s52, 3"); a("s_and_b32 s53, s50, 7"); a("s_add_u32 s52, s52, s53")
    a("s_bfe_u32 s53, s2, 0x10002")
    a("v_lshrrev_b32 v1, 3, v0"); a("v_and_b32 v2, 7, v0")
    for m in range(3):
        a(f"v_add_u32 v3, {8 * m}, v1")
        a("v_mul_u32_u24 v4, 43, v3"); a("v_lshrrev_b32 v4, 7, v4")
        a("v_and_b32 v5, 6, v4"); a("v_xor_b32 v5, v5, v2"); a("v_lshlrev_b32 v5, 4, v5")
        a("v_lshlrev_b32 v6, 7, v1"); a(f"v_add_u32 {dKV[m]}, v5, v6")
        a("v_mul_u32_u24 v5, 3, v4"); a("v_sub_u32 v5, v3, v5"); a("v_lshlrev_b32 v5, 7, v5")
        a("v_bfe_u32 v6, v4, 1, 1"); a("v_lshlrev_b32 v6, 2, v6"); a("v_xor_b32 v6, v6, v2"); a("v_lshlrev_b32 v6, 4, v6"); a("v_add_u32 v5, v5, v6")
        a("v_lshrrev_b32 v6, 2, v4"); a("v_lshlrev_b32 v6, 4, v6"); a("v_and_b32 v7, 3, v4"); a("v_add_u32 v6, v6, v7")
        a("v_mul_u32_u24 v6, 12288, v6"); a("v_add_u32 v5, v5, v6")
        a(f"v_subrev_u32 {dW[m]}, {1024 * m}, v5")
    a("v_and_b32 v3, 6, v1"); a("v_xor_b32 v3, v3, v2"); a("v_lshlrev_b32 v3, 4, v3")
    a("v_mul_u32_u24 v4, 1280, v1"); a(f"v_add_u32 {dX}, v3, v4")
    a(f"v_lshlrev_b32 {vL16}, 4, v0")
    a("s_waitcnt lgkmcnt(0)")
    if cfg.stamps:
        a(f"v_writelane_b32 {vStamp}, s56, 30"); a("s_getreg_b32 s56, hwreg(HW_REG_XCC_ID)"); a(f"v_writelane_b32 {vStamp}, s56, 31")
    a("s_cmp_eq_u32 s53, 0")
    for i in range(8): a(f"s_cselect_b32 s{24 + i}, s{24 + i}, s{32 + i}")
    a("s_cselect_b32 s96, s96, s40"); a("s_cselect_b32 s97, s97, s41"); a("s_mov_b32 s98, 7864320"); a("s_mov_b32 s99, 0x20000")
    a("s_mul_i32 s48, s51, 307200"); a("s_add_u32 s4, s24, s48"); a("s_addc_u32 s5, s25, 0"); a("s_mov_b32 s6, 307200"); a("s_mov_b32 s7, 0x20000")
    a("s_mov_b32 s8, s30"); a("s_mov_b32 s9, s31"); a("s_mov_b32 s10, 7864320"); a("s_mov_b32 s11, 0x20000")
    a("s_mul_i32 s48, s51, 12582912")
    a("s_add_u32 s12, s26, s48"); a("s_addc_u32 s13, s27, 0"); a("s_mov_b32 s14, 12582912"); a("s_mov_b32 s15, 0x20000")
    a("s_add_u32 s16, s28, s48"); a("s_addc_u32 s17, s29, 0"); a("s_mov_b32 s18, 12582912"); a("s_mov_b32 s19, 0x20000")
    a("s_lshl_b32 s48, s53, 3"); a("s_add_u32 s48, s48, s51"); a("s_mul_i32 s48, s48, 2949120")
    a("s_add_u32 s20, s42, s48"); a("s_addc_u32 s21, s43, 0"); a("s_mov_b32 s22, 2949120"); a("s_mov_b32 s23, 0x20000")
    a("s_mov_b32 s64, s44"); a("s_mov_b32 s65, s45"); a("s_mov_b32 s66, 4915200"); a("s_mov_b32 s67, 0x20000")
    a(f"s_add_u32 s68, s42, {EXOFF}"); a("s_addc_u32 s69, s43, 0"); a(f"s_mov_b32 s70, {STOFF + 0x100000}"); a("s_mov_b32 s71, 0x20000")
    a("s_mov_b32 s72, s46"); a("s_mov_b32 s73, s47"); a("s_mov_b32 s74, 256"); a("s_mov_b32 s75, 0x20000")
    a("s_cmp_ge_u32 s50, 30"); a(f"s_cselect_b32 {sIdle}, 1, 0"); a("s_min_u32 s24, s50, 29")
    a("s_and_b32 s25, s2, 1")
    a("s_mul_i32 s26, s24, 52"); a("s_lshr_b32 s26, s26, 8"); a("s_mul_i32 s27, s26, 5"); a("s_sub_u32 s27, s24, s27")
    a("s_lshl_b32 s26, s26, 1"); a("s_and_b32 s28, s3, 1"); a("s_add_u32 s26, s26, s28")
    a("s_mul_i32 s29, s26, 43"); a("s_lshr_b32 s29, s29, 7"); a("s_mul_i32 s30, s29, 3"); a("s_sub_u32 s26, s26, s30")
    a("s_and_b32 s30, s2, 7"); a(f"s_lshl_b32 {sMyc}, s30, 2"); a(f"s_and_b32 {sCnt}, {sMyc}, 24")
    a("s_and_b32 s30, s2, 6"); a("s_lshl_b32 s30, s30, 1")
    a("s_add_u32 s30, s30, s29"); a("s_mul_i32 s31, s30, 2949120")
    a("s_add_u32 s60, s42, s31"); a("s_addc_u32 s61, s43, 0"); a("s_mov_b32 s62, 2949120"); a("s_mov_b32 s63, 0x20000")
    a("s_lshl_b32 s31, s25, 1"); a("s_lshr_b32 s32, s3, 1"); a("s_add_u32 s31, s31, s32")
    a(f"s_mul_i32 {sOb}, s31, {4 * 92160}"); a(f"s_mul_i32 s33, s26, {5 * 6144}"); a(f"s_add_u32 {sOb}, {sOb}, s33")
    a(f"s_mul_i32 {sWb}, s31, {4 * 192 * 1280}"); a("s_lshl_b32 s33, s27, 8"); a(f"s_add_u32 {sWb}, {sWb}, s33")
    a("s_xor_b32 s33, s28, s25"); a("s_lshl_b32 s33, s33, 7"); a(f"s_add_u32 {sWb}, {sWb}, s33")
    a(f"s_mul_i32 {sLb}, s32, {3 * SL}"); a("s_lshl_b32 s33, s28, 13"); a(f"s_add_u32 {sLb}, {sLb}, s33"); a(f"s_add_u32 {sLb}, {sLb}, 1024")
    a("s_and_b32 s30, s30, 7"); a("s_mul_i32 s30, s30, 240"); a("s_mul_i32 s33, s26, 80"); a("s_add_u32 s30, s30, s33")
    a(f"s_mul_i32 {sOutb}, s30, 2560"); a("s_mul_i32 s33, s53, 1280"); a(f"s_add_u32 {sOutb}, {sOutb}, s33")
    a("s_lshl_b32 s33, s27, 8"); a(f"s_add_u32 {sOutb}, {sOutb}, s33"); a("s_lshl_b32 s33, s31, 6"); a(f"s_add_u32 {sOutb}, {sOutb}, s33")
    a("s_lshl_b32 s33, s2, 2"); a("s_add_u32 s33, s33, s3"); a(f"s_mul_i32 {sExs}, s33, 10240"); a("s_xor_b32 s33, s33, 4"); a(f"s_mul_i32 {sExr}, s33, 10240")
    a("s_lshl_b32 s33, s2, 7"); a(f"s_add_u32 {sFs}, s33, {FLOFF}"); a("s_xor_b32 s33, s33, 128"); a(f"s_add_u32 {sFr}, s33, {FLOFF}")
    a("s_and_b32 s48, s2, 3"); a("s_lshl_b32 s48, s48, 5"); a("s_add_u32 s48, s48, s50"); a(f"s_mul_i32 {sWopf}, s48, 61440")
    if cfg.dbgst: a(f"s_add_u32 {sMyc}, {sMyc}, 128"); a(f"s_add_u32 {sCnt}, {sCnt}, 128")
    a(f"s_mov_b32 {sRedo}, 0")
    a(f"s_mov_b32 {sWave}, s3")
    if cfg.stamps > 1: a("s_mov_b32 s3, 512")
    if cfg.spinat == -1: a("s_mov_b32 s3, s56")
    a(f"s_mul_i32 {sKoff}, s52, 393216"); a(f"s_mul_i32 {sWoff}, s52, 384")
    a(f"s_mul_i32 {sXoff}, {sWave}, {64 * 1280}")
    a(f"s_mul_i32 {sOoff}, s52, 92160"); a(f"s_mul_i32 s48, {sWave}, {4 * 6144}"); a(f"s_add_u32 {sOoff}, {sOoff}, s48")
    a(f"s_mov_b32 {sTp}, s50")
    a(f"s_mov_b32 {kR}, {KS[0]}"); a(f"s_mov_b32 {kN}, {KS[1]}"); a(f"s_mov_b32 {kF}, {KS[2]}")
    a(f"s_mov_b32 {vR}, {VS[0]}"); a(f"s_mov_b32 {vN}, {VS[1]}"); a(f"s_mov_b32 {vF}, {VS[2]}")
    a(f"s_mov_b32 {sVcur}, 0"); a(f"s_mov_b32 {sWcur}, {VS[0]}")
    c = math.log2(math.e) / math.sqrt(192.0)
    a(f"s_mov_b32 s38, {fbits(c)}"); a(f"s_mov_b32 s39, {fbits(c)}")
    a(f"s_mov_b32 {sThr}, {fbits(2.0 ** cfg.thr)}")
    a(f"s_mov_b32 {sHead}, 0")
    a(f"s_cmp_eq_u32 {sWave}, 3"); a("s_cbranch_scc1 L_v3")
    return o

def lds_addr_setup(cfg):
    o = []
    def a(t):
        i = raw(t); i.nosim = True; o.append(i)
    a("v_and_b32 v1, 15, v0")
    a("v_lshrrev_b32 v2, 4, v0")
    a("v_and_b32 v3, 6, v1")
    a("v_xor_b32 v4, v2, v3")
    a("v_lshlrev_b32 v4, 4, v4")
    a("v_mul_u32_u24 v5, 384, v1")
    a(f"v_add_u32 {kaddr[0]}, v5, v4")
    a(f"v_xor_b32 v6, 64, v4"); a(f"v_add_u32 {kaddr[1]}, v5, v6")
    a("v_lshlrev_b32 v5, 7, v1"); a(f"v_add_u32 v5, {sXl[0]}, v5")
    a(f"v_add_u32 {xaddr[0]}, v5, v4"); a(f"v_add_u32 {xaddr[1]}, v5, v6")
    a("v_lshrrev_b32 v1, 2, v0"); a("v_and_b32 v3, 6, v1")
    a("v_bfe_u32 v4, v0, 1, 1"); a("v_xor_b32 v4, v4, v3"); a("v_lshlrev_b32 v4, 4, v4")
    a("v_and_b32 v5, 1, v0"); a("v_lshlrev_b32 v5, 3, v5")
    a("v_mul_u32_u24 v6, 384, v1"); a("v_add_u32 v5, v5, v6")
    for m in range(4):
        a(f"v_xor_b32 v6, {32 * m}, v4"); a(f"v_add_u32 {vaddr[m]}, v5, v6")
    a("v_and_b32 v3, 1, v2"); a(f"v_mul_u32_u24 v3, {12288 + cfg.wshift}, v3"); a(f"v_add_u32 v3, {VS[0]}, v3")
    a("v_lshrrev_b32 v4, 1, v2"); a("v_lshlrev_b32 v4, 2, v4"); a("v_bfe_u32 v5, v0, 2, 2"); a("v_add_u32 v4, v4, v5")
    a("v_mul_u32_u24 v4, 384, v4"); a("v_add_u32 v3, v3, v4")
    a("v_bfe_u32 v4, v0, 3, 1"); a("v_lshlrev_b32 v4, 2, v4"); a("v_and_b32 v5, 3, v0"); a("v_xor_b32 v4, v4, v5"); a("v_lshlrev_b32 v4, 4, v4")
    a(f"v_add_u32 {waddr[0]}, v3, v4"); a("v_xor_b32 v4, 64, v4"); a(f"v_add_u32 {waddr[1]}, v3, v4")
    return o

def setup_variant(nq, cfg):
    o = []
    def a(t):
        i = raw(t); i.nosim = True; o.append(i)
    if nq == 4:
        a(f"s_mul_i32 {sGrp}, {sWave}, 3072")
        a(f"s_and_b32 {sT0}, {sWave}, 1"); a(f"s_lshl_b32 {sT0}, {sT0}, 2"); a(f"s_lshr_b32 {sT1}, {sWave}, 1"); a(f"s_lshl_b32 {sT1}, {sT1}, 5")
        a(f"s_add_u32 {sT0}, {sT0}, {sT1}"); a(f"s_mul_i32 {sT0}, {sT0}, 12288"); a(f"s_add_u32 {sWoff}, {sWoff}, {sT0}")
        a(f"s_lshl_b32 {sT0}, {sWave}, 13"); a(f"s_add_u32 {sXl[0]}, {sT0}, {KS[1]}"); a(f"s_add_u32 {sXl[1]}, {sT0}, {KS[2]}")
    else:
        a(f"s_mov_b32 {sXl[0]}, {EB}"); a(f"s_mov_b32 {sXl[1]}, {EB + 6144}")
        a("v_mov_b32 v1, 0"); a("v_lshlrev_b32 v2, 2, v0"); a("s_mov_b64 exec, 15"); a(f"buffer_store_dword v1, v2, {sEx}, {sFs} offen sc1"); a("s_mov_b64 exec, -1")
    a(f"s_add_u32 {sKend}, {sKoff}, {16 * 3072 * kv_map(cfg)[0]}"); a(f"s_mov_b32 {sVend}, {sKend}")
    a(f"s_add_u32 {sWend}, {sWoff}, 7864320"); a(f"s_add_u32 {sXend}, {sXoff}, 1280")
    if cfg.rotkv:
        a(f"s_mul_i32 {sT0}, s2, 5"); a(f"s_lshr_b32 {sT1}, s2, 4"); a(f"s_add_u32 {sT0}, {sT0}, {sT1}"); a(f"s_and_b32 {sT0}, {sT0}, 15")
        a(f"s_mul_i32 {sT0}, {sT0}, {3072 * kv_map(cfg)[0]}"); a(f"s_add_u32 {sKoff}, {sKoff}, {sT0}")
    if cfg.rotq == 1:
        a(f"s_lshr_b32 {sT0}, {sTp}, 3"); a(f"s_lshl_b32 {sT0}, {sT0}, 1"); a(f"s_and_b32 {sT1}, {sTp}, 7"); a(f"s_add_u32 {sT0}, {sT0}, {sT1}")
        a(f"s_mul_i32 {sT0}, {sT0}, 5"); a(f"s_lshr_b32 {sT0}, {sT0}, 2")
        a(f"s_cmp_ge_u32 {sT0}, 10"); a(f"s_cselect_b32 {sT1}, 10, 0"); a(f"s_sub_u32 {sT0}, {sT0}, {sT1}")
    if cfg.rotq == 2:
        a(f"s_lshr_b32 {sT0}, {sTp}, 3"); a(f"s_xor_b32 {sT0}, {sT0}, {sTp}"); a(f"s_and_b32 {sT0}, {sT0}, 1"); a(f"s_mul_i32 {sT0}, {sT0}, 5")
    if cfg.rotq:
        a(f"s_mul_i32 {sRw}, {sT0}, 786432"); a(f"s_lshl_b32 {sRx}, {sT0}, 7")
    a(f"s_mov_b32 {sVoff}, {sKoff}")
    a(f"s_mov_b32 {sK0}, {sKoff}"); a(f"s_mov_b32 {sW0}, {sWoff}"); a(f"s_mov_b32 {sX0}, {sXoff}")
    def spaced(seq):
        for i in seq:
            o.append(i)
            if 'm0' in i.wr: o.append(nop(0))
    spaced(job_x(nq, 0, 0, cfg)); spaced(job_tile(nq, 'W', vR, absT('W', 0, 0), cfg))
    o.extend(lds_addr_setup(cfg))
    spaced(job_x(nq, 1, 0, cfg)); spaced(job_tile(nq, 'W', vN, absT('W', 0, 1), cfg))
    o.append(wait(need_vm=lambda c: [('x', 0, 0), ('W', 0, 0)], free=False)); o.append(barrier())
    dep = []
    for q in range(nq):
        for u in range(2):
            r = rdX(nq, 0, 0, q, u); dep += r.wr; o.append(r)
    for T in range(2):
        for (u, e) in UE: o.append(rdW(T, u, e, absT('W', 0, 0)))
    o.append(wait())
    spaced(job_x(nq, 2, 0, cfg, dep))
    o.append(wait())
    return o

def stamp(cfg, idx):
    if cfg.spinat == idx: return [raw("s_memrealtime s[56:57]"), raw("s_waitcnt lgkmcnt(0)"), raw("s_mov_b32 s3, s56")]
    if not cfg.stamps: return []
    return [raw("s_memrealtime s[56:57]"), raw("s_memtime s[58:59]"), raw("s_waitcnt lgkmcnt(0)"),
            raw(f"v_writelane_b32 {vStamp}, s56, {2 * idx}"), raw(f"v_writelane_b32 {vStamp}, s58, {2 * idx + 1}")]
def finish(cfg, idx):
    e = []
    if cfg.stamps:
        e += [raw("s_waitcnt vmcnt(0)")] + stamp(cfg, idx)
        e += [raw(f"s_lshl_b32 {sTp}, s2, 2"), raw(f"s_add_u32 {sTp}, {sTp}, {sWave}"), raw(f"s_lshl_b32 {sTp}, {sTp}, 8"),
              raw(f"s_add_u32 {sTp}, {sTp}, {STOFF}"), raw(f"v_lshrrev_b32 v0, 2, {vL16}"),
              raw(f"buffer_store_dword {vStamp}, v0, {sEx}, {sTp} offen")]
        if cfg.dbgst == 2 and idx == 7:
            e += [raw("s_cmp_ge_u32 s2, 16"), raw("s_cbranch_scc1 L_nox"), raw("s_getreg_b32 s56, hwreg(HW_REG_XCC_ID)"), raw("s_add_u32 s56, s56, 100"),
                  raw("v_mov_b32 v1, s56"), raw("s_lshl_b32 s57, s2, 2"), raw(f"buffer_store_dword v1, off, {sDbg}, s57"), raw("L_nox:")]
        if cfg.dbgst == 1 and idx == 7:
            e += [raw(f"v_not_b32 v1, {vStamp}"), raw(f"v_cmp_eq_u32 vcc, 480, {vL16}"), raw("s_nop 1"), raw(f"v_cndmask_b32 v1, {vStamp}, v1, vcc"),
                  raw(f"v_lshrrev_b32 v0, 3, {vL16}"), raw("s_mov_b32 exec_lo, 0x40005555"), raw("s_mov_b32 exec_hi, 0"),
                  raw(f"buffer_atomic_umax v1, v0, {sDbg}, 0 offen sc1"), raw("s_mov_b64 exec, -1")]
    if cfg.spinat > -2 and idx == 7:
        e += [raw("L_spin:"), raw("s_sleep 4"), raw("s_memrealtime s[56:57]"), raw("s_waitcnt lgkmcnt(0)"), raw("s_sub_u32 s56, s56, s3"),
              raw("s_cmp_lt_u32 s56, 20000"), raw("s_cbranch_scc1 L_spin")]
    return e + [raw("s_endpgm")]

def variant(nq, cfg, common):
    sfx = f"_{nq}"
    st = lambda i: stamp(cfg, i)
    su = setup_variant(nq, cfg) + st(0)
    q1 = qproj(nq, cfg, False); q1.add_wait_sites()
    q2 = qproj(nq, cfg, True); q2.add_wait_sites()
    cp = conv_prologue(nq, cfg)
    jK = lambda: job_tile(nq, 'K', kF, tagK(3), cfg, groups=range(8))
    jV = lambda: job_tile(nq, 'V', vF, tagV(2), cfg, groups=range(4, 8))
    jL = lambda: [job_tile(nq, 'V', vF, tagV(3), cfg, groups=range(4), adv=False)]
    i0 = attn_iter(nq, 0, cfg, first_pv=True, jobs=[jV(), jK()], late=jL())
    i1 = attn_iter(nq, 1, cfg, jobs=[jV(), jK()], late=jL())
    i2 = attn_iter(nq, 0, cfg, jobs=[jV(), jK()], late=jL())
    two = nq == 4 and cfg.twoloops
    if two:
        j1, j2 = i1, i2
        i1 = attn_iter(nq, 1, cfg, jobs=[jV(), jK()], late=jL(), gentle=True)
        i2 = attn_iter(nq, 0, cfg, jobs=[jV(), jK()], late=jL(), gentle=True)
        j2.place(salu("s_sub_u32", sLoop, sLoop, 1), 20, 60)
    fix = []
    for o_, d_ in ((sKoff, 16 * 393216), (sKend, 16 * 393216), (sVoff, 16 * 393216), (sVend, 16 * 393216), (sWoff, 16 * 384), (sWend, 16 * 384)):
        if nq == 3 or o_ in (sWoff, sWend): fix.append(salu("s_add_u32", o_, o_, d_))
    if cfg.rotq: fix += [salu("s_add_u32", sWoff, sWoff, sRw), salu("s_add_u32", sXoff, sXoff, sRx)]
    a13 = attn_iter(nq, 1, cfg, jobs=[jV(), fix, job_x(nq, 0, 1, cfg)])
    a14 = attn_iter(nq, 0, cfg, jobs=[job_tile(nq, 'W', vF, absT('W', 1, 0), cfg), job_x(nq, 1, 1, cfg)], next_k=False, k_rot=False)
    a15 = attn_last(nq, cfg, 'Q')
    pf = []
    if cfg.wopf and nq == 3:
        pf.append(valu("v_lshlrev_b32", V(243), 3, vL16))
        for i in range(8):
            pf.append(gload(V(244), V(243), sWo, sWopf, 0, "", op="buffer_load_dword"))
            pf[-1].wr = []
            pf.append(salu("s_add_u32", sWopf, sWopf, 8192 if i < 6 else 4096) if i < 7 else salu("s_sub_u32", sWopf, sWopf, 6 * 8192 + 4096))
    b13 = attn_iter(nq, 1, cfg, jobs=[jV(), pf], late=[calc_raddr()])
    b14 = attn_iter(nq, 0, cfg, jobs=[([poll_issue(0)] if nq == 3 else []), job_u(0, cfg)], next_k=False, k_rot=False)
    if nq == 3:
        gb = 12 * 9 - 1
        b14.put(gb, wait()); b14.put(gb, poll_check(0))
    b15 = attn_last(nq, cfg, 'P')
    pa = p_chunks(0, CS, nq, cfg)
    ini = [salu("s_lshr_b32", sJmp, sBad.sub(0), 1), salu("s_sub_u32", sJmp, 4, sJmp),
           salu("s_and_b32", sStol, S(2), 1), salu("s_lshl_b32", sStol, sStol, 4), salu("s_sub_u32", sStol, 11, sStol),
           smov(sA18, 19), smov(sHn, 2), salu("s_add_u32", sOn, sOb, 2 * 92160), salu("s_add_u32", sWn, sWb, 2 * 192 * 1280)]
    ini[1].simfn = lambda st: st.__setitem__(str(sJmp), st['jmp'])
    ini[4].simfn = lambda st: st.__setitem__(str(sStol), 11)
    ini[5].simfn = lambda st: st.__setitem__(str(sA18), st['after18'])
    seq_after(pa, ini[:2], 0, 7); seq_after(pa, ini[2:] + next_head(), 400, 470)
    if cfg.ctouch and nq == 3:
        i1.put(10, code_touch(["L_tail1_4", "L_tail1_3"], 144, guard=(sLoop, 1), alt=["L_tail2_4", "L_tail2_3"]))
        q2.put(72 * 2 + 5, code_touch(["L_tail1_4+16384", "L_tail1_3+16384"], 144))
        q2.put(72 * 8 + 5, code_touch(["L_head_4", "L_head_3"] + (["L_tail2_4"] if cfg.twoloops else []), 144))
        if cfg.ctouch > 1: q1.put(72 * 6 + 5, code_touch(["L_head_4", "L_head_3"], 144))
        pa.put(80 * 3 + 9, code_touch(["L_pcommon"], 246))
    i0.place(smov(sLoop, 6), 20, 60)
    i2.place(salu("s_sub_u32", sLoop, sLoop, 1), 20, 60)
    for s in (i0, i1, i2, a13, a14, a15, b13, b14, b15) + ((j1, j2) if two else ()):
        s.add_wait_sites()
        for g_, ins_ in getattr(s, 'extra', []):
            for i_ in ins_: s.put(g_, i_)
    loopend = [scmp("s_cmp_lg_u32", sLoop, 0), raw(f"s_cbranch_scc1 L_loop{sfx}")]
    loopend2 = [scmp("s_cmp_lg_u32", sLoop, 0), raw(f"s_cbranch_scc1 L_tail2{sfx}")]
    headbr = [scmp("s_cmp_lg_u32", sHead, 0), raw(f"s_cbranch_scc1 L_tail2{sfx}")]
    back = [smov(sHead, 1), raw(f"s_branch L_head{sfx}")]
    idlebr = [scmp("s_cmp_lg_u32", sIdle, 0), raw(f"s_cbranch_scc1 L_idle{sfx}"), wait()]
    idle = [label(f"L_idle{sfx}")]
    i = 0
    for s in range(6):
        for q in range(nq):
            idle += epi_block(q, s, TMP[i & 1], cfg); i += 1
    idle += [raw("s_waitcnt vmcnt(0)"), barrier()]
    if nq == 3: idle += [salu("s_add_u32", sSig, sMyc, 64), signal_add(sSig, False)]
    idle += finish(cfg, 8)
    L = lambda s: s.linear()
    s1, s3, s4, s5 = st(1), st(2), st(3), st(4)
    jump = [raw("s_branch L_pcommon")] if nq == 3 else []
    code = su + L(q1) + s1 + [label(f"L_head{sfx}")] + cp + L(i0) + (headbr if two else []) + [raw(".p2align 3", 'L', states=0), label(f"L_loop{sfx}")] + L(i1) + L(i2) + loopend + ([] if two else headbr) \
        + [label(f"L_tail1{sfx}")] + L(a13) + L(a14) + L(a15) + s3 + L(q2) + s4 + back + slow_path(nq, cfg) + idle \
        + [raw(".p2align 12", 'L', states=0), label(f"L_tail2{sfx}")] + (L(j1) + L(j2) + loopend2 if two else []) + L(b13) + L(b14) + L(b15) + s5 + idlebr + L(pa) + jump
    tr = []
    def add(ins, **c): tr.extend((i, c) for i in ins)
    add(su, h=0, t=-9); add(L(q1) + s1, h=0, t=-5)
    for h in range(2):
        add(cp, h=h, t=-1); add(L(i0), h=h, t=0)
        for t in range(1, 13, 2):
            if two and t == 1: add(headbr, h=h, t=0)
            if two and h == 1: add(L(j1), h=h, t=t); add(L(j2), h=h, t=t + 1); add(loopend2, h=h, t=t + 1)
            else: add(L(i1), h=h, t=t); add(L(i2), h=h, t=t + 1); add(loopend, h=h, t=t + 1)
        if not two: add(headbr, h=h, t=12)
        if h == 0:
            add(L(a13), h=0, t=13); add(L(a14), h=0, t=14); add(L(a15) + s3, h=0, t=15); add(L(q2) + s4, h=1, t=-5); add(back, h=1, t=-5)
        else:
            add(L(b13), h=1, t=13); add(L(b14), h=1, t=14); add(L(b15) + s5, h=1, t=15)
    tr_idle = tr + [(i, dict(h=1, t=16)) for i in idlebr[:2] + idle]
    trs = []
    cpre, cloop, cpost = common
    for heads in ([0, 1, 2, 3, 16, 17, 18, 19], [0, 1, 2, 16, 17, 18, 19], [0, 1, 2, 3, 16, 17, 18, 11, 19]):
        t2 = [(i, dict(c, heads=heads)) for i, c in tr]
        t2 += [(i, dict(h=1, t=16, heads=heads)) for i in idlebr + L(pa) + jump + cpre]
        for p in range(len(heads) - 3): t2 += [(i, dict(h=1, t=16, heads=heads, dc=3 * p)) for i in cloop]
        t2 += [(i, dict(h=1, t=16, heads=heads, dc=3 * (len(heads) - 8))) for i in cpost]
        trs.append(t2)
    tr = trs
    info = dict(q1=q1, q2=q2, i0=i0, i1=i1, i2=i2, a13=a13, a14=a14, a15=a15, b13=b13, b14=b14, b15=b15, pa=pa)
    return code, tr, tr_idle, info

def sim_variant(nq, tr, cfg, jmp, a18):
    ok = True
    for w in ([0, 1, 2] if nq == 4 else [3]):
        h0 = 5
        grp = w * 3072 if nq == 4 else 0
        k0 = [0, 4, 32, 0][w]
        ggrp = kv_map(cfg)[1][w] * 3072 if nq == 4 else 0
        kst = 3072 * kv_map(cfg)[0]
        rk = 7 if cfg.rotkv else 0; rq = 3 if cfg.rotq else 0
        init = {'wave': w, 'jmp': jmp, 'after18': a18, 'h0': h0, 'rk': rk, 'rq': rq, str(kR): KS[0], str(kN): KS[1], str(kF): KS[2], str(vR): VS[0], str(vN): VS[1], str(vF): VS[2],
                str(sVcur): 0, str(sWcur): VS[0], str(sKoff): h0 * 393216 + ggrp, str(sVoff): h0 * 393216 + ggrp, str(sWoff): h0 * 384 + k0 * 12288,
                str(sXoff): w * 64 * 1280, str(sOoff): h0 * 92160 + w * 4 * 6144, str(sGrp): grp,
                str(sXl[0]): (KS[1] + w * 8192 if nq == 4 else EB), str(sXl[1]): (KS[2] + w * 8192 if nq == 4 else EB + 6144),
                str(sOb): 1000000, str(sWb): 2000000, str(sLb): 3000}
        init[str(sKend)] = init[str(sKoff)] + 16 * kst; init[str(sVend)] = init[str(sKend)]
        init[str(sWend)] = init[str(sWoff)] + 7864320; init[str(sXend)] = init[str(sXoff)] + 1280
        init[str(sKoff)] += rk * kst; init[str(sVoff)] += rk * kst; init[str(sRw)] = rq * 786432; init[str(sRx)] = rq * 128
        for r in kaddr + vaddr: init[str(r)] = 0
        for r in waddr: init[str(r)] = VS[0]
        if not cfg.fake and not cfg.pfake: ok = sim_scalar(tr, init, f"nq{nq} w{w}") and ok
    return ok

def build(cfg, name):
    su = setup(cfg)
    pl = p_chunks(CS, CS + 3, None, cfg, loop=True)
    pb = p_chunks(NCH - 3, NCH - 2, None, cfg)
    if cfg.ctouch: pl.put(89, code_touch(["L_ptail"], 246, guard=(sHc, 17)))
    pt, fin = p_tail(cfg)
    cpre = [label("L_pcommon")] + stamp(cfg, 5) + [raw(".p2align 3", 'L', states=0), label("L_ploop")]
    cloop = pl.linear() + [scmp("s_cmp_lg_u32", sHc, 19), raw("s_cbranch_scc1 L_ploop")]
    cpost = [label("L_ptail")] + pb.linear() + pt.linear() + stamp(cfg, 6) + fin + finish(cfg, 7)
    parts = (cpre, cloop, cpost)
    common = cpre + cloop + cpost
    c4, t4, ti4, inf4 = variant(4, cfg, parts)
    c3, t3, ti3, inf3 = variant(3, cfg, parts)
    alltr = [("nq4", t) for t in t4] + [("nq3", t) for t in t3] + [("idle4", ti4), ("idle3", ti3)]
    for rep in range(2):
        for n, t in alltr: derive_waits(t, n)
    ok = True
    for n, t in (("nq4", t4[0]), ("nq3", t3[0]), ("idle4", ti4), ("idle3", ti3)): ok = check_hazards(t, n) and ok
    ok = check_seqs(c4 + common) and check_seqs(c3) and ok
    for k, (jmp, a18) in enumerate(((4, 19), (3, 19), (4, 11))):
        ok = sim_variant(4, t4[k], cfg, jmp, a18) and sim_variant(3, t3[k], cfg, jmp, a18) and ok
        ok = check_lds({4: t4[k], 3: t3[k]}) and ok
    for n, inf in (("nq4", inf4), ("nq3", inf3)): print(n, "model cycles:", {k: s.cycles() for k, s in inf.items()})
    print("common", pl.cycles(), pb.cycles(), pt.cycles())
    assert ok
    lines = [f".globl {name}", ".p2align 8", f".type {name},@function", f"{name}:"]
    lines += emit(su) + emit(c4) + emit(common) + ["L_end:", "s_endpgm", "L_v3:"] + emit(c3)
    out = []
    for l in lines: out += l.split("\n")
    return out

if __name__ == "__main__":
    print(len(build(Cfg(), "k_kernel")), "lines")
```

```python
import math, struct
from asmlib import *

SL = 24832
KS = [0, SL, 2 * SL]
VS = [3 * SL, 4 * SL, 5 * SL]
EB = 6 * SL
FLAG = EB + 12288
LDS_BYTES = 163840

sX, sW, sK, sV, sO = S(4, 4), S(8, 4), S(12, 4), S(16, 4), S(20, 4)
sWave = S(24)
kR, kN, kF = S(25), S(26), S(27)
vR, vN, vF = S(28), S(29), S(30)
sKoff, sVoff, sWoff, sXoff = S(31), S(32), S(33), S(34)
sLoop, sHead = S(35), S(36)
sThr = S(37)
sC2 = S(38, 2)
sGrp = S(40)
sT0, sT1, sT2, sT3, sT4 = S(41), S(42), S(43), S(47), S(55)
sXl = [S(44), S(45)]
sOoff = S(46)
sWcur, sVcur = S(48), S(49)
sTo = S(50)
sTx = S(51)
sBad = S(52, 2)
sWopf = S(54)
sTs = S(56, 4)
sOr, sOut, sEx, sDbg = S(60, 4), S(64, 4), S(68, 4), S(72, 4)
sOb, sWb, sLb, sOutb = S(76), S(77), S(78), S(79)
sExs, sExr, sFs, sFr = S(80), S(81), S(82), S(83)
sRw, sRx = S(0), S(1)
sSig, sCnt, sMyc = S(84), S(85), S(86)
sRedo, sIdle = S(87), S(88)
sK0, sW0, sX0 = S(89), S(90), S(91)
sKend, sVend, sWend, sXend = S(92), S(93), S(94), S(95)
sWo = S(96, 4)
sSpin = S(100)
sTp = S(101)
sHc, sHn, sJmp, sStol = S(25), S(26), S(27), S(28)
sOc, sWc, sOn, sWn = S(29), S(30), S(31), S(32)
sA18 = S(33)
OOB = 0x7fff0000
EXOFF = 0x3000000
FLOFF = 0xC00000
STOFF = 0x1000000

def blk(q, s): return q * 6 + s
def Qf(q, s): return V(8 * blk(q, s), 4)
def QACC(T, q): return V(8 * blk(q, T >> 1) + 4 * (T & 1), 4)
def U(i): return V(8 * i + 4, 4)
def Pf(par, q, u): return U(par * 8 + q * 2 + u)
def Sf(i): return U(16 + (i & 3))
def Ci(q): return U(20 + q)
def VB(b, u, e=None):
    return V(192 + 8 * b + 4 * u, 4) if e is None else V(192 + 8 * b + 4 * u + 2 * e, 2)
TMP = [V(216, 8), V(224, 8)]
def Lq(q): return V(232 + q)
kaddr = [V(236), V(237)]
vaddr = [V(238), V(239), V(240), V(241)]
waddr = [V(242), V(243)]
xaddr = [V(244), V(245)]
dKV = [V(246), V(247), V(248)]
dW = [V(249), V(250), V(251)]
dX = V(252)
vL16 = V(253)
vt0, vt1 = V(224), V(225)
vOne = V(254)
vStamp = V(255)
raddr = [V(249), V(250), V(251), V(242)]
def PACC(N, q): return V(4 * (N * 5 + q), 4)
def OF(b, q, u):
    i = 2 * q + u
    if b == 0: return A(192 + 4 * i, 4)
    if b == 1: return A(232 + 4 * i, 4) if i < 6 else U(20 + i - 6)
    return V(8 * (20 + i), 4) if i < 4 else A(4 * (i - 4), 4)
def Oacc(T, q): return A(4 * (T * 4 + q), 4)
def Lacc(q): return A(240 + 4 * q, 4)
ONES = V(232, 4)
def Kf(b, s): return A(192 + 24 * b + 4 * s, 4)
def Xf(par, q, u): return A(192 + 32 * par + 8 * q + 4 * u, 4)

def fbits(x): return "0x%08x" % struct.unpack("<I", struct.pack("<f", x))[0]

class Cfg:
    wshift = 8
    kvflags = "nt"
    wflags = ""
    xflags = ""
    oflags = "sc1"
    orflags = "sc1"
    woflags = ""
    pubchunk = 3
    epist = 9
    balance = 1
    spind = -1
    spinat = -2
    twoloops = 1
    gentle = 4
    pfake = 0
    pclus = 0
    prd = 1
    pskip = 0
    markchunk = 0
    xend = 120
    ctouch = 2
    kvperm = 1
    lmfma = 1
    dbgst = 0
    xpace = 0
    l2pf = 0
    l2n = 3
    l2tot = 12
    l2fl = ""
    ntlate = 99
    outflags = ""
    thr = 40
    stamps = False
    fake = 0
    nostore = 0
    w3all = 1
    rotkv = 1
    rotq = 1
    codepf = 1
    wopf = 1

def tagK(dn): return lambda c: ('K', c['h'], c['t'] + dn)
def tagV(dn): return lambda c: ('V', c['h'], c['t'] + dn)
def absT(kind, dh, n): return lambda c: (kind, c['h'] + dh, n)
def slot_of(tile, nq):
    k, h, n = tile
    if k == 'K': return ('k', n % 3)
    if k == 'x': return ('k', 1 + n % 2) if nq == 4 else ('e', n % 2)
    if k == 'W': return ('v', (h * 26 + n) % 3)
    if k == 'V': return ('v', (h * 26 + 10 + n) % 3)
    if k == 'U': return ('kv', (n + 1) % 3)

def kv_map(cfg):
    return {0: (8, list(range(8))),
            1: (1, [0, 32, 64, 96, 16, 48, 80, 112]),
            2: (2, [0, 32, 64, 96, 1, 33, 65, 97]),
            3: (4, [0, 64, 1, 65, 2, 66, 3, 67])}[cfg.kvperm]
def slot_base(slot):
    return {'k': KS, 'v': VS, 'e': [EB, EB + 6144]}[slot[0]][slot[1]]
def exp_dma(ins, tag, nq, soff, imm, idx, cfg):
    def f(c, st):
        k, h, n = tag(c); w = st['wave']; base = slot_base(slot_of((k, h, n), nq)); hh = st['h0'] + 16 * h
        if k == 'x':
            el = base + (w * 8192 if nq == 4 else 0) + idx * 1024
            eg = w * 64 * 1280 + 128 * ((n + st['rq'] * h) % 10) + idx * 10240
        else:
            i = idx + (3 * w if nq == 4 else 0); mm = i // 3
            n = (n + st['rq'] * h) % 10 if k == 'W' else (n + st['rk']) % 16
            el = base + i * 1024
            if k == 'W':
                el += cfg.wshift if mm >= 4 else 0
                eg = hh * 384 + (64 * n + 32 * ((mm & 3) >> 1) + 4 * (mm & 1) + 8 * (mm >> 2)) * 12288 + (i % 3) * 1024
            else: eg = hh * 393216 + (n * kv_map(cfg)[0] + kv_map(cfg)[1][mm]) * 3072 + (i % 3) * 1024
        gl, gg = st.get('m0'), st.get(str(soff))
        if gl is None or gg is None or gl + imm != el or gg + imm != eg: return f"lds {gl}+{imm} vs {el}; glob {gg}+{imm} vs {eg} tile {(k, h, n)}"
    ins.expect = f
    return ins
def exp_rd(ins, addr, tag):
    def f(c, st):
        base = slot_base(slot_of(tag(c), 4))
        if st.get(str(addr)) != base: return f"base {st.get(str(addr))} vs {base} tile {tag(c)}"
    ins.expect = f
    return ins

def advance(off, end, step, span, on=True):
    o = [salu("s_add_u32", off, off, step)]
    if on:
        i = Ins(f"s_cmp_eq_u32 {off}, {end}\ns_cselect_b32 {sT4}, {span}, 0", 'S', rd=off.regs() + end.regs(), wr=['scc'] + sT4.regs(), states=2)
        i.cost = 2
        i.simfn = lambda st: st.__setitem__(str(sT4), span if st[str(off)] == st[str(end)] else 0)
        o += [i, salu("s_sub_u32", off, off, sT4)]
    return o

def job_tile(nq, kind, slotreg, tag, cfg, groups=None, adv=True, flo=None):
    srd, off, end, addr, fl = {'K': (sK, sKoff, sKend, dKV, cfg.kvflags), 'V': (sV, sVoff, sVend, dKV, cfg.kvflags),
                               'W': (sW, sWoff, sWend, dW, cfg.wflags)}[kind]
    sl = lambda c: slot_of(tag(c), nq)
    if flo is not None: fl = flo
    out = []
    if nq == 4:
        if groups is None:
            out.append(salu("s_add_u32", 'm0', slotreg, sGrp))
            for m in range(3): out.append(exp_dma(dma(addr[m], srd, off, 1024 * m, fl, tag=tag, slot=sl), tag, nq, off, 1024 * m, m, cfg))
    else:
        for mm in (range(3, 8) if groups is None else groups):
            if kind == 'W':
                k0 = 32 * ((mm & 3) >> 1) + 4 * (mm & 1) + 8 * (mm >> 2)
                go = k0 * 12288; lo = mm * 3072 + (cfg.wshift if mm >= 4 else 0)
            else:
                lo = mm * 3072; go = kv_map(cfg)[1][mm] * 3072
            out.append(salu("s_add_u32", 'm0', slotreg, lo))
            out.append(salu("s_add_u32", sT0, off, go))
            for m in range(3): out.append(exp_dma(dma(addr[m], srd, sT0, 1024 * m, fl, tag=tag, slot=sl), tag, nq, sT0, 1024 * m, 3 * mm + m, cfg))
    if adv and (nq == 3 or kind == 'W'):
        step = 786432 if kind == 'W' else 3072 * kv_map(cfg)[0]
        if cfg.fake and (kind != 'W' or cfg.fake > 1): step = 0
        out += advance(off, end, step, 7864320 if kind == 'W' else 16 * 3072 * kv_map(cfg)[0])
    return out

def job_x(nq, n, dh, cfg, dep=()):
    tag = absT('x', dh, n); sl = lambda c: slot_of(tag(c), nq)
    out = []
    for i in range(2 * nq):
        if i % 4 == 0: out.append(salu("s_add_u32", 'm0', sXl[n & 1], 1024 * i))
        out.append(salu("s_add_u32", sTx, sXoff, 10240 * i - 1024 * (i % 4)))
        d = dma(dX, sX, sTx, 1024 * (i % 4), 'nt' if n >= cfg.ntlate else cfg.xflags, tag=tag, slot=sl, private=True)
        exp_dma(d, tag, nq, sTx, 1024 * (i % 4), i, cfg)
        if i == 0: d.rd += list(dep)
        out.append(d)
    out += advance(sXoff, sXend, 0 if cfg.fake > 1 else 128, 1280)
    return out

def bstamp(sc, gw, gl):
    sc.put(gw, raw("s_memrealtime s[56:57]"), front=True)
    sc.put(gl, unit([f"v_cmp_eq_u32 vcc, s3, {vL16}", f"v_mov_b32 {vOne}, s56", "s_add_u32 s3, s3, 16", f"v_cndmask_b32 {vStamp}, {vStamp}, {vOne}, vcc"], 'V', cost=3))
def code_touch(targets, regs, guard=None, alt=None):
    lo, hi_, dummy = V(regs), V(regs + 1), V(regs + 2)
    _uid[0] += 1; n0 = _uid[0]
    l = [f"s_cmp_lg_u32 {guard[0]}, {guard[1]}", f"s_cbranch_scc1 L_cts{n0}"] if guard else []
    def one(target):
        _uid[0] += 1; n = _uid[0]
        return ["s_getpc_b64 s[58:59]", f"L_ct{n}:", f"s_add_u32 s58, s58, {target}-L_ct{n}", f"s_addc_u32 s59, s59, 0-(({target}-L_ct{n})>>63)",
                "s_and_b32 s58, s58, 0xfffff000",
                f"v_lshrrev_b32 {lo}, 7, {vL16}", f"v_lshlrev_b32 {lo}, 12, {lo}", f"v_and_b32 {hi_}, 0x70, {vL16}", f"v_lshl_add_u32 {lo}, {hi_}, 3, {lo}",
                f"v_min_u32 {lo}, L_code_end-({target})-4, {lo}",
                f"v_mov_b32 {hi_}, s59", f"v_add_co_u32 {lo}, vcc, s58, {lo}", "s_nop 1", f"v_addc_co_u32 {hi_}, vcc, 0, {hi_}, vcc",
                f"global_load_dword {dummy}, v[{lo.a}:{hi_.a}], off"]
    if alt: l += [f"s_cmp_lg_u32 {sHead}, 0", f"s_cbranch_scc1 L_cta{n0}"]
    for t in targets: l += one(t)
    if alt:
        l += [f"s_branch L_cts{n0}", f"L_cta{n0}:"]
        for t in alt: l += one(t)
    l.append(f"L_cts{n0}:")
    u = unit(l, 'S', cost=2 if guard else 18 * len(targets), wr=['scc', 'vcc'])
    u.states = 1
    return u
def lchain(q, par, first):
    o = [mfma(Lacc(q), ONES, Pf(par, q, u), 0 if (first and u == 0) else Lacc(q)) for u in range(2)]
    for i in o: i.cost = 4
    return o

def seq_after(sc, seq, lo, hi, even=False):
    seq = list(seq)
    SEQS.append(seq)
    hi = min(hi, len(sc.g) - 1)
    n = len(seq)
    nx = sum(1 for i in seq if i.kind == 'X'); kx = 0
    g = lo; prev = None; pg = None
    for k, ins in enumerate(seq):
        dl = max(g, min(hi, lo + ((k + 1) * (hi - lo + 1) + n - 1) // n - 1))
        if not even: dl = max(g, min(hi, hi - (n - 1 - k) // 2))
        g1 = g
        if even and ins.kind == 'X': g1 = max(g, min(dl, lo + (kx * (hi - lo + 1)) // nx))
        same_bad = prev is not None and ((prev.kind in 'VE' and ins.kind not in 'VE') or ('m0' in prev.wr and ins.dma))
        if same_bad and g1 == pg:
            if g1 + 1 <= hi: g1 += 1; dl = max(dl, g1)
            else:
                if 'm0' in prev.wr: sc.g[g1].append(nop(0))
                sc.g[g1].append(ins); prev = ins; pg = g1
                for rest in seq[k + 1:]:
                    if 'm0' in prev.wr and rest.dma: sc.g[g1].append(nop(0))
                    sc.g[g1].append(rest); prev = rest
                return g1
        r = sc.place(ins, g1, dl, force=True)
        if ins.kind == 'X': kx += 1
        g = r; pg = r; prev = ins
    return g

def place_even(sc, seq, lo, hi): return seq_after(sc, seq, lo, hi, even=True)

def rdK(j, s, tag): return exp_rd(dsread("ds_read_b128", Kf(j & 1, s), kaddr[s & 1], (j & 3) * 6144 + (s >> 1) * 128, tag), kaddr[s & 1], tag)
def rdV(T, u, e, tag):
    T %= 12
    return exp_rd(dsread("ds_read_b64_tr_b16", VB(T & 3, u, e), vaddr[T & 3], (32 * u + 16 * e) * 384 + (T >> 2) * 128, tag), vaddr[T & 3], tag)
def rdW(T, u, e, tag):
    T %= 12
    s, uu = T >> 1, T & 1
    return exp_rd(dsread("ds_read_b64_tr_b16", VB(T % 3, u, e), waddr[s & 1], (2 * u + e) * 3072 + (s >> 1) * 128 + 8 * uu, tag), waddr[s & 1], tag)
def rdX(nq, n, dh, q, u):
    d = SL if nq == 4 else 6144
    return dsread("ds_read_b128", Xf(n & 1, q, u), xaddr[u], (n & 1) * d + q * 2048, absT('x', dh, n), private=True)
UE = [(0, 0), (0, 1), (1, 0), (1, 1)]

def rebase(regs, cur, new):
    return [salu("s_sub_u32", sT1, new, cur), smov(cur, new)] + [valu("v_add_u32", r, sT1, r) for r in regs]
def rotate(r, n, f): return [smov(sT2, r), smov(r, n), smov(n, f), smov(f, sT2)]
def rebaseK():
    return [salu("s_sub_u32", sT3, kN, kR)] + [valu("v_add_u32", r, sT3, r) for r in kaddr]

def softmax_ops(Sx, q, j, par):
    e = [vexp(Sx.sub(r), Sx.sub(r)) for r in range(4)]
    a = [valu("v_add_f32", Lq(q), Lq(q), Sx.sub(r)) for r in range(4)]
    P = Pf(par, q, j >> 1)
    c = [valu("v_cvt_pk_bf16_f32", P.sub(2 * (j & 1) + i), Sx.sub(2 * i), Sx.sub(2 * i + 1)) for i in range(2)]
    return e, a, c

def attn_iter(nq, par, cfg, first_pv=False, jobs=(), next_k=True, k_rot=True, late=(), gentle=False):
    NG = 4 * nq
    mf = []
    for G in range(NG):
        j, q = divmod(G, nq)
        for s in range(6):
            mf.append(mfma(Sf(G), Kf(j & 1, s), Qf(q, s), Ci(q) if s == 0 else Sf(G)))
        for n in range(3 * G, 3 * G + 3):
            T, qq = divmod(n, nq)
            for u in range(2):
                mf.append(mfma(Oacc(T, qq), VB(T & 3, u), Pf(par, qq, u), 0 if (first_pv and u == 0) else Oacc(T, qq)))
    sc = Sched(mf)
    def pvpos(n): return 12 * (n // 3) + 6 + 2 * (n % 3)
    sm = []
    for G in range(NG):
        Gp = (G - 1) % NG
        j, q = divmod(Gp, nq)
        e, a, c = softmax_ops(Sf(Gp), q, j, par if G == 0 else par ^ 1)
        eg = [0, 2, 4, 6]
        if gentle and cfg.gentle:
            lv = cfg.gentle // 2 + (cfg.gentle % 2) * (G % 2)
            eg = [[0, 2, 4, 6], [2, 2, 4, 6], [2, 2, 6, 6], [4, 4, 4, 4]][lv]
        for r in range(4): sc.put(12 * G + eg[r], e[r])
        sm.append((e, a, c))
    GB = 3 * nq
    bw = wait(need_vm=(lambda c: [('K', c['h'], c['t'] + 2), ('V', c['h'], c['t'] + 1)]), lgkm0=True, free=False)
    sc.put(12 * GB, bw, front=True)
    if cfg.stamps == 2 and nq == 4: bstamp(sc, 12 * GB, 12 * GB + 22)
    sc.put(12 * GB + 2, barrier(), front=True)
    bar = 12 * GB + 2
    reads = []
    for j in range(4):
        lo = 12 * nq * j
        nxt = (j == 3)
        tv, tk = (tagV(1), tagK(2)) if nxt else (tagV(0), tagK(1))
        for i in range(3):
            T = 3 * j + 3 + i
            l2 = lo if i == 0 else pvpos(nq * (T - 4) + nq - 1) + 1
            l2 = max(l2, lo)
            if nxt: l2 = max(l2, bar + 1)
            item = [(rdV(T, u, e, tv), l2) for (u, e) in UE]
            reads.append((l2, 0, item))
        if not nxt or next_k:
            l2 = max(lo, bar + 1) if nxt else lo
            reads.append((l2, 1, [(rdK(j + 1, s, tk), l2) for s in range(6)]))
    reads.sort(key=lambda x: (x[0], x[1]))
    g = 0
    lastpre = 0
    for _, _, item in reads:
        for ins, l2 in item:
            g = max(g, l2)
            while not (g % 12 in (1, 3, 5, 7, 8, 9) and not sc.g[g]) :
                g += 1
                if nq == 3 and g % 12 in (10, 11) and not sc.g[g]: break
            assert g < len(mf), "ds overflow"
            sc.put(g, ins)
            if g < bar: lastpre = g
    assert lastpre < 12 * GB
    upd = rebase(vaddr, sVcur, vN) + (rebaseK() if k_rot else [])
    for G in range(NG):
        e, a, c = sm[G]
        b = 12 * G
        if nq == 3 and G == 0:
            order = [(a[0], 1), (c[0], 3), (a[1], 5), (c[1], 7), (a[2], 8), (a[3], 9)]
        else:
            order = [(a[0], 1), (a[1], 3), (c[0], 5), (a[2], 7), (a[3], 8), (c[1], 9)]
        for ins, o in order:
            if not (cfg.lmfma and ins in a): sc.put(b + o, ins)
    if nq == 3:
        for G in range(NG):
            sc.put(12 * G + 4, wait(), front=True)
            if G % 3 == 2: sc.put(12 * G + 11, wait())
    if cfg.xpace and nq == 4 and gentle:
        for G in range(NG): sc.put(12 * G + 6, nop(cfg.xpace - 1))
    seq_after(sc, upd, lastpre, bar)
    gj = 0
    seq = [i for jb in jobs for i in jb]
    if seq: gj = place_even(sc, seq, 0, 12 * GB - (2 if nq == 3 else 13))
    rot = rotate(vR, vN, vF) + (rotate(kR, kN, kF) if k_rot else [])
    sc.extra = [(12 * (4 * q + 2) + 11, lchain(q, par, first_pv)) for q in range(nq)] if cfg.lmfma else []
    seq = [i for jb in late for i in jb]
    if any(i.kind == 'X' for i in seq):
        gr = seq_after(sc, rot, bar + 1, bar + 4)
        place_even(sc, seq, gr + 1, len(mf) - 2)
    else:
        seq_after(sc, rot + seq, bar + 1, len(mf) - 2)
    return sc

NCH = 24
PSLOT = [0, SL - 1024, 2 * SL - 1024]
def head_of(c):
    hh, cc = divmod(c, 3)
    return (hh if hh < 4 else 12 + hh), cc
def tagU(c): return lambda ctx: ('U', 0, c + ctx.get('dc', 0))
def job_o(c, cfg, dyn=None):
    h, cc = head_of(c)
    if cfg.pfake & 1: h = 0; dyn = None
    out = []
    for q in range(5):
        out.append(salu("s_add_u32", sTp, dyn or sOb, (0 if dyn else h * 92160) + cc * 2048 + q * 6144))
        for u in range(2):
            l = gload(OF(c % 3, q, u), vL16, sOr, sTp, 1024 * u, cfg.orflags)
            l.expect = lambda ctx, st, q=q: None if st.get(str(sTp)) == st[str(sOb)] + ctx['heads'][(c + ctx.get('dc', 0)) // 3] * 92160 + cc * 2048 + q * 6144 else "o off"
            if cfg.pskip & 1 and (q, u) != (0, 0): continue
            if cfg.pskip & 4 and q >= 4: continue
            out.append(l)
    return out
def job_u(c, cfg, dyn=None):
    h, cc = head_of(c)
    if cfg.pfake & 2: h = 0; dyn = None
    tag = tagU(c); sl = lambda ctx: slot_of(tag(ctx), 4)
    out = []
    for i in range(8):
        if i % 4 == 0: out.append(salu("s_add_u32", 'm0', sLb, PSLOT[(c + 1) % 3] + 1024 * i))
        out.append(salu("s_add_u32", sTx, dyn or sWb, ((0 if dyn else h * 192) + 64 * cc + 8 * i) * 1280 - 1024 * (i % 4)))
        d = dma(dX, sWo, sTx, 1024 * (i % 4), cfg.woflags, tag=tag, slot=sl)
        d.expect = lambda ctx, st, i=i, el=PSLOT[(c + 1) % 3] + 4096 * (i // 4): \
            None if (st.get(str(sTx)) == st[str(sWb)] + (ctx['heads'][(c + ctx.get('dc', 0)) // 3] * 192 + 64 * cc + 8 * i) * 1280 - 1024 * (i % 4)
                     and st.get('m0') == st[str(sLb)] + el) else "u off"
        if cfg.pskip & 2 and i != 7: continue
        out.append(d)
    return out
def next_head():
    l = [f"s_mov_b32 {sHc}, {sHn}", f"s_mov_b32 {sOc}, {sOn}", f"s_mov_b32 {sWc}, {sWn}",
         f"s_add_u32 {sHn}, {sHc}, 1",
         f"s_cmp_eq_u32 {sHn}, {sJmp}", f"s_cselect_b32 {sHn}, 16, {sHn}",
         f"s_cmp_eq_u32 {sHc}, 18", f"s_cselect_b32 {sHn}, {sA18}, {sHn}",
         f"s_cmp_eq_u32 {sHc}, {sStol}", f"s_cselect_b32 {sHn}, 19, {sHn}",
         f"s_mul_i32 {sOn}, {sHn}, 92160", f"s_add_u32 {sOn}, {sOn}, {sOb}",
         f"s_mul_i32 {sWn}, {sHn}, {192 * 1280}", f"s_add_u32 {sWn}, {sWn}, {sWb}"]
    out = []
    for grp in (l[0:1], l[1:2], l[2:3], l[3:4], l[4:6], l[6:8], l[8:10], l[10:11], l[11:12], l[12:13], l[13:14]):
        out.append(unit(grp, 'S', wr=['scc']))
    def sim(st):
        st[str(sHc)] = st[str(sHn)]; st[str(sOc)] = st[str(sOn)]; st[str(sWc)] = st[str(sWn)]
        c_ = st[str(sHc)]; n = c_ + 1
        if n == st[str(sJmp)]: n = 16
        if c_ == 18: n = st[str(sA18)]
        if c_ == st[str(sStol)]: n = 19
        st[str(sHn)] = n; st[str(sOn)] = st[str(sOb)] + n * 92160; st[str(sWn)] = st[str(sWb)] + n * 192 * 1280
    def kill(st):
        st['save'] = {k: st[k] for k in (str(sHc), str(sHn), str(sOc), str(sWc), str(sOn), str(sWn)) if k in st}
        for k in st['save']: del st[k]
    def fin(st):
        st.update(st['save']); sim(st)
    out[0].simfn = kill; out[-1].simfn = fin
    return out
def flag_store(off, val):
    u = unit([f"v_mov_b32 {vOne}, {val}", "s_mov_b64 exec, 1", f"buffer_store_dword {vOne}, off, {sEx}, {sFs} offset:{off} sc1", "s_mov_b64 exec, -1"], 'S', cost=7)
    u.states = 2
    return u
SPAN = [divmod(gs, 8) for gs in range(176)] + [(22, N) for N in (6, 7, 4, 5)] + [(23, N) for N in (6, 7, 4, 5)] \
    + [(22, N) for N in (0, 1, 2, 3)] + [(23, N) for N in (2, 3, 0, 1)]
def rdU(gs, u, e):
    c, N = SPAN[gs]
    return dsread("ds_read_b64_tr_b16", VB(gs % 3, u, e), raddr[N & 3],
                  PSLOT[(c + 1) % 3] + (N >> 2) * 8192 + (32 * u + 16 * e) * 128, tag=tagU(c))
def calc_raddr():
    o = [valu("v_lshrrev_b32", vt0, 6, vL16),
         valu("v_and_b32", vt1, 6, vt0),
         valu("v_lshlrev_b32", vt0, 7, vt0),
         valu("v_bfe_u32", raddr[0], vL16, 4, 1),
         valu("v_lshl_add_u32", vt0, raddr[0], 3, vt0),
         valu("v_bfe_u32", raddr[0], vL16, 5, 1),
         valu("v_xor_b32", vt1, vt1, raddr[0]),
         valu("v_lshlrev_b32", vt1, 4, vt1),
         salu("s_lshr_b32", sTp, sWave, 1), salu("s_lshl_b32", sTp, sTp, 6),
         valu("v_xor_b32", vt1, sTp, vt1),
         salu("s_lshr_b32", sTp, sWave, 1), salu("s_mul_i32", sTp, sTp, 3 * SL, scc=False), salu("s_add_u32", sTp, sTp, 1024),
         valu("v_add_u32", vt0, sTp, vt0)]
    for m in range(4):
        o += [valu("v_xor_b32", raddr[m], 32 * m, vt1), valu("v_add_u32", raddr[m], raddr[m], vt0)]
    for i in o: i.nosim = True
    return o
def unit(lines, kind='S', cost=None, rd=(), wr=(), **kw):
    i = Ins("\n".join(lines), kind, rd=rd, wr=wr, states=len([l for l in lines if not l.endswith(":")]), **kw)
    i.cost = cost if cost is not None else len(lines)
    i.nosim = True
    return i
_uid = [0]
def signal_add(off, guarded):
    _uid[0] += 1; n = _uid[0]
    l = [f"v_mov_b32 {vOne}, 1", "s_mov_b64 exec, 1", f"buffer_atomic_add {vOne}, off, {sDbg}, {off} sc1", "s_mov_b64 exec, -1"]
    if guarded: l = [f"s_cmp_eq_u32 {off}, -1", f"s_cbranch_scc1 L_nosig{n}"] + l + [f"s_mov_b32 {off}, -1", f"L_nosig{n}:"]
    u = unit(l, 'S', cost=8, wr=['scc'])
    u.states = 2
    return u
def poll_issue(gen):
    return gload_off(V(226, 2), sDbg, sCnt, 0) if gen == 0 else gload_off(V(226), sDbg, sMyc, 64)
def gload_off(D, srd, soff, off):
    op = {1: "buffer_load_dword", 2: "buffer_load_dwordx2"}[D.n]
    return Ins(f"{op} {D}, off, {srd}, {soff} offset:{off} sc1", 'X', rd=srd.regs() + soff.regs(), wr=D.regs())
def cond_load(D, srd, soff, off, cmp_lines, vtmp):
    a = unit(cmp_lines + [f"s_cselect_b32 {sT0}, 0, 0x7ff00000", f"v_mov_b32 {vtmp}, {sT0}"], 'S', wr=['scc'] + sT0.regs() + vtmp.regs())
    b = Ins(f"buffer_load_dword {D}, {vtmp}, {srd}, {soff} offen offset:{off} sc1", 'X', rd=srd.regs() + soff.regs() + vtmp.regs(), wr=D.regs())
    return a, b
def poll_check(gen):
    _uid[0] += 1; n = _uid[0]
    l = [f"s_mov_b32 {sSpin}, 0x80000", f"L_poll{n}:"] + (["v_min_u32 v226, v226, v227", "s_nop 0"] if gen == 0 else []) + \
        [f"v_readfirstlane_b32 {sT0}, v226", "s_nop 3",
         f"s_cmp_ge_u32 {sT0}, 32", f"s_cbranch_scc1 L_pok{n}",
         "s_sleep 2", poll_issue(gen).text,
         f"s_sub_u32 {sSpin}, {sSpin}, 1", f"s_cmp_lg_u32 {sSpin}, 0", "s_waitcnt vmcnt(0)", f"s_cbranch_scc1 L_poll{n}", f"L_pok{n}:"]
    u = unit(l, 'S', cost=12, rd=['v226', 'v227'], wr=['v226', 'scc'] + sT0.regs())
    u.states = 0
    return u

def attn_last(nq, cfg, nxt):
    par = 1
    mf = []
    for T in range(12):
        for q in range(nq):
            for u in range(2): mf.append(mfma(Oacc(T, q), VB(T & 3, u), Pf(par, q, u), Oacc(T, q)))
    sc = Sched(mf)
    sp = 2 * nq
    e, a, c = softmax_ops(Sf(4 * nq - 1), nq - 1, 3, par)
    if nq == 4:
        for r in range(4): sc.put(r, e[r])
        sc.put(4, c[0]); sc.put(4, c[1])
        g0 = 6
    else:
        sc.put(0, e[0]); sc.put(0, e[1]); sc.put(1, e[2]); sc.put(1, e[3])
        sc.put(2, c[0]); sc.put(2, c[1])
        g0 = 4
    if not cfg.lmfma: sc.put(g0 - 1, a[0]); sc.put(g0 - 1, a[1])
    else: sc.put(g0 - 1, nop(0))
    g = g0
    for T in range(3, 12):
        g = max(g, sp * (T - 3))
        for (u, ee) in UE:
            sc.put(g, rdV(T, u, ee, tagV(0))); g += 1
        sc.put(g - 1, wait())
    lastv = g - 1
    if cfg.lmfma:
        sc.extra = [(sp - 1, [i for q in range(nq) for i in lchain(q, par, False)])]
        fin = [None] * ((sp + 8 - g0) // 2) + [valu("v_accvgpr_read_b32", Lq(q), Lacc(q).sub(0)) for q in range(nq)]
    else:
        fin = [a[2], a[3]]
        for q in range(nq):
            t = vt0 if q % 2 == 0 else vt1
            for w in (32, 16):
                fin += [valu("v_mov_b32", t, Lq(q)), None, vperm(w, t, Lq(q)), valu("v_add_f32", Lq(q), Lq(q), t)]
    fin += [valu("v_add_f32", vt0, Lq(0), Lq(1)), valu("v_add_f32", vt0, vt0, Lq(2))]
    if nq == 4: fin.append(valu("v_add_f32", vt0, vt0, Lq(3)))
    fin.append(Ins(f"v_cmp_ngt_f32 {sBad}, {sThr}, {vt0}", 'V', rd=vt0.regs() + sThr.regs(), wr=sBad.regs()))
    SEQS.append([i for i in fin if i is not None])
    g = g0
    for ins in fin:
        if ins is None: g += 2; continue
        g = sc.place(ins, g, g + 8)
    for q in range(nq):
        g = sc.place(vrcp(Lq(q), Lq(q)), g + 1, g + 8)
    ginv = g
    chk = [unit([f"s_cmp_lg_u64 {sBad}, 0", f"s_cselect_b32 {sBad.sub(0)}, 1, 0"], rd=sBad.regs(), wr=['scc'] + sBad.regs()),
           salu("s_lshl_b32", sTp, sWave, 2), salu("s_add_u32", sTp, sTp, FLAG), valu("v_mov_b32", vt0, sBad.sub(0))]
    if nxt == 'P' and nq == 3 and cfg.balance:
        sc.put(0, gload_off(V(226), sEx, sFr, 4), front=True)
        chk += [wait(), valu("v_lshl_or_b32", vt0, V(226), 1, vt0)]
    chk += [valu("v_mov_b32", vt1, sTp), dswrite("ds_write_b32", vt1, vt0, 0),
           valu("v_mov_b32", vOne, FLAG)]
    for i in chk: i.nosim = True
    g = seq_after(sc, chk, g + 1, g + 12)
    bar = sp * 10
    assert g < bar - 2
    gnext = g + 1
    if nxt == 'Q':
        w = wait(need_vm=lambda c: [('x', c['h'] + 1, 0)], free=False)
        gx = sc.place(w, sp * 3, sp * 4)
        dep = []
        for q in range(nq):
            for u in range(2):
                r = rdX(nq, 0, 1, q, u); dep += r.wr
                gx = sc.place(r, gx + 1, gx + 8)
        j1 = job_tile(nq, 'W', vF, absT('W', 1, 1), cfg)
        ge = place_even(sc, j1, g0, sp * 7)
        ws = wait(); gw = sc.place(ws, max(gx + 4, ge), max(gx + 4, ge) + 4)
        place_even(sc, job_x(nq, 2, 1, cfg, dep), gw + 1, len(mf) - 1)
        need = lambda c: [('W', c['h'] + 1, 0)]
    else:
        place_even(sc, job_u(1, cfg), g0, gnext - 1)
        place_even(sc, job_o(0, cfg) + job_o(1, cfg), gnext, len(mf) - 1)
        need = lambda c: [('U', 0, 0)]
    bw = wait(need_vm=need, lgkm0=True, free=False)
    gb = sc.place(bw, bar - 1, bar)
    gb = sc.place(barrier(), gb, bar + 1)
    fl = dsread("ds_read_b128", V(228, 4), vOne, 0)
    g = sc.place(fl, gb + 1, gb + 2)
    if nxt == 'Q':
        seq_after(sc, rebase(waddr, sWcur, vN), lastv, gb)
        seq_after(sc, rotate(vR, vN, vF), gb + 1, len(mf) - 1)
    for T in range(2):
        g = max(g, sp * (10 + T) - 1)
        for (u, ee) in UE:
            r = rdW(T, u, ee, absT('W', 1, 0)) if nxt == 'Q' else rdU(T, u, ee)
            g = sc.place(r, min(len(mf) - 1, g + 1), min(len(mf) - 1, g + 2))
        sc.place(wait(), g, g)
    sc.post = [valu("v_or3_b32", V(228), V(228), V(229), V(230)), valu("v_or_b32", V(228), V(228), V(231)), nop(0),
               Ins(f"v_readfirstlane_b32 {sBad.sub(0)}, v228", 'V', rd=['v228'], wr=sBad.sub(0).regs()), nop(3),
               salu("s_and_b32", sBad.sub(1), sBad.sub(0), 1),
               salu("s_andn2_b32", sBad.sub(1), sBad.sub(1), sRedo), raw(f"s_cbranch_scc1 L_slow_{nq}"), smov(sRedo, 0)]
    return sc

def epi_block(q, s, t, cfg, packed=False):
    ops = []
    for i in range(8):
        src = Oacc(2 * s + (i >> 2), q).sub(i & 3)
        ops.append(valu("v_accvgpr_read_b32", t.sub(i), src))
    for i in range(8): ops.append(valu("v_mul_f32", t.sub(i), t.sub(i), Lq(q)))
    for i in range(4): ops.append(valu("v_cvt_pk_bf16_f32", t.sub(i), t.sub(2 * i), t.sub(2 * i + 1)))
    ops.append(salu("s_add_u32", sTo, sOoff, q * 6144 + (4096 if s >= 4 else 0)))
    stv = gstore(t.sub(0, 4), vL16, sO, sTo, (s & 3) * 1024, cfg.oflags)
    def f(c, st):
        h = 0 if c['t'] < 0 else 1
        e = (st['h0'] + 16 * h) * 92160 + (4 * st['wave'] + q) * 6144 + s * 1024
        if st.get(str(sTo)) is None or st[str(sTo)] + (s & 3) * 1024 != e: return f"store off vs {e}"
    stv.expect = f
    if not cfg.nostore: ops.append(stv)
    return ops

def qproj(nq, cfg, epi):
    sp = 2 * nq; SN = 12 * sp
    mf = []
    for st in range(10):
        for T in range(12):
            for q in range(nq):
                for u in range(2):
                    mf.append(mfma(QACC(T, q), VB(T % 3, u), Xf(st & 1, q, u), 0 if (st == 0 and u == 0) else QACC(T, q)))
    sc = Sched(mf)
    drain = None
    for st in range(10):
        b = st * SN
        for T in range(10):
            g = b + sp * T
            for (u, e) in UE:
                sc.put(g, rdW(T + 2, u, e, absT('W', 0, st))); g += 1
            sc.put(g - 1, wait())
        lastw = g - 1
        need = [('W', st + 1)] if st < 9 else [('K', 0)]
        bw = wait(need_vm=(lambda c, need=need: [(k, c['h'], n) for k, n in need]), lgkm0=True, free=False)
        gb = b + sp * 10
        if epi and st == 9 and nq == 4: bw.vm = 0; drain = bw
        sc.put(gb, bw); sc.put(gb, barrier())
        if epi and st == 9 and nq == 3: sc.put(gb, signal_add(sMyc, False))
        if cfg.stamps == 3: bstamp(sc, gb, gb + 5)
        g = gb
        if st < 9:
            seq_after(sc, rebase(waddr, sWcur, vN), lastw, gb)
            for T in range(2):
                g = max(g, b + sp * (10 + T) - 1)
                for (u, e) in UE:
                    g += 1; sc.put(g, rdW(T, u, e, absT('W', 0, st + 1)))
                sc.put(g, wait())
        else:
            seq_after(sc, rebase(vaddr, sVcur, vN), lastw, gb)
            for s in range(6):
                g += 1; sc.put(g, rdK(0, s, absT('K', 0, 0)))
        seq_after(sc, rotate(vR, vN, vF), gb + 1, b + SN - 1)
        dep = []
        gx = b + sp * 4
        if st < 9:
            w = wait(need_vm=(lambda c, st=st: [('x', c['h'], st + 1)]), free=False)
            gx = sc.place(w, gx, gx + sp)
            for q in range(nq):
                for u in range(2):
                    r = rdX(nq, st + 1, 0, q, u); dep += r.wr
                    gx = sc.place(r, gx + 1, gx + sp)
        if st < 8: j1 = job_tile(nq, 'W', vF, absT('W', 0, st + 2), cfg)
        elif st == 8: j1 = job_tile(nq, 'V', vF, absT('V', 0, 0), cfg, groups=range(8))
        else: j1 = job_tile(nq, 'K', kN, absT('K', 0, 1), cfg, groups=range(8))
        ge = b
        if j1: ge = place_even(sc, j1, b, b + (sp * 4 - 1 if (nq == 4 or st == 7) else sp * 6 if st < 7 else sp * 10 - 2 if st == 8 else sp * 8))
        if st == 7 and nq == 3:
            if epi:
                dr = wait(need_vm=lambda c: 'all', free=False); dr.vm = 0; drain = dr
                ge = sc.place(dr, ge + 8, ge + 9)
            place_even(sc, job_tile(nq, 'K', kR, absT('K', 0, 0), cfg, groups=range(8)), ge + 1, b + SN - 1)
        if st + 3 <= 9:
            ws = wait(); gw = sc.place(ws, max(gx + 4, ge), max(gx + 4, ge) + 4)
            place_even(sc, job_x(nq, st + 3, 0, cfg, dep), gw + 1, b + SN - 1)
    if epi:
        nb = 6 * nq
        step = (SN * (cfg.epist if nq == 4 else 7) - 20) // nb
        i = 0
        for s in range(6):
            for q in range(nq):
                ops = epi_block(q, s, TMP[i & 1], cfg)
                seq_after(sc, ops, 10 + i * step, 10 + (i + 1) * step - 1)
                SEQS.append([ops[-1], drain])
                i += 1
        seq_after(sc, [salu("s_add_u32", sOoff, sOoff, 16 * 92160)], len(mf) - 20, len(mf) - 1)
    return sc

def conv_prologue(nq, cfg):
    out = []
    cv = []
    for s in range(6):
        for q in range(nq):
            b = V(8 * blk(q, s), 8)
            for i in range(4): cv.append(valu("v_pk_mul_f32", b.sub(2 * i, 2), b.sub(2 * i, 2), sC2))
            for i in range(4): cv.append(valu("v_cvt_pk_bf16_f32", b.sub(i), b.sub(2 * i), b.sub(2 * i + 1)))
    j = job_tile(nq, 'V', vN, absT('V', 0, 1), cfg, groups=range(8))
    k = 0
    for i, ins in enumerate(cv):
        out.append(ins)
        if i % 3 == 2 and k < len(j): out.append(j[k]); k += 1
    out += j[k:]
    for q in range(nq): out.append(valu("v_mov_b32", Ci(q).sub(0), "0xff800000"))
    out.append(label(f"L_prol_{nq}"))
    if cfg.lmfma == 0:
        for q in range(nq): out.append(valu("v_mov_b32", Lq(q), 0))
    elif cfg.lmfma == 2:
        for q in range(4): out.append(valu("v_mov_b32", Lq(q), "0x3f803f80"))
    else:
        out += [valu("v_and_b32", vt0, 48, vL16), valu("v_mov_b32", vt1, "0x3f803f80"),
                Ins(f"v_cmp_eq_u32 vcc, 0, {vt0}", 'V', rd=vt0.regs(), wr=['vcc']), nop(1)]
        for q in range(4): out.append(valu("v_cndmask_b32", Lq(q), 0, vt1, 'vcc'))
    out.append(wait())
    NG = 4 * nq
    mf = []
    for G in range(NG):
        jj, q = divmod(G, nq)
        for s in range(6):
            mf.append(mfma(Sf(G), Kf(jj & 1, s), Qf(q, s), (0 if jj == 0 else Ci(q)) if s == 0 else Sf(G)))
    sc = Sched(mf)
    sc.pre = out
    gb = 6 * nq * 3
    for jj in range(3):
        g = 6 * nq * jj
        for s in range(6):
            sc.put(g, rdK(jj + 1, s, absT('K', 0, 0))); g += 2
    lastk = g - 2
    bw = wait(need_vm=(lambda c: [('K', c['h'], 1), ('V', c['h'], 0)]), lgkm0=True, free=False)
    sc.put(gb - 1, bw); sc.put(gb - 1, barrier())
    seq_after(sc, rebaseK(), lastk + 1, gb - 2)
    g = gb
    post = [rdK(4, s, absT('K', 0, 1)) for s in range(6)]
    for T in range(3): post += [rdV(T, u, e, absT('V', 0, 0)) for (u, e) in UE]
    for ins in post:
        sc.put(g, ins); g += 1
    assert g <= len(mf)
    rot = rotate(kR, kN, kF)
    for i, ins in enumerate(rot): sc.put(gb + i, ins)
    if nq == 3:
        place_even(sc, job_tile(nq, 'K', kF, absT('K', 0, 2), cfg, groups=range(8)), 0, gb - 3)
        place_even(sc, job_tile(nq, 'V', vF, absT('V', 0, 2), cfg, groups=range(4), adv=False), gb, len(mf) - 1)
    tail = []
    for G in range(NG - 1):
        jj, q = divmod(G, nq)
        Sx = Sf(G)
        ops = []
        if jj == 0:
            t = vt0; m = vt1
            ops += [valu("v_max3_f32", m, Sx.sub(0), Sx.sub(1), Sx.sub(2)), valu("v_max3_f32", m, m, Sx.sub(3), Ci(q).sub(0))]
            for w in (32, 16):
                ops += [valu("v_mov_b32", t, m), nop(1), vperm(w, t, m), valu("v_max_f32", m, m, t)]
            for r in range(4): ops.append(valu("v_sub_f32", Ci(q).sub(r), 0, m))
            for r in range(4): ops.append(valu("v_sub_f32", Sx.sub(r), Sx.sub(r), m))
        e, a, c = softmax_ops(Sx, q, jj, 0)
        ops += [e[0], e[1], e[2], e[3], c[0], c[1]] if cfg.lmfma else [e[0], e[1], a[0], e[2], a[1], e[3], c[0], a[2], a[3], c[1]]
        if G + 2 < NG:
            n = len(ops)
            for i, ins in enumerate(ops): sc.put(6 * (G + 2) + (i * 6) // n, ins)
        else:
            tail += ops
    sc.add_wait_sites()
    for jj in range(1, 4):
        sc.put(6 * nq * jj - 1, wait())
    return sc.linear() + tail + [wait()]

CS = 6
def merge_jobs(ju, jo):
    def split(j):
        out = []; cur = []
        for i in j:
            cur.append(i)
            if i.kind == 'X': out.append(cur); cur = []
        return out
    a, b = split(ju), split(jo)
    items = sorted([((k + 0.5) / len(a), 0, x) for k, x in enumerate(a)] + [((k + 0.5) / len(b), 1, x) for k, x in enumerate(b)], key=lambda t: t[:2])
    return [i for _, _, x in items for i in x]
def p_chunks(c0, c1, nq, cfg, loop=False):
    mf = []
    for c in range(c0, c1):
        for N in range(8):
            for q in range(5):
                for u in range(2):
                    mf.append(mfma(PACC(N, q), VB((8 * c + N) % 3, u), OF(c % 3, q, u), 0 if (c == 0 and u == 0) else PACC(N, q)))
    sc = Sched(mf)
    PUB = cfg.pubchunk
    for c in range(c0, c1):
        b = 80 * (c - c0)
        for N in range(6):
            RP = [0, 1, 5, 6] if (cfg.prd and N < 5) else [0, 1, 3, 4] if cfg.prd else [0, 1, 2, 3]
            for i, (u, e) in enumerate(UE): sc.put(b + 10 * N + RP[i], rdU(8 * c + N + 2, u, e))
            sc.put(b + 10 * N + RP[3], wait())
        bw = wait(need_vm=(lambda ctx, c=c: 'all' if c == PUB else [tagU(c + 1)(ctx)]), lgkm0=True, free=False)
        if c == PUB: bw.vm = 0; drain = bw
        if loop and c == c0:
            a_, b_ = cond_load(V(226), sDbg, sMyc, 64, [f"s_lshl_b32 {sT0}, {sHn}, 2", f"s_add_u32 {sT0}, {sT0}, {sWave}", f"s_cmp_eq_u32 {sT0}, 67"], V(228))
            sc.put(b + 8, a_); sc.put(b + 14, b_)
            sc.put(b + 59, wait())
            _uid[0] += 1; n = _uid[0]
            sc.put(b + 59, unit([f"s_add_u32 {sT0}, {sWave}, {sHn}", f"s_cmp_lg_u32 {sHn}, 16", f"s_cbranch_scc1 L_skip{n}",
                                 f"s_cmp_lg_u32 {sT0}, 19", f"s_cbranch_scc1 L_skip{n}"], cost=3, rd=['v226'], wr=['scc'] + sT0.regs()))
            pc = poll_check(1); pc.cost = 0; sc.put(b + 59, pc); sc.put(b + 59, label(f"L_skip{n}"))
        if loop and c == c0 + 2:
            a_, b_ = cond_load(V(227), sEx, sFr, 8, [f"s_cmp_eq_u32 {sHc}, 17"], V(229))
            sc.put(b - 72, a_); sc.put(b - 66, b_)
            sc.put(b + 9, wait())
            _uid[0] += 1; n = _uid[0]
            u_ = unit([f"s_cmp_lg_u32 {sHc}, 17", f"s_cbranch_scc1 L_dok{n}", f"s_mov_b32 {sSpin}, 0x80000", f"L_dp{n}:",
                       f"v_readfirstlane_b32 {sT0}, v227", "s_nop 3", f"s_cmp_eq_u32 {sT0}, 1", f"s_cselect_b32 {sA18}, {sStol}, 19",
                       f"s_cmp_lg_u32 {sT0}, 0", f"s_cbranch_scc1 L_dok{n}", "s_sleep 2", gload_off(V(227), sEx, sFr, 8).text,
                       f"s_sub_u32 {sSpin}, {sSpin}, 1", f"s_cmp_lg_u32 {sSpin}, 0", "s_waitcnt vmcnt(0)", f"s_cbranch_scc1 L_dp{n}", f"L_dok{n}:"],
                      cost=2, rd=['v227'], wr=['scc'] + sT0.regs())
            u_.states = 1
            sc.put(b + 9, u_)
        sc.put(b + 60, bw); sc.put(b + 60, barrier())
        if cfg.stamps == 4: bstamp(sc, b + 60, b + 69)
        if c == PUB and nq == 3:
            sc.put(b + 60, salu("s_add_u32", sSig, sMyc, 64)); sc.put(b + 60, signal_add(sSig, False))
        if c == cfg.markchunk and nq == 3: sc.put(b + 60, flag_store(4, 1))
        if c == 0 and nq == 3: sc.put(b + 9, salu("s_sub_u32", sT0, sJmp, 2)); sc.put(b + 9, flag_store(8, sT0))
        for i, (u, e) in enumerate(UE):
            sc.put(b + 60 + ([1, 3, 5, 6] if cfg.prd else [1, 2, 3, 4])[i], rdU(8 * c + 8, u, e)); sc.put(b + 70 + ([0, 1, 5, 6] if cfg.prd else [0, 1, 2, 3])[i], rdU(8 * c + 9, u, e))
        sc.put(b + (76 if cfg.prd else 73), wait())
        sc.put(b + 79, wait())
    first_reads = []
    if nq is not None:
        nb = 6 * nq
        span = 80 * PUB + 10
        step = (span - 4) / nb
        i = 0
        for s in range(6):
            for q in range(nq):
                ops = epi_block(q, s, TMP[i & 1], cfg)
                if s == 0: first_reads += ops[:8]
                SEQS.append([ops[-1], drain])
                ge = seq_after(sc, ops, 4 + int(i * step), 4 + int((i + 1) * step) - 1)
                if s == 0: gfirst = 4 + int(i * step) + 9
                i += 1
    for c in range(c0, c1):
        b = 80 * (c - c0)
        if c + 2 < NCH:
            ju, jo = job_u(c + 2, cfg), job_o(c + 2, cfg)
            if loop:
                ju, jo = job_u(c + 2, cfg, sWc if c == c0 else sWn), job_o(c + 2, cfg, sOc if c == c0 else sOn)
            if loop and c == c0 + 2:
                if cfg.prd: g1 = g2 = place_even(sc, merge_jobs(ju, jo), b, b + 72)
                elif cfg.pclus: g2 = place_even(sc, jo, b, b + 36); g1 = place_even(sc, ju, b + 37, b + 66)
                else: g1 = place_even(sc, ju, b, b + 64); g2 = place_even(sc, jo, b + 2, b + 64)
                seq_after(sc, next_head(), max(g1, g2) + 1, b + 78)
            elif c == 0:
                place_even(sc, ju, b, b + 40)
                place_even(sc, jo[:6], b + 30, b + gfirst); place_even(sc, jo[6:], b + gfirst + 1, b + 78)
                for r in first_reads:
                    for l in jo:
                        if set(l.wr) & set(r.rd): SEQS.append([r, l])
            elif c == PUB:
                place_even(sc, ju, b, b + 24); place_even(sc, jo[:3], b, b + 24); place_even(sc, jo[3:], b + 61, b + 78)
            else:
                hi_ = 58 if c == NCH - 3 else 78
                if cfg.prd: place_even(sc, merge_jobs(ju, jo), b, b + hi_)
                elif cfg.pclus and c != NCH - 3: place_even(sc, jo, b, b + 42); place_even(sc, ju, b + 43, b + hi_)
                else: place_even(sc, ju, b, b + hi_); place_even(sc, jo, b + 2, b + hi_)
    sc.add_wait_sites()
    return sc

def p_tail(cfg):
    mf = []
    for gs in range(176, 192):
        c, N = SPAN[gs]
        for q in range(5):
            for u in range(2): mf.append(mfma(PACC(N, q), VB(gs % 3, u), OF(c % 3, q, u), PACC(N, q)))
    sc = Sched(mf)
    for k in range(14):
        o = 1 if k == 2 else 0
        for i, (u, e) in enumerate(UE): sc.put(10 * k + i + o, rdU(178 + k, u, e))
        sc.put(10 * k + 3 + o, wait())
    sc.put(143, wait())
    sc.put(20, wait(need_vm=lambda ctx: [tagU(23)(ctx)], free=False)); sc.put(20, barrier())
    sc.put(39, wait())
    wA, rA, wB, rB, oa = V(236), V(237), V(238), V(239), V(240)
    pre = [salu("s_and_b32", sTp, sWave, 1), salu("s_lshr_b32", sTx, sWave, 1), salu("s_mul_i32", sTx, sTx, 3 * SL, scc=False),
           salu("s_sub_u32", sT1, 3 * SL, sTx),
           salu("s_mul_i32", sT0, sTp, 10240, scc=False), salu("s_add_u32", sT0, sT0, SL), valu("v_add_u32", vt0, sT0, vL16),
           valu("v_add_u32", wA, sTx, vt0), valu("v_add_u32", rA, sT1, vt0),
           salu("s_mul_i32", sT0, sTp, 2 * SL, scc=False), salu("s_add_u32", sT0, sT0, 9216), valu("v_add_u32", vt0, sT0, vL16),
           valu("v_add_u32", wB, sTx, vt0), valu("v_add_u32", rB, sT1, vt0),
           valu("v_bfe_u32", oa, vL16, 4, 4), valu("v_mul_u32_u24", oa, 2560, oa),
           valu("v_lshrrev_b32", vt0, 8, vL16), valu("v_lshl_add_u32", oa, vt0, 3, oa)]
    for i in pre: i.nosim = True
    seq_after(sc, pre, 0, 38)
    def T(pair, t): return PACC(2 * pair + t // 5, t % 5)
    def wr(addr, tile, off):
        i = dswrite("ds_write_b128", addr, tile, off); i.cost = 3
        return i
    free = lambda lo, n: [g for g in range(lo, 160) if g % 10 >= 4][:n]
    for t, g in enumerate(free(56, 10)): sc.put(g, wr(wA, T(3, t), 1024 * t))
    sc.put(78, wait(lgkm0=True, free=False)); sc.put(78, barrier())
    rg = free(79, 10)
    for t, g in enumerate(rg): sc.put(g, dsread("ds_read_b128", T(3, t), rA, 1024 * t))
    seq = []
    for t in range(10):
        seq += [wait()] + [valu("v_add_f32", T(2, t).sub(i), T(2, t).sub(i), T(3, t).sub(i)) for i in range(4)]
        if t % 4 == 0: seq.append(salu("s_add_u32", sTp, sExs, 1024 * t))
        seq.append(gstore(T(2, t), vL16, sEx, sTp, 1024 * (t % 4), "sc1"))
    seq_after(sc, seq, 90, cfg.xend)
    for t, g in enumerate([136, 137, 138, 139, 144, 146, 148, 150, 152, 154]): sc.put(g, wr(wB, T(1, t), 1024 * t))
    sc.add_wait_sites()
    def add(dst, src): return [valu("v_pk_add_f32", dst.sub(2 * i, 2), dst.sub(2 * i, 2), src.sub(2 * i, 2)) for i in range(2)]
    w = wait(need_vm=lambda c: 'all', lgkm0=True, free=False); w.vm = 0
    f = [w, barrier()]
    f.append(unit([f"s_cmp_lg_u32 {sWave}, 3", "s_cbranch_scc1 L_xset",
                   f"v_mov_b32 {vOne}, 1", "s_mov_b64 exec, 1", f"buffer_store_dword {vOne}, off, {sEx}, {sFs} sc1", "s_mov_b64 exec, -1",
                   f"buffer_load_dword v226, off, {sEx}, {sFr} sc1", "L_xset:"]))
    for t in range(10): f.append(dsread("ds_read_b128", T(1, t), rB, 1024 * t))
    for t in range(10):
        f.append(wait()); f += add(T(0, t), T(1, t))
    f.append(unit([f"s_cmp_lg_u32 {sWave}, 3", "s_cbranch_scc1 L_xok", f"s_mov_b32 {sSpin}, 0x80000", "L_xpoll:",
                   "s_waitcnt vmcnt(0)", f"v_readfirstlane_b32 {sTp}, v226", f"s_sub_u32 {sSpin}, {sSpin}, 1",
                   f"s_cmp_eq_u32 {sSpin}, 0", "s_cbranch_scc1 L_xok", "s_nop 0",
                   f"s_cmp_eq_u32 {sTp}, 1", "s_cbranch_scc1 L_xok",
                   f"buffer_load_dword v226, off, {sEx}, {sFr} sc1", "s_branch L_xpoll", "L_xok:"]))
    f.append(barrier())
    for t in range(10):
        if t % 4 == 0: f.append(salu("s_add_u32", sTp, sExr, 1024 * t))
        f.append(gload(T(1, t), vL16, sEx, sTp, 1024 * (t % 4), "sc1"))
    for t in range(10):
        N, q = divmod(t, 5)
        ac = T(0, t)
        f.append(wait()); f += add(ac, T(1, t))
        for i in range(2): f.append(valu("v_cvt_pk_bf16_f32", ac.sub(i), ac.sub(2 * i), ac.sub(2 * i + 1)))
        f.append(salu("s_add_u32", sTp, sOutb, q * 16 * 2560))
        f.append(gstore(ac.sub(0, 2), oa, sOut, sTp, 32 * N, cfg.outflags))
    return sc, f

def slow_path(nq, cfg):
    o = []
    a = lambda t: o.append(raw(t))
    def spaced(seq):
        for i in seq:
            o.append(i)
            if 'm0' in i.wr: o.append(nop(0))
    dummy = lambda c: ('K', 0, 0)
    o.append(label(f"L_slow_{nq}"))
    a("s_waitcnt vmcnt(0) lgkmcnt(0)"); a("s_barrier")
    a(f"s_mov_b32 {sRedo}, -1")
    a(f"s_cmp_eq_u32 {sHead}, 0")
    a(f"s_cselect_b32 {sT0}, {16 * 393216}, 0"); a(f"s_cselect_b32 {sT1}, {16 * 384}, 0")
    a(f"s_cselect_b32 {sT2}, 0, {16 * 393216}")
    a(f"s_mov_b32 {vR}, {VS[0]}"); a(f"s_mov_b32 {vN}, {VS[1]}"); a(f"s_mov_b32 {vF}, {VS[2]}")
    a(f"s_cselect_b32 {vR}, {VS[1]}, {vR}"); a(f"s_cselect_b32 {vN}, {VS[2]}, {vN}"); a(f"s_cselect_b32 {vF}, {VS[0]}, {vF}")
    a(f"s_sub_u32 {sKend}, {sKend}, {sT0}"); a(f"s_sub_u32 {sVend}, {sVend}, {sT0}"); a(f"s_sub_u32 {sWend}, {sWend}, {sT1}")
    a(f"s_add_u32 {sKoff}, {sK0}, {sT2}"); a(f"s_mov_b32 {sVoff}, {sKoff}")
    a(f"s_mov_b32 {sWoff}, {sW0}"); a(f"s_mov_b32 {sXoff}, {sX0}")
    for i in rebase(vaddr, sVcur, vR): o.append(i)
    for q in range(nq): a(f"v_mov_b32 {Ci(q).sub(0)}, 0xff800000")
    a(f"s_mov_b32 {sLoop}, 16")
    o.append(label(f"L_slowl_{nq}"))
    spaced(job_tile(nq, 'K', kR, dummy, cfg, groups=range(8)))
    a("s_waitcnt vmcnt(0)"); a("s_barrier")
    for j in range(4):
        for s in range(6): o.append(rdK(j, s, dummy))
        a("s_waitcnt lgkmcnt(0)")
        for q in range(nq):
            for s in range(6): o.append(mfma(Sf(q), Kf(j & 1, s), Qf(q, s), 0 if s == 0 else Sf(q)))
        a("s_nop 7")
        for q in range(nq):
            m = Ci(q).sub(0); Sx = Sf(q)
            a(f"v_max3_f32 {m}, {m}, {Sx.sub(0)}, {Sx.sub(1)}"); a(f"v_max3_f32 {m}, {m}, {Sx.sub(2)}, {Sx.sub(3)}")
    a("s_barrier")
    a(f"s_sub_u32 {sLoop}, {sLoop}, 1"); a(f"s_cmp_lg_u32 {sLoop}, 0"); a(f"s_cbranch_scc1 L_slowl_{nq}")
    for r in (kR, kN): spaced(job_tile(nq, 'K', r, dummy, cfg, groups=range(8)))
    a("s_waitcnt vmcnt(0)")
    for r in (vR, vN): spaced(job_tile(nq, 'V', r, dummy, cfg, groups=range(8)))
    a("s_waitcnt vmcnt(0)"); a("s_barrier")
    for s in range(6): o.append(rdK(0, s, dummy))
    a("s_waitcnt lgkmcnt(0)")
    a(f"s_branch L_prol_{nq}")
    return o

def setup(cfg):
    o = []
    a = lambda t: o.append(raw(t))
    a("s_cmp_ge_u32 s2, 256"); a("s_cbranch_scc1 L_end")
    a("s_load_dwordx8 s[24:31], s[0:1], 0")
    a("s_load_dwordx8 s[32:39], s[0:1], 40")
    a("s_load_dwordx2 s[96:97], s[0:1], 32"); a("s_load_dwordx2 s[40:41], s[0:1], 72")
    a("s_load_dwordx4 s[44:47], s[0:1], 80")
    a("s_load_dwordx2 s[42:43], s[0:1], 96")
    if cfg.stamps or cfg.spinat == -1: a("s_memrealtime s[56:57]")
    if cfg.codepf:
        a("s_getpc_b64 s[48:49]"); a("L_pc:")
        a("s_lshr_b32 s50, s2, 3"); a("s_lshl_b32 s50, s50, 6")
        a("v_add_u32 v2, s50, v0"); a("v_lshlrev_b32 v2, 7, v2")
        a("v_min_u32 v2, L_code_end-L_pc-4, v2")
        a("v_mov_b32 v3, s49"); a("v_add_co_u32 v2, vcc, s48, v2"); a("s_nop 1"); a("v_addc_co_u32 v3, vcc, 0, v3, vcc")
        a("v_cmp_gt_u32 vcc, 64, v0"); a("s_and_saveexec_b64 s[48:49], vcc"); a("s_cbranch_execz L_nopf")
        a(f"global_load_dword {vOne}, v[2:3], off")
        a("L_nopf:"); a("s_mov_b64 exec, s[48:49]")
    a("v_lshrrev_b32 v1, 6, v0"); a("v_and_b32 v0, 63, v0")
    a("v_readfirstlane_b32 s3, v1")
    a("s_lshr_b32 s50, s2, 3")
    a("s_bfe_u32 s51, s2, 0x10001"); a("s_lshl_b32 s51, s51, 2"); a("s_lshr_b32 s52, s50, 3"); a("s_add_u32 s51, s51, s52")
    a("s_and_b32 s52, s2, 1"); a("s_lshl_b32 s52, s52, 3"); a("s_and_b32 s53, s50, 7"); a("s_add_u32 s52, s52, s53")
    a("s_bfe_u32 s53, s2, 0x10002")
    a("v_lshrrev_b32 v1, 3, v0"); a("v_and_b32 v2, 7, v0")
    for m in range(3):
        a(f"v_add_u32 v3, {8 * m}, v1")
        a("v_mul_u32_u24 v4, 43, v3"); a("v_lshrrev_b32 v4, 7, v4")
        a("v_and_b32 v5, 6, v4"); a("v_xor_b32 v5, v5, v2"); a("v_lshlrev_b32 v5, 4, v5")
        a("v_lshlrev_b32 v6, 7, v1"); a(f"v_add_u32 {dKV[m]}, v5, v6")
        a("v_mul_u32_u24 v5, 3, v4"); a("v_sub_u32 v5, v3, v5"); a("v_lshlrev_b32 v5, 7, v5")
        a("v_bfe_u32 v6, v4, 1, 1"); a("v_lshlrev_b32 v6, 2, v6"); a("v_xor_b32 v6, v6, v2"); a("v_lshlrev_b32 v6, 4, v6"); a("v_add_u32 v5, v5, v6")
        a("v_lshrrev_b32 v6, 2, v4"); a("v_lshlrev_b32 v6, 4, v6"); a("v_and_b32 v7, 3, v4"); a("v_add_u32 v6, v6, v7")
        a("v_mul_u32_u24 v6, 12288, v6"); a("v_add_u32 v5, v5, v6")
        a(f"v_subrev_u32 {dW[m]}, {1024 * m}, v5")
    a("v_and_b32 v3, 6, v1"); a("v_xor_b32 v3, v3, v2"); a("v_lshlrev_b32 v3, 4, v3")
    a("v_mul_u32_u24 v4, 1280, v1"); a(f"v_add_u32 {dX}, v3, v4")
    a(f"v_lshlrev_b32 {vL16}, 4, v0")
    a("s_waitcnt lgkmcnt(0)")
    if cfg.stamps:
        a(f"v_writelane_b32 {vStamp}, s56, 30"); a("s_getreg_b32 s56, hwreg(HW_REG_XCC_ID)"); a(f"v_writelane_b32 {vStamp}, s56, 31")
    a("s_cmp_eq_u32 s53, 0")
    for i in range(8): a(f"s_cselect_b32 s{24 + i}, s{24 + i}, s{32 + i}")
    a("s_cselect_b32 s96, s96, s40"); a("s_cselect_b32 s97, s97, s41"); a("s_mov_b32 s98, 7864320"); a("s_mov_b32 s99, 0x20000")
    a("s_mul_i32 s48, s51, 307200"); a("s_add_u32 s4, s24, s48"); a("s_addc_u32 s5, s25, 0"); a("s_mov_b32 s6, 307200"); a("s_mov_b32 s7, 0x20000")
    a("s_mov_b32 s8, s30"); a("s_mov_b32 s9, s31"); a("s_mov_b32 s10, 7864320"); a("s_mov_b32 s11, 0x20000")
    a("s_mul_i32 s48, s51, 12582912")
    a("s_add_u32 s12, s26, s48"); a("s_addc_u32 s13, s27, 0"); a("s_mov_b32 s14, 12582912"); a("s_mov_b32 s15, 0x20000")
    a("s_add_u32 s16, s28, s48"); a("s_addc_u32 s17, s29, 0"); a("s_mov_b32 s18, 12582912"); a("s_mov_b32 s19, 0x20000")
    a("s_lshl_b32 s48, s53, 3"); a("s_add_u32 s48, s48, s51"); a("s_mul_i32 s48, s48, 2949120")
    a("s_add_u32 s20, s42, s48"); a("s_addc_u32 s21, s43, 0"); a("s_mov_b32 s22, 2949120"); a("s_mov_b32 s23, 0x20000")
    a("s_mov_b32 s64, s44"); a("s_mov_b32 s65, s45"); a("s_mov_b32 s66, 4915200"); a("s_mov_b32 s67, 0x20000")
    a(f"s_add_u32 s68, s42, {EXOFF}"); a("s_addc_u32 s69, s43, 0"); a(f"s_mov_b32 s70, {STOFF + 0x100000}"); a("s_mov_b32 s71, 0x20000")
    a("s_mov_b32 s72, s46"); a("s_mov_b32 s73, s47"); a("s_mov_b32 s74, 256"); a("s_mov_b32 s75, 0x20000")
    a("s_cmp_ge_u32 s50, 30"); a(f"s_cselect_b32 {sIdle}, 1, 0"); a("s_min_u32 s24, s50, 29")
    a("s_and_b32 s25, s2, 1")
    a("s_mul_i32 s26, s24, 52"); a("s_lshr_b32 s26, s26, 8"); a("s_mul_i32 s27, s26, 5"); a("s_sub_u32 s27, s24, s27")
    a("s_lshl_b32 s26, s26, 1"); a("s_and_b32 s28, s3, 1"); a("s_add_u32 s26, s26, s28")
    a("s_mul_i32 s29, s26, 43"); a("s_lshr_b32 s29, s29, 7"); a("s_mul_i32 s30, s29, 3"); a("s_sub_u32 s26, s26, s30")
    a("s_and_b32 s30, s2, 7"); a(f"s_lshl_b32 {sMyc}, s30, 2"); a(f"s_and_b32 {sCnt}, {sMyc}, 24")
    a("s_and_b32 s30, s2, 6"); a("s_lshl_b32 s30, s30, 1")
    a("s_add_u32 s30, s30, s29"); a("s_mul_i32 s31, s30, 2949120")
    a("s_add_u32 s60, s42, s31"); a("s_addc_u32 s61, s43, 0"); a("s_mov_b32 s62, 2949120"); a("s_mov_b32 s63, 0x20000")
    a("s_lshl_b32 s31, s25, 1"); a("s_lshr_b32 s32, s3, 1"); a("s_add_u32 s31, s31, s32")
    a(f"s_mul_i32 {sOb}, s31, {4 * 92160}"); a(f"s_mul_i32 s33, s26, {5 * 6144}"); a(f"s_add_u32 {sOb}, {sOb}, s33")
    a(f"s_mul_i32 {sWb}, s31, {4 * 192 * 1280}"); a("s_lshl_b32 s33, s27, 8"); a(f"s_add_u32 {sWb}, {sWb}, s33")
    a("s_xor_b32 s33, s28, s25"); a("s_lshl_b32 s33, s33, 7"); a(f"s_add_u32 {sWb}, {sWb}, s33")
    a(f"s_mul_i32 {sLb}, s32, {3 * SL}"); a("s_lshl_b32 s33, s28, 13"); a(f"s_add_u32 {sLb}, {sLb}, s33"); a(f"s_add_u32 {sLb}, {sLb}, 1024")
    a("s_and_b32 s30, s30, 7"); a("s_mul_i32 s30, s30, 240"); a("s_mul_i32 s33, s26, 80"); a("s_add_u32 s30, s30, s33")
    a(f"s_mul_i32 {sOutb}, s30, 2560"); a("s_mul_i32 s33, s53, 1280"); a(f"s_add_u32 {sOutb}, {sOutb}, s33")
    a("s_lshl_b32 s33, s27, 8"); a(f"s_add_u32 {sOutb}, {sOutb}, s33"); a("s_lshl_b32 s33, s31, 6"); a(f"s_add_u32 {sOutb}, {sOutb}, s33")
    a("s_lshl_b32 s33, s2, 2"); a("s_add_u32 s33, s33, s3"); a(f"s_mul_i32 {sExs}, s33, 10240"); a("s_xor_b32 s33, s33, 4"); a(f"s_mul_i32 {sExr}, s33, 10240")
    a("s_lshl_b32 s33, s2, 7"); a(f"s_add_u32 {sFs}, s33, {FLOFF}"); a("s_xor_b32 s33, s33, 128"); a(f"s_add_u32 {sFr}, s33, {FLOFF}")
    a("s_and_b32 s48, s2, 3"); a("s_lshl_b32 s48, s48, 5"); a("s_add_u32 s48, s48, s50"); a(f"s_mul_i32 {sWopf}, s48, 61440")
    if cfg.dbgst: a(f"s_add_u32 {sMyc}, {sMyc}, 128"); a(f"s_add_u32 {sCnt}, {sCnt}, 128")
    a(f"s_mov_b32 {sRedo}, 0")
    a(f"s_mov_b32 {sWave}, s3")
    if cfg.stamps > 1: a("s_mov_b32 s3, 512")
    if cfg.spinat == -1: a("s_mov_b32 s3, s56")
    a(f"s_mul_i32 {sKoff}, s52, 393216"); a(f"s_mul_i32 {sWoff}, s52, 384")
    a(f"s_mul_i32 {sXoff}, {sWave}, {64 * 1280}")
    a(f"s_mul_i32 {sOoff}, s52, 92160"); a(f"s_mul_i32 s48, {sWave}, {4 * 6144}"); a(f"s_add_u32 {sOoff}, {sOoff}, s48")
    a(f"s_mov_b32 {sTp}, s50")
    a(f"s_mov_b32 {kR}, {KS[0]}"); a(f"s_mov_b32 {kN}, {KS[1]}"); a(f"s_mov_b32 {kF}, {KS[2]}")
    a(f"s_mov_b32 {vR}, {VS[0]}"); a(f"s_mov_b32 {vN}, {VS[1]}"); a(f"s_mov_b32 {vF}, {VS[2]}")
    a(f"s_mov_b32 {sVcur}, 0"); a(f"s_mov_b32 {sWcur}, {VS[0]}")
    c = math.log2(math.e) / math.sqrt(192.0)
    a(f"s_mov_b32 s38, {fbits(c)}"); a(f"s_mov_b32 s39, {fbits(c)}")
    a(f"s_mov_b32 {sThr}, {fbits(2.0 ** cfg.thr)}")
    a(f"s_mov_b32 {sHead}, 0")
    a(f"s_cmp_eq_u32 {sWave}, 3"); a("s_cbranch_scc1 L_v3")
    return o

def lds_addr_setup(cfg):
    o = []
    def a(t):
        i = raw(t); i.nosim = True; o.append(i)
    a("v_and_b32 v1, 15, v0")
    a("v_lshrrev_b32 v2, 4, v0")
    a("v_and_b32 v3, 6, v1")
    a("v_xor_b32 v4, v2, v3")
    a("v_lshlrev_b32 v4, 4, v4")
    a("v_mul_u32_u24 v5, 384, v1")
    a(f"v_add_u32 {kaddr[0]}, v5, v4")
    a(f"v_xor_b32 v6, 64, v4"); a(f"v_add_u32 {kaddr[1]}, v5, v6")
    a("v_lshlrev_b32 v5, 7, v1"); a(f"v_add_u32 v5, {sXl[0]}, v5")
    a(f"v_add_u32 {xaddr[0]}, v5, v4"); a(f"v_add_u32 {xaddr[1]}, v5, v6")
    a("v_lshrrev_b32 v1, 2, v0"); a("v_and_b32 v3, 6, v1")
    a("v_bfe_u32 v4, v0, 1, 1"); a("v_xor_b32 v4, v4, v3"); a("v_lshlrev_b32 v4, 4, v4")
    a("v_and_b32 v5, 1, v0"); a("v_lshlrev_b32 v5, 3, v5")
    a("v_mul_u32_u24 v6, 384, v1"); a("v_add_u32 v5, v5, v6")
    for m in range(4):
        a(f"v_xor_b32 v6, {32 * m}, v4"); a(f"v_add_u32 {vaddr[m]}, v5, v6")
    a("v_and_b32 v3, 1, v2"); a(f"v_mul_u32_u24 v3, {12288 + cfg.wshift}, v3"); a(f"v_add_u32 v3, {VS[0]}, v3")
    a("v_lshrrev_b32 v4, 1, v2"); a("v_lshlrev_b32 v4, 2, v4"); a("v_bfe_u32 v5, v0, 2, 2"); a("v_add_u32 v4, v4, v5")
    a("v_mul_u32_u24 v4, 384, v4"); a("v_add_u32 v3, v3, v4")
    a("v_bfe_u32 v4, v0, 3, 1"); a("v_lshlrev_b32 v4, 2, v4"); a("v_and_b32 v5, 3, v0"); a("v_xor_b32 v4, v4, v5"); a("v_lshlrev_b32 v4, 4, v4")
    a(f"v_add_u32 {waddr[0]}, v3, v4"); a("v_xor_b32 v4, 64, v4"); a(f"v_add_u32 {waddr[1]}, v3, v4")
    return o

def setup_variant(nq, cfg):
    o = []
    def a(t):
        i = raw(t); i.nosim = True; o.append(i)
    if nq == 4:
        a(f"s_mul_i32 {sGrp}, {sWave}, 3072")
        a(f"s_and_b32 {sT0}, {sWave}, 1"); a(f"s_lshl_b32 {sT0}, {sT0}, 2"); a(f"s_lshr_b32 {sT1}, {sWave}, 1"); a(f"s_lshl_b32 {sT1}, {sT1}, 5")
        a(f"s_add_u32 {sT0}, {sT0}, {sT1}"); a(f"s_mul_i32 {sT0}, {sT0}, 12288"); a(f"s_add_u32 {sWoff}, {sWoff}, {sT0}")
        a(f"s_lshl_b32 {sT0}, {sWave}, 13"); a(f"s_add_u32 {sXl[0]}, {sT0}, {KS[1]}"); a(f"s_add_u32 {sXl[1]}, {sT0}, {KS[2]}")
    else:
        a(f"s_mov_b32 {sXl[0]}, {EB}"); a(f"s_mov_b32 {sXl[1]}, {EB + 6144}")
        a("v_mov_b32 v1, 0"); a("v_lshlrev_b32 v2, 2, v0"); a("s_mov_b64 exec, 15"); a(f"buffer_store_dword v1, v2, {sEx}, {sFs} offen sc1"); a("s_mov_b64 exec, -1")
    a(f"s_add_u32 {sKend}, {sKoff}, {16 * 3072 * kv_map(cfg)[0]}"); a(f"s_mov_b32 {sVend}, {sKend}")
    a(f"s_add_u32 {sWend}, {sWoff}, 7864320"); a(f"s_add_u32 {sXend}, {sXoff}, 1280")
    if cfg.rotkv:
        a(f"s_mul_i32 {sT0}, s2, 5"); a(f"s_lshr_b32 {sT1}, s2, 4"); a(f"s_add_u32 {sT0}, {sT0}, {sT1}"); a(f"s_and_b32 {sT0}, {sT0}, 15")
        a(f"s_mul_i32 {sT0}, {sT0}, {3072 * kv_map(cfg)[0]}"); a(f"s_add_u32 {sKoff}, {sKoff}, {sT0}")
    if cfg.rotq == 1:
        a(f"s_lshr_b32 {sT0}, {sTp}, 3"); a(f"s_lshl_b32 {sT0}, {sT0}, 1"); a(f"s_and_b32 {sT1}, {sTp}, 7"); a(f"s_add_u32 {sT0}, {sT0}, {sT1}")
        a(f"s_mul_i32 {sT0}, {sT0}, 5"); a(f"s_lshr_b32 {sT0}, {sT0}, 2")
        a(f"s_cmp_ge_u32 {sT0}, 10"); a(f"s_cselect_b32 {sT1}, 10, 0"); a(f"s_sub_u32 {sT0}, {sT0}, {sT1}")
    if cfg.rotq == 2:
        a(f"s_lshr_b32 {sT0}, {sTp}, 3"); a(f"s_xor_b32 {sT0}, {sT0}, {sTp}"); a(f"s_and_b32 {sT0}, {sT0}, 1"); a(f"s_mul_i32 {sT0}, {sT0}, 5")
    if cfg.rotq:
        a(f"s_mul_i32 {sRw}, {sT0}, 786432"); a(f"s_lshl_b32 {sRx}, {sT0}, 7")
    a(f"s_mov_b32 {sVoff}, {sKoff}")
    a(f"s_mov_b32 {sK0}, {sKoff}"); a(f"s_mov_b32 {sW0}, {sWoff}"); a(f"s_mov_b32 {sX0}, {sXoff}")
    def spaced(seq):
        for i in seq:
            o.append(i)
            if 'm0' in i.wr: o.append(nop(0))
    spaced(job_x(nq, 0, 0, cfg)); spaced(job_tile(nq, 'W', vR, absT('W', 0, 0), cfg))
    o.extend(lds_addr_setup(cfg))
    spaced(job_x(nq, 1, 0, cfg)); spaced(job_tile(nq, 'W', vN, absT('W', 0, 1), cfg))
    o.append(wait(need_vm=lambda c: [('x', 0, 0), ('W', 0, 0)], free=False)); o.append(barrier())
    dep = []
    for q in range(nq):
        for u in range(2):
            r = rdX(nq, 0, 0, q, u); dep += r.wr; o.append(r)
    for T in range(2):
        for (u, e) in UE: o.append(rdW(T, u, e, absT('W', 0, 0)))
    o.append(wait())
    spaced(job_x(nq, 2, 0, cfg, dep))
    o.append(wait())
    return o

def stamp(cfg, idx):
    if cfg.spind >= 0 and idx in (cfg.spind - 1, cfg.spind):
        return [raw("s_memrealtime s[56:57]"), raw("s_waitcnt lgkmcnt(0)"), raw(("s_add_u32" if idx == cfg.spind else "s_sub_u32") + " s3, s3, s56")]
    if cfg.spinat == idx: return [raw("s_memrealtime s[56:57]"), raw("s_waitcnt lgkmcnt(0)"), raw("s_mov_b32 s3, s56")]
    if not cfg.stamps: return []
    return [raw("s_memrealtime s[56:57]"), raw("s_memtime s[58:59]"), raw("s_waitcnt lgkmcnt(0)"),
            raw(f"v_writelane_b32 {vStamp}, s56, {2 * idx}"), raw(f"v_writelane_b32 {vStamp}, s58, {2 * idx + 1}")]
def finish(cfg, idx):
    e = []
    if cfg.stamps:
        e += [raw("s_waitcnt vmcnt(0)")] + stamp(cfg, idx)
        e += [raw(f"s_lshl_b32 {sTp}, s2, 2"), raw(f"s_add_u32 {sTp}, {sTp}, {sWave}"), raw(f"s_lshl_b32 {sTp}, {sTp}, 8"),
              raw(f"s_add_u32 {sTp}, {sTp}, {STOFF}"), raw(f"v_lshrrev_b32 v0, 2, {vL16}"),
              raw(f"buffer_store_dword {vStamp}, v0, {sEx}, {sTp} offen")]
        if cfg.dbgst == 2 and idx == 7:
            e += [raw("s_cmp_ge_u32 s2, 16"), raw("s_cbranch_scc1 L_nox"), raw("s_getreg_b32 s56, hwreg(HW_REG_XCC_ID)"), raw("s_add_u32 s56, s56, 100"),
                  raw("v_mov_b32 v1, s56"), raw("s_lshl_b32 s57, s2, 2"), raw(f"buffer_store_dword v1, off, {sDbg}, s57"), raw("L_nox:")]
        if cfg.dbgst == 1 and idx == 7:
            e += [raw(f"v_not_b32 v1, {vStamp}"), raw(f"v_cmp_eq_u32 vcc, 480, {vL16}"), raw("s_nop 1"), raw(f"v_cndmask_b32 v1, {vStamp}, v1, vcc"),
                  raw(f"v_lshrrev_b32 v0, 3, {vL16}"), raw("s_mov_b32 exec_lo, 0x40005555"), raw("s_mov_b32 exec_hi, 0"),
                  raw(f"buffer_atomic_umax v1, v0, {sDbg}, 0 offen sc1"), raw("s_mov_b64 exec, -1")]
    if 7 in (cfg.spinat, cfg.spind) and idx == 7: e += [raw("s_waitcnt vmcnt(0)")] + stamp(cfg, 7)
    if cfg.spinat > -2 and idx == 7:
        e += [raw("L_spin:"), raw("s_sleep 4"), raw("s_memrealtime s[56:57]"), raw("s_waitcnt lgkmcnt(0)"), raw("s_sub_u32 s56, s56, s3"),
              raw("s_cmp_lt_u32 s56, 20000"), raw("s_cbranch_scc1 L_spin")]
    return e + [raw("s_endpgm")]

def variant(nq, cfg, common):
    sfx = f"_{nq}"
    st = lambda i: stamp(cfg, i)
    su = setup_variant(nq, cfg) + st(0)
    q1 = qproj(nq, cfg, False); q1.add_wait_sites()
    q2 = qproj(nq, cfg, True); q2.add_wait_sites()
    cp = conv_prologue(nq, cfg)
    jK = lambda: job_tile(nq, 'K', kF, tagK(3), cfg, groups=range(8))
    jV = lambda: job_tile(nq, 'V', vF, tagV(2), cfg, groups=range(4, 8))
    jL = lambda: [job_tile(nq, 'V', vF, tagV(3), cfg, groups=range(4), adv=False)]
    i0 = attn_iter(nq, 0, cfg, first_pv=True, jobs=[jV(), jK()], late=jL())
    i1 = attn_iter(nq, 1, cfg, jobs=[jV(), jK()], late=jL())
    i2 = attn_iter(nq, 0, cfg, jobs=[jV(), jK()], late=jL())
    two = nq == 4 and cfg.twoloops
    if two:
        j1, j2 = i1, i2
        i1 = attn_iter(nq, 1, cfg, jobs=[jV(), jK()], late=jL(), gentle=True)
        i2 = attn_iter(nq, 0, cfg, jobs=[jV(), jK()], late=jL(), gentle=True)
        j2.place(salu("s_sub_u32", sLoop, sLoop, 1), 20, 60)
    fix = []
    for o_, d_ in ((sKoff, 16 * 393216), (sKend, 16 * 393216), (sVoff, 16 * 393216), (sVend, 16 * 393216), (sWoff, 16 * 384), (sWend, 16 * 384)):
        if nq == 3 or o_ in (sWoff, sWend): fix.append(salu("s_add_u32", o_, o_, d_))
    if cfg.rotq: fix += [salu("s_add_u32", sWoff, sWoff, sRw), salu("s_add_u32", sXoff, sXoff, sRx)]
    a13 = attn_iter(nq, 1, cfg, jobs=[jV(), fix, job_x(nq, 0, 1, cfg)])
    a14 = attn_iter(nq, 0, cfg, jobs=[job_tile(nq, 'W', vF, absT('W', 1, 0), cfg), job_x(nq, 1, 1, cfg)], next_k=False, k_rot=False)
    a15 = attn_last(nq, cfg, 'Q')
    pf = []
    if cfg.wopf and nq == 3:
        pf.append(valu("v_lshlrev_b32", V(243), 3, vL16))
        for i in range(8):
            pf.append(gload(V(244), V(243), sWo, sWopf, 0, "", op="buffer_load_dword"))
            pf[-1].wr = []
            pf.append(salu("s_add_u32", sWopf, sWopf, 8192 if i < 6 else 4096) if i < 7 else salu("s_sub_u32", sWopf, sWopf, 6 * 8192 + 4096))
    b13 = attn_iter(nq, 1, cfg, jobs=[jV(), pf], late=[calc_raddr()])
    b14 = attn_iter(nq, 0, cfg, jobs=[([poll_issue(0)] if nq == 3 else []), job_u(0, cfg)], next_k=False, k_rot=False)
    if nq == 3:
        gb = 12 * 9 - 1
        b14.put(gb, wait()); b14.put(gb, poll_check(0))
    b15 = attn_last(nq, cfg, 'P')
    pa = p_chunks(0, CS, nq, cfg)
    ini = [salu("s_lshr_b32", sJmp, sBad.sub(0), 1), salu("s_sub_u32", sJmp, 4, sJmp),
           salu("s_and_b32", sStol, S(2), 1), salu("s_lshl_b32", sStol, sStol, 4), salu("s_sub_u32", sStol, 11, sStol),
           smov(sA18, 19), smov(sHn, 2), salu("s_add_u32", sOn, sOb, 2 * 92160), salu("s_add_u32", sWn, sWb, 2 * 192 * 1280)]
    ini[1].simfn = lambda st: st.__setitem__(str(sJmp), st['jmp'])
    ini[4].simfn = lambda st: st.__setitem__(str(sStol), 11)
    ini[5].simfn = lambda st: st.__setitem__(str(sA18), st['after18'])
    seq_after(pa, ini[:2], 0, 7); seq_after(pa, ini[2:] + next_head(), 400, 470)
    if cfg.ctouch and nq == 3:
        i1.put(10, code_touch(["L_tail1_4", "L_tail1_3"], 144, guard=(sLoop, 1), alt=["L_tail2_4", "L_tail2_3"]))
        q2.put(72 * 2 + 5, code_touch(["L_tail1_4+16384", "L_tail1_3+16384"], 144))
        q2.put(72 * 8 + 5, code_touch(["L_head_4", "L_head_3"] + (["L_tail2_4"] if cfg.twoloops else []), 144))
        if cfg.ctouch > 1: q1.put(72 * 6 + 5, code_touch(["L_head_4", "L_head_3"], 144))
        pa.put(80 * 3 + 9, code_touch(["L_pcommon"], 246))
    i0.place(smov(sLoop, 6), 20, 60)
    i2.place(salu("s_sub_u32", sLoop, sLoop, 1), 20, 60)
    for s in (i0, i1, i2, a13, a14, a15, b13, b14, b15) + ((j1, j2) if two else ()):
        s.add_wait_sites()
        for g_, ins_ in getattr(s, 'extra', []):
            for i_ in ins_: s.put(g_, i_)
    loopend = [scmp("s_cmp_lg_u32", sLoop, 0), raw(f"s_cbranch_scc1 L_loop{sfx}")]
    loopend2 = [scmp("s_cmp_lg_u32", sLoop, 0), raw(f"s_cbranch_scc1 L_tail2{sfx}")]
    headbr = [scmp("s_cmp_lg_u32", sHead, 0), raw(f"s_cbranch_scc1 L_tail2{sfx}")]
    back = [smov(sHead, 1), raw(f"s_branch L_head{sfx}")]
    idlebr = [scmp("s_cmp_lg_u32", sIdle, 0), raw(f"s_cbranch_scc1 L_idle{sfx}"), wait()]
    idle = [label(f"L_idle{sfx}")]
    i = 0
    for s in range(6):
        for q in range(nq):
            idle += epi_block(q, s, TMP[i & 1], cfg); i += 1
    idle += [raw("s_waitcnt vmcnt(0)"), barrier()]
    if nq == 3: idle += [salu("s_add_u32", sSig, sMyc, 64), signal_add(sSig, False)]
    idle += finish(cfg, 8)
    L = lambda s: s.linear()
    s1, s3, s4, s5 = st(1), st(2), st(3), st(4)
    jump = [raw("s_branch L_pcommon")] if nq == 3 else []
    code = su + L(q1) + s1 + [label(f"L_head{sfx}")] + cp + L(i0) + (headbr if two else []) + [raw(".p2align 3", 'L', states=0), label(f"L_loop{sfx}")] + L(i1) + L(i2) + loopend + ([] if two else headbr) \
        + [label(f"L_tail1{sfx}")] + L(a13) + L(a14) + L(a15) + s3 + L(q2) + s4 + back + slow_path(nq, cfg) + idle \
        + [raw(".p2align 12", 'L', states=0), label(f"L_tail2{sfx}")] + (L(j1) + L(j2) + loopend2 if two else []) + L(b13) + L(b14) + L(b15) + s5 + idlebr + L(pa) + jump
    tr = []
    def add(ins, **c): tr.extend((i, c) for i in ins)
    add(su, h=0, t=-9); add(L(q1) + s1, h=0, t=-5)
    for h in range(2):
        add(cp, h=h, t=-1); add(L(i0), h=h, t=0)
        for t in range(1, 13, 2):
            if two and t == 1: add(headbr, h=h, t=0)
            if two and h == 1: add(L(j1), h=h, t=t); add(L(j2), h=h, t=t + 1); add(loopend2, h=h, t=t + 1)
            else: add(L(i1), h=h, t=t); add(L(i2), h=h, t=t + 1); add(loopend, h=h, t=t + 1)
        if not two: add(headbr, h=h, t=12)
        if h == 0:
            add(L(a13), h=0, t=13); add(L(a14), h=0, t=14); add(L(a15) + s3, h=0, t=15); add(L(q2) + s4, h=1, t=-5); add(back, h=1, t=-5)
        else:
            add(L(b13), h=1, t=13); add(L(b14), h=1, t=14); add(L(b15) + s5, h=1, t=15)
    tr_idle = tr + [(i, dict(h=1, t=16)) for i in idlebr[:2] + idle]
    trs = []
    cpre, cloop, cpost = common
    for heads in ([0, 1, 2, 3, 16, 17, 18, 19], [0, 1, 2, 16, 17, 18, 19], [0, 1, 2, 3, 16, 17, 18, 11, 19]):
        t2 = [(i, dict(c, heads=heads)) for i, c in tr]
        t2 += [(i, dict(h=1, t=16, heads=heads)) for i in idlebr + L(pa) + jump + cpre]
        for p in range(len(heads) - 3): t2 += [(i, dict(h=1, t=16, heads=heads, dc=3 * p)) for i in cloop]
        t2 += [(i, dict(h=1, t=16, heads=heads, dc=3 * (len(heads) - 8))) for i in cpost]
        trs.append(t2)
    tr = trs
    info = dict(q1=q1, q2=q2, i0=i0, i1=i1, i2=i2, a13=a13, a14=a14, a15=a15, b13=b13, b14=b14, b15=b15, pa=pa)
    return code, tr, tr_idle, info

def sim_variant(nq, tr, cfg, jmp, a18):
    ok = True
    for w in ([0, 1, 2] if nq == 4 else [3]):
        h0 = 5
        grp = w * 3072 if nq == 4 else 0
        k0 = [0, 4, 32, 0][w]
        ggrp = kv_map(cfg)[1][w] * 3072 if nq == 4 else 0
        kst = 3072 * kv_map(cfg)[0]
        rk = 7 if cfg.rotkv else 0; rq = 3 if cfg.rotq else 0
        init = {'wave': w, 'jmp': jmp, 'after18': a18, 'h0': h0, 'rk': rk, 'rq': rq, str(kR): KS[0], str(kN): KS[1], str(kF): KS[2], str(vR): VS[0], str(vN): VS[1], str(vF): VS[2],
                str(sVcur): 0, str(sWcur): VS[0], str(sKoff): h0 * 393216 + ggrp, str(sVoff): h0 * 393216 + ggrp, str(sWoff): h0 * 384 + k0 * 12288,
                str(sXoff): w * 64 * 1280, str(sOoff): h0 * 92160 + w * 4 * 6144, str(sGrp): grp,
                str(sXl[0]): (KS[1] + w * 8192 if nq == 4 else EB), str(sXl[1]): (KS[2] + w * 8192 if nq == 4 else EB + 6144),
                str(sOb): 1000000, str(sWb): 2000000, str(sLb): 3000}
        init[str(sKend)] = init[str(sKoff)] + 16 * kst; init[str(sVend)] = init[str(sKend)]
        init[str(sWend)] = init[str(sWoff)] + 7864320; init[str(sXend)] = init[str(sXoff)] + 1280
        init[str(sKoff)] += rk * kst; init[str(sVoff)] += rk * kst; init[str(sRw)] = rq * 786432; init[str(sRx)] = rq * 128
        for r in kaddr + vaddr: init[str(r)] = 0
        for r in waddr: init[str(r)] = VS[0]
        if not cfg.fake and not cfg.pfake: ok = sim_scalar(tr, init, f"nq{nq} w{w}") and ok
    return ok

def build(cfg, name):
    su = setup(cfg)
    pl = p_chunks(CS, CS + 3, None, cfg, loop=True)
    pb = p_chunks(NCH - 3, NCH - 2, None, cfg)
    if cfg.ctouch: pl.put(89, code_touch(["L_ptail"], 246, guard=(sHc, 17)))
    pt, fin = p_tail(cfg)
    cpre = [label("L_pcommon")] + stamp(cfg, 5) + [raw(".p2align 3", 'L', states=0), label("L_ploop")]
    cloop = pl.linear() + [scmp("s_cmp_lg_u32", sHc, 19), raw("s_cbranch_scc1 L_ploop")]
    cpost = [label("L_ptail")] + pb.linear() + pt.linear() + stamp(cfg, 6) + fin + finish(cfg, 7)
    parts = (cpre, cloop, cpost)
    common = cpre + cloop + cpost
    c4, t4, ti4, inf4 = variant(4, cfg, parts)
    c3, t3, ti3, inf3 = variant(3, cfg, parts)
    alltr = [("nq4", t) for t in t4] + [("nq3", t) for t in t3] + [("idle4", ti4), ("idle3", ti3)]
    for rep in range(2):
        for n, t in alltr: derive_waits(t, n)
    ok = True
    for n, t in (("nq4", t4[0]), ("nq3", t3[0]), ("idle4", ti4), ("idle3", ti3)): ok = check_hazards(t, n) and ok
    ok = check_seqs(c4 + common) and check_seqs(c3) and ok
    for k, (jmp, a18) in enumerate(((4, 19), (3, 19), (4, 11))):
        ok = sim_variant(4, t4[k], cfg, jmp, a18) and sim_variant(3, t3[k], cfg, jmp, a18) and ok
        ok = check_lds({4: t4[k], 3: t3[k]}) and ok
    for n, inf in (("nq4", inf4), ("nq3", inf3)): print(n, "model cycles:", {k: s.cycles() for k, s in inf.items()})
    print("common", pl.cycles(), pb.cycles(), pt.cycles())
    assert ok
    lines = [f".globl {name}", ".p2align 8", f".type {name},@function", f"{name}:"]
    lines += emit(su) + emit(c4) + emit(common) + ["L_end:", "s_endpgm", "L_v3:"] + emit(c3)
    out = []
    for l in lines: out += l.split("\n")
    return out

if __name__ == "__main__":
    print(len(build(Cfg(), "k_kernel")), "lines")
```

```python
import math, struct
from asmlib import *

SL = 24832
KS = [0, SL, 2 * SL]
VS = [3 * SL, 4 * SL, 5 * SL]
EB = 6 * SL
FLAG = EB + 12288
LDS_BYTES = 163840

sX, sW, sK, sV, sO = S(4, 4), S(8, 4), S(12, 4), S(16, 4), S(20, 4)
sWave = S(24)
kR, kN, kF = S(25), S(26), S(27)
vR, vN, vF = S(28), S(29), S(30)
sKoff, sVoff, sWoff, sXoff = S(31), S(32), S(33), S(34)
sLoop, sHead = S(35), S(36)
sThr = S(37)
sC2 = S(38, 2)
sGrp = S(40)
sT0, sT1, sT2, sT3, sT4 = S(41), S(42), S(43), S(47), S(55)
sXl = [S(44), S(45)]
sOoff = S(46)
sWcur, sVcur = S(48), S(49)
sTo = S(50)
sTx = S(51)
sBad = S(52, 2)
sWopf = S(54)
sTs = S(56, 4)
sOr, sOut, sEx, sDbg = S(60, 4), S(64, 4), S(68, 4), S(72, 4)
sOb, sWb, sLb, sOutb = S(76), S(77), S(78), S(79)
sExs, sExr, sFs, sFr = S(80), S(81), S(82), S(83)
sRw, sRx = S(0), S(1)
sSig, sCnt, sMyc = S(84), S(85), S(86)
sRedo, sIdle = S(87), S(88)
sK0, sW0, sX0 = S(89), S(90), S(91)
sKend, sVend, sWend, sXend = S(92), S(93), S(94), S(95)
sWo = S(96, 4)
sSpin = S(100)
sTp = S(101)
sHc, sHn, sJmp, sStol = S(25), S(26), S(27), S(28)
sOc, sWc, sOn, sWn = S(29), S(30), S(31), S(32)
sA18 = S(33)
OOB = 0x7fff0000
EXOFF = 0x3000000
FLOFF = 0xC00000
STOFF = 0x1000000

def blk(q, s): return q * 6 + s
def Qf(q, s): return V(8 * blk(q, s), 4)
def QACC(T, q): return V(8 * blk(q, T >> 1) + 4 * (T & 1), 4)
def U(i): return V(8 * i + 4, 4)
def Pf(par, q, u): return U(par * 8 + q * 2 + u)
def Sf(i): return U(16 + (i & 3))
def Ci(q): return U(20 + q)
def VB(b, u, e=None):
    return V(192 + 8 * b + 4 * u, 4) if e is None else V(192 + 8 * b + 4 * u + 2 * e, 2)
TMP = [V(216, 8), V(224, 8)]
def Lq(q): return V(232 + q)
kaddr = [V(236), V(237)]
vaddr = [V(238), V(239), V(240), V(241)]
waddr = [V(242), V(243)]
xaddr = [V(244), V(245)]
dKV = [V(246), V(247), V(248)]
dW = [V(249), V(250), V(251)]
dX = V(252)
vL16 = V(253)
vt0, vt1 = V(224), V(225)
vOne = V(254)
vStamp = V(255)
raddr = [V(249), V(250), V(251), V(242)]
def PACC(N, q): return V(4 * (N * 5 + q), 4)
def OF(b, q, u):
    i = 2 * q + u
    if b == 0: return A(192 + 4 * i, 4)
    if b == 1: return A(232 + 4 * i, 4) if i < 6 else U(20 + i - 6)
    return V(8 * (20 + i), 4) if i < 4 else A(4 * (i - 4), 4)
def Oacc(T, q): return A(4 * (T * 4 + q), 4)
def Lacc(q): return A(240 + 4 * q, 4)
ONES = V(232, 4)
def Kf(b, s): return A(192 + 24 * b + 4 * s, 4)
def Xf(par, q, u): return A(192 + 32 * par + 8 * q + 4 * u, 4)

def fbits(x): return "0x%08x" % struct.unpack("<I", struct.pack("<f", x))[0]

class Cfg:
    wshift = 8
    kvflags = "nt"
    wflags = ""
    xflags = ""
    oflags = "sc1"
    orflags = "sc1"
    woflags = ""
    pubchunk = 3
    epist = 9
    balance = 1
    exflags = "sc1"
    exrflags = "sc1"
    spinT = 20000
    spind = -1
    spinat = -2
    twoloops = 1
    gentle = 4
    pfake = 0
    pclus = 0
    prd = 1
    pskip = 0
    markchunk = 0
    xend = 120
    ctouch = 2
    kvperm = 1
    lmfma = 1
    dbgst = 0
    xpace = 0
    l2pf = 0
    l2n = 3
    l2tot = 12
    l2fl = ""
    ntlate = 99
    outflags = ""
    thr = 40
    stamps = False
    fake = 0
    nostore = 0
    w3all = 1
    rotkv = 1
    rotq = 1
    codepf = 1
    wopf = 1

def tagK(dn): return lambda c: ('K', c['h'], c['t'] + dn)
def tagV(dn): return lambda c: ('V', c['h'], c['t'] + dn)
def absT(kind, dh, n): return lambda c: (kind, c['h'] + dh, n)
def slot_of(tile, nq):
    k, h, n = tile
    if k == 'K': return ('k', n % 3)
    if k == 'x': return ('k', 1 + n % 2) if nq == 4 else ('e', n % 2)
    if k == 'W': return ('v', (h * 26 + n) % 3)
    if k == 'V': return ('v', (h * 26 + 10 + n) % 3)
    if k == 'U': return ('kv', (n + 1) % 3)

def kv_map(cfg):
    return {0: (8, list(range(8))),
            1: (1, [0, 32, 64, 96, 16, 48, 80, 112]),
            2: (2, [0, 32, 64, 96, 1, 33, 65, 97]),
            3: (4, [0, 64, 1, 65, 2, 66, 3, 67])}[cfg.kvperm]
def slot_base(slot):
    return {'k': KS, 'v': VS, 'e': [EB, EB + 6144]}[slot[0]][slot[1]]
def exp_dma(ins, tag, nq, soff, imm, idx, cfg):
    def f(c, st):
        k, h, n = tag(c); w = st['wave']; base = slot_base(slot_of((k, h, n), nq)); hh = st['h0'] + 16 * h
        if k == 'x':
            el = base + (w * 8192 if nq == 4 else 0) + idx * 1024
            eg = w * 64 * 1280 + 128 * ((n + st['rq'] * h) % 10) + idx * 10240
        else:
            i = idx + (3 * w if nq == 4 else 0); mm = i // 3
            n = (n + st['rq'] * h) % 10 if k == 'W' else (n + st['rk']) % 16
            el = base + i * 1024
            if k == 'W':
                el += cfg.wshift if mm >= 4 else 0
                eg = hh * 384 + (64 * n + 32 * ((mm & 3) >> 1) + 4 * (mm & 1) + 8 * (mm >> 2)) * 12288 + (i % 3) * 1024
            else: eg = hh * 393216 + (n * kv_map(cfg)[0] + kv_map(cfg)[1][mm]) * 3072 + (i % 3) * 1024
        gl, gg = st.get('m0'), st.get(str(soff))
        if gl is None or gg is None or gl + imm != el or gg + imm != eg: return f"lds {gl}+{imm} vs {el}; glob {gg}+{imm} vs {eg} tile {(k, h, n)}"
    ins.expect = f
    return ins
def exp_rd(ins, addr, tag):
    def f(c, st):
        base = slot_base(slot_of(tag(c), 4))
        if st.get(str(addr)) != base: return f"base {st.get(str(addr))} vs {base} tile {tag(c)}"
    ins.expect = f
    return ins

def advance(off, end, step, span, on=True):
    o = [salu("s_add_u32", off, off, step)]
    if on:
        i = Ins(f"s_cmp_eq_u32 {off}, {end}\ns_cselect_b32 {sT4}, {span}, 0", 'S', rd=off.regs() + end.regs(), wr=['scc'] + sT4.regs(), states=2)
        i.cost = 2
        i.simfn = lambda st: st.__setitem__(str(sT4), span if st[str(off)] == st[str(end)] else 0)
        o += [i, salu("s_sub_u32", off, off, sT4)]
    return o

def job_tile(nq, kind, slotreg, tag, cfg, groups=None, adv=True, flo=None):
    srd, off, end, addr, fl = {'K': (sK, sKoff, sKend, dKV, cfg.kvflags), 'V': (sV, sVoff, sVend, dKV, cfg.kvflags),
                               'W': (sW, sWoff, sWend, dW, cfg.wflags)}[kind]
    sl = lambda c: slot_of(tag(c), nq)
    if flo is not None: fl = flo
    out = []
    if nq == 4:
        if groups is None:
            out.append(salu("s_add_u32", 'm0', slotreg, sGrp))
            for m in range(3): out.append(exp_dma(dma(addr[m], srd, off, 1024 * m, fl, tag=tag, slot=sl), tag, nq, off, 1024 * m, m, cfg))
    else:
        for mm in (range(3, 8) if groups is None else groups):
            if kind == 'W':
                k0 = 32 * ((mm & 3) >> 1) + 4 * (mm & 1) + 8 * (mm >> 2)
                go = k0 * 12288; lo = mm * 3072 + (cfg.wshift if mm >= 4 else 0)
            else:
                lo = mm * 3072; go = kv_map(cfg)[1][mm] * 3072
            out.append(salu("s_add_u32", 'm0', slotreg, lo))
            out.append(salu("s_add_u32", sT0, off, go))
            for m in range(3): out.append(exp_dma(dma(addr[m], srd, sT0, 1024 * m, fl, tag=tag, slot=sl), tag, nq, sT0, 1024 * m, 3 * mm + m, cfg))
    if adv and (nq == 3 or kind == 'W'):
        step = 786432 if kind == 'W' else 3072 * kv_map(cfg)[0]
        if cfg.fake and (kind != 'W' or cfg.fake > 1): step = 0
        out += advance(off, end, step, 7864320 if kind == 'W' else 16 * 3072 * kv_map(cfg)[0])
    return out

def job_x(nq, n, dh, cfg, dep=()):
    tag = absT('x', dh, n); sl = lambda c: slot_of(tag(c), nq)
    out = []
    for i in range(2 * nq):
        if i % 4 == 0: out.append(salu("s_add_u32", 'm0', sXl[n & 1], 1024 * i))
        out.append(salu("s_add_u32", sTx, sXoff, 10240 * i - 1024 * (i % 4)))
        d = dma(dX, sX, sTx, 1024 * (i % 4), 'nt' if n >= cfg.ntlate else cfg.xflags, tag=tag, slot=sl, private=True)
        exp_dma(d, tag, nq, sTx, 1024 * (i % 4), i, cfg)
        if i == 0: d.rd += list(dep)
        out.append(d)
    out += advance(sXoff, sXend, 0 if cfg.fake > 1 else 128, 1280)
    return out

def bstamp(sc, gw, gl):
    sc.put(gw, raw("s_memrealtime s[56:57]"), front=True)
    sc.put(gl, unit([f"v_cmp_eq_u32 vcc, s3, {vL16}", f"v_mov_b32 {vOne}, s56", "s_add_u32 s3, s3, 16", f"v_cndmask_b32 {vStamp}, {vStamp}, {vOne}, vcc"], 'V', cost=3))
def code_touch(targets, regs, guard=None, alt=None):
    lo, hi_, dummy = V(regs), V(regs + 1), V(regs + 2)
    _uid[0] += 1; n0 = _uid[0]
    l = [f"s_cmp_lg_u32 {guard[0]}, {guard[1]}", f"s_cbranch_scc1 L_cts{n0}"] if guard else []
    def one(target):
        _uid[0] += 1; n = _uid[0]
        return ["s_getpc_b64 s[58:59]", f"L_ct{n}:", f"s_add_u32 s58, s58, {target}-L_ct{n}", f"s_addc_u32 s59, s59, 0-(({target}-L_ct{n})>>63)",
                "s_and_b32 s58, s58, 0xfffff000",
                f"v_lshrrev_b32 {lo}, 7, {vL16}", f"v_lshlrev_b32 {lo}, 12, {lo}", f"v_and_b32 {hi_}, 0x70, {vL16}", f"v_lshl_add_u32 {lo}, {hi_}, 3, {lo}",
                f"v_min_u32 {lo}, L_code_end-({target})-4, {lo}",
                f"v_mov_b32 {hi_}, s59", f"v_add_co_u32 {lo}, vcc, s58, {lo}", "s_nop 1", f"v_addc_co_u32 {hi_}, vcc, 0, {hi_}, vcc",
                f"global_load_dword {dummy}, v[{lo.a}:{hi_.a}], off"]
    if alt: l += [f"s_cmp_lg_u32 {sHead}, 0", f"s_cbranch_scc1 L_cta{n0}"]
    for t in targets: l += one(t)
    if alt:
        l += [f"s_branch L_cts{n0}", f"L_cta{n0}:"]
        for t in alt: l += one(t)
    l.append(f"L_cts{n0}:")
    u = unit(l, 'S', cost=2 if guard else 18 * len(targets), wr=['scc', 'vcc'])
    u.states = 1
    return u
def lchain(q, par, first):
    o = [mfma(Lacc(q), ONES, Pf(par, q, u), 0 if (first and u == 0) else Lacc(q)) for u in range(2)]
    for i in o: i.cost = 4
    return o

def seq_after(sc, seq, lo, hi, even=False):
    seq = list(seq)
    SEQS.append(seq)
    hi = min(hi, len(sc.g) - 1)
    n = len(seq)
    nx = sum(1 for i in seq if i.kind == 'X'); kx = 0
    g = lo; prev = None; pg = None
    for k, ins in enumerate(seq):
        dl = max(g, min(hi, lo + ((k + 1) * (hi - lo + 1) + n - 1) // n - 1))
        if not even: dl = max(g, min(hi, hi - (n - 1 - k) // 2))
        g1 = g
        if even and ins.kind == 'X': g1 = max(g, min(dl, lo + (kx * (hi - lo + 1)) // nx))
        same_bad = prev is not None and ((prev.kind in 'VE' and ins.kind not in 'VE') or ('m0' in prev.wr and ins.dma))
        if same_bad and g1 == pg:
            if g1 + 1 <= hi: g1 += 1; dl = max(dl, g1)
            else:
                if 'm0' in prev.wr: sc.g[g1].append(nop(0))
                sc.g[g1].append(ins); prev = ins; pg = g1
                for rest in seq[k + 1:]:
                    if 'm0' in prev.wr and rest.dma: sc.g[g1].append(nop(0))
                    sc.g[g1].append(rest); prev = rest
                return g1
        r = sc.place(ins, g1, dl, force=True)
        if ins.kind == 'X': kx += 1
        g = r; pg = r; prev = ins
    return g

def place_even(sc, seq, lo, hi): return seq_after(sc, seq, lo, hi, even=True)

def rdK(j, s, tag): return exp_rd(dsread("ds_read_b128", Kf(j & 1, s), kaddr[s & 1], (j & 3) * 6144 + (s >> 1) * 128, tag), kaddr[s & 1], tag)
def rdV(T, u, e, tag):
    T %= 12
    return exp_rd(dsread("ds_read_b64_tr_b16", VB(T & 3, u, e), vaddr[T & 3], (32 * u + 16 * e) * 384 + (T >> 2) * 128, tag), vaddr[T & 3], tag)
def rdW(T, u, e, tag):
    T %= 12
    s, uu = T >> 1, T & 1
    return exp_rd(dsread("ds_read_b64_tr_b16", VB(T % 3, u, e), waddr[s & 1], (2 * u + e) * 3072 + (s >> 1) * 128 + 8 * uu, tag), waddr[s & 1], tag)
def rdX(nq, n, dh, q, u):
    d = SL if nq == 4 else 6144
    return dsread("ds_read_b128", Xf(n & 1, q, u), xaddr[u], (n & 1) * d + q * 2048, absT('x', dh, n), private=True)
UE = [(0, 0), (0, 1), (1, 0), (1, 1)]

def rebase(regs, cur, new):
    return [salu("s_sub_u32", sT1, new, cur), smov(cur, new)] + [valu("v_add_u32", r, sT1, r) for r in regs]
def rotate(r, n, f): return [smov(sT2, r), smov(r, n), smov(n, f), smov(f, sT2)]
def rebaseK():
    return [salu("s_sub_u32", sT3, kN, kR)] + [valu("v_add_u32", r, sT3, r) for r in kaddr]

def softmax_ops(Sx, q, j, par):
    e = [vexp(Sx.sub(r), Sx.sub(r)) for r in range(4)]
    a = [valu("v_add_f32", Lq(q), Lq(q), Sx.sub(r)) for r in range(4)]
    P = Pf(par, q, j >> 1)
    c = [valu("v_cvt_pk_bf16_f32", P.sub(2 * (j & 1) + i), Sx.sub(2 * i), Sx.sub(2 * i + 1)) for i in range(2)]
    return e, a, c

def attn_iter(nq, par, cfg, first_pv=False, jobs=(), next_k=True, k_rot=True, late=(), gentle=False):
    NG = 4 * nq
    mf = []
    for G in range(NG):
        j, q = divmod(G, nq)
        for s in range(6):
            mf.append(mfma(Sf(G), Kf(j & 1, s), Qf(q, s), Ci(q) if s == 0 else Sf(G)))
        for n in range(3 * G, 3 * G + 3):
            T, qq = divmod(n, nq)
            for u in range(2):
                mf.append(mfma(Oacc(T, qq), VB(T & 3, u), Pf(par, qq, u), 0 if (first_pv and u == 0) else Oacc(T, qq)))
    sc = Sched(mf)
    def pvpos(n): return 12 * (n // 3) + 6 + 2 * (n % 3)
    sm = []
    for G in range(NG):
        Gp = (G - 1) % NG
        j, q = divmod(Gp, nq)
        e, a, c = softmax_ops(Sf(Gp), q, j, par if G == 0 else par ^ 1)
        eg = [0, 2, 4, 6]
        if gentle and cfg.gentle:
            lv = cfg.gentle // 2 + (cfg.gentle % 2) * (G % 2)
            eg = [[0, 2, 4, 6], [2, 2, 4, 6], [2, 2, 6, 6], [4, 4, 4, 4]][lv]
        for r in range(4): sc.put(12 * G + eg[r], e[r])
        sm.append((e, a, c))
    GB = 3 * nq
    bw = wait(need_vm=(lambda c: [('K', c['h'], c['t'] + 2), ('V', c['h'], c['t'] + 1)]), lgkm0=True, free=False)
    sc.put(12 * GB, bw, front=True)
    if cfg.stamps == 2 and nq == 4: bstamp(sc, 12 * GB, 12 * GB + 22)
    sc.put(12 * GB + 2, barrier(), front=True)
    bar = 12 * GB + 2
    reads = []
    for j in range(4):
        lo = 12 * nq * j
        nxt = (j == 3)
        tv, tk = (tagV(1), tagK(2)) if nxt else (tagV(0), tagK(1))
        for i in range(3):
            T = 3 * j + 3 + i
            l2 = lo if i == 0 else pvpos(nq * (T - 4) + nq - 1) + 1
            l2 = max(l2, lo)
            if nxt: l2 = max(l2, bar + 1)
            item = [(rdV(T, u, e, tv), l2) for (u, e) in UE]
            reads.append((l2, 0, item))
        if not nxt or next_k:
            l2 = max(lo, bar + 1) if nxt else lo
            reads.append((l2, 1, [(rdK(j + 1, s, tk), l2) for s in range(6)]))
    reads.sort(key=lambda x: (x[0], x[1]))
    g = 0
    lastpre = 0
    for _, _, item in reads:
        for ins, l2 in item:
            g = max(g, l2)
            while not (g % 12 in (1, 3, 5, 7, 8, 9) and not sc.g[g]) :
                g += 1
                if nq == 3 and g % 12 in (10, 11) and not sc.g[g]: break
            assert g < len(mf), "ds overflow"
            sc.put(g, ins)
            if g < bar: lastpre = g
    assert lastpre < 12 * GB
    upd = rebase(vaddr, sVcur, vN) + (rebaseK() if k_rot else [])
    for G in range(NG):
        e, a, c = sm[G]
        b = 12 * G
        if nq == 3 and G == 0:
            order = [(a[0], 1), (c[0], 3), (a[1], 5), (c[1], 7), (a[2], 8), (a[3], 9)]
        else:
            order = [(a[0], 1), (a[1], 3), (c[0], 5), (a[2], 7), (a[3], 8), (c[1], 9)]
        for ins, o in order:
            if not (cfg.lmfma and ins in a): sc.put(b + o, ins)
    if nq == 3:
        for G in range(NG):
            sc.put(12 * G + 4, wait(), front=True)
            if G % 3 == 2: sc.put(12 * G + 11, wait())
    if cfg.xpace and nq == 4 and gentle:
        for G in range(NG): sc.put(12 * G + 6, nop(cfg.xpace - 1))
    seq_after(sc, upd, lastpre, bar)
    gj = 0
    seq = [i for jb in jobs for i in jb]
    if seq: gj = place_even(sc, seq, 0, 12 * GB - (2 if nq == 3 else 13))
    rot = rotate(vR, vN, vF) + (rotate(kR, kN, kF) if k_rot else [])
    sc.extra = [(12 * (4 * q + 2) + 11, lchain(q, par, first_pv)) for q in range(nq)] if cfg.lmfma else []
    seq = [i for jb in late for i in jb]
    if any(i.kind == 'X' for i in seq):
        gr = seq_after(sc, rot, bar + 1, bar + 4)
        place_even(sc, seq, gr + 1, len(mf) - 2)
    else:
        seq_after(sc, rot + seq, bar + 1, len(mf) - 2)
    return sc

NCH = 24
PSLOT = [0, SL - 1024, 2 * SL - 1024]
def head_of(c):
    hh, cc = divmod(c, 3)
    return (hh if hh < 4 else 12 + hh), cc
def tagU(c): return lambda ctx: ('U', 0, c + ctx.get('dc', 0))
def job_o(c, cfg, dyn=None):
    h, cc = head_of(c)
    if cfg.pfake & 1: h = 0; dyn = None
    out = []
    for q in range(5):
        out.append(salu("s_add_u32", sTp, dyn or sOb, (0 if dyn else h * 92160) + cc * 2048 + q * 6144))
        for u in range(2):
            l = gload(OF(c % 3, q, u), vL16, sOr, sTp, 1024 * u, cfg.orflags)
            l.expect = lambda ctx, st, q=q: None if st.get(str(sTp)) == st[str(sOb)] + ctx['heads'][(c + ctx.get('dc', 0)) // 3] * 92160 + cc * 2048 + q * 6144 else "o off"
            if cfg.pskip & 1 and (q, u) != (0, 0): continue
            if cfg.pskip & 4 and q >= 4: continue
            out.append(l)
    return out
def job_u(c, cfg, dyn=None):
    h, cc = head_of(c)
    if cfg.pfake & 2: h = 0; dyn = None
    tag = tagU(c); sl = lambda ctx: slot_of(tag(ctx), 4)
    out = []
    for i in range(8):
        if i % 4 == 0: out.append(salu("s_add_u32", 'm0', sLb, PSLOT[(c + 1) % 3] + 1024 * i))
        out.append(salu("s_add_u32", sTx, dyn or sWb, ((0 if dyn else h * 192) + 64 * cc + 8 * i) * 1280 - 1024 * (i % 4)))
        d = dma(dX, sWo, sTx, 1024 * (i % 4), cfg.woflags, tag=tag, slot=sl)
        d.expect = lambda ctx, st, i=i, el=PSLOT[(c + 1) % 3] + 4096 * (i // 4): \
            None if (st.get(str(sTx)) == st[str(sWb)] + (ctx['heads'][(c + ctx.get('dc', 0)) // 3] * 192 + 64 * cc + 8 * i) * 1280 - 1024 * (i % 4)
                     and st.get('m0') == st[str(sLb)] + el) else "u off"
        if cfg.pskip & 2 and i != 7: continue
        out.append(d)
    return out
def next_head():
    l = [f"s_mov_b32 {sHc}, {sHn}", f"s_mov_b32 {sOc}, {sOn}", f"s_mov_b32 {sWc}, {sWn}",
         f"s_add_u32 {sHn}, {sHc}, 1",
         f"s_cmp_eq_u32 {sHn}, {sJmp}", f"s_cselect_b32 {sHn}, 16, {sHn}",
         f"s_cmp_eq_u32 {sHc}, 18", f"s_cselect_b32 {sHn}, {sA18}, {sHn}",
         f"s_cmp_eq_u32 {sHc}, {sStol}", f"s_cselect_b32 {sHn}, 19, {sHn}",
         f"s_mul_i32 {sOn}, {sHn}, 92160", f"s_add_u32 {sOn}, {sOn}, {sOb}",
         f"s_mul_i32 {sWn}, {sHn}, {192 * 1280}", f"s_add_u32 {sWn}, {sWn}, {sWb}"]
    out = []
    for grp in (l[0:1], l[1:2], l[2:3], l[3:4], l[4:6], l[6:8], l[8:10], l[10:11], l[11:12], l[12:13], l[13:14]):
        out.append(unit(grp, 'S', wr=['scc']))
    def sim(st):
        st[str(sHc)] = st[str(sHn)]; st[str(sOc)] = st[str(sOn)]; st[str(sWc)] = st[str(sWn)]
        c_ = st[str(sHc)]; n = c_ + 1
        if n == st[str(sJmp)]: n = 16
        if c_ == 18: n = st[str(sA18)]
        if c_ == st[str(sStol)]: n = 19
        st[str(sHn)] = n; st[str(sOn)] = st[str(sOb)] + n * 92160; st[str(sWn)] = st[str(sWb)] + n * 192 * 1280
    def kill(st):
        st['save'] = {k: st[k] for k in (str(sHc), str(sHn), str(sOc), str(sWc), str(sOn), str(sWn)) if k in st}
        for k in st['save']: del st[k]
    def fin(st):
        st.update(st['save']); sim(st)
    out[0].simfn = kill; out[-1].simfn = fin
    return out
def flag_store(off, val):
    u = unit([f"v_mov_b32 {vOne}, {val}", "s_mov_b64 exec, 1", f"buffer_store_dword {vOne}, off, {sEx}, {sFs} offset:{off} sc1", "s_mov_b64 exec, -1"], 'S', cost=7)
    u.states = 2
    return u
SPAN = [divmod(gs, 8) for gs in range(176)] + [(22, N) for N in (6, 7, 4, 5)] + [(23, N) for N in (6, 7, 4, 5)] \
    + [(22, N) for N in (0, 1, 2, 3)] + [(23, N) for N in (2, 3, 0, 1)]
def rdU(gs, u, e):
    c, N = SPAN[gs]
    return dsread("ds_read_b64_tr_b16", VB(gs % 3, u, e), raddr[N & 3],
                  PSLOT[(c + 1) % 3] + (N >> 2) * 8192 + (32 * u + 16 * e) * 128, tag=tagU(c))
def calc_raddr():
    o = [valu("v_lshrrev_b32", vt0, 6, vL16),
         valu("v_and_b32", vt1, 6, vt0),
         valu("v_lshlrev_b32", vt0, 7, vt0),
         valu("v_bfe_u32", raddr[0], vL16, 4, 1),
         valu("v_lshl_add_u32", vt0, raddr[0], 3, vt0),
         valu("v_bfe_u32", raddr[0], vL16, 5, 1),
         valu("v_xor_b32", vt1, vt1, raddr[0]),
         valu("v_lshlrev_b32", vt1, 4, vt1),
         salu("s_lshr_b32", sTp, sWave, 1), salu("s_lshl_b32", sTp, sTp, 6),
         valu("v_xor_b32", vt1, sTp, vt1),
         salu("s_lshr_b32", sTp, sWave, 1), salu("s_mul_i32", sTp, sTp, 3 * SL, scc=False), salu("s_add_u32", sTp, sTp, 1024),
         valu("v_add_u32", vt0, sTp, vt0)]
    for m in range(4):
        o += [valu("v_xor_b32", raddr[m], 32 * m, vt1), valu("v_add_u32", raddr[m], raddr[m], vt0)]
    for i in o: i.nosim = True
    return o
def unit(lines, kind='S', cost=None, rd=(), wr=(), **kw):
    i = Ins("\n".join(lines), kind, rd=rd, wr=wr, states=len([l for l in lines if not l.endswith(":")]), **kw)
    i.cost = cost if cost is not None else len(lines)
    i.nosim = True
    return i
_uid = [0]
def signal_add(off, guarded):
    _uid[0] += 1; n = _uid[0]
    l = [f"v_mov_b32 {vOne}, 1", "s_mov_b64 exec, 1", f"buffer_atomic_add {vOne}, off, {sDbg}, {off} sc1", "s_mov_b64 exec, -1"]
    if guarded: l = [f"s_cmp_eq_u32 {off}, -1", f"s_cbranch_scc1 L_nosig{n}"] + l + [f"s_mov_b32 {off}, -1", f"L_nosig{n}:"]
    u = unit(l, 'S', cost=8, wr=['scc'])
    u.states = 2
    return u
def poll_issue(gen):
    return gload_off(V(226, 2), sDbg, sCnt, 0) if gen == 0 else gload_off(V(226), sDbg, sMyc, 64)
def gload_off(D, srd, soff, off):
    op = {1: "buffer_load_dword", 2: "buffer_load_dwordx2"}[D.n]
    return Ins(f"{op} {D}, off, {srd}, {soff} offset:{off} sc1", 'X', rd=srd.regs() + soff.regs(), wr=D.regs())
def cond_load(D, srd, soff, off, cmp_lines, vtmp):
    a = unit(cmp_lines + [f"s_cselect_b32 {sT0}, 0, 0x7ff00000", f"v_mov_b32 {vtmp}, {sT0}"], 'S', wr=['scc'] + sT0.regs() + vtmp.regs())
    b = Ins(f"buffer_load_dword {D}, {vtmp}, {srd}, {soff} offen offset:{off} sc1", 'X', rd=srd.regs() + soff.regs() + vtmp.regs(), wr=D.regs())
    return a, b
def poll_check(gen):
    _uid[0] += 1; n = _uid[0]
    l = [f"s_mov_b32 {sSpin}, 0x80000", f"L_poll{n}:"] + (["v_min_u32 v226, v226, v227", "s_nop 0"] if gen == 0 else []) + \
        [f"v_readfirstlane_b32 {sT0}, v226", "s_nop 3",
         f"s_cmp_ge_u32 {sT0}, 32", f"s_cbranch_scc1 L_pok{n}",
         "s_sleep 2", poll_issue(gen).text,
         f"s_sub_u32 {sSpin}, {sSpin}, 1", f"s_cmp_lg_u32 {sSpin}, 0", "s_waitcnt vmcnt(0)", f"s_cbranch_scc1 L_poll{n}", f"L_pok{n}:"]
    u = unit(l, 'S', cost=12, rd=['v226', 'v227'], wr=['v226', 'scc'] + sT0.regs())
    u.states = 0
    return u

def attn_last(nq, cfg, nxt):
    par = 1
    mf = []
    for T in range(12):
        for q in range(nq):
            for u in range(2): mf.append(mfma(Oacc(T, q), VB(T & 3, u), Pf(par, q, u), Oacc(T, q)))
    sc = Sched(mf)
    sp = 2 * nq
    e, a, c = softmax_ops(Sf(4 * nq - 1), nq - 1, 3, par)
    if nq == 4:
        for r in range(4): sc.put(r, e[r])
        sc.put(4, c[0]); sc.put(4, c[1])
        g0 = 6
    else:
        sc.put(0, e[0]); sc.put(0, e[1]); sc.put(1, e[2]); sc.put(1, e[3])
        sc.put(2, c[0]); sc.put(2, c[1])
        g0 = 4
    if not cfg.lmfma: sc.put(g0 - 1, a[0]); sc.put(g0 - 1, a[1])
    else: sc.put(g0 - 1, nop(0))
    g = g0
    for T in range(3, 12):
        g = max(g, sp * (T - 3))
        for (u, ee) in UE:
            sc.put(g, rdV(T, u, ee, tagV(0))); g += 1
        sc.put(g - 1, wait())
    lastv = g - 1
    if cfg.lmfma:
        sc.extra = [(sp - 1, [i for q in range(nq) for i in lchain(q, par, False)])]
        fin = [None] * ((sp + 8 - g0) // 2) + [valu("v_accvgpr_read_b32", Lq(q), Lacc(q).sub(0)) for q in range(nq)]
    else:
        fin = [a[2], a[3]]
        for q in range(nq):
            t = vt0 if q % 2 == 0 else vt1
            for w in (32, 16):
                fin += [valu("v_mov_b32", t, Lq(q)), None, vperm(w, t, Lq(q)), valu("v_add_f32", Lq(q), Lq(q), t)]
    fin += [valu("v_add_f32", vt0, Lq(0), Lq(1)), valu("v_add_f32", vt0, vt0, Lq(2))]
    if nq == 4: fin.append(valu("v_add_f32", vt0, vt0, Lq(3)))
    fin.append(Ins(f"v_cmp_ngt_f32 {sBad}, {sThr}, {vt0}", 'V', rd=vt0.regs() + sThr.regs(), wr=sBad.regs()))
    SEQS.append([i for i in fin if i is not None])
    g = g0
    for ins in fin:
        if ins is None: g += 2; continue
        g = sc.place(ins, g, g + 8)
    for q in range(nq):
        g = sc.place(vrcp(Lq(q), Lq(q)), g + 1, g + 8)
    ginv = g
    chk = [unit([f"s_cmp_lg_u64 {sBad}, 0", f"s_cselect_b32 {sBad.sub(0)}, 1, 0"], rd=sBad.regs(), wr=['scc'] + sBad.regs()),
           salu("s_lshl_b32", sTp, sWave, 2), salu("s_add_u32", sTp, sTp, FLAG), valu("v_mov_b32", vt0, sBad.sub(0))]
    if nxt == 'P' and nq == 3 and cfg.balance:
        sc.put(0, gload_off(V(226), sEx, sFr, 4), front=True)
        chk += [wait(), valu("v_lshl_or_b32", vt0, V(226), 1, vt0)]
    chk += [valu("v_mov_b32", vt1, sTp), dswrite("ds_write_b32", vt1, vt0, 0),
           valu("v_mov_b32", vOne, FLAG)]
    for i in chk: i.nosim = True
    g = seq_after(sc, chk, g + 1, g + 12)
    bar = sp * 10
    assert g < bar - 2
    gnext = g + 1
    if nxt == 'Q':
        w = wait(need_vm=lambda c: [('x', c['h'] + 1, 0)], free=False)
        gx = sc.place(w, sp * 3, sp * 4)
        dep = []
        for q in range(nq):
            for u in range(2):
                r = rdX(nq, 0, 1, q, u); dep += r.wr
                gx = sc.place(r, gx + 1, gx + 8)
        j1 = job_tile(nq, 'W', vF, absT('W', 1, 1), cfg)
        ge = place_even(sc, j1, g0, sp * 7)
        ws = wait(); gw = sc.place(ws, max(gx + 4, ge), max(gx + 4, ge) + 4)
        place_even(sc, job_x(nq, 2, 1, cfg, dep), gw + 1, len(mf) - 1)
        need = lambda c: [('W', c['h'] + 1, 0)]
    else:
        place_even(sc, job_u(1, cfg), g0, gnext - 1)
        place_even(sc, job_o(0, cfg) + job_o(1, cfg), gnext, len(mf) - 1)
        need = lambda c: [('U', 0, 0)]
    bw = wait(need_vm=need, lgkm0=True, free=False)
    gb = sc.place(bw, bar - 1, bar)
    gb = sc.place(barrier(), gb, bar + 1)
    fl = dsread("ds_read_b128", V(228, 4), vOne, 0)
    g = sc.place(fl, gb + 1, gb + 2)
    if nxt == 'Q':
        seq_after(sc, rebase(waddr, sWcur, vN), lastv, gb)
        seq_after(sc, rotate(vR, vN, vF), gb + 1, len(mf) - 1)
    for T in range(2):
        g = max(g, sp * (10 + T) - 1)
        for (u, ee) in UE:
            r = rdW(T, u, ee, absT('W', 1, 0)) if nxt == 'Q' else rdU(T, u, ee)
            g = sc.place(r, min(len(mf) - 1, g + 1), min(len(mf) - 1, g + 2))
        sc.place(wait(), g, g)
    sc.post = [valu("v_or3_b32", V(228), V(228), V(229), V(230)), valu("v_or_b32", V(228), V(228), V(231)), nop(0),
               Ins(f"v_readfirstlane_b32 {sBad.sub(0)}, v228", 'V', rd=['v228'], wr=sBad.sub(0).regs()), nop(3),
               salu("s_and_b32", sBad.sub(1), sBad.sub(0), 1),
               salu("s_andn2_b32", sBad.sub(1), sBad.sub(1), sRedo), raw(f"s_cbranch_scc1 L_slow_{nq}"), smov(sRedo, 0)]
    return sc

def epi_block(q, s, t, cfg, packed=False):
    ops = []
    for i in range(8):
        src = Oacc(2 * s + (i >> 2), q).sub(i & 3)
        ops.append(valu("v_accvgpr_read_b32", t.sub(i), src))
    for i in range(8): ops.append(valu("v_mul_f32", t.sub(i), t.sub(i), Lq(q)))
    for i in range(4): ops.append(valu("v_cvt_pk_bf16_f32", t.sub(i), t.sub(2 * i), t.sub(2 * i + 1)))
    ops.append(salu("s_add_u32", sTo, sOoff, q * 6144 + (4096 if s >= 4 else 0)))
    stv = gstore(t.sub(0, 4), vL16, sO, sTo, (s & 3) * 1024, cfg.oflags)
    def f(c, st):
        h = 0 if c['t'] < 0 else 1
        e = (st['h0'] + 16 * h) * 92160 + (4 * st['wave'] + q) * 6144 + s * 1024
        if st.get(str(sTo)) is None or st[str(sTo)] + (s & 3) * 1024 != e: return f"store off vs {e}"
    stv.expect = f
    if not cfg.nostore: ops.append(stv)
    return ops

def qproj(nq, cfg, epi):
    sp = 2 * nq; SN = 12 * sp
    mf = []
    for st in range(10):
        for T in range(12):
            for q in range(nq):
                for u in range(2):
                    mf.append(mfma(QACC(T, q), VB(T % 3, u), Xf(st & 1, q, u), 0 if (st == 0 and u == 0) else QACC(T, q)))
    sc = Sched(mf)
    drain = None
    for st in range(10):
        b = st * SN
        for T in range(10):
            g = b + sp * T
            for (u, e) in UE:
                sc.put(g, rdW(T + 2, u, e, absT('W', 0, st))); g += 1
            sc.put(g - 1, wait())
        lastw = g - 1
        need = [('W', st + 1)] if st < 9 else [('K', 0)]
        bw = wait(need_vm=(lambda c, need=need: [(k, c['h'], n) for k, n in need]), lgkm0=True, free=False)
        gb = b + sp * 10
        if epi and st == 9 and nq == 4: bw.vm = 0; drain = bw
        sc.put(gb, bw); sc.put(gb, barrier())
        if epi and st == 9 and nq == 3: sc.put(gb, signal_add(sMyc, False))
        if cfg.stamps == 3: bstamp(sc, gb, gb + 5)
        g = gb
        if st < 9:
            seq_after(sc, rebase(waddr, sWcur, vN), lastw, gb)
            for T in range(2):
                g = max(g, b + sp * (10 + T) - 1)
                for (u, e) in UE:
                    g += 1; sc.put(g, rdW(T, u, e, absT('W', 0, st + 1)))
                sc.put(g, wait())
        else:
            seq_after(sc, rebase(vaddr, sVcur, vN), lastw, gb)
            for s in range(6):
                g += 1; sc.put(g, rdK(0, s, absT('K', 0, 0)))
        seq_after(sc, rotate(vR, vN, vF), gb + 1, b + SN - 1)
        dep = []
        gx = b + sp * 4
        if st < 9:
            w = wait(need_vm=(lambda c, st=st: [('x', c['h'], st + 1)]), free=False)
            gx = sc.place(w, gx, gx + sp)
            for q in range(nq):
                for u in range(2):
                    r = rdX(nq, st + 1, 0, q, u); dep += r.wr
                    gx = sc.place(r, gx + 1, gx + sp)
        if st < 8: j1 = job_tile(nq, 'W', vF, absT('W', 0, st + 2), cfg)
        elif st == 8: j1 = job_tile(nq, 'V', vF, absT('V', 0, 0), cfg, groups=range(8))
        else: j1 = job_tile(nq, 'K', kN, absT('K', 0, 1), cfg, groups=range(8))
        ge = b
        if j1: ge = place_even(sc, j1, b, b + (sp * 4 - 1 if (nq == 4 or st == 7) else sp * 6 if st < 7 else sp * 10 - 2 if st == 8 else sp * 8))
        if st == 7 and nq == 3:
            if epi:
                dr = wait(need_vm=lambda c: 'all', free=False); dr.vm = 0; drain = dr
                ge = sc.place(dr, ge + 8, ge + 9)
            place_even(sc, job_tile(nq, 'K', kR, absT('K', 0, 0), cfg, groups=range(8)), ge + 1, b + SN - 1)
        if st + 3 <= 9:
            ws = wait(); gw = sc.place(ws, max(gx + 4, ge), max(gx + 4, ge) + 4)
            place_even(sc, job_x(nq, st + 3, 0, cfg, dep), gw + 1, b + SN - 1)
    if epi:
        nb = 6 * nq
        step = (SN * (cfg.epist if nq == 4 else 7) - 20) // nb
        i = 0
        for s in range(6):
            for q in range(nq):
                ops = epi_block(q, s, TMP[i & 1], cfg)
                seq_after(sc, ops, 10 + i * step, 10 + (i + 1) * step - 1)
                SEQS.append([ops[-1], drain])
                i += 1
        seq_after(sc, [salu("s_add_u32", sOoff, sOoff, 16 * 92160)], len(mf) - 20, len(mf) - 1)
    return sc

def conv_prologue(nq, cfg):
    out = []
    cv = []
    for s in range(6):
        for q in range(nq):
            b = V(8 * blk(q, s), 8)
            for i in range(4): cv.append(valu("v_pk_mul_f32", b.sub(2 * i, 2), b.sub(2 * i, 2), sC2))
            for i in range(4): cv.append(valu("v_cvt_pk_bf16_f32", b.sub(i), b.sub(2 * i), b.sub(2 * i + 1)))
    j = job_tile(nq, 'V', vN, absT('V', 0, 1), cfg, groups=range(8))
    k = 0
    for i, ins in enumerate(cv):
        out.append(ins)
        if i % 3 == 2 and k < len(j): out.append(j[k]); k += 1
    out += j[k:]
    for q in range(nq): out.append(valu("v_mov_b32", Ci(q).sub(0), "0xff800000"))
    out.append(label(f"L_prol_{nq}"))
    if cfg.lmfma == 0:
        for q in range(nq): out.append(valu("v_mov_b32", Lq(q), 0))
    elif cfg.lmfma == 2:
        for q in range(4): out.append(valu("v_mov_b32", Lq(q), "0x3f803f80"))
    else:
        out += [valu("v_and_b32", vt0, 48, vL16), valu("v_mov_b32", vt1, "0x3f803f80"),
                Ins(f"v_cmp_eq_u32 vcc, 0, {vt0}", 'V', rd=vt0.regs(), wr=['vcc']), nop(1)]
        for q in range(4): out.append(valu("v_cndmask_b32", Lq(q), 0, vt1, 'vcc'))
    out.append(wait())
    NG = 4 * nq
    mf = []
    for G in range(NG):
        jj, q = divmod(G, nq)
        for s in range(6):
            mf.append(mfma(Sf(G), Kf(jj & 1, s), Qf(q, s), (0 if jj == 0 else Ci(q)) if s == 0 else Sf(G)))
    sc = Sched(mf)
    sc.pre = out
    gb = 6 * nq * 3
    for jj in range(3):
        g = 6 * nq * jj
        for s in range(6):
            sc.put(g, rdK(jj + 1, s, absT('K', 0, 0))); g += 2
    lastk = g - 2
    bw = wait(need_vm=(lambda c: [('K', c['h'], 1), ('V', c['h'], 0)]), lgkm0=True, free=False)
    sc.put(gb - 1, bw); sc.put(gb - 1, barrier())
    seq_after(sc, rebaseK(), lastk + 1, gb - 2)
    g = gb
    post = [rdK(4, s, absT('K', 0, 1)) for s in range(6)]
    for T in range(3): post += [rdV(T, u, e, absT('V', 0, 0)) for (u, e) in UE]
    for ins in post:
        sc.put(g, ins); g += 1
    assert g <= len(mf)
    rot = rotate(kR, kN, kF)
    for i, ins in enumerate(rot): sc.put(gb + i, ins)
    if nq == 3:
        place_even(sc, job_tile(nq, 'K', kF, absT('K', 0, 2), cfg, groups=range(8)), 0, gb - 3)
        place_even(sc, job_tile(nq, 'V', vF, absT('V', 0, 2), cfg, groups=range(4), adv=False), gb, len(mf) - 1)
    tail = []
    for G in range(NG - 1):
        jj, q = divmod(G, nq)
        Sx = Sf(G)
        ops = []
        if jj == 0:
            t = vt0; m = vt1
            ops += [valu("v_max3_f32", m, Sx.sub(0), Sx.sub(1), Sx.sub(2)), valu("v_max3_f32", m, m, Sx.sub(3), Ci(q).sub(0))]
            for w in (32, 16):
                ops += [valu("v_mov_b32", t, m), nop(1), vperm(w, t, m), valu("v_max_f32", m, m, t)]
            for r in range(4): ops.append(valu("v_sub_f32", Ci(q).sub(r), 0, m))
            for r in range(4): ops.append(valu("v_sub_f32", Sx.sub(r), Sx.sub(r), m))
        e, a, c = softmax_ops(Sx, q, jj, 0)
        ops += [e[0], e[1], e[2], e[3], c[0], c[1]] if cfg.lmfma else [e[0], e[1], a[0], e[2], a[1], e[3], c[0], a[2], a[3], c[1]]
        if G + 2 < NG:
            n = len(ops)
            for i, ins in enumerate(ops): sc.put(6 * (G + 2) + (i * 6) // n, ins)
        else:
            tail += ops
    sc.add_wait_sites()
    for jj in range(1, 4):
        sc.put(6 * nq * jj - 1, wait())
    return sc.linear() + tail + [wait()]

CS = 6
def merge_jobs(ju, jo):
    def split(j):
        out = []; cur = []
        for i in j:
            cur.append(i)
            if i.kind == 'X': out.append(cur); cur = []
        return out
    a, b = split(ju), split(jo)
    items = sorted([((k + 0.5) / len(a), 0, x) for k, x in enumerate(a)] + [((k + 0.5) / len(b), 1, x) for k, x in enumerate(b)], key=lambda t: t[:2])
    return [i for _, _, x in items for i in x]
def p_chunks(c0, c1, nq, cfg, loop=False):
    mf = []
    for c in range(c0, c1):
        for N in range(8):
            for q in range(5):
                for u in range(2):
                    mf.append(mfma(PACC(N, q), VB((8 * c + N) % 3, u), OF(c % 3, q, u), 0 if (c == 0 and u == 0) else PACC(N, q)))
    sc = Sched(mf)
    PUB = cfg.pubchunk
    for c in range(c0, c1):
        b = 80 * (c - c0)
        for N in range(6):
            RP = [0, 1, 5, 6] if (cfg.prd and N < 5) else [0, 1, 3, 4] if cfg.prd else [0, 1, 2, 3]
            for i, (u, e) in enumerate(UE): sc.put(b + 10 * N + RP[i], rdU(8 * c + N + 2, u, e))
            sc.put(b + 10 * N + RP[3], wait())
        bw = wait(need_vm=(lambda ctx, c=c: 'all' if c == PUB else [tagU(c + 1)(ctx)]), lgkm0=True, free=False)
        if c == PUB: bw.vm = 0; drain = bw
        if loop and c == c0:
            a_, b_ = cond_load(V(226), sDbg, sMyc, 64, [f"s_lshl_b32 {sT0}, {sHn}, 2", f"s_add_u32 {sT0}, {sT0}, {sWave}", f"s_cmp_eq_u32 {sT0}, 67"], V(228))
            sc.put(b + 8, a_); sc.put(b + 14, b_)
            sc.put(b + 59, wait())
            _uid[0] += 1; n = _uid[0]
            sc.put(b + 59, unit([f"s_add_u32 {sT0}, {sWave}, {sHn}", f"s_cmp_lg_u32 {sHn}, 16", f"s_cbranch_scc1 L_skip{n}",
                                 f"s_cmp_lg_u32 {sT0}, 19", f"s_cbranch_scc1 L_skip{n}"], cost=3, rd=['v226'], wr=['scc'] + sT0.regs()))
            pc = poll_check(1); pc.cost = 0; sc.put(b + 59, pc); sc.put(b + 59, label(f"L_skip{n}"))
        if loop and c == c0 + 2:
            a_, b_ = cond_load(V(227), sEx, sFr, 8, [f"s_cmp_eq_u32 {sHc}, 17"], V(229))
            sc.put(b - 72, a_); sc.put(b - 66, b_)
            sc.put(b + 9, wait())
            _uid[0] += 1; n = _uid[0]
            u_ = unit([f"s_cmp_lg_u32 {sHc}, 17", f"s_cbranch_scc1 L_dok{n}", f"s_mov_b32 {sSpin}, 0x80000", f"L_dp{n}:",
                       f"v_readfirstlane_b32 {sT0}, v227", "s_nop 3", f"s_cmp_eq_u32 {sT0}, 1", f"s_cselect_b32 {sA18}, {sStol}, 19",
                       f"s_cmp_lg_u32 {sT0}, 0", f"s_cbranch_scc1 L_dok{n}", "s_sleep 2", gload_off(V(227), sEx, sFr, 8).text,
                       f"s_sub_u32 {sSpin}, {sSpin}, 1", f"s_cmp_lg_u32 {sSpin}, 0", "s_waitcnt vmcnt(0)", f"s_cbranch_scc1 L_dp{n}", f"L_dok{n}:"],
                      cost=2, rd=['v227'], wr=['scc'] + sT0.regs())
            u_.states = 1
            sc.put(b + 9, u_)
        sc.put(b + 60, bw); sc.put(b + 60, barrier())
        if cfg.stamps == 4: bstamp(sc, b + 60, b + 69)
        if c == PUB and nq == 3:
            sc.put(b + 60, salu("s_add_u32", sSig, sMyc, 64)); sc.put(b + 60, signal_add(sSig, False))
        if c == cfg.markchunk and nq == 3: sc.put(b + 60, flag_store(4, 1))
        if c == 0 and nq == 3: sc.put(b + 9, salu("s_sub_u32", sT0, sJmp, 2)); sc.put(b + 9, flag_store(8, sT0))
        for i, (u, e) in enumerate(UE):
            sc.put(b + 60 + ([1, 3, 5, 6] if cfg.prd else [1, 2, 3, 4])[i], rdU(8 * c + 8, u, e)); sc.put(b + 70 + ([0, 1, 5, 6] if cfg.prd else [0, 1, 2, 3])[i], rdU(8 * c + 9, u, e))
        sc.put(b + (76 if cfg.prd else 73), wait())
        sc.put(b + 79, wait())
    first_reads = []
    if nq is not None:
        nb = 6 * nq
        span = 80 * PUB + 10
        step = (span - 4) / nb
        i = 0
        for s in range(6):
            for q in range(nq):
                ops = epi_block(q, s, TMP[i & 1], cfg)
                if s == 0: first_reads += ops[:8]
                SEQS.append([ops[-1], drain])
                ge = seq_after(sc, ops, 4 + int(i * step), 4 + int((i + 1) * step) - 1)
                if s == 0: gfirst = 4 + int(i * step) + 9
                i += 1
    for c in range(c0, c1):
        b = 80 * (c - c0)
        if c + 2 < NCH:
            ju, jo = job_u(c + 2, cfg), job_o(c + 2, cfg)
            if loop:
                ju, jo = job_u(c + 2, cfg, sWc if c == c0 else sWn), job_o(c + 2, cfg, sOc if c == c0 else sOn)
            if loop and c == c0 + 2:
                if cfg.prd: g1 = g2 = place_even(sc, merge_jobs(ju, jo), b, b + 72)
                elif cfg.pclus: g2 = place_even(sc, jo, b, b + 36); g1 = place_even(sc, ju, b + 37, b + 66)
                else: g1 = place_even(sc, ju, b, b + 64); g2 = place_even(sc, jo, b + 2, b + 64)
                seq_after(sc, next_head(), max(g1, g2) + 1, b + 78)
            elif c == 0:
                place_even(sc, ju, b, b + 40)
                place_even(sc, jo[:6], b + 30, b + gfirst); place_even(sc, jo[6:], b + gfirst + 1, b + 78)
                for r in first_reads:
                    for l in jo:
                        if set(l.wr) & set(r.rd): SEQS.append([r, l])
            elif c == PUB:
                place_even(sc, ju, b, b + 24); place_even(sc, jo[:3], b, b + 24); place_even(sc, jo[3:], b + 61, b + 78)
            else:
                hi_ = 58 if c == NCH - 3 else 78
                if cfg.prd: place_even(sc, merge_jobs(ju, jo), b, b + hi_)
                elif cfg.pclus and c != NCH - 3: place_even(sc, jo, b, b + 42); place_even(sc, ju, b + 43, b + hi_)
                else: place_even(sc, ju, b, b + hi_); place_even(sc, jo, b + 2, b + hi_)
    sc.add_wait_sites()
    return sc

def p_tail(cfg):
    mf = []
    for gs in range(176, 192):
        c, N = SPAN[gs]
        for q in range(5):
            for u in range(2): mf.append(mfma(PACC(N, q), VB(gs % 3, u), OF(c % 3, q, u), PACC(N, q)))
    sc = Sched(mf)
    for k in range(14):
        o = 1 if k == 2 else 0
        for i, (u, e) in enumerate(UE): sc.put(10 * k + i + o, rdU(178 + k, u, e))
        sc.put(10 * k + 3 + o, wait())
    sc.put(143, wait())
    sc.put(20, wait(need_vm=lambda ctx: [tagU(23)(ctx)], free=False)); sc.put(20, barrier())
    sc.put(39, wait())
    wA, rA, wB, rB, oa = V(236), V(237), V(238), V(239), V(240)
    pre = [salu("s_and_b32", sTp, sWave, 1), salu("s_lshr_b32", sTx, sWave, 1), salu("s_mul_i32", sTx, sTx, 3 * SL, scc=False),
           salu("s_sub_u32", sT1, 3 * SL, sTx),
           salu("s_mul_i32", sT0, sTp, 10240, scc=False), salu("s_add_u32", sT0, sT0, SL), valu("v_add_u32", vt0, sT0, vL16),
           valu("v_add_u32", wA, sTx, vt0), valu("v_add_u32", rA, sT1, vt0),
           salu("s_mul_i32", sT0, sTp, 2 * SL, scc=False), salu("s_add_u32", sT0, sT0, 9216), valu("v_add_u32", vt0, sT0, vL16),
           valu("v_add_u32", wB, sTx, vt0), valu("v_add_u32", rB, sT1, vt0),
           valu("v_bfe_u32", oa, vL16, 4, 4), valu("v_mul_u32_u24", oa, 2560, oa),
           valu("v_lshrrev_b32", vt0, 8, vL16), valu("v_lshl_add_u32", oa, vt0, 3, oa)]
    for i in pre: i.nosim = True
    seq_after(sc, pre, 0, 38)
    def T(pair, t): return PACC(2 * pair + t // 5, t % 5)
    def wr(addr, tile, off):
        i = dswrite("ds_write_b128", addr, tile, off); i.cost = 3
        return i
    free = lambda lo, n: [g for g in range(lo, 160) if g % 10 >= 4][:n]
    for t, g in enumerate(free(56, 10)): sc.put(g, wr(wA, T(3, t), 1024 * t))
    sc.put(78, wait(lgkm0=True, free=False)); sc.put(78, barrier())
    rg = free(79, 10)
    for t, g in enumerate(rg): sc.put(g, dsread("ds_read_b128", T(3, t), rA, 1024 * t))
    seq = []
    for t in range(10):
        seq += [wait()] + [valu("v_add_f32", T(2, t).sub(i), T(2, t).sub(i), T(3, t).sub(i)) for i in range(4)]
        if t % 4 == 0: seq.append(salu("s_add_u32", sTp, sExs, 1024 * t))
        seq.append(gstore(T(2, t), vL16, sEx, sTp, 1024 * (t % 4), cfg.exflags))
    seq_after(sc, seq, 90, cfg.xend)
    for t, g in enumerate([136, 137, 138, 139, 144, 146, 148, 150, 152, 154]): sc.put(g, wr(wB, T(1, t), 1024 * t))
    sc.add_wait_sites()
    def add(dst, src): return [valu("v_pk_add_f32", dst.sub(2 * i, 2), dst.sub(2 * i, 2), src.sub(2 * i, 2)) for i in range(2)]
    w = wait(need_vm=lambda c: 'all', lgkm0=True, free=False); w.vm = 0
    f = [w, barrier()]
    f.append(unit([f"s_cmp_lg_u32 {sWave}, 3", "s_cbranch_scc1 L_xset",
                   f"v_mov_b32 {vOne}, 1", "s_mov_b64 exec, 1", f"buffer_store_dword {vOne}, off, {sEx}, {sFs} sc1", "s_mov_b64 exec, -1",
                   f"buffer_load_dword v226, off, {sEx}, {sFr} sc1", "L_xset:"]))
    for t in range(10): f.append(dsread("ds_read_b128", T(1, t), rB, 1024 * t))
    for t in range(10):
        f.append(wait()); f += add(T(0, t), T(1, t))
    f.append(unit([f"s_cmp_lg_u32 {sWave}, 3", "s_cbranch_scc1 L_xok", f"s_mov_b32 {sSpin}, 0x80000", "L_xpoll:",
                   "s_waitcnt vmcnt(0)", f"v_readfirstlane_b32 {sTp}, v226", f"s_sub_u32 {sSpin}, {sSpin}, 1",
                   f"s_cmp_eq_u32 {sSpin}, 0", "s_cbranch_scc1 L_xok", "s_nop 0",
                   f"s_cmp_eq_u32 {sTp}, 1", "s_cbranch_scc1 L_xok",
                   f"buffer_load_dword v226, off, {sEx}, {sFr} sc1", "s_branch L_xpoll", "L_xok:"]))
    f.append(barrier())
    for t in range(10):
        if t % 4 == 0: f.append(salu("s_add_u32", sTp, sExr, 1024 * t))
        f.append(gload(T(1, t), vL16, sEx, sTp, 1024 * (t % 4), cfg.exrflags))
    for t in range(10):
        N, q = divmod(t, 5)
        ac = T(0, t)
        f.append(wait()); f += add(ac, T(1, t))
        for i in range(2): f.append(valu("v_cvt_pk_bf16_f32", ac.sub(i), ac.sub(2 * i), ac.sub(2 * i + 1)))
        f.append(salu("s_add_u32", sTp, sOutb, q * 16 * 2560))
        f.append(gstore(ac.sub(0, 2), oa, sOut, sTp, 32 * N, cfg.outflags))
    return sc, f

def slow_path(nq, cfg):
    o = []
    a = lambda t: o.append(raw(t))
    def spaced(seq):
        for i in seq:
            o.append(i)
            if 'm0' in i.wr: o.append(nop(0))
    dummy = lambda c: ('K', 0, 0)
    o.append(label(f"L_slow_{nq}"))
    a("s_waitcnt vmcnt(0) lgkmcnt(0)"); a("s_barrier")
    a(f"s_mov_b32 {sRedo}, -1")
    a(f"s_cmp_eq_u32 {sHead}, 0")
    a(f"s_cselect_b32 {sT0}, {16 * 393216}, 0"); a(f"s_cselect_b32 {sT1}, {16 * 384}, 0")
    a(f"s_cselect_b32 {sT2}, 0, {16 * 393216}")
    a(f"s_mov_b32 {vR}, {VS[0]}"); a(f"s_mov_b32 {vN}, {VS[1]}"); a(f"s_mov_b32 {vF}, {VS[2]}")
    a(f"s_cselect_b32 {vR}, {VS[1]}, {vR}"); a(f"s_cselect_b32 {vN}, {VS[2]}, {vN}"); a(f"s_cselect_b32 {vF}, {VS[0]}, {vF}")
    a(f"s_sub_u32 {sKend}, {sKend}, {sT0}"); a(f"s_sub_u32 {sVend}, {sVend}, {sT0}"); a(f"s_sub_u32 {sWend}, {sWend}, {sT1}")
    a(f"s_add_u32 {sKoff}, {sK0}, {sT2}"); a(f"s_mov_b32 {sVoff}, {sKoff}")
    a(f"s_mov_b32 {sWoff}, {sW0}"); a(f"s_mov_b32 {sXoff}, {sX0}")
    for i in rebase(vaddr, sVcur, vR): o.append(i)
    for q in range(nq): a(f"v_mov_b32 {Ci(q).sub(0)}, 0xff800000")
    a(f"s_mov_b32 {sLoop}, 16")
    o.append(label(f"L_slowl_{nq}"))
    spaced(job_tile(nq, 'K', kR, dummy, cfg, groups=range(8)))
    a("s_waitcnt vmcnt(0)"); a("s_barrier")
    for j in range(4):
        for s in range(6): o.append(rdK(j, s, dummy))
        a("s_waitcnt lgkmcnt(0)")
        for q in range(nq):
            for s in range(6): o.append(mfma(Sf(q), Kf(j & 1, s), Qf(q, s), 0 if s == 0 else Sf(q)))
        a("s_nop 7")
        for q in range(nq):
            m = Ci(q).sub(0); Sx = Sf(q)
            a(f"v_max3_f32 {m}, {m}, {Sx.sub(0)}, {Sx.sub(1)}"); a(f"v_max3_f32 {m}, {m}, {Sx.sub(2)}, {Sx.sub(3)}")
    a("s_barrier")
    a(f"s_sub_u32 {sLoop}, {sLoop}, 1"); a(f"s_cmp_lg_u32 {sLoop}, 0"); a(f"s_cbranch_scc1 L_slowl_{nq}")
    for r in (kR, kN): spaced(job_tile(nq, 'K', r, dummy, cfg, groups=range(8)))
    a("s_waitcnt vmcnt(0)")
    for r in (vR, vN): spaced(job_tile(nq, 'V', r, dummy, cfg, groups=range(8)))
    a("s_waitcnt vmcnt(0)"); a("s_barrier")
    for s in range(6): o.append(rdK(0, s, dummy))
    a("s_waitcnt lgkmcnt(0)")
    a(f"s_branch L_prol_{nq}")
    return o

def setup(cfg):
    o = []
    a = lambda t: o.append(raw(t))
    a("s_cmp_ge_u32 s2, 256"); a("s_cbranch_scc1 L_end")
    a("s_load_dwordx8 s[24:31], s[0:1], 0")
    a("s_load_dwordx8 s[32:39], s[0:1], 40")
    a("s_load_dwordx2 s[96:97], s[0:1], 32"); a("s_load_dwordx2 s[40:41], s[0:1], 72")
    a("s_load_dwordx4 s[44:47], s[0:1], 80")
    a("s_load_dwordx2 s[42:43], s[0:1], 96")
    if cfg.stamps or cfg.spinat == -1: a("s_memrealtime s[56:57]")
    if cfg.codepf:
        a("s_getpc_b64 s[48:49]"); a("L_pc:")
        a("s_lshr_b32 s50, s2, 3"); a("s_lshl_b32 s50, s50, 6")
        a("v_add_u32 v2, s50, v0"); a("v_lshlrev_b32 v2, 7, v2")
        a("v_min_u32 v2, L_code_end-L_pc-4, v2")
        a("v_mov_b32 v3, s49"); a("v_add_co_u32 v2, vcc, s48, v2"); a("s_nop 1"); a("v_addc_co_u32 v3, vcc, 0, v3, vcc")
        a("v_cmp_gt_u32 vcc, 64, v0"); a("s_and_saveexec_b64 s[48:49], vcc"); a("s_cbranch_execz L_nopf")
        a(f"global_load_dword {vOne}, v[2:3], off")
        a("L_nopf:"); a("s_mov_b64 exec, s[48:49]")
    a("v_lshrrev_b32 v1, 6, v0"); a("v_and_b32 v0, 63, v0")
    a("v_readfirstlane_b32 s3, v1")
    a("s_lshr_b32 s50, s2, 3")
    a("s_bfe_u32 s51, s2, 0x10001"); a("s_lshl_b32 s51, s51, 2"); a("s_lshr_b32 s52, s50, 3"); a("s_add_u32 s51, s51, s52")
    a("s_and_b32 s52, s2, 1"); a("s_lshl_b32 s52, s52, 3"); a("s_and_b32 s53, s50, 7"); a("s_add_u32 s52, s52, s53")
    a("s_bfe_u32 s53, s2, 0x10002")
    a("v_lshrrev_b32 v1, 3, v0"); a("v_and_b32 v2, 7, v0")
    for m in range(3):
        a(f"v_add_u32 v3, {8 * m}, v1")
        a("v_mul_u32_u24 v4, 43, v3"); a("v_lshrrev_b32 v4, 7, v4")
        a("v_and_b32 v5, 6, v4"); a("v_xor_b32 v5, v5, v2"); a("v_lshlrev_b32 v5, 4, v5")
        a("v_lshlrev_b32 v6, 7, v1"); a(f"v_add_u32 {dKV[m]}, v5, v6")
        a("v_mul_u32_u24 v5, 3, v4"); a("v_sub_u32 v5, v3, v5"); a("v_lshlrev_b32 v5, 7, v5")
        a("v_bfe_u32 v6, v4, 1, 1"); a("v_lshlrev_b32 v6, 2, v6"); a("v_xor_b32 v6, v6, v2"); a("v_lshlrev_b32 v6, 4, v6"); a("v_add_u32 v5, v5, v6")
        a("v_lshrrev_b32 v6, 2, v4"); a("v_lshlrev_b32 v6, 4, v6"); a("v_and_b32 v7, 3, v4"); a("v_add_u32 v6, v6, v7")
        a("v_mul_u32_u24 v6, 12288, v6"); a("v_add_u32 v5, v5, v6")
        a(f"v_subrev_u32 {dW[m]}, {1024 * m}, v5")
    a("v_and_b32 v3, 6, v1"); a("v_xor_b32 v3, v3, v2"); a("v_lshlrev_b32 v3, 4, v3")
    a("v_mul_u32_u24 v4, 1280, v1"); a(f"v_add_u32 {dX}, v3, v4")
    a(f"v_lshlrev_b32 {vL16}, 4, v0")
    a("s_waitcnt lgkmcnt(0)")
    if cfg.stamps:
        a(f"v_writelane_b32 {vStamp}, s56, 30"); a("s_getreg_b32 s56, hwreg(HW_REG_XCC_ID)"); a(f"v_writelane_b32 {vStamp}, s56, 31")
    a("s_cmp_eq_u32 s53, 0")
    for i in range(8): a(f"s_cselect_b32 s{24 + i}, s{24 + i}, s{32 + i}")
    a("s_cselect_b32 s96, s96, s40"); a("s_cselect_b32 s97, s97, s41"); a("s_mov_b32 s98, 7864320"); a("s_mov_b32 s99, 0x20000")
    a("s_mul_i32 s48, s51, 307200"); a("s_add_u32 s4, s24, s48"); a("s_addc_u32 s5, s25, 0"); a("s_mov_b32 s6, 307200"); a("s_mov_b32 s7, 0x20000")
    a("s_mov_b32 s8, s30"); a("s_mov_b32 s9, s31"); a("s_mov_b32 s10, 7864320"); a("s_mov_b32 s11, 0x20000")
    a("s_mul_i32 s48, s51, 12582912")
    a("s_add_u32 s12, s26, s48"); a("s_addc_u32 s13, s27, 0"); a("s_mov_b32 s14, 12582912"); a("s_mov_b32 s15, 0x20000")
    a("s_add_u32 s16, s28, s48"); a("s_addc_u32 s17, s29, 0"); a("s_mov_b32 s18, 12582912"); a("s_mov_b32 s19, 0x20000")
    a("s_lshl_b32 s48, s53, 3"); a("s_add_u32 s48, s48, s51"); a("s_mul_i32 s48, s48, 2949120")
    a("s_add_u32 s20, s42, s48"); a("s_addc_u32 s21, s43, 0"); a("s_mov_b32 s22, 2949120"); a("s_mov_b32 s23, 0x20000")
    a("s_mov_b32 s64, s44"); a("s_mov_b32 s65, s45"); a("s_mov_b32 s66, 4915200"); a("s_mov_b32 s67, 0x20000")
    a(f"s_add_u32 s68, s42, {EXOFF}"); a("s_addc_u32 s69, s43, 0"); a(f"s_mov_b32 s70, {STOFF + 0x100000}"); a("s_mov_b32 s71, 0x20000")
    a("s_mov_b32 s72, s46"); a("s_mov_b32 s73, s47"); a("s_mov_b32 s74, 256"); a("s_mov_b32 s75, 0x20000")
    a("s_cmp_ge_u32 s50, 30"); a(f"s_cselect_b32 {sIdle}, 1, 0"); a("s_min_u32 s24, s50, 29")
    a("s_and_b32 s25, s2, 1")
    a("s_mul_i32 s26, s24, 52"); a("s_lshr_b32 s26, s26, 8"); a("s_mul_i32 s27, s26, 5"); a("s_sub_u32 s27, s24, s27")
    a("s_lshl_b32 s26, s26, 1"); a("s_and_b32 s28, s3, 1"); a("s_add_u32 s26, s26, s28")
    a("s_mul_i32 s29, s26, 43"); a("s_lshr_b32 s29, s29, 7"); a("s_mul_i32 s30, s29, 3"); a("s_sub_u32 s26, s26, s30")
    a("s_and_b32 s30, s2, 7"); a(f"s_lshl_b32 {sMyc}, s30, 2"); a(f"s_and_b32 {sCnt}, {sMyc}, 24")
    a("s_and_b32 s30, s2, 6"); a("s_lshl_b32 s30, s30, 1")
    a("s_add_u32 s30, s30, s29"); a("s_mul_i32 s31, s30, 2949120")
    a("s_add_u32 s60, s42, s31"); a("s_addc_u32 s61, s43, 0"); a("s_mov_b32 s62, 2949120"); a("s_mov_b32 s63, 0x20000")
    a("s_lshl_b32 s31, s25, 1"); a("s_lshr_b32 s32, s3, 1"); a("s_add_u32 s31, s31, s32")
    a(f"s_mul_i32 {sOb}, s31, {4 * 92160}"); a(f"s_mul_i32 s33, s26, {5 * 6144}"); a(f"s_add_u32 {sOb}, {sOb}, s33")
    a(f"s_mul_i32 {sWb}, s31, {4 * 192 * 1280}"); a("s_lshl_b32 s33, s27, 8"); a(f"s_add_u32 {sWb}, {sWb}, s33")
    a("s_xor_b32 s33, s28, s25"); a("s_lshl_b32 s33, s33, 7"); a(f"s_add_u32 {sWb}, {sWb}, s33")
    a(f"s_mul_i32 {sLb}, s32, {3 * SL}"); a("s_lshl_b32 s33, s28, 13"); a(f"s_add_u32 {sLb}, {sLb}, s33"); a(f"s_add_u32 {sLb}, {sLb}, 1024")
    a("s_and_b32 s30, s30, 7"); a("s_mul_i32 s30, s30, 240"); a("s_mul_i32 s33, s26, 80"); a("s_add_u32 s30, s30, s33")
    a(f"s_mul_i32 {sOutb}, s30, 2560"); a("s_mul_i32 s33, s53, 1280"); a(f"s_add_u32 {sOutb}, {sOutb}, s33")
    a("s_lshl_b32 s33, s27, 8"); a(f"s_add_u32 {sOutb}, {sOutb}, s33"); a("s_lshl_b32 s33, s31, 6"); a(f"s_add_u32 {sOutb}, {sOutb}, s33")
    a("s_lshl_b32 s33, s2, 2"); a("s_add_u32 s33, s33, s3"); a(f"s_mul_i32 {sExs}, s33, 10240"); a("s_xor_b32 s33, s33, 4"); a(f"s_mul_i32 {sExr}, s33, 10240")
    a("s_lshl_b32 s33, s2, 7"); a(f"s_add_u32 {sFs}, s33, {FLOFF}"); a("s_xor_b32 s33, s33, 128"); a(f"s_add_u32 {sFr}, s33, {FLOFF}")
    a("s_and_b32 s48, s2, 3"); a("s_lshl_b32 s48, s48, 5"); a("s_add_u32 s48, s48, s50"); a(f"s_mul_i32 {sWopf}, s48, 61440")
    if cfg.dbgst: a(f"s_add_u32 {sMyc}, {sMyc}, 128"); a(f"s_add_u32 {sCnt}, {sCnt}, 128")
    a(f"s_mov_b32 {sRedo}, 0")
    a(f"s_mov_b32 {sWave}, s3")
    if cfg.stamps > 1: a("s_mov_b32 s3, 512")
    if cfg.spinat == -1: a("s_mov_b32 s3, s56")
    a(f"s_mul_i32 {sKoff}, s52, 393216"); a(f"s_mul_i32 {sWoff}, s52, 384")
    a(f"s_mul_i32 {sXoff}, {sWave}, {64 * 1280}")
    a(f"s_mul_i32 {sOoff}, s52, 92160"); a(f"s_mul_i32 s48, {sWave}, {4 * 6144}"); a(f"s_add_u32 {sOoff}, {sOoff}, s48")
    a(f"s_mov_b32 {sTp}, s50")
    a(f"s_mov_b32 {kR}, {KS[0]}"); a(f"s_mov_b32 {kN}, {KS[1]}"); a(f"s_mov_b32 {kF}, {KS[2]}")
    a(f"s_mov_b32 {vR}, {VS[0]}"); a(f"s_mov_b32 {vN}, {VS[1]}"); a(f"s_mov_b32 {vF}, {VS[2]}")
    a(f"s_mov_b32 {sVcur}, 0"); a(f"s_mov_b32 {sWcur}, {VS[0]}")
    c = math.log2(math.e) / math.sqrt(192.0)
    a(f"s_mov_b32 s38, {fbits(c)}"); a(f"s_mov_b32 s39, {fbits(c)}")
    a(f"s_mov_b32 {sThr}, {fbits(2.0 ** cfg.thr)}")
    a(f"s_mov_b32 {sHead}, 0")
    a(f"s_cmp_eq_u32 {sWave}, 3"); a("s_cbranch_scc1 L_v3")
    return o

def lds_addr_setup(cfg):
    o = []
    def a(t):
        i = raw(t); i.nosim = True; o.append(i)
    a("v_and_b32 v1, 15, v0")
    a("v_lshrrev_b32 v2, 4, v0")
    a("v_and_b32 v3, 6, v1")
    a("v_xor_b32 v4, v2, v3")
    a("v_lshlrev_b32 v4, 4, v4")
    a("v_mul_u32_u24 v5, 384, v1")
    a(f"v_add_u32 {kaddr[0]}, v5, v4")
    a(f"v_xor_b32 v6, 64, v4"); a(f"v_add_u32 {kaddr[1]}, v5, v6")
    a("v_lshlrev_b32 v5, 7, v1"); a(f"v_add_u32 v5, {sXl[0]}, v5")
    a(f"v_add_u32 {xaddr[0]}, v5, v4"); a(f"v_add_u32 {xaddr[1]}, v5, v6")
    a("v_lshrrev_b32 v1, 2, v0"); a("v_and_b32 v3, 6, v1")
    a("v_bfe_u32 v4, v0, 1, 1"); a("v_xor_b32 v4, v4, v3"); a("v_lshlrev_b32 v4, 4, v4")
    a("v_and_b32 v5, 1, v0"); a("v_lshlrev_b32 v5, 3, v5")
    a("v_mul_u32_u24 v6, 384, v1"); a("v_add_u32 v5, v5, v6")
    for m in range(4):
        a(f"v_xor_b32 v6, {32 * m}, v4"); a(f"v_add_u32 {vaddr[m]}, v5, v6")
    a("v_and_b32 v3, 1, v2"); a(f"v_mul_u32_u24 v3, {12288 + cfg.wshift}, v3"); a(f"v_add_u32 v3, {VS[0]}, v3")
    a("v_lshrrev_b32 v4, 1, v2"); a("v_lshlrev_b32 v4, 2, v4"); a("v_bfe_u32 v5, v0, 2, 2"); a("v_add_u32 v4, v4, v5")
    a("v_mul_u32_u24 v4, 384, v4"); a("v_add_u32 v3, v3, v4")
    a("v_bfe_u32 v4, v0, 3, 1"); a("v_lshlrev_b32 v4, 2, v4"); a("v_and_b32 v5, 3, v0"); a("v_xor_b32 v4, v4, v5"); a("v_lshlrev_b32 v4, 4, v4")
    a(f"v_add_u32 {waddr[0]}, v3, v4"); a("v_xor_b32 v4, 64, v4"); a(f"v_add_u32 {waddr[1]}, v3, v4")
    return o

def setup_variant(nq, cfg):
    o = []
    def a(t):
        i = raw(t); i.nosim = True; o.append(i)
    if nq == 4:
        a(f"s_mul_i32 {sGrp}, {sWave}, 3072")
        a(f"s_and_b32 {sT0}, {sWave}, 1"); a(f"s_lshl_b32 {sT0}, {sT0}, 2"); a(f"s_lshr_b32 {sT1}, {sWave}, 1"); a(f"s_lshl_b32 {sT1}, {sT1}, 5")
        a(f"s_add_u32 {sT0}, {sT0}, {sT1}"); a(f"s_mul_i32 {sT0}, {sT0}, 12288"); a(f"s_add_u32 {sWoff}, {sWoff}, {sT0}")
        a(f"s_lshl_b32 {sT0}, {sWave}, 13"); a(f"s_add_u32 {sXl[0]}, {sT0}, {KS[1]}"); a(f"s_add_u32 {sXl[1]}, {sT0}, {KS[2]}")
    else:
        a(f"s_mov_b32 {sXl[0]}, {EB}"); a(f"s_mov_b32 {sXl[1]}, {EB + 6144}")
        a("v_mov_b32 v1, 0"); a("v_lshlrev_b32 v2, 2, v0"); a("s_mov_b64 exec, 15"); a(f"buffer_store_dword v1, v2, {sEx}, {sFs} offen sc1"); a("s_mov_b64 exec, -1")
    a(f"s_add_u32 {sKend}, {sKoff}, {16 * 3072 * kv_map(cfg)[0]}"); a(f"s_mov_b32 {sVend}, {sKend}")
    a(f"s_add_u32 {sWend}, {sWoff}, 7864320"); a(f"s_add_u32 {sXend}, {sXoff}, 1280")
    if cfg.rotkv:
        a(f"s_mul_i32 {sT0}, s2, 5"); a(f"s_lshr_b32 {sT1}, s2, 4"); a(f"s_add_u32 {sT0}, {sT0}, {sT1}"); a(f"s_and_b32 {sT0}, {sT0}, 15")
        a(f"s_mul_i32 {sT0}, {sT0}, {3072 * kv_map(cfg)[0]}"); a(f"s_add_u32 {sKoff}, {sKoff}, {sT0}")
    if cfg.rotq == 1:
        a(f"s_lshr_b32 {sT0}, {sTp}, 3"); a(f"s_lshl_b32 {sT0}, {sT0}, 1"); a(f"s_and_b32 {sT1}, {sTp}, 7"); a(f"s_add_u32 {sT0}, {sT0}, {sT1}")
        a(f"s_mul_i32 {sT0}, {sT0}, 5"); a(f"s_lshr_b32 {sT0}, {sT0}, 2")
        a(f"s_cmp_ge_u32 {sT0}, 10"); a(f"s_cselect_b32 {sT1}, 10, 0"); a(f"s_sub_u32 {sT0}, {sT0}, {sT1}")
    if cfg.rotq == 2:
        a(f"s_lshr_b32 {sT0}, {sTp}, 3"); a(f"s_xor_b32 {sT0}, {sT0}, {sTp}"); a(f"s_and_b32 {sT0}, {sT0}, 1"); a(f"s_mul_i32 {sT0}, {sT0}, 5")
    if cfg.rotq:
        a(f"s_mul_i32 {sRw}, {sT0}, 786432"); a(f"s_lshl_b32 {sRx}, {sT0}, 7")
    a(f"s_mov_b32 {sVoff}, {sKoff}")
    a(f"s_mov_b32 {sK0}, {sKoff}"); a(f"s_mov_b32 {sW0}, {sWoff}"); a(f"s_mov_b32 {sX0}, {sXoff}")
    def spaced(seq):
        for i in seq:
            o.append(i)
            if 'm0' in i.wr: o.append(nop(0))
    spaced(job_x(nq, 0, 0, cfg)); spaced(job_tile(nq, 'W', vR, absT('W', 0, 0), cfg))
    o.extend(lds_addr_setup(cfg))
    spaced(job_x(nq, 1, 0, cfg)); spaced(job_tile(nq, 'W', vN, absT('W', 0, 1), cfg))
    o.append(wait(need_vm=lambda c: [('x', 0, 0), ('W', 0, 0)], free=False)); o.append(barrier())
    dep = []
    for q in range(nq):
        for u in range(2):
            r = rdX(nq, 0, 0, q, u); dep += r.wr; o.append(r)
    for T in range(2):
        for (u, e) in UE: o.append(rdW(T, u, e, absT('W', 0, 0)))
    o.append(wait())
    spaced(job_x(nq, 2, 0, cfg, dep))
    o.append(wait())
    return o

def stamp(cfg, idx):
    if cfg.spind >= 0 and idx in (cfg.spind - 1, cfg.spind):
        return [raw("s_memrealtime s[56:57]"), raw("s_waitcnt lgkmcnt(0)"), raw(("s_add_u32" if idx == cfg.spind else "s_sub_u32") + " s3, s3, s56")]
    if cfg.spinat == idx: return [raw("s_memrealtime s[56:57]"), raw("s_waitcnt lgkmcnt(0)"), raw("s_mov_b32 s3, s56")]
    if not cfg.stamps: return []
    return [raw("s_memrealtime s[56:57]"), raw("s_memtime s[58:59]"), raw("s_waitcnt lgkmcnt(0)"),
            raw(f"v_writelane_b32 {vStamp}, s56, {2 * idx}"), raw(f"v_writelane_b32 {vStamp}, s58, {2 * idx + 1}")]
def finish(cfg, idx):
    e = []
    if cfg.stamps:
        e += [raw("s_waitcnt vmcnt(0)")] + stamp(cfg, idx)
        e += [raw(f"s_lshl_b32 {sTp}, s2, 2"), raw(f"s_add_u32 {sTp}, {sTp}, {sWave}"), raw(f"s_lshl_b32 {sTp}, {sTp}, 8"),
              raw(f"s_add_u32 {sTp}, {sTp}, {STOFF}"), raw(f"v_lshrrev_b32 v0, 2, {vL16}"),
              raw(f"buffer_store_dword {vStamp}, v0, {sEx}, {sTp} offen")]
        if cfg.dbgst == 2 and idx == 7:
            e += [raw("s_cmp_ge_u32 s2, 16"), raw("s_cbranch_scc1 L_nox"), raw("s_getreg_b32 s56, hwreg(HW_REG_XCC_ID)"), raw("s_add_u32 s56, s56, 100"),
                  raw("v_mov_b32 v1, s56"), raw("s_lshl_b32 s57, s2, 2"), raw(f"buffer_store_dword v1, off, {sDbg}, s57"), raw("L_nox:")]
        if cfg.dbgst == 1 and idx == 7:
            e += [raw(f"v_not_b32 v1, {vStamp}"), raw(f"v_cmp_eq_u32 vcc, 480, {vL16}"), raw("s_nop 1"), raw(f"v_cndmask_b32 v1, {vStamp}, v1, vcc"),
                  raw(f"v_lshrrev_b32 v0, 3, {vL16}"), raw("s_mov_b32 exec_lo, 0x40005555"), raw("s_mov_b32 exec_hi, 0"),
                  raw(f"buffer_atomic_umax v1, v0, {sDbg}, 0 offen sc1"), raw("s_mov_b64 exec, -1")]
    if 7 in (cfg.spinat, cfg.spind) and idx == 7: e += [raw("s_waitcnt vmcnt(0)")] + stamp(cfg, 7)
    if cfg.spinat > -2 and idx == 7:
        e += [raw("L_spin:"), raw("s_sleep 4"), raw("s_memrealtime s[56:57]"), raw("s_waitcnt lgkmcnt(0)"), raw("s_sub_u32 s56, s56, s3"),
              raw(f"s_cmp_lt_u32 s56, {cfg.spinT}"), raw("s_cbranch_scc1 L_spin")]
    return e + [raw("s_endpgm")]

def variant(nq, cfg, common):
    sfx = f"_{nq}"
    st = lambda i: stamp(cfg, i)
    su = setup_variant(nq, cfg) + st(0)
    q1 = qproj(nq, cfg, False); q1.add_wait_sites()
    q2 = qproj(nq, cfg, True); q2.add_wait_sites()
    cp = conv_prologue(nq, cfg)
    jK = lambda: job_tile(nq, 'K', kF, tagK(3), cfg, groups=range(8))
    jV = lambda: job_tile(nq, 'V', vF, tagV(2), cfg, groups=range(4, 8))
    jL = lambda: [job_tile(nq, 'V', vF, tagV(3), cfg, groups=range(4), adv=False)]
    i0 = attn_iter(nq, 0, cfg, first_pv=True, jobs=[jV(), jK()], late=jL())
    i1 = attn_iter(nq, 1, cfg, jobs=[jV(), jK()], late=jL())
    i2 = attn_iter(nq, 0, cfg, jobs=[jV(), jK()], late=jL())
    two = nq == 4 and cfg.twoloops
    if two:
        j1, j2 = i1, i2
        i1 = attn_iter(nq, 1, cfg, jobs=[jV(), jK()], late=jL(), gentle=True)
        i2 = attn_iter(nq, 0, cfg, jobs=[jV(), jK()], late=jL(), gentle=True)
        j2.place(salu("s_sub_u32", sLoop, sLoop, 1), 20, 60)
    fix = []
    for o_, d_ in ((sKoff, 16 * 393216), (sKend, 16 * 393216), (sVoff, 16 * 393216), (sVend, 16 * 393216), (sWoff, 16 * 384), (sWend, 16 * 384)):
        if nq == 3 or o_ in (sWoff, sWend): fix.append(salu("s_add_u32", o_, o_, d_))
    if cfg.rotq: fix += [salu("s_add_u32", sWoff, sWoff, sRw), salu("s_add_u32", sXoff, sXoff, sRx)]
    a13 = attn_iter(nq, 1, cfg, jobs=[jV(), fix, job_x(nq, 0, 1, cfg)])
    a14 = attn_iter(nq, 0, cfg, jobs=[job_tile(nq, 'W', vF, absT('W', 1, 0), cfg), job_x(nq, 1, 1, cfg)], next_k=False, k_rot=False)
    a15 = attn_last(nq, cfg, 'Q')
    pf = []
    if cfg.wopf and nq == 3:
        pf.append(valu("v_lshlrev_b32", V(243), 3, vL16))
        for i in range(8):
            pf.append(gload(V(244), V(243), sWo, sWopf, 0, "", op="buffer_load_dword"))
            pf[-1].wr = []
            pf.append(salu("s_add_u32", sWopf, sWopf, 8192 if i < 6 else 4096) if i < 7 else salu("s_sub_u32", sWopf, sWopf, 6 * 8192 + 4096))
    b13 = attn_iter(nq, 1, cfg, jobs=[jV(), pf], late=[calc_raddr()])
    b14 = attn_iter(nq, 0, cfg, jobs=[([poll_issue(0)] if nq == 3 else []), job_u(0, cfg)], next_k=False, k_rot=False)
    if nq == 3:
        gb = 12 * 9 - 1
        b14.put(gb, wait()); b14.put(gb, poll_check(0))
    b15 = attn_last(nq, cfg, 'P')
    pa = p_chunks(0, CS, nq, cfg)
    ini = [salu("s_lshr_b32", sJmp, sBad.sub(0), 1), salu("s_sub_u32", sJmp, 4, sJmp),
           salu("s_and_b32", sStol, S(2), 1), salu("s_lshl_b32", sStol, sStol, 4), salu("s_sub_u32", sStol, 11, sStol),
           smov(sA18, 19), smov(sHn, 2), salu("s_add_u32", sOn, sOb, 2 * 92160), salu("s_add_u32", sWn, sWb, 2 * 192 * 1280)]
    ini[1].simfn = lambda st: st.__setitem__(str(sJmp), st['jmp'])
    ini[4].simfn = lambda st: st.__setitem__(str(sStol), 11)
    ini[5].simfn = lambda st: st.__setitem__(str(sA18), st['after18'])
    seq_after(pa, ini[:2], 0, 7); seq_after(pa, ini[2:] + next_head(), 400, 470)
    if cfg.ctouch and nq == 3:
        i1.put(10, code_touch(["L_tail1_4", "L_tail1_3"], 144, guard=(sLoop, 1), alt=["L_tail2_4", "L_tail2_3"]))
        q2.put(72 * 2 + 5, code_touch(["L_tail1_4+16384", "L_tail1_3+16384"], 144))
        q2.put(72 * 8 + 5, code_touch(["L_head_4", "L_head_3"] + (["L_tail2_4"] if cfg.twoloops else []), 144))
        if cfg.ctouch > 1: q1.put(72 * 6 + 5, code_touch(["L_head_4", "L_head_3"], 144))
        pa.put(80 * 3 + 9, code_touch(["L_pcommon"], 246))
    i0.place(smov(sLoop, 6), 20, 60)
    i2.place(salu("s_sub_u32", sLoop, sLoop, 1), 20, 60)
    for s in (i0, i1, i2, a13, a14, a15, b13, b14, b15) + ((j1, j2) if two else ()):
        s.add_wait_sites()
        for g_, ins_ in getattr(s, 'extra', []):
            for i_ in ins_: s.put(g_, i_)
    loopend = [scmp("s_cmp_lg_u32", sLoop, 0), raw(f"s_cbranch_scc1 L_loop{sfx}")]
    loopend2 = [scmp("s_cmp_lg_u32", sLoop, 0), raw(f"s_cbranch_scc1 L_tail2{sfx}")]
    headbr = [scmp("s_cmp_lg_u32", sHead, 0), raw(f"s_cbranch_scc1 L_tail2{sfx}")]
    back = [smov(sHead, 1), raw(f"s_branch L_head{sfx}")]
    idlebr = [scmp("s_cmp_lg_u32", sIdle, 0), raw(f"s_cbranch_scc1 L_idle{sfx}"), wait()]
    idle = [label(f"L_idle{sfx}")]
    i = 0
    for s in range(6):
        for q in range(nq):
            idle += epi_block(q, s, TMP[i & 1], cfg); i += 1
    idle += [raw("s_waitcnt vmcnt(0)"), barrier()]
    if nq == 3: idle += [salu("s_add_u32", sSig, sMyc, 64), signal_add(sSig, False)]
    idle += finish(cfg, 8)
    L = lambda s: s.linear()
    s1, s3, s4, s5 = st(1), st(2), st(3), st(4)
    jump = [raw("s_branch L_pcommon")] if nq == 3 else []
    code = su + L(q1) + s1 + [label(f"L_head{sfx}")] + cp + L(i0) + (headbr if two else []) + [raw(".p2align 3", 'L', states=0), label(f"L_loop{sfx}")] + L(i1) + L(i2) + loopend + ([] if two else headbr) \
        + [label(f"L_tail1{sfx}")] + L(a13) + L(a14) + L(a15) + s3 + L(q2) + s4 + back + slow_path(nq, cfg) + idle \
        + [raw(".p2align 12", 'L', states=0), label(f"L_tail2{sfx}")] + (L(j1) + L(j2) + loopend2 if two else []) + L(b13) + L(b14) + L(b15) + s5 + idlebr + L(pa) + jump
    tr = []
    def add(ins, **c): tr.extend((i, c) for i in ins)
    add(su, h=0, t=-9); add(L(q1) + s1, h=0, t=-5)
    for h in range(2):
        add(cp, h=h, t=-1); add(L(i0), h=h, t=0)
        for t in range(1, 13, 2):
            if two and t == 1: add(headbr, h=h, t=0)
            if two and h == 1: add(L(j1), h=h, t=t); add(L(j2), h=h, t=t + 1); add(loopend2, h=h, t=t + 1)
            else: add(L(i1), h=h, t=t); add(L(i2), h=h, t=t + 1); add(loopend, h=h, t=t + 1)
        if not two: add(headbr, h=h, t=12)
        if h == 0:
            add(L(a13), h=0, t=13); add(L(a14), h=0, t=14); add(L(a15) + s3, h=0, t=15); add(L(q2) + s4, h=1, t=-5); add(back, h=1, t=-5)
        else:
            add(L(b13), h=1, t=13); add(L(b14), h=1, t=14); add(L(b15) + s5, h=1, t=15)
    tr_idle = tr + [(i, dict(h=1, t=16)) for i in idlebr[:2] + idle]
    trs = []
    cpre, cloop, cpost = common
    for heads in ([0, 1, 2, 3, 16, 17, 18, 19], [0, 1, 2, 16, 17, 18, 19], [0, 1, 2, 3, 16, 17, 18, 11, 19]):
        t2 = [(i, dict(c, heads=heads)) for i, c in tr]
        t2 += [(i, dict(h=1, t=16, heads=heads)) for i in idlebr + L(pa) + jump + cpre]
        for p in range(len(heads) - 3): t2 += [(i, dict(h=1, t=16, heads=heads, dc=3 * p)) for i in cloop]
        t2 += [(i, dict(h=1, t=16, heads=heads, dc=3 * (len(heads) - 8))) for i in cpost]
        trs.append(t2)
    tr = trs
    info = dict(q1=q1, q2=q2, i0=i0, i1=i1, i2=i2, a13=a13, a14=a14, a15=a15, b13=b13, b14=b14, b15=b15, pa=pa)
    return code, tr, tr_idle, info

def sim_variant(nq, tr, cfg, jmp, a18):
    ok = True
    for w in ([0, 1, 2] if nq == 4 else [3]):
        h0 = 5
        grp = w * 3072 if nq == 4 else 0
        k0 = [0, 4, 32, 0][w]
        ggrp = kv_map(cfg)[1][w] * 3072 if nq == 4 else 0
        kst = 3072 * kv_map(cfg)[0]
        rk = 7 if cfg.rotkv else 0; rq = 3 if cfg.rotq else 0
        init = {'wave': w, 'jmp': jmp, 'after18': a18, 'h0': h0, 'rk': rk, 'rq': rq, str(kR): KS[0], str(kN): KS[1], str(kF): KS[2], str(vR): VS[0], str(vN): VS[1], str(vF): VS[2],
                str(sVcur): 0, str(sWcur): VS[0], str(sKoff): h0 * 393216 + ggrp, str(sVoff): h0 * 393216 + ggrp, str(sWoff): h0 * 384 + k0 * 12288,
                str(sXoff): w * 64 * 1280, str(sOoff): h0 * 92160 + w * 4 * 6144, str(sGrp): grp,
                str(sXl[0]): (KS[1] + w * 8192 if nq == 4 else EB), str(sXl[1]): (KS[2] + w * 8192 if nq == 4 else EB + 6144),
                str(sOb): 1000000, str(sWb): 2000000, str(sLb): 3000}
        init[str(sKend)] = init[str(sKoff)] + 16 * kst; init[str(sVend)] = init[str(sKend)]
        init[str(sWend)] = init[str(sWoff)] + 7864320; init[str(sXend)] = init[str(sXoff)] + 1280
        init[str(sKoff)] += rk * kst; init[str(sVoff)] += rk * kst; init[str(sRw)] = rq * 786432; init[str(sRx)] = rq * 128
        for r in kaddr + vaddr: init[str(r)] = 0
        for r in waddr: init[str(r)] = VS[0]
        if not cfg.fake and not cfg.pfake: ok = sim_scalar(tr, init, f"nq{nq} w{w}") and ok
    return ok

def build(cfg, name):
    su = setup(cfg)
    pl = p_chunks(CS, CS + 3, None, cfg, loop=True)
    pb = p_chunks(NCH - 3, NCH - 2, None, cfg)
    if cfg.ctouch: pl.put(89, code_touch(["L_ptail"], 246, guard=(sHc, 17)))
    pt, fin = p_tail(cfg)
    cpre = [label("L_pcommon")] + stamp(cfg, 5) + [raw(".p2align 3", 'L', states=0), label("L_ploop")]
    cloop = pl.linear() + [scmp("s_cmp_lg_u32", sHc, 19), raw("s_cbranch_scc1 L_ploop")]
    cpost = [label("L_ptail")] + pb.linear() + pt.linear() + stamp(cfg, 6) + fin + finish(cfg, 7)
    parts = (cpre, cloop, cpost)
    common = cpre + cloop + cpost
    c4, t4, ti4, inf4 = variant(4, cfg, parts)
    c3, t3, ti3, inf3 = variant(3, cfg, parts)
    alltr = [("nq4", t) for t in t4] + [("nq3", t) for t in t3] + [("idle4", ti4), ("idle3", ti3)]
    for rep in range(2):
        for n, t in alltr: derive_waits(t, n)
    ok = True
    for n, t in (("nq4", t4[0]), ("nq3", t3[0]), ("idle4", ti4), ("idle3", ti3)): ok = check_hazards(t, n) and ok
    ok = check_seqs(c4 + common) and check_seqs(c3) and ok
    for k, (jmp, a18) in enumerate(((4, 19), (3, 19), (4, 11))):
        ok = sim_variant(4, t4[k], cfg, jmp, a18) and sim_variant(3, t3[k], cfg, jmp, a18) and ok
        ok = check_lds({4: t4[k], 3: t3[k]}) and ok
    for n, inf in (("nq4", inf4), ("nq3", inf3)): print(n, "model cycles:", {k: s.cycles() for k, s in inf.items()})
    print("common", pl.cycles(), pb.cycles(), pt.cycles())
    assert ok
    lines = [f".globl {name}", ".p2align 8", f".type {name},@function", f"{name}:"]
    lines += emit(su) + emit(c4) + emit(common) + ["L_end:", "s_endpgm", "L_v3:"] + emit(c3)
    out = []
    for l in lines: out += l.split("\n")
    return out

if __name__ == "__main__":
    print(len(build(Cfg(), "k_kernel")), "lines")
```

```python
import math, struct
from asmlib import *

SL = 24832
KS = [0, SL, 2 * SL]
VS = [3 * SL, 4 * SL, 5 * SL]
EB = 6 * SL
FLAG = EB + 12288
LDS_BYTES = 163840

sX, sW, sK, sV, sO = S(4, 4), S(8, 4), S(12, 4), S(16, 4), S(20, 4)
sWave = S(24)
kR, kN, kF = S(25), S(26), S(27)
vR, vN, vF = S(28), S(29), S(30)
sKoff, sVoff, sWoff, sXoff = S(31), S(32), S(33), S(34)
sLoop, sHead = S(35), S(36)
sThr = S(37)
sC2 = S(38, 2)
sGrp = S(40)
sT0, sT1, sT2, sT3, sT4 = S(41), S(42), S(43), S(47), S(55)
sXl = [S(44), S(45)]
sOoff = S(46)
sWcur, sVcur = S(48), S(49)
sTo = S(50)
sTx = S(51)
sBad = S(52, 2)
sWopf = S(54)
sTs = S(56, 4)
sOr, sOut, sEx, sDbg = S(60, 4), S(64, 4), S(68, 4), S(72, 4)
sOb, sWb, sLb, sOutb = S(76), S(77), S(78), S(79)
sExs, sExr, sFs, sFr = S(80), S(81), S(82), S(83)
sRw, sRx = S(0), S(1)
sSig, sCnt, sMyc = S(84), S(85), S(86)
sRedo, sIdle = S(87), S(88)
sK0, sW0, sX0 = S(89), S(90), S(91)
sKend, sVend, sWend, sXend = S(92), S(93), S(94), S(95)
sWo = S(96, 4)
sSpin = S(100)
sTp = S(101)
sHc, sHn, sJmp, sStol = S(25), S(26), S(27), S(28)
sOc, sWc, sOn, sWn = S(29), S(30), S(31), S(32)
sA18 = S(33)
OOB = 0x7fff0000
EXOFF = 0x3000000
FLOFF = 0xC00000
STOFF = 0x1000000

def blk(q, s): return q * 6 + s
def Qf(q, s): return V(8 * blk(q, s), 4)
def QACC(T, q): return V(8 * blk(q, T >> 1) + 4 * (T & 1), 4)
def U(i): return V(8 * i + 4, 4)
def Pf(par, q, u): return U(par * 8 + q * 2 + u)
def Sf(i): return U(16 + (i & 3))
def Ci(q): return U(20 + q)
def VB(b, u, e=None):
    return V(192 + 8 * b + 4 * u, 4) if e is None else V(192 + 8 * b + 4 * u + 2 * e, 2)
TMP = [V(216, 8), V(224, 8)]
def Lq(q): return V(232 + q)
kaddr = [V(236), V(237)]
vaddr = [V(238), V(239), V(240), V(241)]
waddr = [V(242), V(243)]
xaddr = [V(244), V(245)]
dKV = [V(246), V(247), V(248)]
dW = [V(249), V(250), V(251)]
dX = V(252)
vL16 = V(253)
vt0, vt1 = V(224), V(225)
vOne = V(254)
vStamp = V(255)
raddr = [V(249), V(250), V(251), V(242)]
def PACC(N, q): return V(4 * (N * 5 + q), 4)
def OF(b, q, u):
    i = 2 * q + u
    if b == 0: return A(192 + 4 * i, 4)
    if b == 1: return A(232 + 4 * i, 4) if i < 6 else U(20 + i - 6)
    return V(8 * (20 + i), 4) if i < 4 else A(4 * (i - 4), 4)
def Oacc(T, q): return A(4 * (T * 4 + q), 4)
def Lacc(q): return A(240 + 4 * q, 4)
ONES = V(232, 4)
def Kf(b, s): return A(192 + 24 * b + 4 * s, 4)
def Xf(par, q, u): return A(192 + 32 * par + 8 * q + 4 * u, 4)

def fbits(x): return "0x%08x" % struct.unpack("<I", struct.pack("<f", x))[0]

class Cfg:
    wshift = 8
    kvflags = "nt"
    wflags = ""
    xflags = ""
    oflags = "sc1"
    orflags = "sc1"
    woflags = ""
    pubchunk = 3
    epist = 9
    balance = 1
    midspin = -1
    exflags = "sc1"
    exrflags = "sc1"
    spinT = 20000
    spind = -1
    spinat = -2
    twoloops = 1
    gentle = 4
    pfake = 0
    pclus = 0
    prd = 1
    pskip = 0
    markchunk = 0
    xend = 120
    ctouch = 2
    kvperm = 1
    lmfma = 1
    dbgst = 0
    xpace = 0
    l2pf = 0
    l2n = 3
    l2tot = 12
    l2fl = ""
    ntlate = 99
    outflags = ""
    thr = 40
    stamps = False
    fake = 0
    nostore = 0
    w3all = 1
    rotkv = 1
    rotq = 1
    codepf = 1
    wopf = 1

def tagK(dn): return lambda c: ('K', c['h'], c['t'] + dn)
def tagV(dn): return lambda c: ('V', c['h'], c['t'] + dn)
def absT(kind, dh, n): return lambda c: (kind, c['h'] + dh, n)
def slot_of(tile, nq):
    k, h, n = tile
    if k == 'K': return ('k', n % 3)
    if k == 'x': return ('k', 1 + n % 2) if nq == 4 else ('e', n % 2)
    if k == 'W': return ('v', (h * 26 + n) % 3)
    if k == 'V': return ('v', (h * 26 + 10 + n) % 3)
    if k == 'U': return ('kv', (n + 1) % 3)

def kv_map(cfg):
    return {0: (8, list(range(8))),
            1: (1, [0, 32, 64, 96, 16, 48, 80, 112]),
            2: (2, [0, 32, 64, 96, 1, 33, 65, 97]),
            3: (4, [0, 64, 1, 65, 2, 66, 3, 67])}[cfg.kvperm]
def slot_base(slot):
    return {'k': KS, 'v': VS, 'e': [EB, EB + 6144]}[slot[0]][slot[1]]
def exp_dma(ins, tag, nq, soff, imm, idx, cfg):
    def f(c, st):
        k, h, n = tag(c); w = st['wave']; base = slot_base(slot_of((k, h, n), nq)); hh = st['h0'] + 16 * h
        if k == 'x':
            el = base + (w * 8192 if nq == 4 else 0) + idx * 1024
            eg = w * 64 * 1280 + 128 * ((n + st['rq'] * h) % 10) + idx * 10240
        else:
            i = idx + (3 * w if nq == 4 else 0); mm = i // 3
            n = (n + st['rq'] * h) % 10 if k == 'W' else (n + st['rk']) % 16
            el = base + i * 1024
            if k == 'W':
                el += cfg.wshift if mm >= 4 else 0
                eg = hh * 384 + (64 * n + 32 * ((mm & 3) >> 1) + 4 * (mm & 1) + 8 * (mm >> 2)) * 12288 + (i % 3) * 1024
            else: eg = hh * 393216 + (n * kv_map(cfg)[0] + kv_map(cfg)[1][mm]) * 3072 + (i % 3) * 1024
        gl, gg = st.get('m0'), st.get(str(soff))
        if gl is None or gg is None or gl + imm != el or gg + imm != eg: return f"lds {gl}+{imm} vs {el}; glob {gg}+{imm} vs {eg} tile {(k, h, n)}"
    ins.expect = f
    return ins
def exp_rd(ins, addr, tag):
    def f(c, st):
        base = slot_base(slot_of(tag(c), 4))
        if st.get(str(addr)) != base: return f"base {st.get(str(addr))} vs {base} tile {tag(c)}"
    ins.expect = f
    return ins

def advance(off, end, step, span, on=True):
    o = [salu("s_add_u32", off, off, step)]
    if on:
        i = Ins(f"s_cmp_eq_u32 {off}, {end}\ns_cselect_b32 {sT4}, {span}, 0", 'S', rd=off.regs() + end.regs(), wr=['scc'] + sT4.regs(), states=2)
        i.cost = 2
        i.simfn = lambda st: st.__setitem__(str(sT4), span if st[str(off)] == st[str(end)] else 0)
        o += [i, salu("s_sub_u32", off, off, sT4)]
    return o

def job_tile(nq, kind, slotreg, tag, cfg, groups=None, adv=True, flo=None):
    srd, off, end, addr, fl = {'K': (sK, sKoff, sKend, dKV, cfg.kvflags), 'V': (sV, sVoff, sVend, dKV, cfg.kvflags),
                               'W': (sW, sWoff, sWend, dW, cfg.wflags)}[kind]
    sl = lambda c: slot_of(tag(c), nq)
    if flo is not None: fl = flo
    out = []
    if nq == 4:
        if groups is None:
            out.append(salu("s_add_u32", 'm0', slotreg, sGrp))
            for m in range(3): out.append(exp_dma(dma(addr[m], srd, off, 1024 * m, fl, tag=tag, slot=sl), tag, nq, off, 1024 * m, m, cfg))
    else:
        for mm in (range(3, 8) if groups is None else groups):
            if kind == 'W':
                k0 = 32 * ((mm & 3) >> 1) + 4 * (mm & 1) + 8 * (mm >> 2)
                go = k0 * 12288; lo = mm * 3072 + (cfg.wshift if mm >= 4 else 0)
            else:
                lo = mm * 3072; go = kv_map(cfg)[1][mm] * 3072
            out.append(salu("s_add_u32", 'm0', slotreg, lo))
            out.append(salu("s_add_u32", sT0, off, go))
            for m in range(3): out.append(exp_dma(dma(addr[m], srd, sT0, 1024 * m, fl, tag=tag, slot=sl), tag, nq, sT0, 1024 * m, 3 * mm + m, cfg))
    if adv and (nq == 3 or kind == 'W'):
        step = 786432 if kind == 'W' else 3072 * kv_map(cfg)[0]
        if cfg.fake and (kind != 'W' or cfg.fake > 1): step = 0
        out += advance(off, end, step, 7864320 if kind == 'W' else 16 * 3072 * kv_map(cfg)[0])
    return out

def job_x(nq, n, dh, cfg, dep=()):
    tag = absT('x', dh, n); sl = lambda c: slot_of(tag(c), nq)
    out = []
    for i in range(2 * nq):
        if i % 4 == 0: out.append(salu("s_add_u32", 'm0', sXl[n & 1], 1024 * i))
        out.append(salu("s_add_u32", sTx, sXoff, 10240 * i - 1024 * (i % 4)))
        d = dma(dX, sX, sTx, 1024 * (i % 4), 'nt' if n >= cfg.ntlate else cfg.xflags, tag=tag, slot=sl, private=True)
        exp_dma(d, tag, nq, sTx, 1024 * (i % 4), i, cfg)
        if i == 0: d.rd += list(dep)
        out.append(d)
    out += advance(sXoff, sXend, 0 if cfg.fake > 1 else 128, 1280)
    return out

def bstamp(sc, gw, gl):
    sc.put(gw, raw("s_memrealtime s[56:57]"), front=True)
    sc.put(gl, unit([f"v_cmp_eq_u32 vcc, s3, {vL16}", f"v_mov_b32 {vOne}, s56", "s_add_u32 s3, s3, 16", f"v_cndmask_b32 {vStamp}, {vStamp}, {vOne}, vcc"], 'V', cost=3))
def code_touch(targets, regs, guard=None, alt=None):
    lo, hi_, dummy = V(regs), V(regs + 1), V(regs + 2)
    _uid[0] += 1; n0 = _uid[0]
    l = [f"s_cmp_lg_u32 {guard[0]}, {guard[1]}", f"s_cbranch_scc1 L_cts{n0}"] if guard else []
    def one(target):
        _uid[0] += 1; n = _uid[0]
        return ["s_getpc_b64 s[58:59]", f"L_ct{n}:", f"s_add_u32 s58, s58, {target}-L_ct{n}", f"s_addc_u32 s59, s59, 0-(({target}-L_ct{n})>>63)",
                "s_and_b32 s58, s58, 0xfffff000",
                f"v_lshrrev_b32 {lo}, 7, {vL16}", f"v_lshlrev_b32 {lo}, 12, {lo}", f"v_and_b32 {hi_}, 0x70, {vL16}", f"v_lshl_add_u32 {lo}, {hi_}, 3, {lo}",
                f"v_min_u32 {lo}, L_code_end-({target})-4, {lo}",
                f"v_mov_b32 {hi_}, s59", f"v_add_co_u32 {lo}, vcc, s58, {lo}", "s_nop 1", f"v_addc_co_u32 {hi_}, vcc, 0, {hi_}, vcc",
                f"global_load_dword {dummy}, v[{lo.a}:{hi_.a}], off"]
    if alt: l += [f"s_cmp_lg_u32 {sHead}, 0", f"s_cbranch_scc1 L_cta{n0}"]
    for t in targets: l += one(t)
    if alt:
        l += [f"s_branch L_cts{n0}", f"L_cta{n0}:"]
        for t in alt: l += one(t)
    l.append(f"L_cts{n0}:")
    u = unit(l, 'S', cost=2 if guard else 18 * len(targets), wr=['scc', 'vcc'])
    u.states = 1
    return u
def lchain(q, par, first):
    o = [mfma(Lacc(q), ONES, Pf(par, q, u), 0 if (first and u == 0) else Lacc(q)) for u in range(2)]
    for i in o: i.cost = 4
    return o

def seq_after(sc, seq, lo, hi, even=False):
    seq = list(seq)
    SEQS.append(seq)
    hi = min(hi, len(sc.g) - 1)
    n = len(seq)
    nx = sum(1 for i in seq if i.kind == 'X'); kx = 0
    g = lo; prev = None; pg = None
    for k, ins in enumerate(seq):
        dl = max(g, min(hi, lo + ((k + 1) * (hi - lo + 1) + n - 1) // n - 1))
        if not even: dl = max(g, min(hi, hi - (n - 1 - k) // 2))
        g1 = g
        if even and ins.kind == 'X': g1 = max(g, min(dl, lo + (kx * (hi - lo + 1)) // nx))
        same_bad = prev is not None and ((prev.kind in 'VE' and ins.kind not in 'VE') or ('m0' in prev.wr and ins.dma))
        if same_bad and g1 == pg:
            if g1 + 1 <= hi: g1 += 1; dl = max(dl, g1)
            else:
                if 'm0' in prev.wr: sc.g[g1].append(nop(0))
                sc.g[g1].append(ins); prev = ins; pg = g1
                for rest in seq[k + 1:]:
                    if 'm0' in prev.wr and rest.dma: sc.g[g1].append(nop(0))
                    sc.g[g1].append(rest); prev = rest
                return g1
        r = sc.place(ins, g1, dl, force=True)
        if ins.kind == 'X': kx += 1
        g = r; pg = r; prev = ins
    return g

def place_even(sc, seq, lo, hi): return seq_after(sc, seq, lo, hi, even=True)

def rdK(j, s, tag): return exp_rd(dsread("ds_read_b128", Kf(j & 1, s), kaddr[s & 1], (j & 3) * 6144 + (s >> 1) * 128, tag), kaddr[s & 1], tag)
def rdV(T, u, e, tag):
    T %= 12
    return exp_rd(dsread("ds_read_b64_tr_b16", VB(T & 3, u, e), vaddr[T & 3], (32 * u + 16 * e) * 384 + (T >> 2) * 128, tag), vaddr[T & 3], tag)
def rdW(T, u, e, tag):
    T %= 12
    s, uu = T >> 1, T & 1
    return exp_rd(dsread("ds_read_b64_tr_b16", VB(T % 3, u, e), waddr[s & 1], (2 * u + e) * 3072 + (s >> 1) * 128 + 8 * uu, tag), waddr[s & 1], tag)
def rdX(nq, n, dh, q, u):
    d = SL if nq == 4 else 6144
    return dsread("ds_read_b128", Xf(n & 1, q, u), xaddr[u], (n & 1) * d + q * 2048, absT('x', dh, n), private=True)
UE = [(0, 0), (0, 1), (1, 0), (1, 1)]

def rebase(regs, cur, new):
    return [salu("s_sub_u32", sT1, new, cur), smov(cur, new)] + [valu("v_add_u32", r, sT1, r) for r in regs]
def rotate(r, n, f): return [smov(sT2, r), smov(r, n), smov(n, f), smov(f, sT2)]
def rebaseK():
    return [salu("s_sub_u32", sT3, kN, kR)] + [valu("v_add_u32", r, sT3, r) for r in kaddr]

def softmax_ops(Sx, q, j, par):
    e = [vexp(Sx.sub(r), Sx.sub(r)) for r in range(4)]
    a = [valu("v_add_f32", Lq(q), Lq(q), Sx.sub(r)) for r in range(4)]
    P = Pf(par, q, j >> 1)
    c = [valu("v_cvt_pk_bf16_f32", P.sub(2 * (j & 1) + i), Sx.sub(2 * i), Sx.sub(2 * i + 1)) for i in range(2)]
    return e, a, c

def attn_iter(nq, par, cfg, first_pv=False, jobs=(), next_k=True, k_rot=True, late=(), gentle=False):
    NG = 4 * nq
    mf = []
    for G in range(NG):
        j, q = divmod(G, nq)
        for s in range(6):
            mf.append(mfma(Sf(G), Kf(j & 1, s), Qf(q, s), Ci(q) if s == 0 else Sf(G)))
        for n in range(3 * G, 3 * G + 3):
            T, qq = divmod(n, nq)
            for u in range(2):
                mf.append(mfma(Oacc(T, qq), VB(T & 3, u), Pf(par, qq, u), 0 if (first_pv and u == 0) else Oacc(T, qq)))
    sc = Sched(mf)
    def pvpos(n): return 12 * (n // 3) + 6 + 2 * (n % 3)
    sm = []
    for G in range(NG):
        Gp = (G - 1) % NG
        j, q = divmod(Gp, nq)
        e, a, c = softmax_ops(Sf(Gp), q, j, par if G == 0 else par ^ 1)
        eg = [0, 2, 4, 6]
        if gentle and cfg.gentle:
            lv = cfg.gentle // 2 + (cfg.gentle % 2) * (G % 2)
            eg = [[0, 2, 4, 6], [2, 2, 4, 6], [2, 2, 6, 6], [4, 4, 4, 4]][lv]
        for r in range(4): sc.put(12 * G + eg[r], e[r])
        sm.append((e, a, c))
    GB = 3 * nq
    bw = wait(need_vm=(lambda c: [('K', c['h'], c['t'] + 2), ('V', c['h'], c['t'] + 1)]), lgkm0=True, free=False)
    sc.put(12 * GB, bw, front=True)
    if cfg.stamps == 2 and nq == 4: bstamp(sc, 12 * GB, 12 * GB + 22)
    sc.put(12 * GB + 2, barrier(), front=True)
    bar = 12 * GB + 2
    reads = []
    for j in range(4):
        lo = 12 * nq * j
        nxt = (j == 3)
        tv, tk = (tagV(1), tagK(2)) if nxt else (tagV(0), tagK(1))
        for i in range(3):
            T = 3 * j + 3 + i
            l2 = lo if i == 0 else pvpos(nq * (T - 4) + nq - 1) + 1
            l2 = max(l2, lo)
            if nxt: l2 = max(l2, bar + 1)
            item = [(rdV(T, u, e, tv), l2) for (u, e) in UE]
            reads.append((l2, 0, item))
        if not nxt or next_k:
            l2 = max(lo, bar + 1) if nxt else lo
            reads.append((l2, 1, [(rdK(j + 1, s, tk), l2) for s in range(6)]))
    reads.sort(key=lambda x: (x[0], x[1]))
    g = 0
    lastpre = 0
    for _, _, item in reads:
        for ins, l2 in item:
            g = max(g, l2)
            while not (g % 12 in (1, 3, 5, 7, 8, 9) and not sc.g[g]) :
                g += 1
                if nq == 3 and g % 12 in (10, 11) and not sc.g[g]: break
            assert g < len(mf), "ds overflow"
            sc.put(g, ins)
            if g < bar: lastpre = g
    assert lastpre < 12 * GB
    upd = rebase(vaddr, sVcur, vN) + (rebaseK() if k_rot else [])
    for G in range(NG):
        e, a, c = sm[G]
        b = 12 * G
        if nq == 3 and G == 0:
            order = [(a[0], 1), (c[0], 3), (a[1], 5), (c[1], 7), (a[2], 8), (a[3], 9)]
        else:
            order = [(a[0], 1), (a[1], 3), (c[0], 5), (a[2], 7), (a[3], 8), (c[1], 9)]
        for ins, o in order:
            if not (cfg.lmfma and ins in a): sc.put(b + o, ins)
    if nq == 3:
        for G in range(NG):
            sc.put(12 * G + 4, wait(), front=True)
            if G % 3 == 2: sc.put(12 * G + 11, wait())
    if cfg.xpace and nq == 4 and gentle:
        for G in range(NG): sc.put(12 * G + 6, nop(cfg.xpace - 1))
    seq_after(sc, upd, lastpre, bar)
    gj = 0
    seq = [i for jb in jobs for i in jb]
    if seq: gj = place_even(sc, seq, 0, 12 * GB - (2 if nq == 3 else 13))
    rot = rotate(vR, vN, vF) + (rotate(kR, kN, kF) if k_rot else [])
    sc.extra = [(12 * (4 * q + 2) + 11, lchain(q, par, first_pv)) for q in range(nq)] if cfg.lmfma else []
    seq = [i for jb in late for i in jb]
    if any(i.kind == 'X' for i in seq):
        gr = seq_after(sc, rot, bar + 1, bar + 4)
        place_even(sc, seq, gr + 1, len(mf) - 2)
    else:
        seq_after(sc, rot + seq, bar + 1, len(mf) - 2)
    return sc

NCH = 24
PSLOT = [0, SL - 1024, 2 * SL - 1024]
def head_of(c):
    hh, cc = divmod(c, 3)
    return (hh if hh < 4 else 12 + hh), cc
def tagU(c): return lambda ctx: ('U', 0, c + ctx.get('dc', 0))
def job_o(c, cfg, dyn=None):
    h, cc = head_of(c)
    if cfg.pfake & 1: h = 0; dyn = None
    out = []
    for q in range(5):
        out.append(salu("s_add_u32", sTp, dyn or sOb, (0 if dyn else h * 92160) + cc * 2048 + q * 6144))
        for u in range(2):
            l = gload(OF(c % 3, q, u), vL16, sOr, sTp, 1024 * u, cfg.orflags)
            l.expect = lambda ctx, st, q=q: None if st.get(str(sTp)) == st[str(sOb)] + ctx['heads'][(c + ctx.get('dc', 0)) // 3] * 92160 + cc * 2048 + q * 6144 else "o off"
            if cfg.pskip & 1 and (q, u) != (0, 0): continue
            if cfg.pskip & 4 and q >= 4: continue
            out.append(l)
    return out
def job_u(c, cfg, dyn=None):
    h, cc = head_of(c)
    if cfg.pfake & 2: h = 0; dyn = None
    tag = tagU(c); sl = lambda ctx: slot_of(tag(ctx), 4)
    out = []
    for i in range(8):
        if i % 4 == 0: out.append(salu("s_add_u32", 'm0', sLb, PSLOT[(c + 1) % 3] + 1024 * i))
        out.append(salu("s_add_u32", sTx, dyn or sWb, ((0 if dyn else h * 192) + 64 * cc + 8 * i) * 1280 - 1024 * (i % 4)))
        d = dma(dX, sWo, sTx, 1024 * (i % 4), cfg.woflags, tag=tag, slot=sl)
        d.expect = lambda ctx, st, i=i, el=PSLOT[(c + 1) % 3] + 4096 * (i // 4): \
            None if (st.get(str(sTx)) == st[str(sWb)] + (ctx['heads'][(c + ctx.get('dc', 0)) // 3] * 192 + 64 * cc + 8 * i) * 1280 - 1024 * (i % 4)
                     and st.get('m0') == st[str(sLb)] + el) else "u off"
        if cfg.pskip & 2 and i != 7: continue
        out.append(d)
    return out
def next_head():
    l = [f"s_mov_b32 {sHc}, {sHn}", f"s_mov_b32 {sOc}, {sOn}", f"s_mov_b32 {sWc}, {sWn}",
         f"s_add_u32 {sHn}, {sHc}, 1",
         f"s_cmp_eq_u32 {sHn}, {sJmp}", f"s_cselect_b32 {sHn}, 16, {sHn}",
         f"s_cmp_eq_u32 {sHc}, 18", f"s_cselect_b32 {sHn}, {sA18}, {sHn}",
         f"s_cmp_eq_u32 {sHc}, {sStol}", f"s_cselect_b32 {sHn}, 19, {sHn}",
         f"s_mul_i32 {sOn}, {sHn}, 92160", f"s_add_u32 {sOn}, {sOn}, {sOb}",
         f"s_mul_i32 {sWn}, {sHn}, {192 * 1280}", f"s_add_u32 {sWn}, {sWn}, {sWb}"]
    out = []
    for grp in (l[0:1], l[1:2], l[2:3], l[3:4], l[4:6], l[6:8], l[8:10], l[10:11], l[11:12], l[12:13], l[13:14]):
        out.append(unit(grp, 'S', wr=['scc']))
    def sim(st):
        st[str(sHc)] = st[str(sHn)]; st[str(sOc)] = st[str(sOn)]; st[str(sWc)] = st[str(sWn)]
        c_ = st[str(sHc)]; n = c_ + 1
        if n == st[str(sJmp)]: n = 16
        if c_ == 18: n = st[str(sA18)]
        if c_ == st[str(sStol)]: n = 19
        st[str(sHn)] = n; st[str(sOn)] = st[str(sOb)] + n * 92160; st[str(sWn)] = st[str(sWb)] + n * 192 * 1280
    def kill(st):
        st['save'] = {k: st[k] for k in (str(sHc), str(sHn), str(sOc), str(sWc), str(sOn), str(sWn)) if k in st}
        for k in st['save']: del st[k]
    def fin(st):
        st.update(st['save']); sim(st)
    out[0].simfn = kill; out[-1].simfn = fin
    return out
def flag_store(off, val):
    u = unit([f"v_mov_b32 {vOne}, {val}", "s_mov_b64 exec, 1", f"buffer_store_dword {vOne}, off, {sEx}, {sFs} offset:{off} sc1", "s_mov_b64 exec, -1"], 'S', cost=7)
    u.states = 2
    return u
SPAN = [divmod(gs, 8) for gs in range(176)] + [(22, N) for N in (6, 7, 4, 5)] + [(23, N) for N in (6, 7, 4, 5)] \
    + [(22, N) for N in (0, 1, 2, 3)] + [(23, N) for N in (2, 3, 0, 1)]
def rdU(gs, u, e):
    c, N = SPAN[gs]
    return dsread("ds_read_b64_tr_b16", VB(gs % 3, u, e), raddr[N & 3],
                  PSLOT[(c + 1) % 3] + (N >> 2) * 8192 + (32 * u + 16 * e) * 128, tag=tagU(c))
def calc_raddr():
    o = [valu("v_lshrrev_b32", vt0, 6, vL16),
         valu("v_and_b32", vt1, 6, vt0),
         valu("v_lshlrev_b32", vt0, 7, vt0),
         valu("v_bfe_u32", raddr[0], vL16, 4, 1),
         valu("v_lshl_add_u32", vt0, raddr[0], 3, vt0),
         valu("v_bfe_u32", raddr[0], vL16, 5, 1),
         valu("v_xor_b32", vt1, vt1, raddr[0]),
         valu("v_lshlrev_b32", vt1, 4, vt1),
         salu("s_lshr_b32", sTp, sWave, 1), salu("s_lshl_b32", sTp, sTp, 6),
         valu("v_xor_b32", vt1, sTp, vt1),
         salu("s_lshr_b32", sTp, sWave, 1), salu("s_mul_i32", sTp, sTp, 3 * SL, scc=False), salu("s_add_u32", sTp, sTp, 1024),
         valu("v_add_u32", vt0, sTp, vt0)]
    for m in range(4):
        o += [valu("v_xor_b32", raddr[m], 32 * m, vt1), valu("v_add_u32", raddr[m], raddr[m], vt0)]
    for i in o: i.nosim = True
    return o
def unit(lines, kind='S', cost=None, rd=(), wr=(), **kw):
    i = Ins("\n".join(lines), kind, rd=rd, wr=wr, states=len([l for l in lines if not l.endswith(":")]), **kw)
    i.cost = cost if cost is not None else len(lines)
    i.nosim = True
    return i
_uid = [0]
def signal_add(off, guarded):
    _uid[0] += 1; n = _uid[0]
    l = [f"v_mov_b32 {vOne}, 1", "s_mov_b64 exec, 1", f"buffer_atomic_add {vOne}, off, {sDbg}, {off} sc1", "s_mov_b64 exec, -1"]
    if guarded: l = [f"s_cmp_eq_u32 {off}, -1", f"s_cbranch_scc1 L_nosig{n}"] + l + [f"s_mov_b32 {off}, -1", f"L_nosig{n}:"]
    u = unit(l, 'S', cost=8, wr=['scc'])
    u.states = 2
    return u
def poll_issue(gen):
    return gload_off(V(226, 2), sDbg, sCnt, 0) if gen == 0 else gload_off(V(226), sDbg, sMyc, 64)
def gload_off(D, srd, soff, off):
    op = {1: "buffer_load_dword", 2: "buffer_load_dwordx2"}[D.n]
    return Ins(f"{op} {D}, off, {srd}, {soff} offset:{off} sc1", 'X', rd=srd.regs() + soff.regs(), wr=D.regs())
def cond_load(D, srd, soff, off, cmp_lines, vtmp):
    a = unit(cmp_lines + [f"s_cselect_b32 {sT0}, 0, 0x7ff00000", f"v_mov_b32 {vtmp}, {sT0}"], 'S', wr=['scc'] + sT0.regs() + vtmp.regs())
    b = Ins(f"buffer_load_dword {D}, {vtmp}, {srd}, {soff} offen offset:{off} sc1", 'X', rd=srd.regs() + soff.regs() + vtmp.regs(), wr=D.regs())
    return a, b
def poll_check(gen):
    _uid[0] += 1; n = _uid[0]
    l = [f"s_mov_b32 {sSpin}, 0x80000", f"L_poll{n}:"] + (["v_min_u32 v226, v226, v227", "s_nop 0"] if gen == 0 else []) + \
        [f"v_readfirstlane_b32 {sT0}, v226", "s_nop 3",
         f"s_cmp_ge_u32 {sT0}, 32", f"s_cbranch_scc1 L_pok{n}",
         "s_sleep 2", poll_issue(gen).text,
         f"s_sub_u32 {sSpin}, {sSpin}, 1", f"s_cmp_lg_u32 {sSpin}, 0", "s_waitcnt vmcnt(0)", f"s_cbranch_scc1 L_poll{n}", f"L_pok{n}:"]
    u = unit(l, 'S', cost=12, rd=['v226', 'v227'], wr=['v226', 'scc'] + sT0.regs())
    u.states = 0
    return u

def attn_last(nq, cfg, nxt):
    par = 1
    mf = []
    for T in range(12):
        for q in range(nq):
            for u in range(2): mf.append(mfma(Oacc(T, q), VB(T & 3, u), Pf(par, q, u), Oacc(T, q)))
    sc = Sched(mf)
    sp = 2 * nq
    e, a, c = softmax_ops(Sf(4 * nq - 1), nq - 1, 3, par)
    if nq == 4:
        for r in range(4): sc.put(r, e[r])
        sc.put(4, c[0]); sc.put(4, c[1])
        g0 = 6
    else:
        sc.put(0, e[0]); sc.put(0, e[1]); sc.put(1, e[2]); sc.put(1, e[3])
        sc.put(2, c[0]); sc.put(2, c[1])
        g0 = 4
    if not cfg.lmfma: sc.put(g0 - 1, a[0]); sc.put(g0 - 1, a[1])
    else: sc.put(g0 - 1, nop(0))
    g = g0
    for T in range(3, 12):
        g = max(g, sp * (T - 3))
        for (u, ee) in UE:
            sc.put(g, rdV(T, u, ee, tagV(0))); g += 1
        sc.put(g - 1, wait())
    lastv = g - 1
    if cfg.lmfma:
        sc.extra = [(sp - 1, [i for q in range(nq) for i in lchain(q, par, False)])]
        fin = [None] * ((sp + 8 - g0) // 2) + [valu("v_accvgpr_read_b32", Lq(q), Lacc(q).sub(0)) for q in range(nq)]
    else:
        fin = [a[2], a[3]]
        for q in range(nq):
            t = vt0 if q % 2 == 0 else vt1
            for w in (32, 16):
                fin += [valu("v_mov_b32", t, Lq(q)), None, vperm(w, t, Lq(q)), valu("v_add_f32", Lq(q), Lq(q), t)]
    fin += [valu("v_add_f32", vt0, Lq(0), Lq(1)), valu("v_add_f32", vt0, vt0, Lq(2))]
    if nq == 4: fin.append(valu("v_add_f32", vt0, vt0, Lq(3)))
    fin.append(Ins(f"v_cmp_ngt_f32 {sBad}, {sThr}, {vt0}", 'V', rd=vt0.regs() + sThr.regs(), wr=sBad.regs()))
    SEQS.append([i for i in fin if i is not None])
    g = g0
    for ins in fin:
        if ins is None: g += 2; continue
        g = sc.place(ins, g, g + 8)
    for q in range(nq):
        g = sc.place(vrcp(Lq(q), Lq(q)), g + 1, g + 8)
    ginv = g
    chk = [unit([f"s_cmp_lg_u64 {sBad}, 0", f"s_cselect_b32 {sBad.sub(0)}, 1, 0"], rd=sBad.regs(), wr=['scc'] + sBad.regs()),
           salu("s_lshl_b32", sTp, sWave, 2), salu("s_add_u32", sTp, sTp, FLAG), valu("v_mov_b32", vt0, sBad.sub(0))]
    if nxt == 'P' and nq == 3 and cfg.balance:
        sc.put(0, gload_off(V(226), sEx, sFr, 4), front=True)
        chk += [wait(), valu("v_lshl_or_b32", vt0, V(226), 1, vt0)]
    chk += [valu("v_mov_b32", vt1, sTp), dswrite("ds_write_b32", vt1, vt0, 0),
           valu("v_mov_b32", vOne, FLAG)]
    for i in chk: i.nosim = True
    g = seq_after(sc, chk, g + 1, g + 12)
    bar = sp * 10
    assert g < bar - 2
    gnext = g + 1
    if nxt == 'Q':
        w = wait(need_vm=lambda c: [('x', c['h'] + 1, 0)], free=False)
        gx = sc.place(w, sp * 3, sp * 4)
        dep = []
        for q in range(nq):
            for u in range(2):
                r = rdX(nq, 0, 1, q, u); dep += r.wr
                gx = sc.place(r, gx + 1, gx + 8)
        j1 = job_tile(nq, 'W', vF, absT('W', 1, 1), cfg)
        ge = place_even(sc, j1, g0, sp * 7)
        ws = wait(); gw = sc.place(ws, max(gx + 4, ge), max(gx + 4, ge) + 4)
        place_even(sc, job_x(nq, 2, 1, cfg, dep), gw + 1, len(mf) - 1)
        need = lambda c: [('W', c['h'] + 1, 0)]
    else:
        place_even(sc, job_u(1, cfg), g0, gnext - 1)
        place_even(sc, job_o(0, cfg) + job_o(1, cfg), gnext, len(mf) - 1)
        need = lambda c: [('U', 0, 0)]
    bw = wait(need_vm=need, lgkm0=True, free=False)
    gb = sc.place(bw, bar - 1, bar)
    gb = sc.place(barrier(), gb, bar + 1)
    fl = dsread("ds_read_b128", V(228, 4), vOne, 0)
    g = sc.place(fl, gb + 1, gb + 2)
    if nxt == 'Q':
        seq_after(sc, rebase(waddr, sWcur, vN), lastv, gb)
        seq_after(sc, rotate(vR, vN, vF), gb + 1, len(mf) - 1)
    for T in range(2):
        g = max(g, sp * (10 + T) - 1)
        for (u, ee) in UE:
            r = rdW(T, u, ee, absT('W', 1, 0)) if nxt == 'Q' else rdU(T, u, ee)
            g = sc.place(r, min(len(mf) - 1, g + 1), min(len(mf) - 1, g + 2))
        sc.place(wait(), g, g)
    sc.post = [valu("v_or3_b32", V(228), V(228), V(229), V(230)), valu("v_or_b32", V(228), V(228), V(231)), nop(0),
               Ins(f"v_readfirstlane_b32 {sBad.sub(0)}, v228", 'V', rd=['v228'], wr=sBad.sub(0).regs()), nop(3),
               salu("s_and_b32", sBad.sub(1), sBad.sub(0), 1),
               salu("s_andn2_b32", sBad.sub(1), sBad.sub(1), sRedo), raw(f"s_cbranch_scc1 L_slow_{nq}"), smov(sRedo, 0)]
    return sc

def epi_block(q, s, t, cfg, packed=False):
    ops = []
    for i in range(8):
        src = Oacc(2 * s + (i >> 2), q).sub(i & 3)
        ops.append(valu("v_accvgpr_read_b32", t.sub(i), src))
    for i in range(8): ops.append(valu("v_mul_f32", t.sub(i), t.sub(i), Lq(q)))
    for i in range(4): ops.append(valu("v_cvt_pk_bf16_f32", t.sub(i), t.sub(2 * i), t.sub(2 * i + 1)))
    ops.append(salu("s_add_u32", sTo, sOoff, q * 6144 + (4096 if s >= 4 else 0)))
    stv = gstore(t.sub(0, 4), vL16, sO, sTo, (s & 3) * 1024, cfg.oflags)
    def f(c, st):
        h = 0 if c['t'] < 0 else 1
        e = (st['h0'] + 16 * h) * 92160 + (4 * st['wave'] + q) * 6144 + s * 1024
        if st.get(str(sTo)) is None or st[str(sTo)] + (s & 3) * 1024 != e: return f"store off vs {e}"
    stv.expect = f
    if not cfg.nostore: ops.append(stv)
    return ops

def qproj(nq, cfg, epi):
    sp = 2 * nq; SN = 12 * sp
    mf = []
    for st in range(10):
        for T in range(12):
            for q in range(nq):
                for u in range(2):
                    mf.append(mfma(QACC(T, q), VB(T % 3, u), Xf(st & 1, q, u), 0 if (st == 0 and u == 0) else QACC(T, q)))
    sc = Sched(mf)
    drain = None
    for st in range(10):
        b = st * SN
        for T in range(10):
            g = b + sp * T
            for (u, e) in UE:
                sc.put(g, rdW(T + 2, u, e, absT('W', 0, st))); g += 1
            sc.put(g - 1, wait())
        lastw = g - 1
        need = [('W', st + 1)] if st < 9 else [('K', 0)]
        bw = wait(need_vm=(lambda c, need=need: [(k, c['h'], n) for k, n in need]), lgkm0=True, free=False)
        gb = b + sp * 10
        if epi and st == 9 and nq == 4: bw.vm = 0; drain = bw
        sc.put(gb, bw); sc.put(gb, barrier())
        if epi and st == 9 and nq == 3: sc.put(gb, signal_add(sMyc, False))
        if cfg.stamps == 3: bstamp(sc, gb, gb + 5)
        g = gb
        if st < 9:
            seq_after(sc, rebase(waddr, sWcur, vN), lastw, gb)
            for T in range(2):
                g = max(g, b + sp * (10 + T) - 1)
                for (u, e) in UE:
                    g += 1; sc.put(g, rdW(T, u, e, absT('W', 0, st + 1)))
                sc.put(g, wait())
        else:
            seq_after(sc, rebase(vaddr, sVcur, vN), lastw, gb)
            for s in range(6):
                g += 1; sc.put(g, rdK(0, s, absT('K', 0, 0)))
        seq_after(sc, rotate(vR, vN, vF), gb + 1, b + SN - 1)
        dep = []
        gx = b + sp * 4
        if st < 9:
            w = wait(need_vm=(lambda c, st=st: [('x', c['h'], st + 1)]), free=False)
            gx = sc.place(w, gx, gx + sp)
            for q in range(nq):
                for u in range(2):
                    r = rdX(nq, st + 1, 0, q, u); dep += r.wr
                    gx = sc.place(r, gx + 1, gx + sp)
        if st < 8: j1 = job_tile(nq, 'W', vF, absT('W', 0, st + 2), cfg)
        elif st == 8: j1 = job_tile(nq, 'V', vF, absT('V', 0, 0), cfg, groups=range(8))
        else: j1 = job_tile(nq, 'K', kN, absT('K', 0, 1), cfg, groups=range(8))
        ge = b
        if j1: ge = place_even(sc, j1, b, b + (sp * 4 - 1 if (nq == 4 or st == 7) else sp * 6 if st < 7 else sp * 10 - 2 if st == 8 else sp * 8))
        if st == 7 and nq == 3:
            if epi:
                dr = wait(need_vm=lambda c: 'all', free=False); dr.vm = 0; drain = dr
                ge = sc.place(dr, ge + 8, ge + 9)
            place_even(sc, job_tile(nq, 'K', kR, absT('K', 0, 0), cfg, groups=range(8)), ge + 1, b + SN - 1)
        if st + 3 <= 9:
            ws = wait(); gw = sc.place(ws, max(gx + 4, ge), max(gx + 4, ge) + 4)
            place_even(sc, job_x(nq, st + 3, 0, cfg, dep), gw + 1, b + SN - 1)
    if epi:
        nb = 6 * nq
        step = (SN * (cfg.epist if nq == 4 else 7) - 20) // nb
        i = 0
        for s in range(6):
            for q in range(nq):
                ops = epi_block(q, s, TMP[i & 1], cfg)
                seq_after(sc, ops, 10 + i * step, 10 + (i + 1) * step - 1)
                SEQS.append([ops[-1], drain])
                i += 1
        seq_after(sc, [salu("s_add_u32", sOoff, sOoff, 16 * 92160)], len(mf) - 20, len(mf) - 1)
    return sc

def conv_prologue(nq, cfg):
    out = []
    cv = []
    for s in range(6):
        for q in range(nq):
            b = V(8 * blk(q, s), 8)
            for i in range(4): cv.append(valu("v_pk_mul_f32", b.sub(2 * i, 2), b.sub(2 * i, 2), sC2))
            for i in range(4): cv.append(valu("v_cvt_pk_bf16_f32", b.sub(i), b.sub(2 * i), b.sub(2 * i + 1)))
    j = job_tile(nq, 'V', vN, absT('V', 0, 1), cfg, groups=range(8))
    k = 0
    for i, ins in enumerate(cv):
        out.append(ins)
        if i % 3 == 2 and k < len(j): out.append(j[k]); k += 1
    out += j[k:]
    for q in range(nq): out.append(valu("v_mov_b32", Ci(q).sub(0), "0xff800000"))
    out.append(label(f"L_prol_{nq}"))
    if cfg.lmfma == 0:
        for q in range(nq): out.append(valu("v_mov_b32", Lq(q), 0))
    elif cfg.lmfma == 2:
        for q in range(4): out.append(valu("v_mov_b32", Lq(q), "0x3f803f80"))
    else:
        out += [valu("v_and_b32", vt0, 48, vL16), valu("v_mov_b32", vt1, "0x3f803f80"),
                Ins(f"v_cmp_eq_u32 vcc, 0, {vt0}", 'V', rd=vt0.regs(), wr=['vcc']), nop(1)]
        for q in range(4): out.append(valu("v_cndmask_b32", Lq(q), 0, vt1, 'vcc'))
    out.append(wait())
    NG = 4 * nq
    mf = []
    for G in range(NG):
        jj, q = divmod(G, nq)
        for s in range(6):
            mf.append(mfma(Sf(G), Kf(jj & 1, s), Qf(q, s), (0 if jj == 0 else Ci(q)) if s == 0 else Sf(G)))
    sc = Sched(mf)
    sc.pre = out
    gb = 6 * nq * 3
    for jj in range(3):
        g = 6 * nq * jj
        for s in range(6):
            sc.put(g, rdK(jj + 1, s, absT('K', 0, 0))); g += 2
    lastk = g - 2
    bw = wait(need_vm=(lambda c: [('K', c['h'], 1), ('V', c['h'], 0)]), lgkm0=True, free=False)
    sc.put(gb - 1, bw); sc.put(gb - 1, barrier())
    seq_after(sc, rebaseK(), lastk + 1, gb - 2)
    g = gb
    post = [rdK(4, s, absT('K', 0, 1)) for s in range(6)]
    for T in range(3): post += [rdV(T, u, e, absT('V', 0, 0)) for (u, e) in UE]
    for ins in post:
        sc.put(g, ins); g += 1
    assert g <= len(mf)
    rot = rotate(kR, kN, kF)
    for i, ins in enumerate(rot): sc.put(gb + i, ins)
    if nq == 3:
        place_even(sc, job_tile(nq, 'K', kF, absT('K', 0, 2), cfg, groups=range(8)), 0, gb - 3)
        place_even(sc, job_tile(nq, 'V', vF, absT('V', 0, 2), cfg, groups=range(4), adv=False), gb, len(mf) - 1)
    tail = []
    for G in range(NG - 1):
        jj, q = divmod(G, nq)
        Sx = Sf(G)
        ops = []
        if jj == 0:
            t = vt0; m = vt1
            ops += [valu("v_max3_f32", m, Sx.sub(0), Sx.sub(1), Sx.sub(2)), valu("v_max3_f32", m, m, Sx.sub(3), Ci(q).sub(0))]
            for w in (32, 16):
                ops += [valu("v_mov_b32", t, m), nop(1), vperm(w, t, m), valu("v_max_f32", m, m, t)]
            for r in range(4): ops.append(valu("v_sub_f32", Ci(q).sub(r), 0, m))
            for r in range(4): ops.append(valu("v_sub_f32", Sx.sub(r), Sx.sub(r), m))
        e, a, c = softmax_ops(Sx, q, jj, 0)
        ops += [e[0], e[1], e[2], e[3], c[0], c[1]] if cfg.lmfma else [e[0], e[1], a[0], e[2], a[1], e[3], c[0], a[2], a[3], c[1]]
        if G + 2 < NG:
            n = len(ops)
            for i, ins in enumerate(ops): sc.put(6 * (G + 2) + (i * 6) // n, ins)
        else:
            tail += ops
    sc.add_wait_sites()
    for jj in range(1, 4):
        sc.put(6 * nq * jj - 1, wait())
    return sc.linear() + tail + [wait()]

CS = 6
def merge_jobs(ju, jo):
    def split(j):
        out = []; cur = []
        for i in j:
            cur.append(i)
            if i.kind == 'X': out.append(cur); cur = []
        return out
    a, b = split(ju), split(jo)
    items = sorted([((k + 0.5) / len(a), 0, x) for k, x in enumerate(a)] + [((k + 0.5) / len(b), 1, x) for k, x in enumerate(b)], key=lambda t: t[:2])
    return [i for _, _, x in items for i in x]
def p_chunks(c0, c1, nq, cfg, loop=False):
    mf = []
    for c in range(c0, c1):
        for N in range(8):
            for q in range(5):
                for u in range(2):
                    mf.append(mfma(PACC(N, q), VB((8 * c + N) % 3, u), OF(c % 3, q, u), 0 if (c == 0 and u == 0) else PACC(N, q)))
    sc = Sched(mf)
    PUB = cfg.pubchunk
    for c in range(c0, c1):
        b = 80 * (c - c0)
        for N in range(6):
            RP = [0, 1, 5, 6] if (cfg.prd and N < 5) else [0, 1, 3, 4] if cfg.prd else [0, 1, 2, 3]
            for i, (u, e) in enumerate(UE): sc.put(b + 10 * N + RP[i], rdU(8 * c + N + 2, u, e))
            sc.put(b + 10 * N + RP[3], wait())
        bw = wait(need_vm=(lambda ctx, c=c: 'all' if c == PUB else [tagU(c + 1)(ctx)]), lgkm0=True, free=False)
        if c == PUB: bw.vm = 0; drain = bw
        if loop and c == c0:
            a_, b_ = cond_load(V(226), sDbg, sMyc, 64, [f"s_lshl_b32 {sT0}, {sHn}, 2", f"s_add_u32 {sT0}, {sT0}, {sWave}", f"s_cmp_eq_u32 {sT0}, 67"], V(228))
            sc.put(b + 8, a_); sc.put(b + 14, b_)
            sc.put(b + 59, wait())
            _uid[0] += 1; n = _uid[0]
            sc.put(b + 59, unit([f"s_add_u32 {sT0}, {sWave}, {sHn}", f"s_cmp_lg_u32 {sHn}, 16", f"s_cbranch_scc1 L_skip{n}",
                                 f"s_cmp_lg_u32 {sT0}, 19", f"s_cbranch_scc1 L_skip{n}"], cost=3, rd=['v226'], wr=['scc'] + sT0.regs()))
            pc = poll_check(1); pc.cost = 0; sc.put(b + 59, pc); sc.put(b + 59, label(f"L_skip{n}"))
        if loop and c == c0 + 2:
            a_, b_ = cond_load(V(227), sEx, sFr, 8, [f"s_cmp_eq_u32 {sHc}, 17"], V(229))
            sc.put(b - 72, a_); sc.put(b - 66, b_)
            sc.put(b + 9, wait())
            _uid[0] += 1; n = _uid[0]
            u_ = unit([f"s_cmp_lg_u32 {sHc}, 17", f"s_cbranch_scc1 L_dok{n}", f"s_mov_b32 {sSpin}, 0x80000", f"L_dp{n}:",
                       f"v_readfirstlane_b32 {sT0}, v227", "s_nop 3", f"s_cmp_eq_u32 {sT0}, 1", f"s_cselect_b32 {sA18}, {sStol}, 19",
                       f"s_cmp_lg_u32 {sT0}, 0", f"s_cbranch_scc1 L_dok{n}", "s_sleep 2", gload_off(V(227), sEx, sFr, 8).text,
                       f"s_sub_u32 {sSpin}, {sSpin}, 1", f"s_cmp_lg_u32 {sSpin}, 0", "s_waitcnt vmcnt(0)", f"s_cbranch_scc1 L_dp{n}", f"L_dok{n}:"],
                      cost=2, rd=['v227'], wr=['scc'] + sT0.regs())
            u_.states = 1
            sc.put(b + 9, u_)
        sc.put(b + 60, bw); sc.put(b + 60, barrier())
        if cfg.stamps == 4: bstamp(sc, b + 60, b + 69)
        if c == PUB and nq == 3:
            sc.put(b + 60, salu("s_add_u32", sSig, sMyc, 64)); sc.put(b + 60, signal_add(sSig, False))
        if c == cfg.markchunk and nq == 3: sc.put(b + 60, flag_store(4, 1))
        if c == 0 and nq == 3: sc.put(b + 9, salu("s_sub_u32", sT0, sJmp, 2)); sc.put(b + 9, flag_store(8, sT0))
        for i, (u, e) in enumerate(UE):
            sc.put(b + 60 + ([1, 3, 5, 6] if cfg.prd else [1, 2, 3, 4])[i], rdU(8 * c + 8, u, e)); sc.put(b + 70 + ([0, 1, 5, 6] if cfg.prd else [0, 1, 2, 3])[i], rdU(8 * c + 9, u, e))
        sc.put(b + (76 if cfg.prd else 73), wait())
        sc.put(b + 79, wait())
    first_reads = []
    if nq is not None:
        nb = 6 * nq
        span = 80 * PUB + 10
        step = (span - 4) / nb
        i = 0
        for s in range(6):
            for q in range(nq):
                ops = epi_block(q, s, TMP[i & 1], cfg)
                if s == 0: first_reads += ops[:8]
                SEQS.append([ops[-1], drain])
                ge = seq_after(sc, ops, 4 + int(i * step), 4 + int((i + 1) * step) - 1)
                if s == 0: gfirst = 4 + int(i * step) + 9
                i += 1
    for c in range(c0, c1):
        b = 80 * (c - c0)
        if c + 2 < NCH:
            ju, jo = job_u(c + 2, cfg), job_o(c + 2, cfg)
            if loop:
                ju, jo = job_u(c + 2, cfg, sWc if c == c0 else sWn), job_o(c + 2, cfg, sOc if c == c0 else sOn)
            if loop and c == c0 + 2:
                if cfg.prd: g1 = g2 = place_even(sc, merge_jobs(ju, jo), b, b + 72)
                elif cfg.pclus: g2 = place_even(sc, jo, b, b + 36); g1 = place_even(sc, ju, b + 37, b + 66)
                else: g1 = place_even(sc, ju, b, b + 64); g2 = place_even(sc, jo, b + 2, b + 64)
                seq_after(sc, next_head(), max(g1, g2) + 1, b + 78)
            elif c == 0:
                place_even(sc, ju, b, b + 40)
                place_even(sc, jo[:6], b + 30, b + gfirst); place_even(sc, jo[6:], b + gfirst + 1, b + 78)
                for r in first_reads:
                    for l in jo:
                        if set(l.wr) & set(r.rd): SEQS.append([r, l])
            elif c == PUB:
                place_even(sc, ju, b, b + 24); place_even(sc, jo[:3], b, b + 24); place_even(sc, jo[3:], b + 61, b + 78)
            else:
                hi_ = 58 if c == NCH - 3 else 78
                if cfg.prd: place_even(sc, merge_jobs(ju, jo), b, b + hi_)
                elif cfg.pclus and c != NCH - 3: place_even(sc, jo, b, b + 42); place_even(sc, ju, b + 43, b + hi_)
                else: place_even(sc, ju, b, b + hi_); place_even(sc, jo, b + 2, b + hi_)
    sc.add_wait_sites()
    return sc

def p_tail(cfg):
    mf = []
    for gs in range(176, 192):
        c, N = SPAN[gs]
        for q in range(5):
            for u in range(2): mf.append(mfma(PACC(N, q), VB(gs % 3, u), OF(c % 3, q, u), PACC(N, q)))
    sc = Sched(mf)
    for k in range(14):
        o = 1 if k == 2 else 0
        for i, (u, e) in enumerate(UE): sc.put(10 * k + i + o, rdU(178 + k, u, e))
        sc.put(10 * k + 3 + o, wait())
    sc.put(143, wait())
    sc.put(20, wait(need_vm=lambda ctx: [tagU(23)(ctx)], free=False)); sc.put(20, barrier())
    sc.put(39, wait())
    wA, rA, wB, rB, oa = V(236), V(237), V(238), V(239), V(240)
    pre = [salu("s_and_b32", sTp, sWave, 1), salu("s_lshr_b32", sTx, sWave, 1), salu("s_mul_i32", sTx, sTx, 3 * SL, scc=False),
           salu("s_sub_u32", sT1, 3 * SL, sTx),
           salu("s_mul_i32", sT0, sTp, 10240, scc=False), salu("s_add_u32", sT0, sT0, SL), valu("v_add_u32", vt0, sT0, vL16),
           valu("v_add_u32", wA, sTx, vt0), valu("v_add_u32", rA, sT1, vt0),
           salu("s_mul_i32", sT0, sTp, 2 * SL, scc=False), salu("s_add_u32", sT0, sT0, 9216), valu("v_add_u32", vt0, sT0, vL16),
           valu("v_add_u32", wB, sTx, vt0), valu("v_add_u32", rB, sT1, vt0),
           valu("v_bfe_u32", oa, vL16, 4, 4), valu("v_mul_u32_u24", oa, 2560, oa),
           valu("v_lshrrev_b32", vt0, 8, vL16), valu("v_lshl_add_u32", oa, vt0, 3, oa)]
    for i in pre: i.nosim = True
    seq_after(sc, pre, 0, 38)
    def T(pair, t): return PACC(2 * pair + t // 5, t % 5)
    def wr(addr, tile, off):
        i = dswrite("ds_write_b128", addr, tile, off); i.cost = 3
        return i
    free = lambda lo, n: [g for g in range(lo, 160) if g % 10 >= 4][:n]
    for t, g in enumerate(free(56, 10)): sc.put(g, wr(wA, T(3, t), 1024 * t))
    sc.put(78, wait(lgkm0=True, free=False)); sc.put(78, barrier())
    rg = free(79, 10)
    for t, g in enumerate(rg): sc.put(g, dsread("ds_read_b128", T(3, t), rA, 1024 * t))
    seq = []
    for t in range(10):
        seq += [wait()] + [valu("v_add_f32", T(2, t).sub(i), T(2, t).sub(i), T(3, t).sub(i)) for i in range(4)]
        if t % 4 == 0: seq.append(salu("s_add_u32", sTp, sExs, 1024 * t))
        seq.append(gstore(T(2, t), vL16, sEx, sTp, 1024 * (t % 4), cfg.exflags))
    seq_after(sc, seq, 90, cfg.xend)
    for t, g in enumerate([136, 137, 138, 139, 144, 146, 148, 150, 152, 154]): sc.put(g, wr(wB, T(1, t), 1024 * t))
    sc.add_wait_sites()
    def add(dst, src): return [valu("v_pk_add_f32", dst.sub(2 * i, 2), dst.sub(2 * i, 2), src.sub(2 * i, 2)) for i in range(2)]
    w = wait(need_vm=lambda c: 'all', lgkm0=True, free=False); w.vm = 0
    f = [w, barrier()]
    f.append(unit([f"s_cmp_lg_u32 {sWave}, 3", "s_cbranch_scc1 L_xset",
                   f"v_mov_b32 {vOne}, 1", "s_mov_b64 exec, 1", f"buffer_store_dword {vOne}, off, {sEx}, {sFs} sc1", "s_mov_b64 exec, -1",
                   f"buffer_load_dword v226, off, {sEx}, {sFr} sc1", "L_xset:"]))
    for t in range(10): f.append(dsread("ds_read_b128", T(1, t), rB, 1024 * t))
    for t in range(10):
        f.append(wait()); f += add(T(0, t), T(1, t))
    f.append(unit([f"s_cmp_lg_u32 {sWave}, 3", "s_cbranch_scc1 L_xok", f"s_mov_b32 {sSpin}, 0x80000", "L_xpoll:",
                   "s_waitcnt vmcnt(0)", f"v_readfirstlane_b32 {sTp}, v226", f"s_sub_u32 {sSpin}, {sSpin}, 1",
                   f"s_cmp_eq_u32 {sSpin}, 0", "s_cbranch_scc1 L_xok", "s_nop 0",
                   f"s_cmp_eq_u32 {sTp}, 1", "s_cbranch_scc1 L_xok",
                   f"buffer_load_dword v226, off, {sEx}, {sFr} sc1", "s_branch L_xpoll", "L_xok:"]))
    f.append(barrier())
    for t in range(10):
        if t % 4 == 0: f.append(salu("s_add_u32", sTp, sExr, 1024 * t))
        f.append(gload(T(1, t), vL16, sEx, sTp, 1024 * (t % 4), cfg.exrflags))
    for t in range(10):
        N, q = divmod(t, 5)
        ac = T(0, t)
        f.append(wait()); f += add(ac, T(1, t))
        for i in range(2): f.append(valu("v_cvt_pk_bf16_f32", ac.sub(i), ac.sub(2 * i), ac.sub(2 * i + 1)))
        f.append(salu("s_add_u32", sTp, sOutb, q * 16 * 2560))
        f.append(gstore(ac.sub(0, 2), oa, sOut, sTp, 32 * N, cfg.outflags))
    return sc, f

def slow_path(nq, cfg):
    o = []
    a = lambda t: o.append(raw(t))
    def spaced(seq):
        for i in seq:
            o.append(i)
            if 'm0' in i.wr: o.append(nop(0))
    dummy = lambda c: ('K', 0, 0)
    o.append(label(f"L_slow_{nq}"))
    a("s_waitcnt vmcnt(0) lgkmcnt(0)"); a("s_barrier")
    a(f"s_mov_b32 {sRedo}, -1")
    a(f"s_cmp_eq_u32 {sHead}, 0")
    a(f"s_cselect_b32 {sT0}, {16 * 393216}, 0"); a(f"s_cselect_b32 {sT1}, {16 * 384}, 0")
    a(f"s_cselect_b32 {sT2}, 0, {16 * 393216}")
    a(f"s_mov_b32 {vR}, {VS[0]}"); a(f"s_mov_b32 {vN}, {VS[1]}"); a(f"s_mov_b32 {vF}, {VS[2]}")
    a(f"s_cselect_b32 {vR}, {VS[1]}, {vR}"); a(f"s_cselect_b32 {vN}, {VS[2]}, {vN}"); a(f"s_cselect_b32 {vF}, {VS[0]}, {vF}")
    a(f"s_sub_u32 {sKend}, {sKend}, {sT0}"); a(f"s_sub_u32 {sVend}, {sVend}, {sT0}"); a(f"s_sub_u32 {sWend}, {sWend}, {sT1}")
    a(f"s_add_u32 {sKoff}, {sK0}, {sT2}"); a(f"s_mov_b32 {sVoff}, {sKoff}")
    a(f"s_mov_b32 {sWoff}, {sW0}"); a(f"s_mov_b32 {sXoff}, {sX0}")
    for i in rebase(vaddr, sVcur, vR): o.append(i)
    for q in range(nq): a(f"v_mov_b32 {Ci(q).sub(0)}, 0xff800000")
    a(f"s_mov_b32 {sLoop}, 16")
    o.append(label(f"L_slowl_{nq}"))
    spaced(job_tile(nq, 'K', kR, dummy, cfg, groups=range(8)))
    a("s_waitcnt vmcnt(0)"); a("s_barrier")
    for j in range(4):
        for s in range(6): o.append(rdK(j, s, dummy))
        a("s_waitcnt lgkmcnt(0)")
        for q in range(nq):
            for s in range(6): o.append(mfma(Sf(q), Kf(j & 1, s), Qf(q, s), 0 if s == 0 else Sf(q)))
        a("s_nop 7")
        for q in range(nq):
            m = Ci(q).sub(0); Sx = Sf(q)
            a(f"v_max3_f32 {m}, {m}, {Sx.sub(0)}, {Sx.sub(1)}"); a(f"v_max3_f32 {m}, {m}, {Sx.sub(2)}, {Sx.sub(3)}")
    a("s_barrier")
    a(f"s_sub_u32 {sLoop}, {sLoop}, 1"); a(f"s_cmp_lg_u32 {sLoop}, 0"); a(f"s_cbranch_scc1 L_slowl_{nq}")
    for r in (kR, kN): spaced(job_tile(nq, 'K', r, dummy, cfg, groups=range(8)))
    a("s_waitcnt vmcnt(0)")
    for r in (vR, vN): spaced(job_tile(nq, 'V', r, dummy, cfg, groups=range(8)))
    a("s_waitcnt vmcnt(0)"); a("s_barrier")
    for s in range(6): o.append(rdK(0, s, dummy))
    a("s_waitcnt lgkmcnt(0)")
    a(f"s_branch L_prol_{nq}")
    return o

def setup(cfg):
    o = []
    a = lambda t: o.append(raw(t))
    a("s_cmp_ge_u32 s2, 256"); a("s_cbranch_scc1 L_end")
    a("s_load_dwordx8 s[24:31], s[0:1], 0")
    a("s_load_dwordx8 s[32:39], s[0:1], 40")
    a("s_load_dwordx2 s[96:97], s[0:1], 32"); a("s_load_dwordx2 s[40:41], s[0:1], 72")
    a("s_load_dwordx4 s[44:47], s[0:1], 80")
    a("s_load_dwordx2 s[42:43], s[0:1], 96")
    if cfg.stamps or cfg.spinat == -1 or cfg.midspin >= 0: a("s_memrealtime s[56:57]")
    if cfg.codepf:
        a("s_getpc_b64 s[48:49]"); a("L_pc:")
        a("s_lshr_b32 s50, s2, 3"); a("s_lshl_b32 s50, s50, 6")
        a("v_add_u32 v2, s50, v0"); a("v_lshlrev_b32 v2, 7, v2")
        a("v_min_u32 v2, L_code_end-L_pc-4, v2")
        a("v_mov_b32 v3, s49"); a("v_add_co_u32 v2, vcc, s48, v2"); a("s_nop 1"); a("v_addc_co_u32 v3, vcc, 0, v3, vcc")
        a("v_cmp_gt_u32 vcc, 64, v0"); a("s_and_saveexec_b64 s[48:49], vcc"); a("s_cbranch_execz L_nopf")
        a(f"global_load_dword {vOne}, v[2:3], off")
        a("L_nopf:"); a("s_mov_b64 exec, s[48:49]")
    a("v_lshrrev_b32 v1, 6, v0"); a("v_and_b32 v0, 63, v0")
    a("v_readfirstlane_b32 s3, v1")
    a("s_lshr_b32 s50, s2, 3")
    a("s_bfe_u32 s51, s2, 0x10001"); a("s_lshl_b32 s51, s51, 2"); a("s_lshr_b32 s52, s50, 3"); a("s_add_u32 s51, s51, s52")
    a("s_and_b32 s52, s2, 1"); a("s_lshl_b32 s52, s52, 3"); a("s_and_b32 s53, s50, 7"); a("s_add_u32 s52, s52, s53")
    a("s_bfe_u32 s53, s2, 0x10002")
    a("v_lshrrev_b32 v1, 3, v0"); a("v_and_b32 v2, 7, v0")
    for m in range(3):
        a(f"v_add_u32 v3, {8 * m}, v1")
        a("v_mul_u32_u24 v4, 43, v3"); a("v_lshrrev_b32 v4, 7, v4")
        a("v_and_b32 v5, 6, v4"); a("v_xor_b32 v5, v5, v2"); a("v_lshlrev_b32 v5, 4, v5")
        a("v_lshlrev_b32 v6, 7, v1"); a(f"v_add_u32 {dKV[m]}, v5, v6")
        a("v_mul_u32_u24 v5, 3, v4"); a("v_sub_u32 v5, v3, v5"); a("v_lshlrev_b32 v5, 7, v5")
        a("v_bfe_u32 v6, v4, 1, 1"); a("v_lshlrev_b32 v6, 2, v6"); a("v_xor_b32 v6, v6, v2"); a("v_lshlrev_b32 v6, 4, v6"); a("v_add_u32 v5, v5, v6")
        a("v_lshrrev_b32 v6, 2, v4"); a("v_lshlrev_b32 v6, 4, v6"); a("v_and_b32 v7, 3, v4"); a("v_add_u32 v6, v6, v7")
        a("v_mul_u32_u24 v6, 12288, v6"); a("v_add_u32 v5, v5, v6")
        a(f"v_subrev_u32 {dW[m]}, {1024 * m}, v5")
    a("v_and_b32 v3, 6, v1"); a("v_xor_b32 v3, v3, v2"); a("v_lshlrev_b32 v3, 4, v3")
    a("v_mul_u32_u24 v4, 1280, v1"); a(f"v_add_u32 {dX}, v3, v4")
    a(f"v_lshlrev_b32 {vL16}, 4, v0")
    a("s_waitcnt lgkmcnt(0)")
    if cfg.stamps:
        a(f"v_writelane_b32 {vStamp}, s56, 30"); a("s_getreg_b32 s56, hwreg(HW_REG_XCC_ID)"); a(f"v_writelane_b32 {vStamp}, s56, 31")
    a("s_cmp_eq_u32 s53, 0")
    for i in range(8): a(f"s_cselect_b32 s{24 + i}, s{24 + i}, s{32 + i}")
    a("s_cselect_b32 s96, s96, s40"); a("s_cselect_b32 s97, s97, s41"); a("s_mov_b32 s98, 7864320"); a("s_mov_b32 s99, 0x20000")
    a("s_mul_i32 s48, s51, 307200"); a("s_add_u32 s4, s24, s48"); a("s_addc_u32 s5, s25, 0"); a("s_mov_b32 s6, 307200"); a("s_mov_b32 s7, 0x20000")
    a("s_mov_b32 s8, s30"); a("s_mov_b32 s9, s31"); a("s_mov_b32 s10, 7864320"); a("s_mov_b32 s11, 0x20000")
    a("s_mul_i32 s48, s51, 12582912")
    a("s_add_u32 s12, s26, s48"); a("s_addc_u32 s13, s27, 0"); a("s_mov_b32 s14, 12582912"); a("s_mov_b32 s15, 0x20000")
    a("s_add_u32 s16, s28, s48"); a("s_addc_u32 s17, s29, 0"); a("s_mov_b32 s18, 12582912"); a("s_mov_b32 s19, 0x20000")
    a("s_lshl_b32 s48, s53, 3"); a("s_add_u32 s48, s48, s51"); a("s_mul_i32 s48, s48, 2949120")
    a("s_add_u32 s20, s42, s48"); a("s_addc_u32 s21, s43, 0"); a("s_mov_b32 s22, 2949120"); a("s_mov_b32 s23, 0x20000")
    a("s_mov_b32 s64, s44"); a("s_mov_b32 s65, s45"); a("s_mov_b32 s66, 4915200"); a("s_mov_b32 s67, 0x20000")
    a(f"s_add_u32 s68, s42, {EXOFF}"); a("s_addc_u32 s69, s43, 0"); a(f"s_mov_b32 s70, {STOFF + 0x100000}"); a("s_mov_b32 s71, 0x20000")
    a("s_mov_b32 s72, s46"); a("s_mov_b32 s73, s47"); a("s_mov_b32 s74, 256"); a("s_mov_b32 s75, 0x20000")
    a("s_cmp_ge_u32 s50, 30"); a(f"s_cselect_b32 {sIdle}, 1, 0"); a("s_min_u32 s24, s50, 29")
    a("s_and_b32 s25, s2, 1")
    a("s_mul_i32 s26, s24, 52"); a("s_lshr_b32 s26, s26, 8"); a("s_mul_i32 s27, s26, 5"); a("s_sub_u32 s27, s24, s27")
    a("s_lshl_b32 s26, s26, 1"); a("s_and_b32 s28, s3, 1"); a("s_add_u32 s26, s26, s28")
    a("s_mul_i32 s29, s26, 43"); a("s_lshr_b32 s29, s29, 7"); a("s_mul_i32 s30, s29, 3"); a("s_sub_u32 s26, s26, s30")
    a("s_and_b32 s30, s2, 7"); a(f"s_lshl_b32 {sMyc}, s30, 2"); a(f"s_and_b32 {sCnt}, {sMyc}, 24")
    a("s_and_b32 s30, s2, 6"); a("s_lshl_b32 s30, s30, 1")
    a("s_add_u32 s30, s30, s29"); a("s_mul_i32 s31, s30, 2949120")
    a("s_add_u32 s60, s42, s31"); a("s_addc_u32 s61, s43, 0"); a("s_mov_b32 s62, 2949120"); a("s_mov_b32 s63, 0x20000")
    a("s_lshl_b32 s31, s25, 1"); a("s_lshr_b32 s32, s3, 1"); a("s_add_u32 s31, s31, s32")
    a(f"s_mul_i32 {sOb}, s31, {4 * 92160}"); a(f"s_mul_i32 s33, s26, {5 * 6144}"); a(f"s_add_u32 {sOb}, {sOb}, s33")
    a(f"s_mul_i32 {sWb}, s31, {4 * 192 * 1280}"); a("s_lshl_b32 s33, s27, 8"); a(f"s_add_u32 {sWb}, {sWb}, s33")
    a("s_xor_b32 s33, s28, s25"); a("s_lshl_b32 s33, s33, 7"); a(f"s_add_u32 {sWb}, {sWb}, s33")
    a(f"s_mul_i32 {sLb}, s32, {3 * SL}"); a("s_lshl_b32 s33, s28, 13"); a(f"s_add_u32 {sLb}, {sLb}, s33"); a(f"s_add_u32 {sLb}, {sLb}, 1024")
    a("s_and_b32 s30, s30, 7"); a("s_mul_i32 s30, s30, 240"); a("s_mul_i32 s33, s26, 80"); a("s_add_u32 s30, s30, s33")
    a(f"s_mul_i32 {sOutb}, s30, 2560"); a("s_mul_i32 s33, s53, 1280"); a(f"s_add_u32 {sOutb}, {sOutb}, s33")
    a("s_lshl_b32 s33, s27, 8"); a(f"s_add_u32 {sOutb}, {sOutb}, s33"); a("s_lshl_b32 s33, s31, 6"); a(f"s_add_u32 {sOutb}, {sOutb}, s33")
    a("s_lshl_b32 s33, s2, 2"); a("s_add_u32 s33, s33, s3"); a(f"s_mul_i32 {sExs}, s33, 10240"); a("s_xor_b32 s33, s33, 4"); a(f"s_mul_i32 {sExr}, s33, 10240")
    a("s_lshl_b32 s33, s2, 7"); a(f"s_add_u32 {sFs}, s33, {FLOFF}"); a("s_xor_b32 s33, s33, 128"); a(f"s_add_u32 {sFr}, s33, {FLOFF}")
    a("s_and_b32 s48, s2, 3"); a("s_lshl_b32 s48, s48, 5"); a("s_add_u32 s48, s48, s50"); a(f"s_mul_i32 {sWopf}, s48, 61440")
    if cfg.dbgst: a(f"s_add_u32 {sMyc}, {sMyc}, 128"); a(f"s_add_u32 {sCnt}, {sCnt}, 128")
    a(f"s_mov_b32 {sRedo}, 0")
    a(f"s_mov_b32 {sWave}, s3")
    if cfg.stamps > 1: a("s_mov_b32 s3, 512")
    if cfg.spinat == -1 or cfg.midspin >= 0: a("s_mov_b32 s3, s56")
    a(f"s_mul_i32 {sKoff}, s52, 393216"); a(f"s_mul_i32 {sWoff}, s52, 384")
    a(f"s_mul_i32 {sXoff}, {sWave}, {64 * 1280}")
    a(f"s_mul_i32 {sOoff}, s52, 92160"); a(f"s_mul_i32 s48, {sWave}, {4 * 6144}"); a(f"s_add_u32 {sOoff}, {sOoff}, s48")
    a(f"s_mov_b32 {sTp}, s50")
    a(f"s_mov_b32 {kR}, {KS[0]}"); a(f"s_mov_b32 {kN}, {KS[1]}"); a(f"s_mov_b32 {kF}, {KS[2]}")
    a(f"s_mov_b32 {vR}, {VS[0]}"); a(f"s_mov_b32 {vN}, {VS[1]}"); a(f"s_mov_b32 {vF}, {VS[2]}")
    a(f"s_mov_b32 {sVcur}, 0"); a(f"s_mov_b32 {sWcur}, {VS[0]}")
    c = math.log2(math.e) / math.sqrt(192.0)
    a(f"s_mov_b32 s38, {fbits(c)}"); a(f"s_mov_b32 s39, {fbits(c)}")
    a(f"s_mov_b32 {sThr}, {fbits(2.0 ** cfg.thr)}")
    a(f"s_mov_b32 {sHead}, 0")
    a(f"s_cmp_eq_u32 {sWave}, 3"); a("s_cbranch_scc1 L_v3")
    return o

def lds_addr_setup(cfg):
    o = []
    def a(t):
        i = raw(t); i.nosim = True; o.append(i)
    a("v_and_b32 v1, 15, v0")
    a("v_lshrrev_b32 v2, 4, v0")
    a("v_and_b32 v3, 6, v1")
    a("v_xor_b32 v4, v2, v3")
    a("v_lshlrev_b32 v4, 4, v4")
    a("v_mul_u32_u24 v5, 384, v1")
    a(f"v_add_u32 {kaddr[0]}, v5, v4")
    a(f"v_xor_b32 v6, 64, v4"); a(f"v_add_u32 {kaddr[1]}, v5, v6")
    a("v_lshlrev_b32 v5, 7, v1"); a(f"v_add_u32 v5, {sXl[0]}, v5")
    a(f"v_add_u32 {xaddr[0]}, v5, v4"); a(f"v_add_u32 {xaddr[1]}, v5, v6")
    a("v_lshrrev_b32 v1, 2, v0"); a("v_and_b32 v3, 6, v1")
    a("v_bfe_u32 v4, v0, 1, 1"); a("v_xor_b32 v4, v4, v3"); a("v_lshlrev_b32 v4, 4, v4")
    a("v_and_b32 v5, 1, v0"); a("v_lshlrev_b32 v5, 3, v5")
    a("v_mul_u32_u24 v6, 384, v1"); a("v_add_u32 v5, v5, v6")
    for m in range(4):
        a(f"v_xor_b32 v6, {32 * m}, v4"); a(f"v_add_u32 {vaddr[m]}, v5, v6")
    a("v_and_b32 v3, 1, v2"); a(f"v_mul_u32_u24 v3, {12288 + cfg.wshift}, v3"); a(f"v_add_u32 v3, {VS[0]}, v3")
    a("v_lshrrev_b32 v4, 1, v2"); a("v_lshlrev_b32 v4, 2, v4"); a("v_bfe_u32 v5, v0, 2, 2"); a("v_add_u32 v4, v4, v5")
    a("v_mul_u32_u24 v4, 384, v4"); a("v_add_u32 v3, v3, v4")
    a("v_bfe_u32 v4, v0, 3, 1"); a("v_lshlrev_b32 v4, 2, v4"); a("v_and_b32 v5, 3, v0"); a("v_xor_b32 v4, v4, v5"); a("v_lshlrev_b32 v4, 4, v4")
    a(f"v_add_u32 {waddr[0]}, v3, v4"); a("v_xor_b32 v4, 64, v4"); a(f"v_add_u32 {waddr[1]}, v3, v4")
    return o

def setup_variant(nq, cfg):
    o = []
    def a(t):
        i = raw(t); i.nosim = True; o.append(i)
    if nq == 4:
        a(f"s_mul_i32 {sGrp}, {sWave}, 3072")
        a(f"s_and_b32 {sT0}, {sWave}, 1"); a(f"s_lshl_b32 {sT0}, {sT0}, 2"); a(f"s_lshr_b32 {sT1}, {sWave}, 1"); a(f"s_lshl_b32 {sT1}, {sT1}, 5")
        a(f"s_add_u32 {sT0}, {sT0}, {sT1}"); a(f"s_mul_i32 {sT0}, {sT0}, 12288"); a(f"s_add_u32 {sWoff}, {sWoff}, {sT0}")
        a(f"s_lshl_b32 {sT0}, {sWave}, 13"); a(f"s_add_u32 {sXl[0]}, {sT0}, {KS[1]}"); a(f"s_add_u32 {sXl[1]}, {sT0}, {KS[2]}")
    else:
        a(f"s_mov_b32 {sXl[0]}, {EB}"); a(f"s_mov_b32 {sXl[1]}, {EB + 6144}")
        a("v_mov_b32 v1, 0"); a("v_lshlrev_b32 v2, 2, v0"); a("s_mov_b64 exec, 15"); a(f"buffer_store_dword v1, v2, {sEx}, {sFs} offen sc1"); a("s_mov_b64 exec, -1")
    a(f"s_add_u32 {sKend}, {sKoff}, {16 * 3072 * kv_map(cfg)[0]}"); a(f"s_mov_b32 {sVend}, {sKend}")
    a(f"s_add_u32 {sWend}, {sWoff}, 7864320"); a(f"s_add_u32 {sXend}, {sXoff}, 1280")
    if cfg.rotkv:
        a(f"s_mul_i32 {sT0}, s2, 5"); a(f"s_lshr_b32 {sT1}, s2, 4"); a(f"s_add_u32 {sT0}, {sT0}, {sT1}"); a(f"s_and_b32 {sT0}, {sT0}, 15")
        a(f"s_mul_i32 {sT0}, {sT0}, {3072 * kv_map(cfg)[0]}"); a(f"s_add_u32 {sKoff}, {sKoff}, {sT0}")
    if cfg.rotq == 1:
        a(f"s_lshr_b32 {sT0}, {sTp}, 3"); a(f"s_lshl_b32 {sT0}, {sT0}, 1"); a(f"s_and_b32 {sT1}, {sTp}, 7"); a(f"s_add_u32 {sT0}, {sT0}, {sT1}")
        a(f"s_mul_i32 {sT0}, {sT0}, 5"); a(f"s_lshr_b32 {sT0}, {sT0}, 2")
        a(f"s_cmp_ge_u32 {sT0}, 10"); a(f"s_cselect_b32 {sT1}, 10, 0"); a(f"s_sub_u32 {sT0}, {sT0}, {sT1}")
    if cfg.rotq == 2:
        a(f"s_lshr_b32 {sT0}, {sTp}, 3"); a(f"s_xor_b32 {sT0}, {sT0}, {sTp}"); a(f"s_and_b32 {sT0}, {sT0}, 1"); a(f"s_mul_i32 {sT0}, {sT0}, 5")
    if cfg.rotq:
        a(f"s_mul_i32 {sRw}, {sT0}, 786432"); a(f"s_lshl_b32 {sRx}, {sT0}, 7")
    a(f"s_mov_b32 {sVoff}, {sKoff}")
    a(f"s_mov_b32 {sK0}, {sKoff}"); a(f"s_mov_b32 {sW0}, {sWoff}"); a(f"s_mov_b32 {sX0}, {sXoff}")
    def spaced(seq):
        for i in seq:
            o.append(i)
            if 'm0' in i.wr: o.append(nop(0))
    spaced(job_x(nq, 0, 0, cfg)); spaced(job_tile(nq, 'W', vR, absT('W', 0, 0), cfg))
    o.extend(lds_addr_setup(cfg))
    spaced(job_x(nq, 1, 0, cfg)); spaced(job_tile(nq, 'W', vN, absT('W', 0, 1), cfg))
    o.append(wait(need_vm=lambda c: [('x', 0, 0), ('W', 0, 0)], free=False)); o.append(barrier())
    dep = []
    for q in range(nq):
        for u in range(2):
            r = rdX(nq, 0, 0, q, u); dep += r.wr; o.append(r)
    for T in range(2):
        for (u, e) in UE: o.append(rdW(T, u, e, absT('W', 0, 0)))
    o.append(wait())
    spaced(job_x(nq, 2, 0, cfg, dep))
    o.append(wait())
    return o

def stamp(cfg, idx):
    if cfg.midspin == idx:
        _uid[0] += 1; n = _uid[0]
        return [raw(f"L_ms{n}:"), raw("s_sleep 4"), raw("s_memrealtime s[56:57]"), raw("s_waitcnt lgkmcnt(0)"), raw("s_sub_u32 s56, s56, s3"),
                raw("s_cmp_lt_u32 s56, 17000"), raw(f"s_cbranch_scc1 L_ms{n}")]
    if cfg.spind >= 0 and idx in (cfg.spind - 1, cfg.spind):
        return [raw("s_memrealtime s[56:57]"), raw("s_waitcnt lgkmcnt(0)"), raw(("s_add_u32" if idx == cfg.spind else "s_sub_u32") + " s3, s3, s56")]
    if cfg.spinat == idx: return [raw("s_memrealtime s[56:57]"), raw("s_waitcnt lgkmcnt(0)"), raw("s_mov_b32 s3, s56")]
    if not cfg.stamps: return []
    return [raw("s_memrealtime s[56:57]"), raw("s_memtime s[58:59]"), raw("s_waitcnt lgkmcnt(0)"),
            raw(f"v_writelane_b32 {vStamp}, s56, {2 * idx}"), raw(f"v_writelane_b32 {vStamp}, s58, {2 * idx + 1}")]
def finish(cfg, idx):
    e = []
    if cfg.stamps:
        e += [raw("s_waitcnt vmcnt(0)")] + stamp(cfg, idx)
        e += [raw(f"s_lshl_b32 {sTp}, s2, 2"), raw(f"s_add_u32 {sTp}, {sTp}, {sWave}"), raw(f"s_lshl_b32 {sTp}, {sTp}, 8"),
              raw(f"s_add_u32 {sTp}, {sTp}, {STOFF}"), raw(f"v_lshrrev_b32 v0, 2, {vL16}"),
              raw(f"buffer_store_dword {vStamp}, v0, {sEx}, {sTp} offen")]
        if cfg.dbgst == 2 and idx == 7:
            e += [raw("s_cmp_ge_u32 s2, 16"), raw("s_cbranch_scc1 L_nox"), raw("s_getreg_b32 s56, hwreg(HW_REG_XCC_ID)"), raw("s_add_u32 s56, s56, 100"),
                  raw("v_mov_b32 v1, s56"), raw("s_lshl_b32 s57, s2, 2"), raw(f"buffer_store_dword v1, off, {sDbg}, s57"), raw("L_nox:")]
        if cfg.dbgst == 1 and idx == 7:
            e += [raw(f"v_not_b32 v1, {vStamp}"), raw(f"v_cmp_eq_u32 vcc, 480, {vL16}"), raw("s_nop 1"), raw(f"v_cndmask_b32 v1, {vStamp}, v1, vcc"),
                  raw(f"v_lshrrev_b32 v0, 3, {vL16}"), raw("s_mov_b32 exec_lo, 0x40005555"), raw("s_mov_b32 exec_hi, 0"),
                  raw(f"buffer_atomic_umax v1, v0, {sDbg}, 0 offen sc1"), raw("s_mov_b64 exec, -1")]
    if 7 in (cfg.spinat, cfg.spind) and idx == 7: e += [raw("s_waitcnt vmcnt(0)")] + stamp(cfg, 7)
    if cfg.spinat > -2 and idx == 7:
        e += [raw("L_spin:"), raw("s_sleep 4"), raw("s_memrealtime s[56:57]"), raw("s_waitcnt lgkmcnt(0)"), raw("s_sub_u32 s56, s56, s3"),
              raw(f"s_cmp_lt_u32 s56, {cfg.spinT}"), raw("s_cbranch_scc1 L_spin")]
    return e + [raw("s_endpgm")]

def variant(nq, cfg, common):
    sfx = f"_{nq}"
    st = lambda i: stamp(cfg, i)
    su = setup_variant(nq, cfg) + st(0)
    q1 = qproj(nq, cfg, False); q1.add_wait_sites()
    q2 = qproj(nq, cfg, True); q2.add_wait_sites()
    cp = conv_prologue(nq, cfg)
    jK = lambda: job_tile(nq, 'K', kF, tagK(3), cfg, groups=range(8))
    jV = lambda: job_tile(nq, 'V', vF, tagV(2), cfg, groups=range(4, 8))
    jL = lambda: [job_tile(nq, 'V', vF, tagV(3), cfg, groups=range(4), adv=False)]
    i0 = attn_iter(nq, 0, cfg, first_pv=True, jobs=[jV(), jK()], late=jL())
    i1 = attn_iter(nq, 1, cfg, jobs=[jV(), jK()], late=jL())
    i2 = attn_iter(nq, 0, cfg, jobs=[jV(), jK()], late=jL())
    two = nq == 4 and cfg.twoloops
    if two:
        j1, j2 = i1, i2
        i1 = attn_iter(nq, 1, cfg, jobs=[jV(), jK()], late=jL(), gentle=True)
        i2 = attn_iter(nq, 0, cfg, jobs=[jV(), jK()], late=jL(), gentle=True)
        j2.place(salu("s_sub_u32", sLoop, sLoop, 1), 20, 60)
    fix = []
    for o_, d_ in ((sKoff, 16 * 393216), (sKend, 16 * 393216), (sVoff, 16 * 393216), (sVend, 16 * 393216), (sWoff, 16 * 384), (sWend, 16 * 384)):
        if nq == 3 or o_ in (sWoff, sWend): fix.append(salu("s_add_u32", o_, o_, d_))
    if cfg.rotq: fix += [salu("s_add_u32", sWoff, sWoff, sRw), salu("s_add_u32", sXoff, sXoff, sRx)]
    a13 = attn_iter(nq, 1, cfg, jobs=[jV(), fix, job_x(nq, 0, 1, cfg)])
    a14 = attn_iter(nq, 0, cfg, jobs=[job_tile(nq, 'W', vF, absT('W', 1, 0), cfg), job_x(nq, 1, 1, cfg)], next_k=False, k_rot=False)
    a15 = attn_last(nq, cfg, 'Q')
    pf = []
    if cfg.wopf and nq == 3:
        pf.append(valu("v_lshlrev_b32", V(243), 3, vL16))
        for i in range(8):
            pf.append(gload(V(244), V(243), sWo, sWopf, 0, "", op="buffer_load_dword"))
            pf[-1].wr = []
            pf.append(salu("s_add_u32", sWopf, sWopf, 8192 if i < 6 else 4096) if i < 7 else salu("s_sub_u32", sWopf, sWopf, 6 * 8192 + 4096))
    b13 = attn_iter(nq, 1, cfg, jobs=[jV(), pf], late=[calc_raddr()])
    b14 = attn_iter(nq, 0, cfg, jobs=[([poll_issue(0)] if nq == 3 else []), job_u(0, cfg)], next_k=False, k_rot=False)
    if nq == 3:
        gb = 12 * 9 - 1
        b14.put(gb, wait()); b14.put(gb, poll_check(0))
    b15 = attn_last(nq, cfg, 'P')
    pa = p_chunks(0, CS, nq, cfg)
    ini = [salu("s_lshr_b32", sJmp, sBad.sub(0), 1), salu("s_sub_u32", sJmp, 4, sJmp),
           salu("s_and_b32", sStol, S(2), 1), salu("s_lshl_b32", sStol, sStol, 4), salu("s_sub_u32", sStol, 11, sStol),
           smov(sA18, 19), smov(sHn, 2), salu("s_add_u32", sOn, sOb, 2 * 92160), salu("s_add_u32", sWn, sWb, 2 * 192 * 1280)]
    ini[1].simfn = lambda st: st.__setitem__(str(sJmp), st['jmp'])
    ini[4].simfn = lambda st: st.__setitem__(str(sStol), 11)
    ini[5].simfn = lambda st: st.__setitem__(str(sA18), st['after18'])
    seq_after(pa, ini[:2], 0, 7); seq_after(pa, ini[2:] + next_head(), 400, 470)
    if cfg.ctouch and nq == 3:
        i1.put(10, code_touch(["L_tail1_4", "L_tail1_3"], 144, guard=(sLoop, 1), alt=["L_tail2_4", "L_tail2_3"]))
        q2.put(72 * 2 + 5, code_touch(["L_tail1_4+16384", "L_tail1_3+16384"], 144))
        q2.put(72 * 8 + 5, code_touch(["L_head_4", "L_head_3"] + (["L_tail2_4"] if cfg.twoloops else []), 144))
        if cfg.ctouch > 1: q1.put(72 * 6 + 5, code_touch(["L_head_4", "L_head_3"], 144))
        pa.put(80 * 3 + 9, code_touch(["L_pcommon"], 246))
    i0.place(smov(sLoop, 6), 20, 60)
    i2.place(salu("s_sub_u32", sLoop, sLoop, 1), 20, 60)
    for s in (i0, i1, i2, a13, a14, a15, b13, b14, b15) + ((j1, j2) if two else ()):
        s.add_wait_sites()
        for g_, ins_ in getattr(s, 'extra', []):
            for i_ in ins_: s.put(g_, i_)
    loopend = [scmp("s_cmp_lg_u32", sLoop, 0), raw(f"s_cbranch_scc1 L_loop{sfx}")]
    loopend2 = [scmp("s_cmp_lg_u32", sLoop, 0), raw(f"s_cbranch_scc1 L_tail2{sfx}")]
    headbr = [scmp("s_cmp_lg_u32", sHead, 0), raw(f"s_cbranch_scc1 L_tail2{sfx}")]
    back = [smov(sHead, 1), raw(f"s_branch L_head{sfx}")]
    idlebr = [scmp("s_cmp_lg_u32", sIdle, 0), raw(f"s_cbranch_scc1 L_idle{sfx}"), wait()]
    idle = [label(f"L_idle{sfx}")]
    i = 0
    for s in range(6):
        for q in range(nq):
            idle += epi_block(q, s, TMP[i & 1], cfg); i += 1
    idle += [raw("s_waitcnt vmcnt(0)"), barrier()]
    if nq == 3: idle += [salu("s_add_u32", sSig, sMyc, 64), signal_add(sSig, False)]
    idle += finish(cfg, 8)
    L = lambda s: s.linear()
    s1, s3, s4, s5 = st(1), st(2), st(3), st(4)
    jump = [raw("s_branch L_pcommon")] if nq == 3 else []
    code = su + L(q1) + s1 + [label(f"L_head{sfx}")] + cp + L(i0) + (headbr if two else []) + [raw(".p2align 3", 'L', states=0), label(f"L_loop{sfx}")] + L(i1) + L(i2) + loopend + ([] if two else headbr) \
        + [label(f"L_tail1{sfx}")] + L(a13) + L(a14) + L(a15) + s3 + L(q2) + s4 + back + slow_path(nq, cfg) + idle \
        + [raw(".p2align 12", 'L', states=0), label(f"L_tail2{sfx}")] + (L(j1) + L(j2) + loopend2 if two else []) + L(b13) + L(b14) + L(b15) + s5 + idlebr + L(pa) + jump
    tr = []
    def add(ins, **c): tr.extend((i, c) for i in ins)
    add(su, h=0, t=-9); add(L(q1) + s1, h=0, t=-5)
    for h in range(2):
        add(cp, h=h, t=-1); add(L(i0), h=h, t=0)
        for t in range(1, 13, 2):
            if two and t == 1: add(headbr, h=h, t=0)
            if two and h == 1: add(L(j1), h=h, t=t); add(L(j2), h=h, t=t + 1); add(loopend2, h=h, t=t + 1)
            else: add(L(i1), h=h, t=t); add(L(i2), h=h, t=t + 1); add(loopend, h=h, t=t + 1)
        if not two: add(headbr, h=h, t=12)
        if h == 0:
            add(L(a13), h=0, t=13); add(L(a14), h=0, t=14); add(L(a15) + s3, h=0, t=15); add(L(q2) + s4, h=1, t=-5); add(back, h=1, t=-5)
        else:
            add(L(b13), h=1, t=13); add(L(b14), h=1, t=14); add(L(b15) + s5, h=1, t=15)
    tr_idle = tr + [(i, dict(h=1, t=16)) for i in idlebr[:2] + idle]
    trs = []
    cpre, cloop, cpost = common
    for heads in ([0, 1, 2, 3, 16, 17, 18, 19], [0, 1, 2, 16, 17, 18, 19], [0, 1, 2, 3, 16, 17, 18, 11, 19]):
        t2 = [(i, dict(c, heads=heads)) for i, c in tr]
        t2 += [(i, dict(h=1, t=16, heads=heads)) for i in idlebr + L(pa) + jump + cpre]
        for p in range(len(heads) - 3): t2 += [(i, dict(h=1, t=16, heads=heads, dc=3 * p)) for i in cloop]
        t2 += [(i, dict(h=1, t=16, heads=heads, dc=3 * (len(heads) - 8))) for i in cpost]
        trs.append(t2)
    tr = trs
    info = dict(q1=q1, q2=q2, i0=i0, i1=i1, i2=i2, a13=a13, a14=a14, a15=a15, b13=b13, b14=b14, b15=b15, pa=pa)
    return code, tr, tr_idle, info

def sim_variant(nq, tr, cfg, jmp, a18):
    ok = True
    for w in ([0, 1, 2] if nq == 4 else [3]):
        h0 = 5
        grp = w * 3072 if nq == 4 else 0
        k0 = [0, 4, 32, 0][w]
        ggrp = kv_map(cfg)[1][w] * 3072 if nq == 4 else 0
        kst = 3072 * kv_map(cfg)[0]
        rk = 7 if cfg.rotkv else 0; rq = 3 if cfg.rotq else 0
        init = {'wave': w, 'jmp': jmp, 'after18': a18, 'h0': h0, 'rk': rk, 'rq': rq, str(kR): KS[0], str(kN): KS[1], str(kF): KS[2], str(vR): VS[0], str(vN): VS[1], str(vF): VS[2],
                str(sVcur): 0, str(sWcur): VS[0], str(sKoff): h0 * 393216 + ggrp, str(sVoff): h0 * 393216 + ggrp, str(sWoff): h0 * 384 + k0 * 12288,
                str(sXoff): w * 64 * 1280, str(sOoff): h0 * 92160 + w * 4 * 6144, str(sGrp): grp,
                str(sXl[0]): (KS[1] + w * 8192 if nq == 4 else EB), str(sXl[1]): (KS[2] + w * 8192 if nq == 4 else EB + 6144),
                str(sOb): 1000000, str(sWb): 2000000, str(sLb): 3000}
        init[str(sKend)] = init[str(sKoff)] + 16 * kst; init[str(sVend)] = init[str(sKend)]
        init[str(sWend)] = init[str(sWoff)] + 7864320; init[str(sXend)] = init[str(sXoff)] + 1280
        init[str(sKoff)] += rk * kst; init[str(sVoff)] += rk * kst; init[str(sRw)] = rq * 786432; init[str(sRx)] = rq * 128
        for r in kaddr + vaddr: init[str(r)] = 0
        for r in waddr: init[str(r)] = VS[0]
        if not cfg.fake and not cfg.pfake: ok = sim_scalar(tr, init, f"nq{nq} w{w}") and ok
    return ok

def build(cfg, name):
    su = setup(cfg)
    pl = p_chunks(CS, CS + 3, None, cfg, loop=True)
    pb = p_chunks(NCH - 3, NCH - 2, None, cfg)
    if cfg.ctouch: pl.put(89, code_touch(["L_ptail"], 246, guard=(sHc, 17)))
    pt, fin = p_tail(cfg)
    cpre = [label("L_pcommon")] + stamp(cfg, 5) + [raw(".p2align 3", 'L', states=0), label("L_ploop")]
    cloop = pl.linear() + [scmp("s_cmp_lg_u32", sHc, 19), raw("s_cbranch_scc1 L_ploop")]
    cpost = [label("L_ptail")] + pb.linear() + pt.linear() + stamp(cfg, 6) + fin + finish(cfg, 7)
    parts = (cpre, cloop, cpost)
    common = cpre + cloop + cpost
    c4, t4, ti4, inf4 = variant(4, cfg, parts)
    c3, t3, ti3, inf3 = variant(3, cfg, parts)
    alltr = [("nq4", t) for t in t4] + [("nq3", t) for t in t3] + [("idle4", ti4), ("idle3", ti3)]
    for rep in range(2):
        for n, t in alltr: derive_waits(t, n)
    ok = True
    for n, t in (("nq4", t4[0]), ("nq3", t3[0]), ("idle4", ti4), ("idle3", ti3)): ok = check_hazards(t, n) and ok
    ok = check_seqs(c4 + common) and check_seqs(c3) and ok
    for k, (jmp, a18) in enumerate(((4, 19), (3, 19), (4, 11))):
        ok = sim_variant(4, t4[k], cfg, jmp, a18) and sim_variant(3, t3[k], cfg, jmp, a18) and ok
        ok = check_lds({4: t4[k], 3: t3[k]}) and ok
    for n, inf in (("nq4", inf4), ("nq3", inf3)): print(n, "model cycles:", {k: s.cycles() for k, s in inf.items()})
    print("common", pl.cycles(), pb.cycles(), pt.cycles())
    assert ok
    lines = [f".globl {name}", ".p2align 8", f".type {name},@function", f"{name}:"]
    lines += emit(su) + emit(c4) + emit(common) + ["L_end:", "s_endpgm", "L_v3:"] + emit(c3)
    out = []
    for l in lines: out += l.split("\n")
    return out

if __name__ == "__main__":
    print(len(build(Cfg(), "k_kernel")), "lines")
```

```python
import re

def R(f, a, n=1):
    return [f"{f}{a+i}" for i in range(n)]

def rt(f, a, n=1):
    return f"{f}{a}" if n == 1 else f"{f}[{a}:{a+n-1}]"

class Reg:
    def __init__(self, f, a, n=1):
        self.f, self.a, self.n = f, a, n
    def __str__(self): return rt(self.f, self.a, self.n)
    def regs(self): return R(self.f, self.a, self.n)
    def sub(self, o, n=1): return Reg(self.f, self.a + o, n)
def V(a, n=1): return Reg('v', a, n)
def A(a, n=1): return Reg('a', a, n)
def S(a, n=1): return Reg('s', a, n)

def regs_of(x):
    if isinstance(x, Reg): return x.regs()
    if isinstance(x, str) and x in ('m0', 'vcc', 'exec', 'scc'): return [x]
    return []

class Ins:
    def __init__(self, text, kind, rd=(), wr=(), **kw):
        self.text, self.kind = text, kind
        self.rd, self.wr = list(rd), list(wr)
        self.trans = kw.get('trans', False)
        self.perm = kw.get('perm', False)
        self.srcC = kw.get('srcC', [])
        self.store = kw.get('store', False)
        self.stdata = kw.get('stdata', [])
        self.dma = kw.get('dma', False)
        self.tag = kw.get('tag')
        self.slot = kw.get('slot')
        self.private = kw.get('private', False)
        self.need_vm = kw.get('need_vm')
        self.need_lgkm0 = kw.get('lgkm0', False)
        self.lgkm = None
        self.vm = None
        self.free = kw.get('free', True)
        self.states = kw.get('states', 1)
        self.lgkm_cnt = kw.get('lgkm_cnt', kind == 'D')
    def emit(self):
        if self.kind == 'W':
            p = []
            if self.vm is not None: p.append(f"vmcnt({self.vm})")
            if self.lgkm is not None: p.append(f"lgkmcnt({self.lgkm})")
            if not p: return None
            return "s_waitcnt " + " ".join(p)
        return self.text

def mfma(D, Aop, Bop, C):
    c = str(C) if isinstance(C, Reg) else "0"
    return Ins(f"v_mfma_f32_16x16x32_bf16 {D}, {Aop}, {Bop}, {c}", 'M',
               rd=Aop.regs() + Bop.regs() + regs_of(C), wr=D.regs(), srcC=regs_of(C))
def valu(op, D, *src, kind='V', **kw):
    rd = []
    for s in src: rd += regs_of(s)
    extra_rd = kw.pop('rd', []); extra_wr = kw.pop('wr', [])
    return Ins(f"{op} {D}, " + ", ".join(str(s) for s in src), kind, rd=rd + extra_rd, wr=regs_of(D) + extra_wr, **kw)
def vexp(D, s): return valu("v_exp_f32", D, s, kind='E', trans=True)
def vrcp(D, s): return valu("v_rcp_f32", D, s, kind='E', trans=True)
def vperm(which, a, b):
    return Ins(f"v_permlane{which}_swap_b32 {a}, {b}", 'E', rd=a.regs() + b.regs(), wr=a.regs() + b.regs(), perm=True)
def salu(op, D, *src, scc=True, **kw):
    rd = []
    for s in src: rd += regs_of(s)
    return Ins(f"{op} {D}, " + ", ".join(str(s) for s in src), 'S', rd=rd + kw.pop('rd', []),
               wr=regs_of(D) + (['scc'] if scc else []), **kw)
def smov(D, s): return salu("s_mov_b32", D, s, scc=False)
def scmp(op, a, b):
    return Ins(f"{op} {a}, {b}", 'S', rd=regs_of(a) + regs_of(b), wr=['scc'])
def nop(n=0): return Ins(f"s_nop {n}", 'S', states=n + 1)
def raw(text, kind='S', rd=(), wr=(), **kw): return Ins(text, kind, rd, wr, **kw)
def label(name): return Ins(name + ":", 'L', states=0)
def dsread(op, D, addr, off, tag=None, private=False):
    o = f" offset:{off}" if off else ""
    return Ins(f"{op} {D}, {addr}{o}", 'D', rd=addr.regs(), wr=D.regs(), tag=tag, private=private)
def dswrite(op, addr, data, off):
    o = f" offset:{off}" if off else ""
    return Ins(f"{op} {addr}, {data}{o}", 'D', rd=addr.regs() + data.regs())
def dma(addr, srd, soff, off, flags="", tag=None, slot=None, private=False):
    o = f" offset:{off}" if off else ""
    fl = f" {flags}" if flags else ""
    return Ins(f"buffer_load_dwordx4 {addr}, {srd}, {soff} offen{o}{fl} lds", 'X',
               rd=addr.regs() + srd.regs() + regs_of(soff) + ['m0'], dma=True, tag=tag, slot=slot, private=private)
def gload(D, addr, srd, soff, off, flags="", op="buffer_load_dwordx4"):
    o = f" offset:{off}" if off else ""
    fl = f" {flags}" if flags else ""
    return Ins(f"{op} {D}, {addr}, {srd}, {soff} offen{o}{fl}", 'X',
               rd=addr.regs() + srd.regs() + regs_of(soff), wr=D.regs())
def gstore(data, addr, srd, soff, off, flags="", op=None):
    op = op or {1: "buffer_store_dword", 2: "buffer_store_dwordx2", 4: "buffer_store_dwordx4"}[data.n]
    o = f" offset:{off}" if off else ""
    fl = f" {flags}" if flags else ""
    return Ins(f"{op} {data}, {addr}, {srd}, {soff} offen{o}{fl}", 'X',
               rd=addr.regs() + srd.regs() + regs_of(soff) + data.regs(), store=True, stdata=data.regs())
def wait(need_vm=None, lgkm0=False, free=True): return Ins("", 'W', need_vm=need_vm, lgkm0=lgkm0, free=free)
def barrier(): return Ins("s_barrier", 'B')

COST = {'M': 4, 'S': 1, 'W': 1, 'B': 1, 'V': 1, 'E': 2, 'D': 2, 'X': 3, 'L': 0}

class Sched:
    def __init__(self, mf):
        self.mf = mf
        self.g = [[] for _ in mf]
        self.pre = []
        self.post = []
    def _slots(self, items):
        items = self.order(items)
        t = 1
        prev = None
        for it in items:
            k = it.kind
            if k in 'VE' and t < 2: t = 2
            if k in 'DX' and prev in ('V', 'E'): t += 1
            t += getattr(it, 'cost', COST[k])
            prev = k
        return t
    @staticmethod
    def order(items):
        return items
    def fits(self, i, ins, front=False):
        items = ([ins] + self.g[i]) if front else (self.g[i] + [ins])
        return self._slots(items) <= 4
    def put(self, i, ins, front=False):
        if front: self.g[i].insert(0, ins)
        else: self.g[i].append(ins)
    def place(self, ins, lo, hi, force=True):
        hi = min(hi, len(self.g) - 1)
        assert lo <= hi, (ins.text, lo, hi)
        for i in range(lo, hi + 1):
            cand = self._insert(self.g[i], ins)
            if self._slots(cand) <= 4:
                self.g[i] = cand
                return i
        if not force: return None
        best = min(range(lo, hi + 1), key=lambda i: self._slots(self._insert(self.g[i], ins)))
        self.g[best] = self._insert(self.g[best], ins)
        return best
    @staticmethod
    def _insert(items, ins):
        if ins.kind in 'VE': return items + [ins]
        k = 0
        while k < len(items) and items[k].kind not in 'VE': k += 1
        return items[:k] + [ins] + items[k:]
    def add_wait_sites(self):
        for i in range(len(self.g)):
            if any(it.kind == 'W' for it in self.g[i]): continue
            w = wait()
            cand = self._insert(self.g[i], w)
            if self._slots(cand) <= max(4, self._slots(self.g[i])):
                self.g[i] = cand
    def linear(self):
        out = list(self.pre)
        for m, g in zip(self.mf, self.g):
            out.append(m); out += g
        return out + list(self.post)
    def part(self, lo, hi):
        out = []
        for m, g in zip(self.mf[lo:hi], self.g[lo:hi]):
            out.append(m); out += g
        return out
    def cycles(self):
        return sum(4 * max(4, self._slots([x for x in g if not (x.kind == 'W' and x.emit() is None)])) for g in self.g)

def derive_waits(trace, name="", verbose=False):
    changed = True
    npass = 0
    mind = {}
    while changed:
        changed = False
        npass += 1
        assert npass < 50
        pend = {}
        nl = nv = 0
        donel = donev = 0
        sites = []
        vmtags = {}
        lissue = {}; vissue = {}
        mcount = 0
        for pos, (ins, ctx) in enumerate(trace):
            if ins.kind == 'W':
                if ins.need_vm is not None:
                    need = ins.need_vm(ctx)
                    if need == 'all': idx = nv
                    else: idx = max([vmtags.get(t, 0) for t in need] + [0])
                    if idx > donev:
                        n = min(63, nv - idx)
                        if ins.vm is None or n < ins.vm: ins.vm = n; changed = True
                if ins.need_lgkm0 and ins.lgkm != 0:
                    ins.lgkm = 0; changed = True
                if ins.lgkm is not None and nl - ins.lgkm > donel:
                    d = mcount - lissue[nl - ins.lgkm]
                    mind[id(ins)] = min(mind.get(id(ins), (1 << 30, None))[0], d), pos
                    donel = nl - ins.lgkm
                if ins.vm is not None: donev = max(donev, nv - ins.vm)
                sites.append((ins, nl, nv))
                continue
            for r in ins.rd + ins.wr:
                if r in pend:
                    c, idx = pend[r]
                    if c == 'l' and idx > donel:
                        ok = False
                        for (w, snl, snv) in reversed(sites):
                            if snl < idx: break
                            if not w.free: continue
                            n = min(15, snl - idx)
                            if w.lgkm is None or n < w.lgkm: w.lgkm = n; changed = True
                            donel = max(donel, snl - w.lgkm); ok = True
                            break
                        assert ok, f"{name}: no lgkm wait site for {ins.text} (reg {r}) ctx {ctx}"
                    if c == 'v' and idx > donev:
                        ok = False
                        for (w, snl, snv) in reversed(sites):
                            if snv < idx: break
                            if not w.free: continue
                            n = min(63, snv - idx)
                            if w.vm is None or n < w.vm: w.vm = n; changed = True
                            donev = max(donev, snv - w.vm); ok = True
                            break
                        assert ok, f"{name}: no vm wait site for {ins.text} (reg {r}) ctx {ctx}"
                    del pend[r]
            if ins.kind == 'M': mcount += 1
            if ins.lgkm_cnt:
                nl += 1; lissue[nl] = mcount
                for r in ins.wr: pend[r] = ('l', nl)
            if ins.kind == 'X':
                nv += 1; vissue[nv] = mcount
                for r in ins.wr: pend[r] = ('v', nv)
                if ins.dma and ins.tag: vmtags[ins.tag(ctx)] = nv
                if ins.store: vmtags['stores'] = nv
        if changed: mind = {}
    if verbose:
        short = sorted((d, p) for d, p in mind.values())[:12]
        print(f"[{name}] shortest ds->wait distances (mfma count, pos):", short)

def live(trace):
    return [(i, c) for (i, c) in trace if not (i.kind == 'W' and i.emit() is None) and i.kind != 'L']

def check_hazards(trace, name=""):
    tr = live(trace)
    errs = []
    n = len(tr)
    def look(i, need, pred, what):
        st = 0
        j = i + 1
        while j < n and st < need:
            c = tr[j][0]
            if pred(c):
                errs.append(f"{what}: [{tr[i][0].text}] -> [{c.emit()}] states {st} < {need} ctx {tr[i][1]}")
            st += c.states
            j += 1
    for i, (p, ctx) in enumerate(tr):
        W = set(p.wr)
        if p.kind == 'M':
            def cons8(c):
                if c.kind == 'M':
                    ab = set(c.rd) - set(c.srcC)
                    return bool(ab & W)
                if c.kind in 'VEDX': return bool((set(c.rd) | set(c.wr)) & W)
                return False
            look(i, 8, cons8, "mfmaD->use")
            look(i, 6, lambda c: c.kind == 'M' and bool(set(c.srcC) & W) and c.srcC != p.wr, "mfmaD->partialC")
            look(i, 6, lambda c: c.kind == 'M' and bool(set(c.wr) & W) and c.srcC != p.wr, "mfmaD->WAW")
            C = set(p.srcC)
            look(i, 3, lambda c: c.kind in 'VE' and bool(set(c.wr) & C), "mfmaC WAR")
        if p.kind in 'VE':
            vw = {r for r in W if r[0] in 'va' and r != 'vcc'}
            sw = W - vw
            look(i, 2, lambda c: c.kind == 'M' and bool(set(c.rd) & vw), "valu->mfma")
            look(i, 2, lambda c: c.perm and bool(set(c.rd) & vw), "valu->permlane")
            look(i, 1, lambda c: 'readfirstlane' in c.text and bool(set(c.rd) & vw), "valu->readlane")
            if p.trans:
                look(i, 1, lambda c: c.kind in 'VE' and not c.trans and bool(set(c.rd) & vw), "trans->valu")
            if sw:
                look(i, 5, lambda c: c.kind == 'X' and bool(set(c.rd) & sw), "valu sgpr->vmem")
                look(i, 2, lambda c: c.kind in 'VE' and bool(set(c.rd) & sw), "valu sgpr->valu")
                look(i, 4, lambda c: c.kind == 'S' and bool(set(c.rd) & sw), "valu sgpr->salu(pad)")
        if p.kind == 'S' and 'm0' in W:
            look(i, 1, lambda c: c.dma, "m0->dma")
        if p.store and len(p.stdata) > 2:
            D = set(p.stdata)
            look(i, 2, lambda c: c.kind in 'VE' and bool(set(c.wr) & D), "store data WAR")
    seen = set()
    for e in errs:
        k = e.split(" ctx")[0]
        if k not in seen:
            seen.add(k); print(f"HAZARD[{name}]", e)
    return not errs

def lds_events(trace):
    ep = 0
    nl = nv = 0
    dmas = []
    reads = []
    pl = pv = 0
    for pos, (ins, ctx) in enumerate(trace):
        if ins.kind == 'B': ep += 1
        if ins.kind == 'W':
            if ins.lgkm is not None:
                while pl < len(reads) and reads[pl][1] <= nl - ins.lgkm:
                    reads[pl][3] = ep; reads[pl][6] = pos; pl += 1
            if ins.vm is not None:
                while pv < len(dmas) and dmas[pv][2] <= nv - ins.vm:
                    dmas[pv][4] = ep; dmas[pv][7] = pos; pv += 1
        if ins.lgkm_cnt:
            nl += 1
            if ins.tag: reads.append([ins.tag(ctx), nl, ep, None, ins.private, pos, None])
        if ins.kind == 'X':
            nv += 1
            if ins.dma and ins.tag:
                sl = ins.slot(ctx)
                for x in ([('k', sl[1]), ('v', sl[1])] if isinstance(sl, tuple) and sl[0] == 'kv' else [sl]):
                    dmas.append([ins.tag(ctx), x, nv, ep, None, ins.private, pos, None])
    return dmas, reads, ep

def check_lds(traces, name=""):
    ev = {k: lds_events(t) for k, t in traces.items()}
    eps = {k: e[2] for k, e in ev.items()}
    ok = True
    if len(set(eps.values())) != 1:
        print("LDS: barrier counts differ", eps); ok = False
    INF = 1 << 30
    done = {}; written = set()
    for k, (dm, rd, _) in ev.items():
        for d in dm:
            written.add(d[0])
            if not d[5]: done[d[0]] = max(done.get(d[0], -1), INF if d[4] is None else d[4])
    for k, (dm, rd, _) in ev.items():
        pdone = {}
        for d in dm:
            if d[5]: pdone[d[0]] = max(pdone.get(d[0], -1), INF if d[7] is None else d[7])
        for r in rd:
            if r[0] not in written: print("LDS: read of never written tile", r[0], k); ok = False; continue
            if r[4]:
                if not pdone.get(r[0], INF) < r[5]: print("LDS RAW(private)", k, r[0]); ok = False
            elif not done[r[0]] < r[2]:
                print("LDS RAW", k, r[0], "dma done epoch", done[r[0]], "read epoch", r[2]); ok = False
    rdone = {}
    for k, (dm, rd, _) in ev.items():
        for r in rd:
            rdone.setdefault(r[0], {})
            e = rdone[r[0]].get(k, (-1, -1))
            rdone[r[0]][k] = (max(e[0], INF if r[3] is None else r[3]), max(e[1], INF if r[6] is None else r[6]))
    occ = {}
    first = {}
    for k, (dm, rd, _) in ev.items():
        for d in dm:
            key = (d[1], d[0])
            first[key] = min(first.get(key, (INF, INF)), (d[3], d[6]))
    for (slot, tile), e in sorted(first.items(), key=lambda x: x[1]):
        occ.setdefault(slot, []).append(tile)
    priv = {}
    for k, (dm, rd, _) in ev.items():
        for d in dm: priv[d[0]] = d[5]
    for k, (dm, rd, _) in ev.items():
        for d in dm:
            lst = occ[d[1]]
            i = lst.index(d[0])
            if i == 0: continue
            prev = lst[i - 1]
            for k2, (e, p) in rdone.get(prev, {}).items():
                if d[5] and priv[prev]:
                    if k2 == k and not p < d[6]: print("LDS WAR(private)", k, d[0], "over", prev); ok = False
                else:
                    if priv[prev] and not any(x[0] == prev and x[1] == d[1] for x in ev[k2][0]): continue
                    if not e < d[3]:
                        print("LDS WAR", k, d[0], "issue epoch", d[3], "over", prev, "read done epoch", e, k2); ok = False
    return ok

def est_cycles(lin):
    t = 0; lastm = -99; prev = None
    for it in lin:
        if it.kind == 'L' or (it.kind == 'W' and it.emit() is None): continue
        k = it.kind
        if k == 'M':
            t = max(t, lastm + 4); lastm = t; t += 1
        else:
            if k in 'VE': t = max(t, lastm + 2)
            if k in 'DX' and prev in ('V', 'E'): t += 1
            t += getattr(it, 'cost', COST[k])
        prev = k
    return 4 * max(t, lastm + 4)
SEQS = []
def check_seqs(code):
    pos = {id(i): k for k, i in enumerate(code)}
    ok = True
    for seq in SEQS:
        p = [pos[id(i)] for i in seq if id(i) in pos]
        if p != sorted(p):
            print("SEQ ORDER broken:", [i.text for i in seq][:6], p); ok = False
    return ok

def sim_scalar(trace, init, name=""):
    st = dict(init)
    ok = True
    def val(x):
        x = x.strip()
        if x in st: return st[x]
        if re.fullmatch(r"-?\d+|0x[0-9a-f]+", x): return int(x, 0)
        return None
    nerr = 0
    for ins, ctx in trace:
        ex = getattr(ins, 'expect', None)
        if ex is not None:
            msg = ex(ctx, st)
            if msg:
                ok = False; nerr += 1
                if nerr < 10: print(f"SIM[{name}] {ins.text}: {msg} ctx {ctx}")
        if hasattr(ins, 'simfn'): ins.simfn(st); continue
        m = re.match(r"(s_add_u32|s_sub_u32|s_mov_b32|v_add_u32) (\S+), (\S+?)(?:, (\S+))?$", ins.text)
        if (not m or getattr(ins, 'nosim', False)) and ins.kind != 'M':
            for r in ins.wr: st.pop(r, None)
        if m and not getattr(ins, 'nosim', False):
            op, d, a, b = m.groups()
            va = val(a); vb = val(b) if b else None
            if op == 's_mov_b32': r = va
            elif va is None or vb is None: r = None
            elif op == 's_sub_u32': r = (va - vb) & 0xffffffff
            else: r = (va + vb) & 0xffffffff
            if r is None: st.pop(d, None)
            else: st[d] = r
    return ok

def emit(instrs):
    out = []
    for i in instrs:
        t = i.emit()
        if t is not None: out.append(t)
    return out
```

```python
import math, struct
from asmlib import *

SL = 24832
KS = [0, SL, 2 * SL]
VS = [3 * SL, 4 * SL, 5 * SL]
EB = 6 * SL
FLAG = EB + 12288
LDS_BYTES = 163840

sX, sW, sK, sV, sO = S(4, 4), S(8, 4), S(12, 4), S(16, 4), S(20, 4)
sWave = S(24)
kR, kN, kF = S(25), S(26), S(27)
vR, vN, vF = S(28), S(29), S(30)
sKoff, sVoff, sWoff, sXoff = S(31), S(32), S(33), S(34)
sLoop, sHead = S(35), S(36)
sThr = S(37)
sC2 = S(38, 2)
sGrp = S(40)
sT0, sT1, sT2, sT3, sT4 = S(41), S(42), S(43), S(47), S(55)
sXl = [S(44), S(45)]
sOoff = S(46)
sWcur, sVcur = S(48), S(49)
sTo = S(50)
sTx = S(51)
sBad = S(52, 2)
sWopf = S(54)
sTs = S(56, 4)
sOr, sOut, sEx, sDbg = S(60, 4), S(64, 4), S(68, 4), S(72, 4)
sOb, sWb, sLb, sOutb = S(76), S(77), S(78), S(79)
sExs, sExr, sFs, sFr = S(80), S(81), S(82), S(83)
sRw, sRx = S(0), S(1)
sSig, sCnt, sMyc = S(84), S(85), S(86)
sRedo, sIdle = S(87), S(88)
sArr, sUni = S(40), S(35)
sK0, sW0, sX0 = S(89), S(90), S(91)
sKend, sVend, sWend, sXend = S(92), S(93), S(94), S(95)
sWo = S(96, 4)
sSpin = S(100)
sTp = S(101)
sHc, sHn, sJmp, sStol = S(25), S(26), S(27), S(28)
sOc, sWc, sOn, sWn = S(29), S(30), S(31), S(32)
sA18 = S(33)
OOB = 0x7fff0000
EXOFF = 0x3000000
FLOFF = 0xC00000
STOFF = 0x1000000

def blk(q, s): return q * 6 + s
def Qf(q, s): return V(8 * blk(q, s), 4)
def QACC(T, q): return V(8 * blk(q, T >> 1) + 4 * (T & 1), 4)
def U(i): return V(8 * i + 4, 4)
def Pf(par, q, u): return U(par * 8 + q * 2 + u)
def Sf(i): return U(16 + (i & 3))
def Ci(q): return U(20 + q)
def VB(b, u, e=None):
    return V(192 + 8 * b + 4 * u, 4) if e is None else V(192 + 8 * b + 4 * u + 2 * e, 2)
TMP = [V(216, 8), V(224, 8)]
def Lq(q): return V(232 + q)
kaddr = [V(236), V(237)]
vaddr = [V(238), V(239), V(240), V(241)]
waddr = [V(242), V(243)]
xaddr = [V(244), V(245)]
dKV = [V(144), V(145), V(146)]
vTi, vTw, vTr = V(246), V(247), V(248)
SCR = 18432
dW = [V(249), V(250), V(251)]
dX = V(252)
vL16 = V(253)
vt0, vt1 = V(224), V(225)
vOne = V(254)
vStamp = V(255)
raddr = [V(249), V(250), V(251), V(242)]
def PACC(N, q): return V(4 * (N * 5 + q), 4)
def OF(b, q, u):
    i = 2 * q + u
    if b == 0: return A(192 + 4 * i, 4)
    if b == 1: return A(232 + 4 * i, 4) if i < 6 else U(20 + i - 6)
    return V(8 * (20 + i), 4) if i < 4 else A(4 * (i - 4), 4)
def Oacc(T, q): return A(4 * (T * 4 + q), 4)
def Lacc(q): return A(240 + 4 * q, 4)
ONES = V(232, 4)
def Kf(b, s): return A(192 + 24 * b + 4 * s, 4)
def Xf(par, q, u): return A(192 + 32 * par + 8 * q + 4 * u, 4)

WHAT = [0]
_mfma = mfma
def mfma(D, a, b, C, kind=''):
    w = WHAT[0]
    if (kind == 'pv' and w & 2) or (kind == 'q' and w & 16) or (kind == 'p' and w & 32) or (kind == 'qk' and w & 64): a, b = b, a
    return _mfma(D, a, b, C)
def fbits(x): return "0x%08x" % struct.unpack("<I", struct.pack("<f", x))[0]

class Cfg:
    wshift = 8
    kvflags = "nt"
    wflags = ""
    xflags = ""
    oflags = ""
    orflags = "sc1"
    woflags = ""
    pubchunk = 4
    epist = 7
    balance = 1
    wb = 1
    pvswap = 1
    pswap = 1
    whatif = 0
    xvalu = 0
    qshift = 1
    k0st = 6
    k0n = 2
    gentle2 = 0
    pubgap = 0
    tw = 1
    tl = 1
    o1flags = "sc1"
    o1pf = 0
    k0early = 0
    epist3 = 7
    cyc = 0
    rpdet = 0
    midT = 17000
    midspin = -1
    exflags = "sc1"
    exrflags = "sc1"
    spinT = 20000
    spind = -1
    spinat = -2
    twoloops = 1
    gentle = 2
    pfake = 0
    pclus = 0
    prd = 1
    pskip = 0
    markchunk = 0
    xend = 120
    ctouch = 2
    kvperm = 4
    lmfma = 1
    dbgst = 0
    xpace = 0
    l2pf = 0
    l2n = 3
    l2tot = 12
    l2fl = ""
    ntlate = 99
    outflags = ""
    thr = 40
    stamps = False
    fake = 0
    nostore = 0
    w3all = 1
    rotkv = 1
    rotq = 1
    codepf = 1
    wopf = 1

def tagK(dn): return lambda c: ('K', c['h'], c['t'] + dn)
def tagV(dn): return lambda c: ('V', c['h'], c['t'] + dn)
def absT(kind, dh, n): return lambda c: (kind, c['h'] + dh, n)
def slot_of(tile, nq):
    k, h, n = tile
    if k == 'K': return ('k', n % 3)
    if k == 'x': return ('k', 1 + n % 2) if nq == 4 else ('e', n % 2)
    if k == 'W': return ('v', (h * 26 + n) % 3)
    if k == 'V': return ('v', (h * 26 + 10 + n) % 3)
    if k == 'U': return ('kv', (n + 1) % 3)

def kv_map(cfg):
    return {0: (8, list(range(8))),
            1: (1, [0, 32, 64, 96, 16, 48, 80, 112]),
            2: (2, [0, 32, 64, 96, 1, 33, 65, 97]),
            3: (4, [0, 64, 1, 65, 2, 66, 3, 67]), 4: (0, RM_ODD)}[cfg.kvperm]
RM_C = [0, 11, 21, 32]
RM_ODD = [10, 31, 42, 53, 74, 85, 96, 117]
RM_ORDER = sorted(((n + RM_C[i] * 3 - 32 * i, i, n) for i in range(4) for n in range(6)))
def rm_base(idx): return 2 * idx + 33 * (idx // 5)
def rm_group(n, rk, mm):
    return RM_ODD[mm] if n == 0 else rm_base((n - 1 + rk) % 15) + RM_C[mm >> 1] + (mm & 1)
dRM = [[V(8 * (18 + i) + m) for m in range(3)] for i in range(4)]
def slot_base(slot):
    return {'k': KS, 'v': VS, 'e': [EB, EB + 6144]}[slot[0]][slot[1]]
def exp_dma(ins, tag, nq, soff, imm, idx, cfg, vgo=0):
    def f(c, st):
        k, h, n = tag(c); w = st['wave']; base = slot_base(slot_of((k, h, n), nq)); hh = st['h0'] + 16 * h
        if k == 'x':
            el = base + (w * 8192 if nq == 4 else 0) + idx * 1024
            eg = w * 64 * 1280 + 128 * ((n + st['rq'] * h) % 10) + idx * 10240
        else:
            i = idx + (3 * w if nq == 4 else 0); mm = i // 3
            n0 = n
            n = (n + st['rq'] * h) % 10 if k == 'W' else (n + st['rk']) % 16
            el = base + i * 1024
            if k == 'W':
                el += cfg.wshift if mm >= 4 else 0
                eg = hh * 384 + (64 * n + 32 * ((mm & 3) >> 1) + 4 * (mm & 1) + 8 * (mm >> 2)) * 12288 + (i % 3) * 1024
            elif cfg.kvperm == 4: eg = hh * 393216 + rm_group(n0, st['rk'], mm) * 3072 + (i % 3) * 1024 - vgo
            else: eg = hh * 393216 + (n * kv_map(cfg)[0] + kv_map(cfg)[1][mm]) * 3072 + (i % 3) * 1024
        gl, gg = st.get('m0'), st.get(str(soff))
        if gl is None or gg is None or gl + imm != el or gg + imm != eg: return f"lds {gl}+{imm} vs {el}; glob {gg}+{imm} vs {eg} tile {(k, h, n)}"
    ins.expect = f
    return ins
def exp_rd(ins, addr, tag):
    def f(c, st):
        base = slot_base(slot_of(tag(c), 4))
        if st.get(str(addr)) != base: return f"base {st.get(str(addr))} vs {base} tile {tag(c)}"
    ins.expect = f
    return ins

def advance(off, end, step, span, on=True):
    o = [salu("s_add_u32", off, off, step)]
    if on:
        i = Ins(f"s_cmp_eq_u32 {off}, {end}\ns_cselect_b32 {sT4}, {span}, 0", 'S', rd=off.regs() + end.regs(), wr=['scc'] + sT4.regs(), states=2)
        i.cost = 2
        i.simfn = lambda st: st.__setitem__(str(sT4), span if st[str(off)] == st[str(end)] else 0)
        o += [i, salu("s_sub_u32", off, off, sT4)]
    return o

def rm_offset(off, idx):
    o = [salu("s_mul_i32", sT4, idx, 13, scc=False), salu("s_lshr_b32", sT4, sT4, 6), salu("s_mul_i32", sT4, sT4, 33 * 3072, scc=False),
         salu("s_mul_i32", off, idx, 6144, scc=False), salu("s_add_u32", off, off, sT4), salu("s_add_u32", off, off, sK0)]
    o[-1].simfn = lambda st: st.__setitem__(str(off), st[str(sK0)] + rm_base(st[str(idx)]) * 3072)
    return o
def rm_advance(off, idx):
    w = Ins(f"s_cmp_eq_u32 {idx}, 15\ns_cselect_b32 {idx}, 0, {idx}", 'S', rd=idx.regs(), wr=['scc'] + idx.regs(), states=2)
    w.cost = 2
    w.simfn = lambda st: st.__setitem__(str(idx), st[str(idx)] % 15)
    return [salu("s_add_u32", idx, idx, 1), w] + rm_offset(off, idx)
def job_tile(nq, kind, slotreg, tag, cfg, groups=None, adv=True, flo=None, odd=False):
    srd, off, end, addr, fl = {'K': (sK, sKoff, sKend, dKV, cfg.kvflags), 'V': (sV, sVoff, sVend, dKV, cfg.kvflags),
                               'W': (sW, sWoff, sWend, dW, cfg.wflags)}[kind]
    sl = lambda c: slot_of(tag(c), nq)
    if flo is not None: fl = flo
    out = []
    if cfg.kvperm == 4 and kind != 'W':
        if nq == 4: return []
        if odd:
            for mm in groups:
                out.append(salu("s_add_u32", 'm0', slotreg, mm * 3072))
                out.append(salu("s_add_u32", sT0, sK0, RM_ODD[mm] * 3072))
                for m in range(3): out.append(exp_dma(dma(addr[m], srd, sT0, 1024 * m, fl, tag=tag, slot=sl), tag, nq, sT0, 1024 * m, 3 * mm + m, cfg))
            return out
        sel = [x for g in groups for x in RM_ORDER[3 * g:3 * g + 3]]
        hi_set = False
        for rho, i, n in sel:
            if n >= 3 and not hi_set: out.append(salu("s_add_u32", sT0, off, 3072)); hi_set = True
            out.append(salu("s_add_u32", 'm0', slotreg, 6144 * i + 3072 * (n // 3)))
            so = sT0 if n >= 3 else off
            d = exp_dma(dma(dRM[i][n % 3], srd, so, 1024 * (n % 3), fl, tag=tag, slot=sl), tag, nq, so, 1024 * (n % 3), 6 * i + n, cfg, vgo=RM_C[i] * 3072)
            d.burst = (kind, rho)
            out.append(d)
        if adv: out += rm_advance(off, end)
        return out
    if nq == 4:
        if groups is None:
            out.append(salu("s_add_u32", 'm0', slotreg, sGrp))
            for m in range(3): out.append(exp_dma(dma(addr[m], srd, off, 1024 * m, fl, tag=tag, slot=sl), tag, nq, off, 1024 * m, m, cfg))
    else:
        for mm in (range(3, 8) if groups is None else groups):
            if kind == 'W':
                k0 = 32 * ((mm & 3) >> 1) + 4 * (mm & 1) + 8 * (mm >> 2)
                go = k0 * 12288; lo = mm * 3072 + (cfg.wshift if mm >= 4 else 0)
            else:
                lo = mm * 3072; go = kv_map(cfg)[1][mm] * 3072
            out.append(salu("s_add_u32", 'm0', slotreg, lo))
            out.append(salu("s_add_u32", sT0, off, go))
            for m in range(3): out.append(exp_dma(dma(addr[m], srd, sT0, 1024 * m, fl, tag=tag, slot=sl), tag, nq, sT0, 1024 * m, 3 * mm + m, cfg))
    if adv and (nq == 3 or kind == 'W'):
        step = 786432 if kind == 'W' else 3072 * kv_map(cfg)[0]
        if cfg.fake and (kind != 'W' or cfg.fake > 1): step = 0
        out += advance(off, end, step, 7864320 if kind == 'W' else 16 * 3072 * kv_map(cfg)[0])
    return out

def job_x(nq, n, dh, cfg, dep=()):
    tag = absT('x', dh, n); sl = lambda c: slot_of(tag(c), nq)
    out = []
    for i in range(2 * nq):
        if i % 4 == 0: out.append(salu("s_add_u32", 'm0', sXl[n & 1], 1024 * i))
        out.append(salu("s_add_u32", sTx, sXoff, 10240 * i - 1024 * (i % 4)))
        d = dma(dX, sX, sTx, 1024 * (i % 4), 'nt' if n >= cfg.ntlate else cfg.xflags, tag=tag, slot=sl, private=True)
        exp_dma(d, tag, nq, sTx, 1024 * (i % 4), i, cfg)
        if i == 0: d.rd += list(dep)
        out.append(d)
    out += advance(sXoff, sXend, 0 if cfg.fake > 1 else 128, 1280)
    return out

BSTAMP = ['s_memrealtime']
def bstamp(sc, gw, gl):
    sc.put(gw, raw(BSTAMP[0] + " s[56:57]"), front=True)
    sc.put(gl, unit([f"v_cmp_eq_u32 vcc, s3, {vL16}", f"v_mov_b32 {vOne}, s56", "s_add_u32 s3, s3, 16", f"v_cndmask_b32 {vStamp}, {vStamp}, {vOne}, vcc"], 'V', cost=3))
def code_touch(targets, regs, guard=None, alt=None):
    lo, hi_, dummy = V(regs), V(regs + 1), V(regs + 2 if regs < 200 else regs - 1)
    _uid[0] += 1; n0 = _uid[0]
    l = [f"s_cmp_lg_u32 {guard[0]}, {guard[1]}", f"s_cbranch_scc1 L_cts{n0}"] if guard else []
    def one(target):
        _uid[0] += 1; n = _uid[0]
        return ["s_getpc_b64 s[58:59]", f"L_ct{n}:", f"s_add_u32 s58, s58, {target}-L_ct{n}", f"s_addc_u32 s59, s59, 0-(({target}-L_ct{n})>>63)",
                "s_and_b32 s57, s58, 0xf80", "s_and_b32 s58, s58, 0xfffff000",
                f"v_lshrrev_b32 {lo}, 7, {vL16}", f"v_lshlrev_b32 {lo}, 12, {lo}", f"v_max_u32 {lo}, s57, {lo}",
                f"v_and_b32 {hi_}, 0x70, {vL16}", f"v_lshl_add_u32 {lo}, {hi_}, 3, {lo}",
                f"v_min_u32 {lo}, L_code_end-({target})-4, {lo}",
                f"v_mov_b32 {hi_}, s59", f"v_add_co_u32 {lo}, vcc, s58, {lo}", "s_nop 1", f"v_addc_co_u32 {hi_}, vcc, 0, {hi_}, vcc",
                f"global_load_dword {dummy}, v[{lo.a}:{hi_.a}], off"]
    if alt: l += [f"s_cmp_lg_u32 {sHead}, 0", f"s_cbranch_scc1 L_cta{n0}"]
    for t in targets: l += one(t)
    if alt:
        l += [f"s_branch L_cts{n0}", f"L_cta{n0}:"]
        for t in alt: l += one(t)
    l.append(f"L_cts{n0}:")
    u = unit(l, 'S', cost=2 if guard else 20 * len(targets), wr=['scc', 'vcc'])
    u.states = 1
    return u
def lchain(q, par, first):
    o = [mfma(Lacc(q), ONES, Pf(par, q, u), 0 if (first and u == 0) else Lacc(q)) for u in range(2)]
    for i in o: i.cost = 4
    return o

def seq_after(sc, seq, lo, hi, even=False):
    seq = list(seq)
    SEQS.append(seq)
    hi = min(hi, len(sc.g) - 1)
    n = len(seq)
    nx = sum(1 for i in seq if i.kind == 'X'); kx = 0
    g = lo; prev = None; pg = None
    for k, ins in enumerate(seq):
        dl = max(g, min(hi, lo + ((k + 1) * (hi - lo + 1) + n - 1) // n - 1))
        if not even: dl = max(g, min(hi, hi - (n - 1 - k) // 2))
        g1 = g
        if even and ins.kind == 'X': g1 = max(g, min(dl, lo + (kx * (hi - lo + 1)) // nx))
        same_bad = prev is not None and ((prev.kind in 'VE' and ins.kind not in 'VE') or ('m0' in prev.wr and ins.dma))
        if same_bad and g1 == pg:
            if g1 + 1 <= hi: g1 += 1; dl = max(dl, g1)
            else:
                if 'm0' in prev.wr: sc.g[g1].append(nop(0))
                sc.g[g1].append(ins); prev = ins; pg = g1
                for rest in seq[k + 1:]:
                    if 'm0' in prev.wr and rest.dma: sc.g[g1].append(nop(0))
                    sc.g[g1].append(rest); prev = rest
                return g1
        r = sc.place(ins, g1, dl, force=True)
        if ins.kind == 'X': kx += 1
        g = r; pg = r; prev = ins
    return g

def place_even(sc, seq, lo, hi):
    if any(hasattr(i, 'burst') for i in seq): return place_bursts(sc, seq, lo, hi)
    return seq_after(sc, seq, lo, hi, even=True)
def place_bursts(sc, seq, lo, hi):
    seq = list(seq); SEQS.append(seq)
    hi = min(hi, len(sc.g) - 1)
    xs = [i for i in seq if i.kind == 'X']; nx = len(xs)
    bid = lambda i: getattr(i, 'burst', id(i))
    at = {}; g = lo; k = 0
    while k < nx:
        n = 1
        while k + n < nx and bid(xs[k + n]) == bid(xs[k]): n += 1
        tgt = lo + 1 + (k * (hi - lo)) // nx
        last = hi - (nx - k - 1)
        cands = [c for c in range(max(g + 1, tgt - 5), min(tgt + 6, last) + 1)] or [min(hi, g + 1)]
        best = min(cands, key=lambda c: (sum(sc._slots(sc.g[min(hi, c + j)]) for j in range(n)), abs(c - tgt)))
        for j in range(n): at[id(xs[k + j])] = min(hi, best + j)
        g = min(hi, best + n - 1); k += n
    g = lo
    for idx, ins in enumerate(seq):
        if ins.kind == 'X':
            g1 = max(g, at[id(ins)])
            if g1 == g: sc.g[g] = sc._insert(sc.g[g], nop(0))
            g = g1
            sc.g[g] = sc._insert(sc.g[g], ins)
        else:
            nxt = next((j for j in seq[idx + 1:] if j.kind == 'X'), None)
            lim = max(g, at[id(nxt)] - 1) if nxt is not None else min(hi, g + 2)
            if ins.kind in 'VE':
                g = sc.place(ins, g, min(lim, g + 1)); g = min(hi, g + 1)
            else: g = sc.place(ins, g, lim)
    return g

def rdK(j, s, tag): return exp_rd(dsread("ds_read_b128", Kf(j & 1, s), kaddr[s & 1], (j & 3) * 6144 + (s >> 1) * 128, tag), kaddr[s & 1], tag)
def rdV(T, u, e, tag):
    T %= 12
    return exp_rd(dsread("ds_read_b64_tr_b16", VB(T & 3, u, e), vaddr[T & 3], (32 * u + 16 * e) * 384 + (T >> 2) * 128, tag), vaddr[T & 3], tag)
def rdW(T, u, e, tag):
    T %= 12
    s, uu = T >> 1, T & 1
    return exp_rd(dsread("ds_read_b64_tr_b16", VB(T % 3, u, e), waddr[s & 1], (2 * u + e) * 3072 + (s >> 1) * 128 + 8 * uu, tag), waddr[s & 1], tag)
def rdX(nq, n, dh, q, u):
    d = SL if nq == 4 else 6144
    return dsread("ds_read_b128", Xf(n & 1, q, u), xaddr[u], (n & 1) * d + q * 2048, absT('x', dh, n), private=True)
UE = [(0, 0), (0, 1), (1, 0), (1, 1)]

def rebase(regs, cur, new):
    return [salu("s_sub_u32", sT1, new, cur), smov(cur, new)] + [valu("v_add_u32", r, sT1, r) for r in regs]
def rotate(r, n, f): return [smov(sT2, r), smov(r, n), smov(n, f), smov(f, sT2)]
def rebaseK():
    return [salu("s_sub_u32", sT3, kN, kR)] + [valu("v_add_u32", r, sT3, r) for r in kaddr]

def softmax_ops(Sx, q, j, par):
    e = [vexp(Sx.sub(r), Sx.sub(r)) for r in range(4)]
    a = [valu("v_add_f32", Lq(q), Lq(q), Sx.sub(r)) for r in range(4)]
    P = Pf(par, q, j >> 1)
    c = [valu("v_cvt_pk_bf16_f32", P.sub(2 * (j & 1) + i), Sx.sub(2 * i), Sx.sub(2 * i + 1)) for i in range(2)]
    return e, a, c

def attn_iter(nq, par, cfg, first_pv=False, jobs=(), next_k=True, k_rot=True, late=(), gentle=False, side=()):
    NG = 4 * nq
    mf = []
    for G in range(NG):
        j, q = divmod(G, nq)
        for s in range(6):
            mf.append(mfma(Sf(G), Kf(j & 1, s), Qf(q, s), (0 if WHAT[0] & 1 else Ci(q)) if s == 0 else Sf(G), 'qk'))
        for n in range(3 * G, 3 * G + 3):
            T, qq = divmod(n, nq)
            for u in range(2):
                oq = Oacc(*divmod(n - (1 if (WHAT[0] & 128 and n % 3 == 1 and not first_pv) else 0), nq))
                mf.append(mfma(oq, VB(T & 3, u), Pf(par, qq, u), 0 if (first_pv and u == 0) else oq, 'pv'))
    sc = Sched(mf)
    def pvpos(n): return 12 * (n // 3) + 6 + 2 * (n % 3)
    sm = []
    for G in range(NG):
        Gp = (G - 1) % NG
        j, q = divmod(Gp, nq)
        e, a, c = softmax_ops(Sf(Gp), q, j, par if G == 0 else par ^ 1)
        eg = [0, 2, 4, 6]
        if gentle:
            lv = min(3, gentle // 2 + (gentle % 2) * (G % 2))
            eg = [[0, 2, 4, 6], [2, 2, 4, 6], [2, 2, 6, 6], [4, 4, 4, 4]][lv]
        for r in range(4): sc.put(12 * G + eg[r], e[r])
        sm.append((e, a, c))
    GB = 3 * nq
    bw = wait(need_vm=(lambda c: [('K', c['h'], c['t'] + 2), ('V', c['h'], c['t'] + 1)]), lgkm0=True, free=False)
    sc.put(12 * GB, bw, front=True)
    if cfg.stamps == 2 and nq == 4: bstamp(sc, 12 * GB, 12 * GB + 22)
    sc.put(12 * GB + 2, barrier(), front=True)
    bar = 12 * GB + 2
    reads = []
    for j in range(4):
        lo = 12 * nq * j
        nxt = (j == 3)
        tv, tk = (tagV(1), tagK(2)) if nxt else (tagV(0), tagK(1))
        for i in range(3):
            T = 3 * j + 3 + i
            l2 = lo if i == 0 else pvpos(nq * (T - 4) + nq - 1) + 1
            l2 = max(l2, lo)
            if nxt: l2 = max(l2, bar + 1)
            item = [(rdV(T, u, e, tv), l2) for (u, e) in UE]
            reads.append((l2, 0, item))
        if not nxt or next_k:
            l2 = max(lo, bar + 1) if nxt else lo
            reads.append((l2, 1, [(rdK(j + 1, s, tk), l2) for s in range(6)]))
    reads.sort(key=lambda x: (x[0], x[1]))
    g = 0
    lastpre = 0
    for _, _, item in reads:
        for ins, l2 in item:
            g = max(g, l2)
            while not (g % 12 in (1, 3, 5, 7, 8, 9) and not sc.g[g]) :
                g += 1
                if nq == 3 and g % 12 in (10, 11) and not sc.g[g]: break
            assert g < len(mf), "ds overflow"
            sc.put(g, ins)
            if g < bar: lastpre = g
    assert lastpre < 12 * GB
    upd = rebase(vaddr, sVcur, vN) + (rebaseK() if k_rot else [])
    for G in range(NG):
        e, a, c = sm[G]
        b = 12 * G
        if nq == 3 and G == 0:
            order = [(a[0], 1), (c[0], 3), (a[1], 5), (c[1], 7), (a[2], 8), (a[3], 9)]
        else:
            order = [(a[0], 1), (a[1], 3), (c[0], 5), (a[2], 7), (a[3], 8), (c[1], 9)]
        for ins, o in order:
            if not (cfg.lmfma and ins in a): sc.put(b + o, ins)
            elif cfg.xvalu: sc.put(b + o, valu("v_add_f32", V(231), V(231), Sf((G - 1) % NG).sub(a.index(ins))))
    if nq == 3:
        for G in range(NG):
            sc.put(12 * G + 4, wait(), front=True)
            if G % 3 == 2: sc.put(12 * G + 11, wait())
    if cfg.xpace and nq == 4 and gentle:
        for G in range(NG): sc.put(12 * G + 6, nop(cfg.xpace - 1))
    seq_after(sc, upd, lastpre, bar)
    gj = 0
    if side: seq_after(sc, side, 0, 12 * GB - 14)
    seq = [i for jb in jobs for i in jb]
    if seq: gj = place_even(sc, seq, 0, 12 * GB - (2 if nq == 3 else 13))
    rot = rotate(vR, vN, vF) + (rotate(kR, kN, kF) if k_rot else [])
    sc.extra = [(12 * (4 * q + 2) + 11, lchain(q, par, first_pv)) for q in range(nq)] if cfg.lmfma else []
    seq = [i for jb in late for i in jb]
    if any(i.kind == 'X' for i in seq):
        gr = seq_after(sc, rot, bar + 1, bar + 4)
        place_even(sc, seq, gr + 1, len(mf) - 2)
    else:
        seq_after(sc, rot + seq, bar + 1, len(mf) - 2)
    return sc

NCH = 24
PSLOT = [0, SL - 1024, 2 * SL - 1024]
def head_of(c):
    hh, cc = divmod(c, 3)
    return (hh if hh < 4 else 12 + hh), cc
def tagU(c): return lambda ctx: ('U', 0, c + ctx.get('dc', 0))
def job_o(c, cfg, dyn=None):
    h, cc = head_of(c)
    if cfg.pfake & 1: h = 0; dyn = None
    out = []
    for q in range(5):
        out.append(salu("s_add_u32", sTp, dyn or sOb, (0 if dyn else h * 92160) + cc * 2048 + q * 6144))
        for u in range(2):
            l = gload(OF(c % 3, q, u), vL16, sOr, sTp, 1024 * u, cfg.orflags)
            l.expect = lambda ctx, st, q=q: None if st.get(str(sTp)) == st[str(sOb)] + ctx['heads'][(c + ctx.get('dc', 0)) // 3] * 92160 + cc * 2048 + q * 6144 else "o off"
            if cfg.pskip & 1 and (q, u) != (0, 0): continue
            if cfg.pskip & 4 and q >= 4: continue
            out.append(l)
    return out
def job_u(c, cfg, dyn=None):
    h, cc = head_of(c)
    if cfg.pfake & 2: h = 0; dyn = None
    tag = tagU(c); sl = lambda ctx: slot_of(tag(ctx), 4)
    out = []
    for i in range(8):
        if i % 4 == 0: out.append(salu("s_add_u32", 'm0', sLb, PSLOT[(c + 1) % 3] + 1024 * i))
        out.append(salu("s_add_u32", sTx, dyn or sWb, ((0 if dyn else h * 192) + 64 * cc + 8 * i) * 1280 - 1024 * (i % 4)))
        d = dma(dX, sWo, sTx, 1024 * (i % 4), cfg.woflags, tag=tag, slot=sl)
        d.expect = lambda ctx, st, i=i, el=PSLOT[(c + 1) % 3] + 4096 * (i // 4): \
            None if (st.get(str(sTx)) == st[str(sWb)] + (ctx['heads'][(c + ctx.get('dc', 0)) // 3] * 192 + 64 * cc + 8 * i) * 1280 - 1024 * (i % 4)
                     and st.get('m0') == st[str(sLb)] + el) else "u off"
        if cfg.pskip & 2 and i != 7: continue
        out.append(d)
    return out
def next_head():
    l = [f"s_mov_b32 {sHc}, {sHn}", f"s_mov_b32 {sOc}, {sOn}", f"s_mov_b32 {sWc}, {sWn}",
         f"s_add_u32 {sHn}, {sHc}, 1",
         f"s_cmp_eq_u32 {sHn}, {sJmp}", f"s_cselect_b32 {sHn}, 16, {sHn}",
         f"s_cmp_eq_u32 {sHc}, 18", f"s_cselect_b32 {sHn}, {sA18}, {sHn}",
         f"s_cmp_eq_u32 {sHc}, {sStol}", f"s_cselect_b32 {sHn}, 19, {sHn}",
         f"s_mul_i32 {sOn}, {sHn}, 92160", f"s_add_u32 {sOn}, {sOn}, {sOb}",
         f"s_mul_i32 {sWn}, {sHn}, {192 * 1280}", f"s_add_u32 {sWn}, {sWn}, {sWb}"]
    out = []
    for grp in (l[0:1], l[1:2], l[2:3], l[3:4], l[4:6], l[6:8], l[8:10], l[10:11], l[11:12], l[12:13], l[13:14]):
        out.append(unit(grp, 'S', wr=['scc']))
    def sim(st):
        st[str(sHc)] = st[str(sHn)]; st[str(sOc)] = st[str(sOn)]; st[str(sWc)] = st[str(sWn)]
        c_ = st[str(sHc)]; n = c_ + 1
        if n == st[str(sJmp)]: n = 16
        if c_ == 18: n = st[str(sA18)]
        if c_ == st[str(sStol)]: n = 19
        st[str(sHn)] = n; st[str(sOn)] = st[str(sOb)] + n * 92160; st[str(sWn)] = st[str(sWb)] + n * 192 * 1280
    def kill(st):
        st['save'] = {k: st[k] for k in (str(sHc), str(sHn), str(sOc), str(sWc), str(sOn), str(sWn)) if k in st}
        for k in st['save']: del st[k]
    def fin(st):
        st.update(st['save']); sim(st)
    out[0].simfn = kill; out[-1].simfn = fin
    return out
def flag_store(off, val):
    u = unit([f"v_mov_b32 {vOne}, {val}", "s_mov_b64 exec, 1", f"buffer_store_dword {vOne}, off, {sEx}, {sFs} offset:{off} sc1", "s_mov_b64 exec, -1"], 'S', cost=7)
    u.states = 2
    return u
SPAN = [divmod(gs, 8) for gs in range(176)] + [(22, N) for N in (6, 7, 4, 5)] + [(23, N) for N in (6, 7, 4, 5)] \
    + [(22, N) for N in (0, 1, 2, 3)] + [(23, N) for N in (2, 3, 0, 1)]
def rdU(gs, u, e):
    c, N = SPAN[gs]
    return dsread("ds_read_b64_tr_b16", VB(gs % 3, u, e), raddr[N & 3],
                  PSLOT[(c + 1) % 3] + (N >> 2) * 8192 + (32 * u + 16 * e) * 128, tag=tagU(c))
def calc_raddr():
    o = [valu("v_lshrrev_b32", vt0, 6, vL16),
         valu("v_and_b32", vt1, 6, vt0),
         valu("v_lshlrev_b32", vt0, 7, vt0),
         valu("v_bfe_u32", raddr[0], vL16, 4, 1),
         valu("v_lshl_add_u32", vt0, raddr[0], 3, vt0),
         valu("v_bfe_u32", raddr[0], vL16, 5, 1),
         valu("v_xor_b32", vt1, vt1, raddr[0]),
         valu("v_lshlrev_b32", vt1, 4, vt1),
         salu("s_lshr_b32", sTp, sWave, 1), salu("s_lshl_b32", sTp, sTp, 6),
         valu("v_xor_b32", vt1, sTp, vt1),
         salu("s_lshr_b32", sTp, sWave, 1), salu("s_mul_i32", sTp, sTp, 3 * SL, scc=False), salu("s_add_u32", sTp, sTp, 1024),
         valu("v_add_u32", vt0, sTp, vt0)]
    for m in range(4):
        o += [valu("v_xor_b32", raddr[m], 32 * m, vt1), valu("v_add_u32", raddr[m], raddr[m], vt0)]
    for i in o: i.nosim = True
    return o
def unit(lines, kind='S', cost=None, rd=(), wr=(), **kw):
    i = Ins("\n".join(lines), kind, rd=rd, wr=wr, states=len([l for l in lines if not l.endswith(":")]), **kw)
    i.cost = cost if cost is not None else len(lines)
    i.nosim = True
    return i
_uid = [0]
def signal_add(off, guarded, val=1):
    _uid[0] += 1; n = _uid[0]
    l = [f"v_mov_b32 {vOne}, {val}", "s_mov_b64 exec, 1", f"buffer_atomic_add {vOne}, off, {sDbg}, {off} sc1", "s_mov_b64 exec, -1"]
    if guarded: l = [f"s_cmp_eq_u32 {off}, -1", f"s_cbranch_scc1 L_nosig{n}"] + l + [f"s_mov_b32 {off}, -1", f"L_nosig{n}:"]
    u = unit(l, 'S', cost=8, wr=['scc'])
    u.states = 2
    return u
def poll_issue(gen):
    return gload_off(V(226, 2), sDbg, sCnt, 0) if gen == 0 else gload_off(V(226), sDbg, sMyc, 64)
def gload_off(D, srd, soff, off):
    op = {1: "buffer_load_dword", 2: "buffer_load_dwordx2"}[D.n]
    return Ins(f"{op} {D}, off, {srd}, {soff} offset:{off} sc1", 'X', rd=srd.regs() + soff.regs(), wr=D.regs())
def cond_load(D, srd, soff, off, cmp_lines, vtmp):
    a = unit(cmp_lines + [f"s_cselect_b32 {sT0}, 0, 0x7ff00000", f"v_mov_b32 {vtmp}, {sT0}"], 'S', wr=['scc'] + sT0.regs() + vtmp.regs())
    b = Ins(f"buffer_load_dword {D}, {vtmp}, {srd}, {soff} offen offset:{off} sc1", 'X', rd=srd.regs() + soff.regs() + vtmp.regs(), wr=D.regs())
    return a, b
def poll_check(gen, wb=0):
    _uid[0] += 1; n = _uid[0]
    l = [f"s_mov_b32 {sSpin}, 0x80000", f"L_poll{n}:", f"v_readfirstlane_b32 {sT0}, v226"]
    if gen == 0:
        l += [f"v_readfirstlane_b32 {sT4}, v227", "s_nop 3", "s_bitcmp1_b32 s2, 0", f"s_cselect_b32 {sUni}, {sT4}, {sT0}",
              f"s_and_b32 {sT0}, {sT0}, 255", f"s_and_b32 {sT4}, {sT4}, 255", f"s_min_u32 {sT0}, {sT0}, {sT4}"]
    else: l.append("s_nop 3")
    l += [f"s_cmp_ge_u32 {sT0}, 32", f"s_cbranch_scc1 L_pok{n}",
          "s_sleep 2", poll_issue(gen).text,
          f"s_sub_u32 {sSpin}, {sSpin}, 1", f"s_cmp_lg_u32 {sSpin}, 0", "s_waitcnt vmcnt(0)", f"s_cbranch_scc1 L_poll{n}", f"L_pok{n}:"]
    if gen == 0: l += [f"s_lshl_b32 {sT0}, {sArr}, 5", f"s_sub_u32 {sUni}, {sUni}, {sT0}"]
    elif wb: l += [f"s_cmp_eq_u32 {sUni}, 0", f"s_cbranch_scc1 L_pac{n}", "buffer_inv sc1", "s_waitcnt vmcnt(0)", f"L_pac{n}:"]
    u = unit(l, 'S', cost=16, rd=['v226', 'v227'], wr=['v226', 'scc'] + sT0.regs() + sT4.regs())
    u.states = 0
    return u
def release():
    _uid[0] += 1; n = _uid[0]
    u = unit([f"s_cmp_eq_u32 {sUni}, 0", f"s_cbranch_scc1 L_rel{n}", "buffer_wbl2 sc1", "s_waitcnt vmcnt(0)", f"L_rel{n}:"], 'S', cost=2, wr=['scc'])
    u.states = 2
    return u

def attn_last(nq, cfg, nxt):
    par = 1
    mf = []
    for T in range(12):
        for q in range(nq):
            for u in range(2): mf.append(mfma(Oacc(T, q), VB(T & 3, u), Pf(par, q, u), Oacc(T, q), 'pv'))
    sc = Sched(mf)
    sp = 2 * nq
    e, a, c = softmax_ops(Sf(4 * nq - 1), nq - 1, 3, par)
    if nq == 4:
        for r in range(4): sc.put(r, e[r])
        sc.put(4, c[0]); sc.put(4, c[1])
        g0 = 6
    else:
        sc.put(0, e[0]); sc.put(0, e[1]); sc.put(1, e[2]); sc.put(1, e[3])
        sc.put(2, c[0]); sc.put(2, c[1])
        g0 = 4
    if not cfg.lmfma: sc.put(g0 - 1, a[0]); sc.put(g0 - 1, a[1])
    else: sc.put(g0 - 1, nop(0))
    g = g0
    for T in range(3, 12):
        g = max(g, sp * (T - 3))
        for (u, ee) in UE:
            sc.put(g, rdV(T, u, ee, tagV(0))); g += 1
        sc.put(g - 1, wait())
    lastv = g - 1
    if cfg.lmfma:
        sc.extra = [(sp - 1, [i for q in range(nq) for i in lchain(q, par, False)])]
        fin = [None] * ((sp + 8 - g0) // 2) + [valu("v_accvgpr_read_b32", Lq(q), Lacc(q).sub(0)) for q in range(nq)]
    else:
        fin = [a[2], a[3]]
        tt = Sf(0)
        for w in (32, 16):
            fin += [valu("v_mov_b32", tt.sub(q), Lq(q)) for q in range(nq)] + [None]
            fin += [vperm(w, tt.sub(q), Lq(q)) for q in range(nq)]
            fin += [valu("v_add_f32", Lq(q), Lq(q), tt.sub(q)) for q in range(nq)]
    fin += [valu("v_add_f32", vt0, Lq(0), Lq(1)), valu("v_add_f32", vt0, vt0, Lq(2))]
    if nq == 4: fin.append(valu("v_add_f32", vt0, vt0, Lq(3)))
    fin.append(Ins(f"v_cmp_ngt_f32 {sBad}, {sThr}, {vt0}", 'V', rd=vt0.regs() + sThr.regs(), wr=sBad.regs()))
    SEQS.append([i for i in fin if i is not None])
    g = g0
    for ins in fin:
        if ins is None: g += 2; continue
        g = sc.place(ins, g, g + (8 if cfg.lmfma else 1))
    for q in range(nq):
        g = sc.place(vrcp(Lq(q), Lq(q)), g + 1, g + (8 if cfg.lmfma else 2))
    ginv = g
    chk = [unit([f"s_cmp_lg_u64 {sBad}, 0", f"s_cselect_b32 {sBad.sub(0)}, 1, 0"], rd=sBad.regs(), wr=['scc'] + sBad.regs()),
           salu("s_lshl_b32", sTp, sWave, 2), salu("s_add_u32", sTp, sTp, FLAG), valu("v_mov_b32", vt0, sBad.sub(0))]
    if nxt == 'P' and nq == 3 and cfg.balance:
        sc.put(0, gload_off(V(226), sEx, sFr, 4), front=True)
        chk += [wait(), valu("v_lshl_or_b32", vt0, V(226), 1, vt0)]
    chk += [valu("v_mov_b32", vt1, sTp), dswrite("ds_write_b32", vt1, vt0, 0),
           valu("v_mov_b32", vOne, FLAG)]
    if cfg.pvswap:
        chk = [salu("s_lshl_b32", sTp, sWave, 8), salu("s_add_u32", sTp, sTp, SCR + 4096), valu("v_bfe_u32", vt1, vL16, 4, 4),
               valu("v_lshl_add_u32", vt1, vt1, 2, sTp)] + [dswrite("ds_write_b32", vt1, Lq(q), 64 * q) for q in range(nq)] + chk
    for i in chk: i.nosim = True
    g = seq_after(sc, chk, g + 1, min(g + (18 if cfg.pvswap else 12), sp * 10 - 4))
    bar = sp * 10
    assert g < bar - 2
    gnext = g + 1
    if nxt == 'Q':
        w = wait(need_vm=lambda c: [('x', c['h'] + 1, 0)], free=False)
        gx = sc.place(w, sp * 3, sp * 4)
        dep = []
        for q in range(nq):
            for u in range(2):
                r = rdX(nq, 0, 1, q, u); dep += r.wr
                gx = sc.place(r, gx + 1, gx + 8)
        j1 = [] if cfg.tl else job_tile(nq, 'W', vF, absT('W', 1, 1), cfg)
        ge = place_even(sc, j1, g0, sp * 7) if j1 else g0
        ws = wait(); gw = sc.place(ws, max(gx + 4, ge), max(gx + 4, ge) + 4)
        place_even(sc, job_x(nq, 2, 1, cfg, dep), gw + 1, len(mf) - 1)
        need = lambda c: [('W', c['h'] + 1, 0)]
    else:
        if not cfg.tl: place_even(sc, job_u(1, cfg), g0, gnext - 1)
        place_even(sc, job_o(0, cfg)[9 if cfg.tl else 0:] + job_o(1, cfg), gnext, len(mf) - 1)
        need = lambda c: [('U', 0, 0)]
    bw = wait(need_vm=need, lgkm0=True, free=False)
    gb = sc.place(bw, bar - 1, bar)
    gb = sc.place(barrier(), gb, bar + 1)
    fl = dsread("ds_read_b128", V(228, 4), vOne, 0)
    g = sc.place(fl, gb + 1, gb + 2)
    if nxt == 'Q':
        seq_after(sc, rebase(waddr, sWcur, vN), lastv, gb)
        seq_after(sc, rotate(vR, vN, vF), gb + 1, len(mf) - 1)
    for T in range(2):
        g = max(g, sp * (10 + T) - 1)
        for (u, ee) in UE:
            r = rdW(T, u, ee, absT('W', 1, 0)) if nxt == 'Q' else rdU(T, u, ee)
            g = sc.place(r, min(len(mf) - 1, g + 1), min(len(mf) - 1, g + 2))
        sc.place(wait(), g, g)
    put_epilogue(sc, [(q, 0, (U(2 * q), U(2 * q + 1))) for q in range(nq)], gnext, len(mf) - 2, cfg, first=(nxt == 'Q'))
    n_ = len(mf)
    v1 = [wait(), valu("v_or3_b32", V(228), V(228), V(229), V(230)), valu("v_or_b32", V(228), V(228), V(231))]
    v2 = Ins(f"v_readfirstlane_b32 {sBad.sub(0)}, v228", 'V', rd=['v228'], wr=sBad.sub(0).regs())
    SEQS.append([fl] + v1 + [v2])
    for i in v1: sc.put(n_ - 6, i)
    sc.put(n_ - 5, v2)
    sc.post = [salu("s_and_b32", sBad.sub(1), sBad.sub(0), 1),
               salu("s_andn2_b32", sBad.sub(1), sBad.sub(1), sRedo), raw(f"s_cbranch_scc1 L_slow_{nq}"), smov(sRedo, 0)]
    return sc

def epi_block(q, s, t, cfg, first=False):
    lo, hi = (t.sub(0, 4), t.sub(4, 4)) if isinstance(t, Reg) else t
    r = lambda i: (lo if i < 4 else hi).sub(i & 3)
    t = lo
    ops = []
    for i in range(8):
        src = Oacc(2 * s + (i >> 2), q).sub(i & 3)
        ops.append(valu("v_accvgpr_read_b32", r(i), src))
    if cfg.pvswap: t = hi
    for i in range(8): ops.append(valu("v_mul_f32", r(i), r(i), Lq(i & 3 if cfg.pvswap else q)))
    for i in range(4): ops.append(valu("v_cvt_pk_bf16_f32", r(i), r(2 * i), r(2 * i + 1)))
    ops.append(salu("s_add_u32", sTo, sOoff, q * 6144 + (4096 if s >= 4 else 0)))
    stv = gstore(t.sub(0, 4), vL16, sO, sTo, (s & 3) * 1024, cfg.o1flags if first else cfg.oflags)
    def f(c, st):
        h = 0 if first else 1
        e = (st['h0'] + 16 * h) * 92160 + (4 * st['wave'] + q) * 6144 + s * 1024
        if st.get(str(sTo)) is None or st[str(sTo)] + (s & 3) * 1024 != e: return f"store off vs {e}"
    stv.expect = f
    if not cfg.nostore: ops.append(stv)
    return ops

def epi_stream(blocks, cfg, first=False):
    out = []; pend = []
    cur = blocks[0][0] if blocks[0][1] > 0 else None
    for q, s, t in blocks:
        ops = epi_block(q, s, t, cfg, first)
        lo, hi = (t.sub(0, 4), t.sub(4, 4)) if isinstance(t, Reg) else t
        w = dswrite("ds_write_b128", vTw, lo, 0); w.cost = 3
        if q != cur: out.append(dsread("ds_read_b128", ONES, vTi, 64 * q)); cur = q
        out += ops[:8] + [wait()] + pend + ops[8:20]
        out += [w] + [dsread("ds_read_b64_tr_b16", hi.sub(2 * i, 2), vTr, 8 * i) for i in range(2)]
        pend = ops[20:]
    return out, [wait()] + pend
def put_epilogue(sc, blocks, lo, hi, cfg, first=False):
    if not cfg.pvswap:
        bl = [epi_block(q, s, t, cfg, first) for q, s, t in blocks]
        weave(sc, bl, lo, hi)
        return [b[-1] for b in bl], None
    a, b = epi_stream(blocks, cfg, first)
    g = seq_after(sc, a, lo, hi - 8, even=True)
    seq_after(sc, b, max(g + 1, min(g + 6, hi - 2)), max(g + 3, hi))
    SEQS.append([a[-1], b[0]])
    return [i for i in a + b if i.store], a[-1]

def qproj(nq, cfg, epi):
    sp = 2 * nq; SN = 12 * sp
    mf = []
    for st in range(10):
        for T in range(12):
            for q in range(nq):
                for u in range(2):
                    qa = QACC(T, (q & ~1) + ((st & 1) if (q | 1) < nq else 0) if (WHAT[0] & 4 and st > 0) else q)
                    mf.append(mfma(qa, VB(T % 3, u), Xf(st & 1, q, u), 0 if (st == 0 and u == 0) else qa, 'q'))
    sc = Sched(mf)
    drain = None
    for st in range(10):
        b = st * SN
        for T in range(10):
            g = b + sp * T
            for (u, e) in UE:
                sc.put(g, rdW(T + 2, u, e, absT('W', 0, st))); g += 1
            sc.put(g - 1, wait())
        lastw = g - 1
        need = [('W', st + 1)] if st < 9 else [('K', 0)]
        bw = wait(need_vm=(lambda c, need=need, st=st: [(k, c['h'], n) for k, n in need] + (['stores'] if epi and st == 9 else [])), lgkm0=True, free=False)
        gb = b + sp * 10
        if st == 6: bw6 = bw
        if epi and st == 9: drain = bw
        sc.put(gb, bw); sc.put(gb, barrier())
        if epi and st == 9 and nq == 3: sc.put(gb, signal_add(sMyc, False, sArr))
        if cfg.stamps == 3: bstamp(sc, gb, gb + 5)
        g = gb
        if st < 9:
            seq_after(sc, rebase(waddr, sWcur, vN), lastw, gb)
            for T in range(2):
                g = max(g, b + sp * (10 + T) - 1)
                for (u, e) in UE:
                    g += 1; sc.put(g, rdW(T, u, e, absT('W', 0, st + 1)))
                sc.put(g, wait())
        else:
            seq_after(sc, rebase(vaddr, sVcur, vN), lastw, gb)
            for s in range(6):
                g += 1; sc.put(g, rdK(0, s, absT('K', 0, 0)))
        seq_after(sc, rotate(vR, vN, vF), gb + 1, b + SN - 1)
        dep = []
        gx = b + sp * 4
        if st < 9:
            w = wait(need_vm=(lambda c, st=st: [('x', c['h'], st + 1)]), free=False)
            gx = sc.place(w, gx, gx + sp)
            for q in range(nq):
                for u in range(2):
                    r = rdX(nq, st + 1, 0, q, u); dep += r.wr
                    gx = sc.place(r, gx + 1, gx + sp)
        if st < 8: j1 = job_tile(nq, 'W', vF, absT('W', 0, st + 2), cfg)
        elif st == 8: j1 = job_tile(nq, 'V', vF, absT('V', 0, 0), cfg, groups=range(8), odd=True)
        else: j1 = job_tile(nq, 'K', kN, absT('K', 0, 1), cfg, groups=range(8))
        if nq == 3 and cfg.k0st <= st < cfg.k0st + cfg.k0n:
            k = st - cfg.k0st
            j1 = j1 + job_tile(nq, 'K', kR, absT('K', 0, 0), cfg, groups=range(8 * k // cfg.k0n, 8 * (k + 1) // cfg.k0n), adv=(k == cfg.k0n - 1), odd=True)
        ge = b
        if j1: ge = place_even(sc, j1, b, b + (sp * 4 - 1 if nq == 4 else sp * 7 if st < 7 else sp * 10 - 2 if st < 9 else sp * 9))
        if st + 3 <= 9:
            ws = wait(); gw = sc.place(ws, max(gx + 4, ge), max(gx + 4, ge) + 4)
            place_even(sc, job_x(nq, st + 3, 0, cfg, dep), gw + 1, b + SN - 1)
    if epi:
        blocks = [(q, s, TMP[(5 * q + s) & 1]) for q in reversed(range(nq)) for s in range(1, 6)]
        sts, lastlds = put_epilogue(sc, blocks, 2, SN * (cfg.epist if nq == 4 else cfg.epist3) - 2 * sp, cfg, first=True)
        for i in sts: SEQS.append([i, drain])
        if lastlds: SEQS.append([lastlds, bw6]); assert cfg.k0st + cfg.k0n == 8 and cfg.k0n <= 4
        seq_after(sc, [salu("s_add_u32", sOoff, sOoff, 16 * 92160)], len(mf) - 20, len(mf) - 1)
    return sc

def conv_prologue(nq, cfg):
    out = []
    cv = []
    for s in range(6):
        for q in range(nq):
            b = V(8 * blk(q, s), 8)
            for i in range(4): cv.append(valu("v_pk_mul_f32", b.sub(2 * i, 2), b.sub(2 * i, 2), sC2))
            for i in range(4): cv.append(valu("v_cvt_pk_bf16_f32", b.sub(i), b.sub(2 * i), b.sub(2 * i + 1)))
    j = job_tile(nq, 'V', vN, absT('V', 0, 1), cfg, groups=range(8))
    jrest = []
    if cfg.qshift:
        j = job_tile(nq, 'V', vN, absT('V', 0, 1), cfg, groups=range(5), adv=False)
        jrest = job_tile(nq, 'V', vN, absT('V', 0, 1), cfg, groups=range(5, 8))
    k = 0
    for i, ins in enumerate(cv):
        out.append(ins)
        if i % (4 if cfg.kvperm == 4 else 5 if cfg.qshift else 3) == 2 and k < len(j): out.append(j[k]); k += 1
    out += j[k:]
    for q in range(nq): out.append(valu("v_mov_b32", Ci(q).sub(0), "0xff800000"))
    out.append(label(f"L_prol_{nq}"))
    if cfg.lmfma == 0:
        for q in range(nq): out.append(valu("v_mov_b32", Lq(q), 0))
    elif cfg.lmfma == 2:
        for q in range(4): out.append(valu("v_mov_b32", Lq(q), "0x3f803f80"))
    else:
        out += [valu("v_and_b32", vt0, 48, vL16), valu("v_mov_b32", vt1, "0x3f803f80"),
                Ins(f"v_cmp_eq_u32 vcc, 0, {vt0}", 'V', rd=vt0.regs(), wr=['vcc']), nop(1)]
        for q in range(4): out.append(valu("v_cndmask_b32", Lq(q), 0, vt1, 'vcc'))
    out.append(wait())
    NG = 4 * nq
    mf = []
    for G in range(NG):
        jj, q = divmod(G, nq)
        for s in range(6):
            mf.append(mfma(Sf(G), Kf(jj & 1, s), Qf(q, s), (0 if jj == 0 else Ci(q)) if s == 0 else Sf(G)))
    sc = Sched(mf)
    sc.pre = out
    gb = 6 * nq * 3
    for jj in range(3):
        g = 6 * nq * jj
        for s in range(6):
            sc.put(g, rdK(jj + 1, s, absT('K', 0, 0))); g += 2
    lastk = g - 2
    bw = wait(need_vm=(lambda c: [('K', c['h'], 1), ('V', c['h'], 0)]), lgkm0=True, free=False)
    sc.put(gb - 1, bw); sc.put(gb - 1, barrier())
    seq_after(sc, rebaseK(), lastk + 1, gb - 2)
    g = gb
    post = [rdK(4, s, absT('K', 0, 1)) for s in range(6)]
    for T in range(3): post += [rdV(T, u, e, absT('V', 0, 0)) for (u, e) in UE]
    for ins in post:
        sc.put(g, ins); g += 1
    assert g <= len(mf)
    rot = rotate(kR, kN, kF)
    for i, ins in enumerate(rot): sc.put(gb + i, ins)
    if nq == 3:
        if cfg.qshift:
            place_even(sc, jrest + job_tile(nq, 'K', kF, absT('K', 0, 2), cfg, groups=range(5), adv=False), 0, gb - 3)
            place_even(sc, job_tile(nq, 'K', kN, absT('K', 0, 2), cfg, groups=range(5, 8)), gb + 4, len(mf) - 1)
        else:
            place_even(sc, job_tile(nq, 'K', kF, absT('K', 0, 2), cfg, groups=range(8)), 0, gb - 3)
            place_even(sc, job_tile(nq, 'V', vF, absT('V', 0, 2), cfg, groups=range(4), adv=False), gb, len(mf) - 1)
    tail = []
    for G in range(NG - 1):
        jj, q = divmod(G, nq)
        Sx = Sf(G)
        ops = []
        if jj == 0:
            t = vt0; m = vt1
            ops += [valu("v_max3_f32", m, Sx.sub(0), Sx.sub(1), Sx.sub(2)), valu("v_max3_f32", m, m, Sx.sub(3), Ci(q).sub(0))]
            for w in (32, 16):
                ops += [valu("v_mov_b32", t, m), nop(1), vperm(w, t, m), valu("v_max_f32", m, m, t)]
            for r in range(4): ops.append(valu("v_sub_f32", Ci(q).sub(r), 0, m))
            for r in range(4): ops.append(valu("v_sub_f32", Sx.sub(r), Sx.sub(r), m))
        e, a, c = softmax_ops(Sx, q, jj, 0)
        ops += [e[0], e[1], e[2], e[3], c[0], c[1]] if cfg.lmfma else [e[0], e[1], a[0], e[2], a[1], e[3], c[0], a[2], a[3], c[1]]
        if G + 2 < NG:
            n = len(ops)
            for i, ins in enumerate(ops): sc.put(6 * (G + 2) + (i * 6) // n, ins)
        else:
            tail += ops
    sc.add_wait_sites()
    for jj in range(1, 4):
        sc.put(6 * nq * jj - 1, wait())
    return sc.linear() + tail + [wait()]

CS = 6
def merge_jobs(ju, jo):
    def split(j):
        out = []; cur = []
        for i in j:
            cur.append(i)
            if i.kind == 'X': out.append(cur); cur = []
        return out
    a, b = split(ju), split(jo)
    items = sorted([((k + 0.5) / len(a), 0, x) for k, x in enumerate(a)] + [((k + 0.5) / len(b), 1, x) for k, x in enumerate(b)], key=lambda t: t[:2])
    return [i for _, _, x in items for i in x]
def weave(sc, blocks, lo, hi):
    n = len(blocks)
    g0 = lo
    for k, ops in enumerate(blocks):
        SEQS.append(ops)
        end = lo + ((k + 1) * (hi - lo + 1)) // n - 1
        st = ops[-1] if ops[-1].kind == 'X' else None
        va = [i for i in ops if i.kind == 'V']
        gs = end
        if st is not None:
            while gs > g0 + 2 and sc.g[gs]: gs -= 1
            if sc.g[gs]: gs = end
        cand = [g for g in range(g0, gs) if not any(i.kind == 'X' or i.kind == 'B' for i in sc.g[g])] or list(range(g0, gs))
        cap = {g: max(0, 4 - max(2, sc._slots(sc.g[g]))) for g in cand}
        extra = len(va) - sum(cap.values())
        j = 0
        while extra > 0:
            cap[cand[(j * 7) % len(cand)] if len(cand) % 7 else cand[j % len(cand)]] += 1; extra -= 1; j += 1
        it = iter(va); left = len(va); lastg = g0
        for g in cand:
            for _ in range(cap[g]):
                if left: sc.g[g].append(next(it)); left -= 1; lastg = g
        sa = [i for i in ops if i.kind == 'S'][0]
        SEQS[-1] = [i for i in ops if i is not sa]
        sc.place(sa, g0, max(g0, gs - 1))
        if st is not None:
            SEQS.append([sa, st]); sc.g[gs].append(st)
            if k + 1 < n: SEQS.append([st, [i for i in blocks[k + 1] if i.kind == 'S'][0]])
        g0 = gs + 1
def p_chunks(c0, c1, nq, cfg, loop=False):
    mf = []
    for c in range(c0, c1):
        for N in range(8):
            for q in range(5):
                for u in range(2):
                    pa_ = PACC(N, (q & ~1) if (WHAT[0] & 8 and c > 0) else q)
                    mf.append(mfma(pa_, VB((8 * c + N) % 3, u), OF(c % 3, q, u), 0 if (c == 0 and u == 0) else pa_, 'p'))
    sc = Sched(mf)
    PUB = cfg.pubchunk
    for c in range(c0, c1):
        b = 80 * (c - c0)
        for N in range(6):
            RP = [0, 1, 5, 6] if (cfg.prd and N < 5) else [0, 1, 3, 4] if cfg.prd else [0, 1, 2, 3]
            for i, (u, e) in enumerate(UE): sc.put(b + 10 * N + RP[i], rdU(8 * c + N + 2, u, e))
            sc.put(b + 10 * N + RP[3], wait())
        bw = wait(need_vm=(lambda ctx, c=c: [tagU(c + 1)(ctx)] + (['stores'] if c == PUB else [])), lgkm0=True, free=False)
        if c == PUB: drain = bw
        if loop and c == c0:
            a_, b_ = cond_load(V(226), sDbg, sMyc, 64, [f"s_lshl_b32 {sT0}, {sHn}, 2", f"s_add_u32 {sT0}, {sT0}, {sWave}", f"s_cmp_eq_u32 {sT0}, 67"], V(228))
            sc.put(b + 8, a_); sc.put(b + 14, b_)
            sc.put(b + 59, wait())
            _uid[0] += 1; n = _uid[0]
            sc.put(b + 59, unit([f"s_add_u32 {sT0}, {sWave}, {sHn}", f"s_cmp_lg_u32 {sHn}, 16", f"s_cbranch_scc1 L_skip{n}",
                                 f"s_cmp_lg_u32 {sT0}, 19", f"s_cbranch_scc1 L_skip{n}"], cost=3, rd=['v226'], wr=['scc'] + sT0.regs()))
            pc = poll_check(1, cfg.wb); pc.cost = 0; sc.put(b + 59, pc); sc.put(b + 59, label(f"L_skip{n}"))
        if loop and c == c0 + 2:
            a_, b_ = cond_load(V(227), sEx, sFr, 8, [f"s_cmp_eq_u32 {sHc}, 17"], V(229))
            sc.put(b - 72, a_); sc.put(b - 66, b_)
            sc.put(b + 9, wait())
            _uid[0] += 1; n = _uid[0]
            u_ = unit([f"s_cmp_lg_u32 {sHc}, 17", f"s_cbranch_scc1 L_dok{n}", f"s_mov_b32 {sSpin}, 0x80000", f"L_dp{n}:",
                       f"v_readfirstlane_b32 {sT0}, v227", "s_nop 3", f"s_cmp_eq_u32 {sT0}, 1", f"s_cselect_b32 {sA18}, {sStol}, 19",
                       f"s_cmp_lg_u32 {sT0}, 0", f"s_cbranch_scc1 L_dok{n}", "s_sleep 2", gload_off(V(227), sEx, sFr, 8).text,
                       f"s_sub_u32 {sSpin}, {sSpin}, 1", f"s_cmp_lg_u32 {sSpin}, 0", "s_waitcnt vmcnt(0)", f"s_cbranch_scc1 L_dp{n}", f"L_dok{n}:"],
                      cost=2, rd=['v227'], wr=['scc'] + sT0.regs())
            u_.states = 1
            sc.put(b + 9, u_)
        sc.put(b + 60, bw); sc.put(b + 60, barrier())
        if cfg.stamps == 4: bstamp(sc, b + 60, b + 69)
        if c == PUB and nq == 3 and cfg.wb: sc.put(b + 60, release())
        if c == PUB and nq == 3:
            sc.put(b + 60, salu("s_add_u32", sSig, sMyc, 64)); sc.put(b + 60, signal_add(sSig, False))
        if c == cfg.markchunk and nq == 3: sc.put(b + 60, flag_store(4, 1))
        if c == 0 and nq == 3: sc.put(b + 9, salu("s_sub_u32", sT0, sJmp, 2)); sc.put(b + 9, flag_store(8, sT0))
        for i, (u, e) in enumerate(UE):
            sc.put(b + 60 + ([1, 3, 5, 6] if cfg.prd else [1, 2, 3, 4])[i], rdU(8 * c + 8, u, e)); sc.put(b + 70 + ([0, 1, 5, 6] if cfg.prd else [0, 1, 2, 3])[i], rdU(8 * c + 9, u, e))
        sc.put(b + (76 if cfg.prd else 73), wait())
        sc.put(b + 79, wait())
    for c in range(c0, c1):
        b = 80 * (c - c0)
        if c + 2 < NCH:
            ju, jo = job_u(c + 2, cfg), job_o(c + 2, cfg)
            if loop:
                ju, jo = job_u(c + 2, cfg, sWc if c == c0 else sWn), job_o(c + 2, cfg, sOc if c == c0 else sOn)
            if loop and c == c0 + 2:
                g1 = place_even(sc, merge_jobs(ju, jo), b, b + 72)
                seq_after(sc, next_head(), g1 + 1, b + 78)
            else:
                place_even(sc, merge_jobs(ju, jo), b, b + (58 if c == NCH - 3 else 78))
    if nq is not None:
        blocks = [(q, s, TMP[(5 * q + s) & 1]) for q in reversed(range(nq)) for s in range(1, 6)]
        for i in put_epilogue(sc, blocks, 4, 80 * PUB + cfg.pubgap, cfg)[0]: SEQS.append([i, drain])
    sc.add_wait_sites()
    return sc

def p_tail(cfg):
    mf = []
    for gs in range(176, 192):
        c, N = SPAN[gs]
        for q in range(5):
            for u in range(2): mf.append(mfma(PACC(N, q), VB(gs % 3, u), OF(c % 3, q, u), PACC(N, q), 'p'))
    sc = Sched(mf)
    for k in range(14):
        o = 1 if k == 2 else 0
        for i, (u, e) in enumerate(UE): sc.put(10 * k + i + o, rdU(178 + k, u, e))
        sc.put(10 * k + 3 + o, wait())
    sc.put(143, wait())
    sc.put(20, wait(need_vm=lambda ctx: [tagU(23)(ctx)], free=False)); sc.put(20, barrier())
    sc.put(39, wait())
    wA, rA, wB, rB, oa = V(236), V(237), V(238), V(239), V(240)
    pre = [salu("s_and_b32", sTp, sWave, 1), salu("s_lshr_b32", sTx, sWave, 1), salu("s_mul_i32", sTx, sTx, 3 * SL, scc=False),
           salu("s_sub_u32", sT1, 3 * SL, sTx),
           salu("s_mul_i32", sT0, sTp, 10240, scc=False), salu("s_add_u32", sT0, sT0, SL), valu("v_add_u32", vt0, sT0, vL16),
           valu("v_add_u32", wA, sTx, vt0), valu("v_add_u32", rA, sT1, vt0),
           salu("s_mul_i32", sT0, sTp, 2 * SL, scc=False), salu("s_add_u32", sT0, sT0, 9216), valu("v_add_u32", vt0, sT0, vL16),
           valu("v_add_u32", wB, sTx, vt0), valu("v_add_u32", rB, sT1, vt0),
           valu("v_bfe_u32", oa, vL16, 4, 4), valu("v_mul_u32_u24", oa, 2560, oa),
           valu("v_lshrrev_b32", vt0, 8, vL16), valu("v_lshl_add_u32", oa, vt0, 4 if cfg.pswap else 3, oa)]
    fw, fr = V(241), [V(243), V(244)]
    if cfg.pswap:
        pre += [valu("v_sub_u32", vt1, wA, vL16), valu("v_and_b32", vt0, "0x3ff", vTw), valu("v_add_u32", fw, vt0, vt1),
                valu("v_lshrrev_b32", vt0, 9, vL16), valu("v_lshl_add_u32", vt1, vt0, 3, vt1),
                valu("v_bfe_u32", vt0, vL16, 8, 1), valu("v_lshl_add_u32", vt1, vt0, 9, vt1),
                valu("v_bfe_u32", vt0, vL16, 6, 2), valu("v_lshl_add_u32", vt1, vt0, 6, vt1),
                valu("v_bfe_u32", vt0, vL16, 7, 1), valu("v_bfe_u32", fr[1], vL16, 4, 2), valu("v_xor_b32", vt0, vt0, fr[1]),
                valu("v_lshl_add_u32", fr[0], vt0, 4, vt1), valu("v_xor_b32", vt0, 2, vt0), valu("v_lshl_add_u32", fr[1], vt0, 4, vt1)]
    for i in pre: i.nosim = True
    seq_after(sc, pre, 0, 46)
    def T(pair, t): return PACC(2 * pair + t // 5, t % 5)
    def wr(addr, tile, off):
        i = dswrite("ds_write_b128", addr, tile, off); i.cost = 3
        return i
    free = lambda lo, n: [g for g in range(lo, 160) if g % 10 >= 4][:n]
    wg_ = [49, 54, 57, 59, 64, 67, 69, 74, 77, 79] if cfg.tw else free(56, 10)
    x1 = 86 if cfg.tw else 78
    for t, g in enumerate(wg_): sc.put(g, wr(wA, T(3, t), 1024 * t))
    sc.put(x1, wait(lgkm0=True, free=False)); sc.put(x1, barrier())
    rg = free(x1 + 1, 10)
    rds = [dsread("ds_read_b128", T(3, t), rA, 1024 * t) for t in range(10)]
    for t, g in enumerate(rg): sc.put(g, rds[t])
    seq = []
    for t in range(10):
        seq += [wait()] + [valu("v_add_f32", T(2, t).sub(i), T(2, t).sub(i), T(3, t).sub(i)) for i in range(4)]
        SEQS.append([rds[t], seq[-4]])
        if t % 4 == 0: seq.append(salu("s_add_u32", sTp, sExs, 1024 * t))
        seq.append(gstore(T(2, t), vL16, sEx, sTp, 1024 * (t % 4), cfg.exflags))
    seq_after(sc, seq, x1 + 12, cfg.xend + x1 - 78)
    for t, g in enumerate([129, 134, 137, 140, 143, 146, 149, 152, 155, 158] if cfg.tw else [136, 137, 138, 139, 144, 146, 148, 150, 152, 154]): sc.put(g, wr(wB, T(1, t), 1024 * t))
    sc.add_wait_sites()
    def add(dst, src): return [valu("v_pk_add_f32", dst.sub(2 * i, 2), dst.sub(2 * i, 2), src.sub(2 * i, 2)) for i in range(2)]
    w = wait(need_vm=lambda c: 'all', lgkm0=True, free=False); w.vm = 0
    f = [w, barrier()]
    f.append(unit([f"s_cmp_lg_u32 {sWave}, 3", "s_cbranch_scc1 L_xset",
                   f"v_mov_b32 {vOne}, 1", "s_mov_b64 exec, 1", f"buffer_store_dword {vOne}, off, {sEx}, {sFs} sc1", "s_mov_b64 exec, -1",
                   f"buffer_load_dword v226, off, {sEx}, {sFr} sc1", "L_xset:"]))
    for t in range(10): f.append(dsread("ds_read_b128", T(1, t), rB, 1024 * t))
    for t in range(10):
        f.append(wait()); f += add(T(0, t), T(1, t))
    f.append(unit([f"s_cmp_lg_u32 {sWave}, 3", "s_cbranch_scc1 L_xok", f"s_mov_b32 {sSpin}, 0x80000", "L_xpoll:",
                   "s_waitcnt vmcnt(0)", f"v_readfirstlane_b32 {sTp}, v226", f"s_sub_u32 {sSpin}, {sSpin}, 1",
                   f"s_cmp_eq_u32 {sSpin}, 0", "s_cbranch_scc1 L_xok", "s_nop 0",
                   f"s_cmp_eq_u32 {sTp}, 1", "s_cbranch_scc1 L_xok",
                   f"buffer_load_dword v226, off, {sEx}, {sFr} sc1", "s_branch L_xpoll", "L_xok:"]))
    f.append(barrier())
    order = [0, 5, 1, 6, 2, 7, 3, 8, 4, 9] if cfg.pswap else list(range(10))
    f += [salu("s_add_u32", sTp, sExr, 4096), salu("s_add_u32", sTx, sExr, 8192)]
    for t in order: f.append(gload(T(1, t), vL16, sEx, [sExr, sTp, sTx][t // 4], 1024 * (t % 4), cfg.exrflags))
    if cfg.pswap:
        for q in range(5):
            for N in range(2):
                ac = T(0, 5 * N + q)
                f.append(wait()); f += add(ac, T(1, 5 * N + q))
                for i in range(2): f.append(valu("v_cvt_pk_bf16_f32", T(2, q).sub(2 * N + i), ac.sub(2 * i), ac.sub(2 * i + 1)))
            f.append(dswrite("ds_write_b128", fw, T(2, q), 1024 * q))
            for k in range(2): f.append(dsread("ds_read_b64_tr_b16", T(3, q).sub(2 * k, 2), fr[k], 1024 * q + 256 * k))
        for q in range(5):
            f += [salu("s_add_u32", sTp, sOutb, q * 16 * 2560), wait(), gstore(T(3, q), oa, sOut, sTp, 0, cfg.outflags)]
    else:
        for t in range(10):
            N, q = divmod(t, 5)
            ac = T(0, t)
            f.append(wait()); f += add(ac, T(1, t))
            for i in range(2): f.append(valu("v_cvt_pk_bf16_f32", ac.sub(i), ac.sub(2 * i), ac.sub(2 * i + 1)))
            f.append(salu("s_add_u32", sTp, sOutb, q * 16 * 2560))
            f.append(gstore(ac.sub(0, 2), oa, sOut, sTp, 32 * N, cfg.outflags))
    return sc, f

def slow_path(nq, cfg):
    o = []
    a = lambda t: o.append(raw(t))
    def spaced(seq):
        for i in seq:
            o.append(i)
            if 'm0' in i.wr: o.append(nop(0))
    dummy = lambda c: ('K', 0, 0)
    o.append(label(f"L_slow_{nq}"))
    a("s_waitcnt vmcnt(0) lgkmcnt(0)"); a("s_barrier")
    a(f"s_mov_b32 {sRedo}, -1")
    a(f"s_cmp_eq_u32 {sHead}, 0")
    a(f"s_cselect_b32 {sT0}, {16 * 393216}, 0"); a(f"s_cselect_b32 {sT1}, {16 * 384}, 0")
    a(f"s_cselect_b32 {sT2}, 0, {16 * 393216}")
    a(f"s_mov_b32 {vR}, {VS[0]}"); a(f"s_mov_b32 {vN}, {VS[1]}"); a(f"s_mov_b32 {vF}, {VS[2]}")
    a(f"s_cselect_b32 {vR}, {VS[1]}, {vR}"); a(f"s_cselect_b32 {vN}, {VS[2]}, {vN}"); a(f"s_cselect_b32 {vF}, {VS[0]}, {vF}")
    a(f"s_sub_u32 {sWend}, {sWend}, {sT1}")
    if cfg.kvperm == 4:
        for r in (sK0, sKoff, sVoff): a(f"s_sub_u32 {r}, {r}, {sT0}")
        a(f"s_mov_b32 {sSpin}, {sK0}")
    else:
        a(f"s_sub_u32 {sKend}, {sKend}, {sT0}"); a(f"s_sub_u32 {sVend}, {sVend}, {sT0}")
        a(f"s_add_u32 {sKoff}, {sK0}, {sT2}"); a(f"s_mov_b32 {sVoff}, {sKoff}")
    a(f"s_mov_b32 {sWoff}, {sW0}"); a(f"s_mov_b32 {sXoff}, {sX0}")
    for i in rebase(vaddr, sVcur, vR): o.append(i)
    for q in range(nq): a(f"v_mov_b32 {Ci(q).sub(0)}, 0xff800000")
    a(f"s_mov_b32 {sLoop}, 16")
    o.append(label(f"L_slowl_{nq}"))
    if cfg.kvperm != 4: spaced(job_tile(nq, 'K', kR, dummy, cfg, groups=range(8)))
    elif nq == 3:
        for mm in range(8):
            a(f"s_add_u32 m0, {kR}, {mm * 3072}"); a("s_nop 0")
            for m in range(3): o.append(dma(dKV[m], sK, sSpin, 1024 * m, cfg.kvflags))
            a(f"s_add_u32 {sSpin}, {sSpin}, 3072")
    a("s_waitcnt vmcnt(0)"); a("s_barrier")
    for j in range(4):
        for s in range(6): o.append(rdK(j, s, dummy))
        a("s_waitcnt lgkmcnt(0)")
        for q in range(nq):
            for s in range(6): o.append(mfma(Sf(q), Kf(j & 1, s), Qf(q, s), 0 if s == 0 else Sf(q)))
        a("s_nop 7")
        for q in range(nq):
            m = Ci(q).sub(0); Sx = Sf(q)
            a(f"v_max3_f32 {m}, {m}, {Sx.sub(0)}, {Sx.sub(1)}"); a(f"v_max3_f32 {m}, {m}, {Sx.sub(2)}, {Sx.sub(3)}")
    a("s_barrier")
    a(f"s_sub_u32 {sLoop}, {sLoop}, 1"); a(f"s_cmp_lg_u32 {sLoop}, 0"); a(f"s_cbranch_scc1 L_slowl_{nq}")
    for r in (kR, kN): spaced(job_tile(nq, 'K', r, dummy, cfg, groups=range(8), odd=r is kR))
    a("s_waitcnt vmcnt(0)")
    for r in (vR, vN): spaced(job_tile(nq, 'V', r, dummy, cfg, groups=range(8), adv=not (cfg.qshift and r is vN), odd=r is vR))
    a("s_waitcnt vmcnt(0)"); a("s_barrier")
    for s in range(6): o.append(rdK(0, s, dummy))
    a("s_waitcnt lgkmcnt(0)")
    a(f"s_branch L_prol_{nq}")
    return o

def setup(cfg):
    o = []
    a = lambda t: o.append(raw(t))
    a("s_cmp_ge_u32 s2, 256"); a("s_cbranch_scc1 L_end")
    a("s_load_dwordx8 s[24:31], s[0:1], 0")
    a("s_load_dwordx8 s[32:39], s[0:1], 40")
    a("s_load_dwordx2 s[96:97], s[0:1], 32"); a("s_load_dwordx2 s[40:41], s[0:1], 72")
    a("s_load_dwordx4 s[44:47], s[0:1], 80")
    a("s_load_dwordx2 s[42:43], s[0:1], 96")
    if cfg.stamps or cfg.spinat == -1 or cfg.midspin >= 0: a("s_memrealtime s[56:57]")
    if cfg.codepf:
        a("s_getpc_b64 s[48:49]"); a("L_pc:")
        a("s_lshr_b32 s50, s2, 3"); a("s_lshl_b32 s50, s50, 6")
        a("v_add_u32 v2, s50, v0"); a("v_lshlrev_b32 v2, 7, v2")
        a("v_min_u32 v2, L_code_end-L_pc-4, v2")
        a("v_mov_b32 v3, s49"); a("v_add_co_u32 v2, vcc, s48, v2"); a("s_nop 1"); a("v_addc_co_u32 v3, vcc, 0, v3, vcc")
        a("v_cmp_gt_u32 vcc, 64, v0"); a("s_and_saveexec_b64 s[48:49], vcc"); a("s_cbranch_execz L_nopf")
        a(f"global_load_dword {vOne}, v[2:3], off")
        a("L_nopf:"); a("s_mov_b64 exec, s[48:49]")
    a("v_lshrrev_b32 v1, 6, v0"); a("v_and_b32 v0, 63, v0")
    a("v_readfirstlane_b32 s3, v1")
    a("s_lshr_b32 s50, s2, 3")
    a("s_bfe_u32 s51, s2, 0x10001"); a("s_lshl_b32 s51, s51, 2"); a("s_lshr_b32 s52, s50, 3"); a("s_add_u32 s51, s51, s52")
    a("s_and_b32 s52, s2, 1"); a("s_lshl_b32 s52, s52, 3"); a("s_and_b32 s53, s50, 7"); a("s_add_u32 s52, s52, s53")
    a("s_bfe_u32 s53, s2, 0x10002")
    a("v_lshrrev_b32 v1, 3, v0"); a("v_and_b32 v2, 7, v0")
    for m in range(3):
        a(f"v_add_u32 v3, {8 * m}, v1")
        a("v_mul_u32_u24 v4, 43, v3"); a("v_lshrrev_b32 v4, 7, v4")
        a("v_and_b32 v5, 6, v4"); a("v_xor_b32 v5, v5, v2"); a("v_lshlrev_b32 v5, 4, v5")
        a("v_lshlrev_b32 v6, 7, v1"); a(f"v_add_u32 {dKV[m]}, v5, v6")
        a("v_mul_u32_u24 v5, 3, v4"); a("v_sub_u32 v5, v3, v5"); a("v_lshlrev_b32 v5, 7, v5")
        a("v_bfe_u32 v6, v4, 1, 1"); a("v_lshlrev_b32 v6, 2, v6"); a("v_xor_b32 v6, v6, v2"); a("v_lshlrev_b32 v6, 4, v6"); a("v_add_u32 v5, v5, v6")
        a("v_lshrrev_b32 v6, 2, v4"); a("v_lshlrev_b32 v6, 4, v6"); a("v_and_b32 v7, 3, v4"); a("v_add_u32 v6, v6, v7")
        a("v_mul_u32_u24 v6, 12288, v6"); a("v_add_u32 v5, v5, v6")
        a(f"v_subrev_u32 {dW[m]}, {1024 * m}, v5")
    a("v_and_b32 v3, 6, v1"); a("v_xor_b32 v3, v3, v2"); a("v_lshlrev_b32 v3, 4, v3")
    a("v_mul_u32_u24 v4, 1280, v1"); a(f"v_add_u32 {dX}, v3, v4")
    a(f"v_lshlrev_b32 {vL16}, 4, v0")
    a("s_waitcnt lgkmcnt(0)")
    if cfg.stamps:
        a(f"v_writelane_b32 {vStamp}, s56, 30"); a("s_getreg_b32 s56, hwreg(HW_REG_XCC_ID)"); a(f"v_writelane_b32 {vStamp}, s56, 31")
    a("s_cmp_eq_u32 s53, 0")
    for i in range(8): a(f"s_cselect_b32 s{24 + i}, s{24 + i}, s{32 + i}")
    a("s_cselect_b32 s96, s96, s40"); a("s_cselect_b32 s97, s97, s41"); a("s_mov_b32 s98, 7864320"); a("s_mov_b32 s99, 0x20000")
    a("s_mul_i32 s48, s51, 307200"); a("s_add_u32 s4, s24, s48"); a("s_addc_u32 s5, s25, 0"); a("s_mov_b32 s6, 307200"); a("s_mov_b32 s7, 0x20000")
    a("s_mov_b32 s8, s30"); a("s_mov_b32 s9, s31"); a("s_mov_b32 s10, 7864320"); a("s_mov_b32 s11, 0x20000")
    a("s_mul_i32 s48, s51, 12582912")
    a("s_add_u32 s12, s26, s48"); a("s_addc_u32 s13, s27, 0"); a("s_mov_b32 s14, 12582912"); a("s_mov_b32 s15, 0x20000")
    a("s_add_u32 s16, s28, s48"); a("s_addc_u32 s17, s29, 0"); a("s_mov_b32 s18, 12582912"); a("s_mov_b32 s19, 0x20000")
    a("s_lshl_b32 s48, s53, 3"); a("s_add_u32 s48, s48, s51"); a("s_mul_i32 s48, s48, 2949120")
    a("s_add_u32 s20, s42, s48"); a("s_addc_u32 s21, s43, 0"); a("s_mov_b32 s22, 2949120"); a("s_mov_b32 s23, 0x20000")
    a("s_mov_b32 s64, s44"); a("s_mov_b32 s65, s45"); a("s_mov_b32 s66, 4915200"); a("s_mov_b32 s67, 0x20000")
    a(f"s_add_u32 s68, s42, {EXOFF}"); a("s_addc_u32 s69, s43, 0"); a(f"s_mov_b32 s70, {STOFF + 0x100000}"); a("s_mov_b32 s71, 0x20000")
    a("s_mov_b32 s72, s46"); a("s_mov_b32 s73, s47"); a("s_mov_b32 s74, 256"); a("s_mov_b32 s75, 0x20000")
    a("s_cmp_ge_u32 s50, 30"); a(f"s_cselect_b32 {sIdle}, 1, 0"); a("s_min_u32 s24, s50, 29")
    a("s_and_b32 s25, s2, 1")
    a("s_mul_i32 s26, s24, 52"); a("s_lshr_b32 s26, s26, 8"); a("s_mul_i32 s27, s26, 5"); a("s_sub_u32 s27, s24, s27")
    a("s_lshl_b32 s26, s26, 1"); a("s_and_b32 s28, s3, 1"); a("s_add_u32 s26, s26, s28")
    a("s_mul_i32 s29, s26, 43"); a("s_lshr_b32 s29, s29, 7"); a("s_mul_i32 s30, s29, 3"); a("s_sub_u32 s26, s26, s30")
    a("s_and_b32 s30, s2, 7"); a(f"s_lshl_b32 {sMyc}, s30, 2"); a(f"s_and_b32 {sCnt}, {sMyc}, 24")
    a("s_and_b32 s30, s2, 6"); a("s_lshl_b32 s30, s30, 1")
    a("s_add_u32 s30, s30, s29"); a("s_mul_i32 s31, s30, 2949120")
    a("s_add_u32 s60, s42, s31"); a("s_addc_u32 s61, s43, 0"); a("s_mov_b32 s62, 2949120"); a("s_mov_b32 s63, 0x20000")
    a("s_lshl_b32 s31, s25, 1"); a("s_lshr_b32 s32, s3, 1"); a("s_add_u32 s31, s31, s32")
    a(f"s_mul_i32 {sOb}, s31, {4 * 92160}"); a(f"s_mul_i32 s33, s26, {5 * 6144}"); a(f"s_add_u32 {sOb}, {sOb}, s33")
    a(f"s_mul_i32 {sWb}, s31, {4 * 192 * 1280}"); a("s_lshl_b32 s33, s27, 8"); a(f"s_add_u32 {sWb}, {sWb}, s33")
    a("s_xor_b32 s33, s28, s25"); a("s_lshl_b32 s33, s33, 7"); a(f"s_add_u32 {sWb}, {sWb}, s33")
    a(f"s_mul_i32 {sLb}, s32, {3 * SL}"); a("s_lshl_b32 s33, s28, 13"); a(f"s_add_u32 {sLb}, {sLb}, s33"); a(f"s_add_u32 {sLb}, {sLb}, 1024")
    a("s_and_b32 s30, s30, 7"); a("s_mul_i32 s30, s30, 240"); a("s_mul_i32 s33, s26, 80"); a("s_add_u32 s30, s30, s33")
    a(f"s_mul_i32 {sOutb}, s30, 2560"); a("s_mul_i32 s33, s53, 1280"); a(f"s_add_u32 {sOutb}, {sOutb}, s33")
    a("s_lshl_b32 s33, s27, 8"); a(f"s_add_u32 {sOutb}, {sOutb}, s33"); a("s_lshl_b32 s33, s31, 6"); a(f"s_add_u32 {sOutb}, {sOutb}, s33")
    a("s_lshl_b32 s33, s2, 2"); a("s_add_u32 s33, s33, s3"); a(f"s_mul_i32 {sExs}, s33, 10240"); a("s_xor_b32 s33, s33, 4"); a(f"s_mul_i32 {sExr}, s33, 10240")
    a("s_lshl_b32 s33, s2, 7"); a(f"s_add_u32 {sFs}, s33, {FLOFF}"); a("s_xor_b32 s33, s33, 128"); a(f"s_add_u32 {sFr}, s33, {FLOFF}")
    a("s_and_b32 s48, s2, 3"); a("s_lshl_b32 s48, s48, 5"); a("s_add_u32 s48, s48, s50"); a(f"s_mul_i32 {sWopf}, s48, 30720")
    if cfg.dbgst: a(f"s_add_u32 {sMyc}, {sMyc}, 128"); a(f"s_add_u32 {sCnt}, {sCnt}, 128")
    a(f"s_mov_b32 {sRedo}, 0")
    a(f"s_mov_b32 {sWave}, s3")
    if cfg.stamps > 1: a("s_mov_b32 s3, 512")
    if cfg.spinat == -1 or cfg.midspin >= 0: a("s_mov_b32 s3, s56")
    a(f"s_mul_i32 {sKoff}, s52, 393216"); a(f"s_mul_i32 {sWoff}, s52, 384")
    a(f"s_mul_i32 {sXoff}, {sWave}, {64 * 1280}")
    a(f"s_mul_i32 {sOoff}, s52, 92160"); a(f"s_mul_i32 s48, {sWave}, {4 * 6144}"); a(f"s_add_u32 {sOoff}, {sOoff}, s48")
    a(f"s_mov_b32 {sTp}, s50")
    a(f"s_mov_b32 {kR}, {KS[0]}"); a(f"s_mov_b32 {kN}, {KS[1]}"); a(f"s_mov_b32 {kF}, {KS[2]}")
    a(f"s_mov_b32 {vR}, {VS[0]}"); a(f"s_mov_b32 {vN}, {VS[1]}"); a(f"s_mov_b32 {vF}, {VS[2]}")
    a(f"s_mov_b32 {sVcur}, 0"); a(f"s_mov_b32 {sWcur}, {VS[0]}")
    c = math.log2(math.e) / math.sqrt(192.0)
    a(f"s_mov_b32 s38, {fbits(c)}"); a(f"s_mov_b32 s39, {fbits(c)}")
    a(f"s_mov_b32 {sThr}, {fbits(2.0 ** cfg.thr)}")
    a(f"s_mov_b32 {sHead}, 0")
    a(f"s_cmp_eq_u32 {sWave}, 3"); a("s_cbranch_scc1 L_v3")
    return o

def lds_addr_setup(cfg):
    o = []
    def a(t):
        i = raw(t); i.nosim = True; o.append(i)
    a("v_and_b32 v1, 15, v0")
    a("v_lshrrev_b32 v2, 4, v0")
    a("v_and_b32 v3, 6, v1")
    a("v_xor_b32 v4, v2, v3")
    a("v_lshlrev_b32 v4, 4, v4")
    a("v_mul_u32_u24 v5, 384, v1")
    a(f"v_add_u32 {kaddr[0]}, v5, v4")
    a(f"v_xor_b32 v6, 64, v4"); a(f"v_add_u32 {kaddr[1]}, v5, v6")
    a("v_lshlrev_b32 v5, 7, v1"); a(f"v_add_u32 v5, {sXl[0]}, v5")
    a(f"v_add_u32 {xaddr[0]}, v5, v4"); a(f"v_add_u32 {xaddr[1]}, v5, v6")
    a("v_lshrrev_b32 v1, 2, v0"); a("v_and_b32 v3, 6, v1")
    a("v_bfe_u32 v4, v0, 1, 1"); a("v_xor_b32 v4, v4, v3"); a("v_lshlrev_b32 v4, 4, v4")
    a("v_and_b32 v5, 1, v0"); a("v_lshlrev_b32 v5, 3, v5")
    a("v_mul_u32_u24 v6, 384, v1"); a("v_add_u32 v5, v5, v6")
    for m in range(4):
        a(f"v_xor_b32 v6, {32 * m}, v4"); a(f"v_add_u32 {vaddr[m]}, v5, v6")
    a("v_and_b32 v3, 1, v2"); a(f"v_mul_u32_u24 v3, {12288 + cfg.wshift}, v3"); a(f"v_add_u32 v3, {VS[0]}, v3")
    a("v_lshrrev_b32 v4, 1, v2"); a("v_lshlrev_b32 v4, 2, v4"); a("v_bfe_u32 v5, v0, 2, 2"); a("v_add_u32 v4, v4, v5")
    a("v_mul_u32_u24 v4, 384, v4"); a("v_add_u32 v3, v3, v4")
    a("v_bfe_u32 v4, v0, 3, 1"); a("v_lshlrev_b32 v4, 2, v4"); a("v_and_b32 v5, 3, v0"); a("v_xor_b32 v4, v4, v5"); a("v_lshlrev_b32 v4, 4, v4")
    a(f"v_add_u32 {waddr[0]}, v3, v4"); a("v_xor_b32 v4, 64, v4"); a(f"v_add_u32 {waddr[1]}, v3, v4")
    a(f"s_lshl_b32 {sT1}, {sWave}, 10"); a(f"s_add_u32 {sT1}, {sT1}, {SCR}")
    a("v_and_b32 v1, 15, v0"); a("v_bfe_u32 v3, v0, 1, 2"); a("v_xor_b32 v3, v3, v2"); a("v_lshl_add_u32 v3, v1, 2, v3"); a(f"v_lshl_add_u32 {vTw}, v3, 4, {sT1}")
    a("v_bfe_u32 v3, v0, 3, 2"); a("v_xor_b32 v3, v3, v0"); a(f"v_lshl_add_u32 {vTr}, v3, 4, {sT1}")
    a(f"s_lshl_b32 {sT1}, {sWave}, 8"); a(f"s_add_u32 {sT1}, {sT1}, {SCR + 4096}"); a(f"v_lshl_add_u32 {vTi}, v2, 4, {sT1}")
    return o

def setup_variant(nq, cfg):
    o = []
    def a(t):
        i = raw(t); i.nosim = True; o.append(i)
    if nq == 4:
        a(f"s_mul_i32 {sGrp}, {sWave}, 3072")
        a(f"s_and_b32 {sT0}, {sWave}, 1"); a(f"s_lshl_b32 {sT0}, {sT0}, 2"); a(f"s_lshr_b32 {sT1}, {sWave}, 1"); a(f"s_lshl_b32 {sT1}, {sT1}, 5")
        a(f"s_add_u32 {sT0}, {sT0}, {sT1}"); a(f"s_mul_i32 {sT0}, {sT0}, 12288"); a(f"s_add_u32 {sWoff}, {sWoff}, {sT0}")
        a(f"s_lshl_b32 {sT0}, {sWave}, 13"); a(f"s_add_u32 {sXl[0]}, {sT0}, {KS[1]}"); a(f"s_add_u32 {sXl[1]}, {sT0}, {KS[2]}")
    else:
        a(f"s_mov_b32 {sXl[0]}, {EB}"); a(f"s_mov_b32 {sXl[1]}, {EB + 6144}")
        a(f"s_getreg_b32 {sT0}, hwreg(HW_REG_XCC_ID)"); a(f"s_and_b32 {sT0}, {sT0}, 7"); a(f"s_mul_i32 {sT1}, {sT0}, {sT0}")
        a(f"s_lshl_b32 {sT1}, {sT1}, 8"); a(f"s_add_u32 {sT0}, {sT0}, {sT1}"); a(f"s_lshl_b32 {sT0}, {sT0}, 8"); a(f"s_add_u32 {sArr}, {sT0}, 1")
        a("v_mov_b32 v1, 0"); a("v_lshlrev_b32 v2, 2, v0"); a("s_mov_b64 exec, 15"); a(f"buffer_store_dword v1, v2, {sEx}, {sFs} offen sc1"); a("s_mov_b64 exec, -1")
    a(f"s_add_u32 {sWend}, {sWoff}, 7864320"); a(f"s_add_u32 {sXend}, {sXoff}, 1280")
    a(f"s_mul_i32 {sT0}, s2, 5"); a(f"s_lshr_b32 {sT1}, s2, 4"); a(f"s_add_u32 {sT0}, {sT0}, {sT1}"); a(f"s_and_b32 {sT0}, {sT0}, {15 if cfg.rotkv else 0}")
    if cfg.kvperm == 4:
        a(f"s_min_u32 {sKend}, {sT0}, 14"); a(f"s_mov_b32 {sVend}, {sKend}"); a(f"s_mov_b32 {sK0}, {sKoff}")
        for i in rm_offset(sKoff, sKend): a(i.text)
        if nq == 3:
            for i in range(1, 4):
                for m in range(3): a(f"v_add_u32 {dRM[i][m]}, {RM_C[i] * 3072}, {dKV[m]}")
    else:
        a(f"s_add_u32 {sKend}, {sKoff}, {16 * 3072 * kv_map(cfg)[0]}"); a(f"s_mov_b32 {sVend}, {sKend}")
        a(f"s_mul_i32 {sT0}, {sT0}, {3072 * kv_map(cfg)[0]}"); a(f"s_add_u32 {sKoff}, {sKoff}, {sT0}"); a(f"s_mov_b32 {sK0}, {sKoff}")
    if cfg.rotq == 1:
        a(f"s_lshr_b32 {sT0}, {sTp}, 3"); a(f"s_lshl_b32 {sT0}, {sT0}, 1"); a(f"s_and_b32 {sT1}, {sTp}, 7"); a(f"s_add_u32 {sT0}, {sT0}, {sT1}")
        a(f"s_mul_i32 {sT0}, {sT0}, 5"); a(f"s_lshr_b32 {sT0}, {sT0}, 2")
        a(f"s_cmp_ge_u32 {sT0}, 10"); a(f"s_cselect_b32 {sT1}, 10, 0"); a(f"s_sub_u32 {sT0}, {sT0}, {sT1}")
    if cfg.rotq == 2:
        a(f"s_lshr_b32 {sT0}, {sTp}, 3"); a(f"s_xor_b32 {sT0}, {sT0}, {sTp}"); a(f"s_and_b32 {sT0}, {sT0}, 1"); a(f"s_mul_i32 {sT0}, {sT0}, 5")
    if cfg.rotq:
        a(f"s_mul_i32 {sRw}, {sT0}, 786432"); a(f"s_lshl_b32 {sRx}, {sT0}, 7")
    a(f"s_mov_b32 {sVoff}, {sKoff}")
    a(f"s_mov_b32 {sW0}, {sWoff}"); a(f"s_mov_b32 {sX0}, {sXoff}")
    def spaced(seq):
        for i in seq:
            o.append(i)
            if 'm0' in i.wr: o.append(nop(0))
    spaced(job_x(nq, 0, 0, cfg)); spaced(job_tile(nq, 'W', vR, absT('W', 0, 0), cfg))
    o.extend(lds_addr_setup(cfg))
    spaced(job_x(nq, 1, 0, cfg)); spaced(job_tile(nq, 'W', vN, absT('W', 0, 1), cfg))
    o.append(wait(need_vm=lambda c: [('x', 0, 0), ('W', 0, 0)], free=False)); o.append(barrier())
    dep = []
    for q in range(nq):
        for u in range(2):
            r = rdX(nq, 0, 0, q, u); dep += r.wr; o.append(r)
    for T in range(2):
        for (u, e) in UE: o.append(rdW(T, u, e, absT('W', 0, 0)))
    o.append(wait())
    spaced(job_x(nq, 2, 0, cfg, dep))
    o.append(wait())
    return o

def stamp(cfg, idx):
    if cfg.midspin == idx:
        _uid[0] += 1; n = _uid[0]
        return [raw(f"L_ms{n}:"), raw("s_sleep 4"), raw("s_memrealtime s[56:57]"), raw("s_waitcnt lgkmcnt(0)"), raw("s_sub_u32 s56, s56, s3"),
                raw(f"s_cmp_lt_u32 s56, {cfg.midT}"), raw(f"s_cbranch_scc1 L_ms{n}")]
    if cfg.spind >= 0 and idx in (cfg.spind - 1, cfg.spind):
        return [raw("s_memrealtime s[56:57]"), raw("s_waitcnt lgkmcnt(0)"), raw(("s_add_u32" if idx == cfg.spind else "s_sub_u32") + " s3, s3, s56")]
    if cfg.spinat == idx: return [raw("s_memrealtime s[56:57]"), raw("s_waitcnt lgkmcnt(0)"), raw("s_mov_b32 s3, s56")]
    if not cfg.stamps: return []
    return [raw("s_memrealtime s[56:57]"), raw("s_memtime s[58:59]"), raw("s_waitcnt lgkmcnt(0)"),
            raw(f"v_writelane_b32 {vStamp}, s56, {2 * idx}"), raw(f"v_writelane_b32 {vStamp}, s58, {2 * idx + 1}")]
def finish(cfg, idx):
    e = []
    if cfg.stamps:
        e += [raw("s_waitcnt vmcnt(0)")] + stamp(cfg, idx)
        e += [raw(f"s_lshl_b32 {sTp}, s2, 2"), raw(f"s_add_u32 {sTp}, {sTp}, {sWave}"), raw(f"s_lshl_b32 {sTp}, {sTp}, 8"),
              raw(f"s_add_u32 {sTp}, {sTp}, {STOFF}"), raw(f"v_lshrrev_b32 v0, 2, {vL16}"),
              raw(f"buffer_store_dword {vStamp}, v0, {sEx}, {sTp} offen")]
        if cfg.dbgst == 2 and idx == 7:
            e += [raw("s_cmp_ge_u32 s2, 16"), raw("s_cbranch_scc1 L_nox"), raw("s_getreg_b32 s56, hwreg(HW_REG_XCC_ID)"), raw("s_add_u32 s56, s56, 100"),
                  raw("v_mov_b32 v1, s56"), raw("s_lshl_b32 s57, s2, 2"), raw(f"buffer_store_dword v1, off, {sDbg}, s57"), raw("L_nox:")]
        if cfg.dbgst == 1 and idx == 7:
            e += [raw(f"v_not_b32 v1, {vStamp}"), raw(f"v_cmp_eq_u32 vcc, 480, {vL16}"), raw("s_nop 1"), raw(f"v_cndmask_b32 v1, {vStamp}, v1, vcc"),
                  raw(f"v_lshrrev_b32 v0, 3, {vL16}"), raw("s_mov_b32 exec_lo, 0x40005555"), raw("s_mov_b32 exec_hi, 0"),
                  raw(f"buffer_atomic_umax v1, v0, {sDbg}, 0 offen sc1"), raw("s_mov_b64 exec, -1")]
    if 7 in (cfg.spinat, cfg.spind) and idx == 7: e += [raw("s_waitcnt vmcnt(0)")] + stamp(cfg, 7)
    if cfg.rpdet >= 2 and idx == 7:
        e += [raw(f"s_lshl_b32 {sTp}, s2, 2"), raw(f"s_add_u32 {sTp}, {sTp}, {sWave}"), raw(f"s_lshl_b32 {sTp}, {sTp}, 7"), raw(f"s_add_u32 {sTp}, {sTp}, {STOFF}"),
              raw(f"buffer_load_dwordx2 v[4:5], off, {sEx}, {sTp} sc1"), raw("s_waitcnt vmcnt(0)"),
              raw("v_readfirstlane_b32 s57, v4"), raw("v_readfirstlane_b32 s58, v5"), raw("s_nop 3")]
        if cfg.rpdet == 2: e += [raw("s_sub_u32 s59, s3, s58"), raw("s_min_u32 s59, s59, 200000")]
        else: e += [raw("s_mul_i32 s59, s58, 100"), raw("s_min_u32 s59, s59, 200000")]
        e += [raw("s_cmp_eq_u32 s57, 0x13572468"), raw("s_cselect_b32 s59, s59, 0"), raw("s_cselect_b32 s58, s58, 0"), raw("s_add_u32 s59, s59, 20000"),
              raw("L_spin2:"), raw("s_sleep 4"), raw("s_memrealtime s[56:57]"), raw("s_waitcnt lgkmcnt(0)"), raw("s_sub_u32 s57, s56, s3"),
              raw("s_cmp_lt_u32 s57, s59"), raw("s_cbranch_scc1 L_spin2"), raw("s_add_u32 s58, s58, 1"),
              raw("v_mov_b32 v2, 0x13572468"), raw("v_mov_b32 v3, " + ("s56" if cfg.rpdet == 2 else "s58")),
              raw(f"buffer_store_dwordx2 v[2:3], off, {sEx}, {sTp} sc1"), raw("s_endpgm")]
    if cfg.rpdet == 1 and idx == 7:
        e += [raw(f"s_lshl_b32 {sTp}, s2, 2"), raw(f"s_add_u32 {sTp}, {sTp}, {sWave}"), raw(f"s_lshl_b32 {sTp}, {sTp}, 7"), raw(f"s_add_u32 {sTp}, {sTp}, {STOFF}"),
              raw(f"buffer_load_dword v1, off, {sEx}, {sTp} sc1"), raw("v_mov_b32 v2, 0x13572468"), raw("s_waitcnt vmcnt(0)"),
              raw(f"buffer_store_dword v2, off, {sEx}, {sTp} sc1"), raw("v_readfirstlane_b32 s57, v1"), raw("s_nop 3"),
              raw("s_cmp_lg_u32 s57, 0x13572468"), raw("s_cbranch_scc1 L_end")]
    if cfg.spinat > -2 and idx == 7:
        e += [raw("L_spin:"), raw("s_sleep 4"), raw("s_memrealtime s[56:57]"), raw("s_waitcnt lgkmcnt(0)"), raw("s_sub_u32 s56, s56, s3"),
              raw(f"s_cmp_lt_u32 s56, {cfg.spinT}"), raw("s_cbranch_scc1 L_spin")]
    return e + [raw("s_endpgm")]

def variant(nq, cfg, common):
    sfx = f"_{nq}"
    st = lambda i: stamp(cfg, i)
    su = setup_variant(nq, cfg) + st(0)
    q1 = qproj(nq, cfg, False); q1.add_wait_sites()
    q2 = qproj(nq, cfg, True); q2.add_wait_sites()
    cp = conv_prologue(nq, cfg)
    jK = lambda: job_tile(nq, 'K', kF, tagK(3), cfg, groups=range(8))
    jV = lambda: job_tile(nq, 'V', vF, tagV(2), cfg, groups=range(4, 8))
    jL = lambda: [job_tile(nq, 'V', vF, tagV(3), cfg, groups=range(4), adv=False)]
    if cfg.qshift:
        jK = lambda: job_tile(nq, 'K', kF, tagK(3), cfg, groups=range(4), adv=False)
        jV = lambda: job_tile(nq, 'V', vF, tagV(2), cfg, groups=range(8))
        jL = lambda: [job_tile(nq, 'K', kN, tagK(3), cfg, groups=range(4, 8))]
    i0 = attn_iter(nq, 0, cfg, first_pv=True, jobs=[jV(), jK()], late=jL())
    i1 = attn_iter(nq, 1, cfg, jobs=[jV(), jK()], late=jL(), gentle=cfg.gentle2 if nq == 4 else 0)
    i2 = attn_iter(nq, 0, cfg, jobs=[jV(), jK()], late=jL(), gentle=cfg.gentle2 if nq == 4 else 0)
    two = nq == 4 and cfg.twoloops
    if two:
        j1, j2 = i1, i2
        i1 = attn_iter(nq, 1, cfg, jobs=[jV(), jK()], late=jL(), gentle=cfg.gentle)
        i2 = attn_iter(nq, 0, cfg, jobs=[jV(), jK()], late=jL(), gentle=cfg.gentle)
        j2.place(salu("s_sub_u32", sLoop, sLoop, 1), 20, 60)
    fix = []
    for o_, d_ in ((sKoff, 16 * 393216), (sKend, 16 * 393216), (sVoff, 16 * 393216), (sVend, 16 * 393216), (sWoff, 16 * 384), (sWend, 16 * 384)):
        if cfg.kvperm == 4 and o_ is sVend: continue
        if cfg.kvperm == 4 and o_ is sKend: o_ = sK0
        if nq == 3 or o_ in (sWoff, sWend): fix.append(salu("s_add_u32", o_, o_, d_))
    if cfg.rotq: fix += [salu("s_add_u32", sWoff, sWoff, sRw), salu("s_add_u32", sXoff, sXoff, sRx)]
    def wo_touch(half, ks):
        if not (cfg.wopf and nq == 3): return []
        o = [valu("v_lshlrev_b32", V(184), 3, vL16)]
        for k in ks:
            o.append(salu("s_add_u32", sT0, sWopf, half * 3932160 + min(8192 * k, 30720 - 8192)))
            o.append(gload(V(185), V(184), sWo, sT0, 0, "", op="buffer_load_dword")); o[-1].wr = []
        return o
    a13 = attn_iter(nq, 1, cfg, jobs=[jV(), fix, job_x(nq, 0, 1, cfg)], late=[wo_touch(0, (0, 1))])
    a14 = attn_iter(nq, 0, cfg, jobs=[job_tile(nq, 'W', vF, absT('W', 1, 0), cfg), job_x(nq, 1, 1, cfg), wo_touch(0, (2, 3))], next_k=False, k_rot=False,
                    late=[job_tile(nq, 'W', vF, absT('W', 1, 1), cfg)] if cfg.tl else [])
    a15 = attn_last(nq, cfg, 'Q')
    b13 = attn_iter(nq, 1, cfg, jobs=[jV(), wo_touch(1, (0, 1))], late=[wo_touch(1, (2, 3))], side=calc_raddr())
    b14 = attn_iter(nq, 0, cfg, jobs=[([poll_issue(0)] if nq == 3 else []), job_u(0, cfg)], next_k=False, k_rot=False,
                    late=[merge_jobs(job_u(1, cfg), job_o(0, cfg)[:9])] if cfg.tl else [])
    if nq == 3:
        gb = 12 * 9 - 1
        b14.put(gb, wait()); b14.put(gb, poll_check(0))
    b15 = attn_last(nq, cfg, 'P')
    pa = p_chunks(0, CS, nq, cfg)
    ini = [salu("s_lshr_b32", sJmp, sBad.sub(0), 1), salu("s_sub_u32", sJmp, 4, sJmp),
           salu("s_and_b32", sStol, S(2), 1), salu("s_lshl_b32", sStol, sStol, 4), salu("s_sub_u32", sStol, 11, sStol),
           smov(sA18, 19), smov(sHn, 2), salu("s_add_u32", sOn, sOb, 2 * 92160), salu("s_add_u32", sWn, sWb, 2 * 192 * 1280)]
    ini[1].simfn = lambda st: st.__setitem__(str(sJmp), st['jmp'])
    ini[4].simfn = lambda st: st.__setitem__(str(sStol), 11)
    ini[5].simfn = lambda st: st.__setitem__(str(sA18), st['after18'])
    seq_after(pa, ini[:2], 0, 7); seq_after(pa, ini[2:] + next_head(), 400, 470)
    if cfg.ctouch and nq == 3:
        i1.put(10, code_touch(["L_tail1_4", "L_tail1_3"], 176, guard=(sLoop, 1), alt=["L_tail2_4", "L_tail2_3"]))
        q2.put(72 * 2 + 5, code_touch(["L_tail1_4+16384", "L_tail1_3+16384"], 176))
        q2.put(72 * 8 + 5, code_touch(["L_head_4", "L_head_3"] + (["L_tail2_4"] if cfg.twoloops else []), 176))
        if cfg.ctouch > 1: q1.put(72 * 6 + 5, code_touch(["L_head_4", "L_head_3"], 176))
        pa.put(80 * 3 + 9, code_touch(["L_pcommon"], 244))
    i0.place(smov(sLoop, 6), 20, 60)
    i2.place(salu("s_sub_u32", sLoop, sLoop, 1), 20, 60)
    for s in (i0, i1, i2, a13, a14, a15, b13, b14, b15) + ((j1, j2) if two else ()):
        s.add_wait_sites()
        for g_, ins_ in getattr(s, 'extra', []):
            for i_ in ins_: s.put(g_, i_)
    loopend = [scmp("s_cmp_lg_u32", sLoop, 0), raw(f"s_cbranch_scc1 L_loop{sfx}")]
    loopend2 = [scmp("s_cmp_lg_u32", sLoop, 0), raw(f"s_cbranch_scc1 L_tail2{sfx}")]
    headbr = [scmp("s_cmp_lg_u32", sHead, 0), raw(f"s_cbranch_scc1 L_tail2{sfx}")]
    back = [smov(sHead, 1), raw(f"s_branch L_head{sfx}")]
    idlebr = [scmp("s_cmp_lg_u32", sIdle, 0), raw(f"s_cbranch_scc1 L_idle{sfx}"), wait()]
    idle = [label(f"L_idle{sfx}")]
    blocks = [(q, s, TMP[(5 * q + s) & 1]) for q in reversed(range(nq)) for s in range(1, 6)]
    if cfg.pvswap:
        for part in epi_stream(blocks, cfg): idle += part
    else:
        for q, s, t in blocks: idle += epi_block(q, s, t, cfg)
    idle += [raw("s_waitcnt vmcnt(0)"), barrier()]
    if nq == 3 and cfg.wb: idle.append(release())
    if nq == 3: idle += [salu("s_add_u32", sSig, sMyc, 64), signal_add(sSig, False)]
    idle += finish(cfg, 8)
    L = lambda s: s.linear()
    s1, s3, s4, s5 = st(1), st(2), st(3), st(4)
    jump = [raw("s_branch L_pcommon")] if nq == 3 else []
    code = su + L(q1) + s1 + [label(f"L_head{sfx}")] + cp + L(i0) + (headbr if two else []) + [raw(".p2align 3", 'L', states=0), label(f"L_loop{sfx}")] + L(i1) + L(i2) + loopend + ([] if two else headbr) \
        + [label(f"L_tail1{sfx}")] + L(a13) + L(a14) + L(a15) + s3 + L(q2) + s4 + back + slow_path(nq, cfg) + idle \
        + [raw(".p2align 12", 'L', states=0), label(f"L_tail2{sfx}")] + (L(j1) + L(j2) + loopend2 if two else []) + L(b13) + L(b14) + L(b15) + s5 + idlebr + L(pa) + jump
    tr = []
    def add(ins, **c): tr.extend((i, c) for i in ins)
    add(su, h=0, t=-9); add(L(q1) + s1, h=0, t=-5)
    for h in range(2):
        add(cp, h=h, t=-1); add(L(i0), h=h, t=0)
        for t in range(1, 13, 2):
            if two and t == 1: add(headbr, h=h, t=0)
            if two and h == 1: add(L(j1), h=h, t=t); add(L(j2), h=h, t=t + 1); add(loopend2, h=h, t=t + 1)
            else: add(L(i1), h=h, t=t); add(L(i2), h=h, t=t + 1); add(loopend, h=h, t=t + 1)
        if not two: add(headbr, h=h, t=12)
        if h == 0:
            add(L(a13), h=0, t=13); add(L(a14), h=0, t=14); add(L(a15) + s3, h=0, t=15); add(L(q2) + s4, h=1, t=-5); add(back, h=1, t=-5)
        else:
            add(L(b13), h=1, t=13); add(L(b14), h=1, t=14); add(L(b15) + s5, h=1, t=15)
    tr_idle = tr + [(i, dict(h=1, t=16)) for i in idlebr[:2] + idle]
    trs = []
    cpre, cloop, cpost = common
    for heads in ([0, 1, 2, 3, 16, 17, 18, 19], [0, 1, 2, 16, 17, 18, 19], [0, 1, 2, 3, 16, 17, 18, 11, 19]):
        t2 = [(i, dict(c, heads=heads)) for i, c in tr]
        t2 += [(i, dict(h=1, t=16, heads=heads)) for i in idlebr + L(pa) + jump + cpre]
        for p in range(len(heads) - 3): t2 += [(i, dict(h=1, t=16, heads=heads, dc=3 * p)) for i in cloop]
        t2 += [(i, dict(h=1, t=16, heads=heads, dc=3 * (len(heads) - 8))) for i in cpost]
        trs.append(t2)
    tr = trs
    info = dict(su=su, cp=cp, q1=q1, q2=q2, i0=i0, i1=i1, i2=i2, a13=a13, a14=a14, a15=a15, b13=b13, b14=b14, b15=b15, pa=pa)
    return code, tr, tr_idle, info

def sim_variant(nq, tr, cfg, jmp, a18):
    ok = True
    for w in ([0, 1, 2] if nq == 4 else [3]):
        h0 = 5
        grp = w * 3072 if nq == 4 else 0
        k0 = [0, 4, 32, 0][w]
        ggrp = kv_map(cfg)[1][w] * 3072 if nq == 4 else 0
        kst = 3072 * kv_map(cfg)[0]
        rk = 7 if cfg.rotkv else 0; rq = 3 if cfg.rotq else 0
        init = {'wave': w, 'jmp': jmp, 'after18': a18, 'h0': h0, 'rk': rk, 'rq': rq, str(kR): KS[0], str(kN): KS[1], str(kF): KS[2], str(vR): VS[0], str(vN): VS[1], str(vF): VS[2],
                str(sVcur): 0, str(sWcur): VS[0], str(sKoff): h0 * 393216 + ggrp, str(sVoff): h0 * 393216 + ggrp, str(sWoff): h0 * 384 + k0 * 12288,
                str(sXoff): w * 64 * 1280, str(sOoff): h0 * 92160 + w * 4 * 6144, str(sGrp): grp,
                str(sXl[0]): (KS[1] + w * 8192 if nq == 4 else EB), str(sXl[1]): (KS[2] + w * 8192 if nq == 4 else EB + 6144),
                str(sOb): 1000000, str(sWb): 2000000, str(sLb): 3000}
        init[str(sKend)] = init[str(sKoff)] + 16 * kst; init[str(sVend)] = init[str(sKend)]
        init[str(sWend)] = init[str(sWoff)] + 7864320; init[str(sXend)] = init[str(sXoff)] + 1280
        init[str(sKoff)] += rk * kst; init[str(sVoff)] += rk * kst; init[str(sRw)] = rq * 786432; init[str(sRx)] = rq * 128
        if cfg.kvperm == 4:
            init[str(sK0)] = h0 * 393216; init[str(sKend)] = init[str(sVend)] = rk
            init[str(sKoff)] = init[str(sVoff)] = h0 * 393216 + rm_base(rk) * 3072
        for r in kaddr + vaddr: init[str(r)] = 0
        for r in waddr: init[str(r)] = VS[0]
        if not cfg.fake and not cfg.pfake: ok = sim_scalar(tr, init, f"nq{nq} w{w}") and ok
    return ok

def build(cfg, name):
    WHAT[0] = cfg.whatif | (2 if cfg.pvswap else 0) | (32 if cfg.pswap else 0)
    assert cfg.kvperm == 4 and cfg.lmfma and (cfg.wb or 'sc1' in cfg.oflags)
    if cfg.cyc: BSTAMP[0] = 's_memtime'
    su = setup(cfg)
    pl = p_chunks(CS, CS + 3, None, cfg, loop=True)
    pb = p_chunks(NCH - 3, NCH - 2, None, cfg)
    if cfg.ctouch: pl.put(89, code_touch(["L_ptail"], 244, guard=(sHc, 17)))
    pt, fin = p_tail(cfg)
    cpre = [label("L_pcommon")] + stamp(cfg, 5) + [raw(".p2align 3", 'L', states=0), label("L_ploop")]
    cloop = pl.linear() + [scmp("s_cmp_lg_u32", sHc, 19), raw("s_cbranch_scc1 L_ploop")]
    cpost = [label("L_ptail")] + pb.linear() + pt.linear() + stamp(cfg, 6) + fin + finish(cfg, 7)
    parts = (cpre, cloop, cpost)
    common = cpre + cloop + cpost
    c4, t4, ti4, inf4 = variant(4, cfg, parts)
    c3, t3, ti3, inf3 = variant(3, cfg, parts)
    alltr = [("nq4", t) for t in t4] + [("nq3", t) for t in t3] + [("idle4", ti4), ("idle3", ti3)]
    for rep in range(2):
        for n, t in alltr: derive_waits(t, n)
    ok = True
    for n, t in (("nq4", t4[0]), ("nq3", t3[0]), ("idle4", ti4), ("idle3", ti3)): ok = check_hazards(t, n) and ok
    ok = check_seqs(c4 + common) and check_seqs(c3) and ok
    for k, (jmp, a18) in enumerate(((4, 19), (3, 19), (4, 11))):
        ok = sim_variant(4, t4[k], cfg, jmp, a18) and sim_variant(3, t3[k], cfg, jmp, a18) and ok
        ok = check_lds({4: t4[k], 3: t3[k]}) and ok
    for n, inf in (("nq4", inf4), ("nq3", inf3)): print(n, "model cycles:", {k: est_cycles(s if isinstance(s, list) else s.linear()) for k, s in inf.items()})
    print("common", pl.cycles(), pb.cycles(), pt.cycles())
    assert ok
    lines = [f".globl {name}", ".p2align 8", f".type {name},@function", f"{name}:"]
    lines += emit(su) + emit(c4) + emit(common) + ["L_end:", "s_endpgm", "L_v3:"] + emit(c3)
    out = []
    for l in lines: out += l.split("\n")
    return out

if __name__ == "__main__":
    print(len(build(Cfg(), "k_kernel")), "lines")
```
